```python
import torch

def _softmax(x, axis=-1):
    return torch.softmax(x, dim=axis)
def _gelu(x):
    return torch.nn.functional.gelu(x, approximate="tanh")
def _silu(x):
    return torch.nn.functional.silu(x)
def _sigmoid(x):
    return torch.sigmoid(x)
def _layernorm(x, axis=-1, eps=1e-5):
    m = x.mean(dim=axis, keepdim=True)
    v = x.var(dim=axis, keepdim=True, unbiased=False)
    return (x - m) / torch.sqrt(v + eps)
def _scatter_add(tgt, idx, src, axis=0):
    return tgt.clone().index_add_(axis, idx, src)
def _segment_sum(src, seg, n):
    out = torch.zeros((n,) + src.shape[1:], dtype=src.dtype)
    return out.index_add_(0, seg, src)
def _pad(x, pw):
    flat = tuple(v for pair in reversed(pw) for v in pair)
    return torch.nn.functional.pad(x, flat)

kernel_name = 'recurrent_scan__sliding_local_dilated__glu_gated_bilinear__prompt'

def setup_inputs():

    _w = (lambda a: (lambda t: t.to(torch.bfloat16) if t.is_floating_point() else t)(torch.as_tensor(a)))
    def _A_setup():
        B, S, D = 1, 2048, 512
        return {
            "x": _w((lambda *s: torch.randn(*s, dtype=torch.bfloat16) * 0.05)(B, S, D)),
            "wqkv": _w((lambda *s: torch.randn(*s, dtype=torch.bfloat16) * 0.2)(D, 3 * D)),
            "wo": _w((lambda *s: torch.randn(*s, dtype=torch.bfloat16) * 0.2)(D, D)),
        }
    _A_in = _A_setup()

    def _B_setup():
        B, S, D, F = 1, 2048, 512, 1792
        return {
            "x": _w((lambda *s: torch.randn(*s, dtype=torch.bfloat16) * 0.05)(B, S, D)),
            "w_gate": _w((lambda *s: torch.randn(*s, dtype=torch.bfloat16) * 0.1)(D, F) * (D ** -0.5)),
            "w_up": _w((lambda *s: torch.randn(*s, dtype=torch.bfloat16) * 0.1)(D, F) * (D ** -0.5)),
            "w_down": _w((lambda *s: torch.randn(*s, dtype=torch.bfloat16) * 0.1)(F, D) * (F ** -0.5)),
        }
    _B_in = _B_setup()

    return {
        "A_x": _A_in["x"],
        "A_wqkv": _A_in["wqkv"],
        "A_wo": _A_in["wo"],
        "B_x": _B_in["x"],
        "B_w_gate": _B_in["w_gate"],
        "B_w_up": _B_in["w_up"],
        "B_w_down": _B_in["w_down"],
    }

def reference(A_x, A_wqkv, A_wo, B_x, B_w_gate, B_w_up, B_w_down):
    def _A_ref(x, wqkv, wo):
        B, S, D = x.shape
        H = 32; Dh = D // H
        W, dil = 8, 2
        qkv = (lambda x, *d: x.permute(*d))((x @ wqkv).reshape(B, S, 3, H, Dh), 2, 0, 3, 1, 4)
        q, k, v = qkv[0], qkv[1], qkv[2]
        scale = Dh ** -0.5
        pos = torch.arange(S)
        off = torch.arange(W) * dil
        idx = pos[:, None] - off[None, :]
        mask = idx >= 0
        idx_c = torch.where(mask, idx, 0).reshape(-1)
        kg = k[:, :, idx_c, :].reshape(B, H, S, W, Dh)
        vg = v[:, :, idx_c, :].reshape(B, H, S, W, Dh)
        logits = torch.einsum("bhsd,bhswd->bhsw", q, kg) * scale
        logits = torch.where(mask[None, None, :, :], logits, -1e9)
        attn = _softmax(logits, axis=-1)
        o = torch.einsum("bhsw,bhswd->bhsd", attn, vg)
        return (lambda x, *d: x.permute(*d))(o, 0, 2, 1, 3).reshape(B, S, D) @ wo

    def _B_ref(x, w_gate, w_up, w_down):
        g = torch.einsum("bsd,df->bsf", x, w_gate)
        u = torch.einsum("bsd,df->bsf", x, w_up)
        h = g * u
        return torch.einsum("bsf,fd->bsd", h, w_down)

    x = A_x
    xn = _layernorm(x, axis=-1)
    s = _A_ref(xn, A_wqkv, A_wo)
    g = _silu(_B_ref(xn, B_w_gate, B_w_up, B_w_down))
    return x + s * g
```

```python
import re

REG = re.compile(r"^(-|\|)?(v|a|s)(\d+|\[(\d+):(\d+)\])\|?$")
TRANS = ("v_exp_", "v_log_", "v_rcp_", "v_rsq_", "v_sqrt_", "v_sin_", "v_cos_")

def regs(tok):
    tok = tok.strip()
    if tok in ("vcc", "exec"): return {(tok, 0), (tok, 1)}
    if tok in ("vcc_lo", "exec_lo"): return {(tok[:-3], 0)}
    if tok in ("vcc_hi", "exec_hi"): return {(tok[:-3], 1)}
    if tok == "m0": return {("m0", 0)}
    m = REG.match(tok)
    if not m: return set()
    f = m.group(2)
    if m.group(4) is not None:
        return {(f, i) for i in range(int(m.group(4)), int(m.group(5)) + 1)}
    return {(f, int(m.group(3)))}

class I:
    def __init__(self, text):
        self.text = text.strip()
        self.nops = 0
        t = self.text.split(";")[0].strip()
        self.is_label = t.endswith(":") or t.startswith(".") or t == ""
        self.op = ""; self.dst = set(); self.src = set(); self.kind = "none"
        self.srcC = set(); self.srcAB = set(); self.data = set()
        if self.is_label: return
        parts = t.split(None, 1)
        op = self.op = parts[0]
        ops = []
        if len(parts) > 1:
            depth = 0; cur = ""
            for ch in parts[1]:
                if ch in "[(": depth += 1
                if ch in "])": depth -= 1
                if ch == "," and depth == 0: ops.append(cur.strip()); cur = ""
                else: cur += ch
            ops.append(cur.strip())
        mods = ""
        if ops:
            last = ops[-1].split(None, 1)
            ops[-1] = last[0]
            mods = last[1] if len(last) > 1 else ""
        self.mods = mods
        R = [regs(o) for o in ops]
        U = lambda l: set().union(*l) if l else set()
        if op.startswith("v_mfma"):
            self.kind = "mfma"
            self.passes = 8 if "32x32x16" in op else 4 if ("16x16x32" in op or "16x16x16" in op) else 2 if "4x4x4" in op else None
            assert self.passes, op
            self.dst = R[0]; self.srcAB = R[1] | R[2]; self.srcC = R[3]; self.src = self.srcAB | self.srcC
        elif op.startswith("v_"):
            self.kind = "valu"
            if op.startswith("v_swap") or op.startswith("v_permlane"):
                self.dst = R[0] | R[1]; self.src = R[0] | R[1]
            elif op.startswith(("v_add_co", "v_sub_co", "v_addc_co", "v_subb_co", "v_mad_u64")):
                self.dst = R[0] | R[1]; self.src = U(R[2:])
            elif op.startswith("v_nop"):
                pass
            else:
                self.dst = R[0]; self.src = U(R[1:])
                if op.startswith(("v_fmac", "v_dot2c", "v_writelane")) or "dpp" in op or "row_" in mods or "quad_perm" in mods:
                    self.src |= R[0]
                if op.startswith("v_cndmask") and len(ops) == 3: self.src |= regs("vcc")
            self.dpp = ("dpp" in op) or ("row_" in mods) or ("quad_perm" in mods)
            self.trans = op.startswith(TRANS)
        elif op.startswith(("buffer_", "global_")):
            self.kind = "vmem"
            toks = mods.split()
            if "lds" in toks or "_lds_" in op:
                self.lds = True; self.src = U(R) | regs("m0")
            elif "load" in op:
                self.dst = R[0]; self.src = U(R[1:])
            elif "atomic" in op:
                self.src = U(R)
                if "sc0" in toks: self.dst = R[0]
            elif op.startswith("buffer_store"):
                self.data = R[0]; self.src = U(R)
            elif op.startswith("global_store"):
                self.data = R[1]; self.src = U(R)
            else:
                self.src = U(R)
        elif op.startswith("ds_"):
            self.kind = "ds"
            if op.startswith("ds_read") or op.startswith("ds_bpermute") or op.startswith("ds_swizzle"):
                self.dst = R[0]; self.src = U(R[1:])
            else:
                self.src = U(R)
        elif op.startswith(("s_load", "s_buffer_load", "s_memtime", "s_memrealtime")):
            self.kind = "smem"; self.dst = R[0]; self.src = U(R[1:])
        elif op.startswith("s_"):
            self.kind = "salu"
            if op.startswith(("s_cmp", "s_waitcnt", "s_barrier", "s_branch", "s_cbranch", "s_nop", "s_setprio", "s_sleep", "s_endpgm", "s_bitcmp", "s_setpc")):
                self.src = U(R)
            else:
                self.dst = R[0]; self.src = U(R[1:])
                if "saveexec" in op: self.dst |= regs("exec"); self.src |= regs("exec")
        else:
            raise ValueError("unknown op " + t)
    def states(self):
        if self.is_label: return 0
        if self.op == "s_nop": return int(self.text.split()[1], 0) + 1
        return 1
    def lines(self):
        out = []
        n = self.nops
        while n > 0:
            k = min(n, 16); out.append(f"  s_nop {k-1}"); n -= k
        out.append(("" if self.is_label else "  ") + self.text)
        return out

class Loop:
    def __init__(self, body, trips): self.body = body; self.trips = trips

def mk(text):
    return [I(l) for l in text.strip("\n").split("\n") if l.strip()]

def flatten(code):
    out = []
    for c in code:
        if isinstance(c, Loop): out += flatten(c.body)
        elif isinstance(c, list): out += flatten(c)
        else: out.append(c)
    return out

def trace(code):
    out = []
    for c in code:
        if isinstance(c, Loop):
            b = trace(c.body)
            out += b * c.trips
        elif isinstance(c, list): out += trace(c)
        else: out.append(c)
    return out

def text(code):
    return "\n".join(l for i in flatten(code) for l in i.lines()) + "\n"

def isv(r): return r[0] in ("v", "a")
def iss(r): return r[0] in ("s", "vcc")

def need(p, c):
    n = 0
    if p.kind == "valu":
        vd = {r for r in p.dst if isv(r)}; sd = {r for r in p.dst if iss(r)}
        if c.kind == "mfma" and vd & c.src: n = max(n, 2)
        if c.kind == "valu":
            if vd & c.src:
                if c.op.startswith("v_permlane") or c.dpp: n = max(n, 2)
                if c.op.startswith(("v_readfirstlane", "v_readlane")): n = max(n, 1)
                if p.trans and not c.trans: n = max(n, 1)
            if sd & c.src: n = max(n, 4 if c.op.startswith(("v_readlane", "v_writelane")) else 2)
            if ("exec", 0) in p.dst: n = max(n, 5)
        if c.kind == "vmem" and sd & c.src: n = max(n, 5)
        if c.kind in ("salu", "smem") and sd & c.src: n = max(n, 1)
        if p.trans and c.kind in ("vmem", "ds", "mfma") and vd & c.src: n = max(n, 2 if c.kind == "mfma" else 1)
    elif p.kind == "mfma":
        P = {2: 0, 4: 1, 8: 2}[p.passes]
        if c.kind == "mfma":
            if p.dst & c.srcAB: n = max(n, (5, 8, 12)[P])
            if p.dst & c.srcC:
                if p.dst == c.srcC and p.passes == c.passes: n = max(n, (2, 0, 0)[P])
                else: n = max(n, (4, 6, 10)[P])
            if p.dst & c.dst and not (p.dst == c.srcC): n = max(n, (5, 8, 12)[P])
        elif c.kind in ("valu", "vmem", "ds"):
            if p.dst & (c.src | c.dst): n = max(n, (5, 8, 12)[P])
            if c.kind == "valu" and p.srcC & c.dst: n = max(n, (1, 3, 7)[P])
    elif p.kind == "vmem":
        if p.data and len(p.data) >= 3 and p.data & c.dst: n = max(n, 2 if c.kind == "valu" else 1)
    elif p.kind == "salu":
        if ("m0", 0) in p.dst and c.kind == "vmem" and getattr(c, "lds", False): n = max(n, 1)
    return n

def fix_hazards(code, verbose=False):
    total = 0
    for _ in range(50):
        tr = [i for i in trace(code) if not i.is_label]
        changed = False
        for k, c in enumerate(tr):
            dist = c.nops
            j = k - 1
            while j >= 0 and dist < 20:
                p = tr[j]
                q = need(p, c)
                if q > dist:
                    if verbose: print(f"hazard: [{p.text}] -> [{c.text}] need {q} have {dist}")
                    c.nops += q - dist; total += q - dist; changed = True
                    dist = q
                dist += p.states() + p.nops
                j -= 1
        if not changed: break
    return total

def check_waits(code, name=""):
    tr = [i for i in trace(code) if not i.is_label]
    vm = []; lg = []
    errs = 0
    maxvm = 0
    for c in tr:
        if c.op == "s_waitcnt":
            m = re.search(r"vmcnt\((\d+)\)", c.text)
            if m:
                n = int(m.group(1)); vm = vm[len(vm) - n:] if n < len(vm) else vm
                if n == 0: vm = []
            m = re.search(r"lgkmcnt\((\d+)\)", c.text)
            if m:
                n = int(m.group(1))
                if n == 0: lg = []
                elif any(p.kind == "smem" for p in lg): pass
                elif n < len(lg): lg = lg[len(lg) - n:]
            continue
        touch = c.src | c.dst
        for q, nm in ((vm, "vm"), (lg, "lgkm")):
            for p in q:
                if p.dst & touch and not (c.kind == p.kind == "ds" and not (p.dst & c.src)):
                    print(f"{name} WAIT ERROR ({nm}): [{p.text}] pending at [{c.text}]"); errs += 1
        if c.kind == "vmem": vm.append(c); maxvm = max(maxvm, len(vm))
        if c.kind in ("ds", "smem"): lg.append(c)
    return errs, maxvm

def weave(main, lds, oth=(), per_gap=2, lds_start=0):
    lds = list(lds); oth = list(oth)
    out = []
    n = len(main)
    size = lambda x: len([i for i in x if not i.is_label]) if isinstance(x, list) else (0 if x.is_label else 1)
    tot = sum(size(x) for x in oth); done = 0
    for idx, m in enumerate(main):
        out.append(m)
        used = 0
        if lds and idx >= lds_start:
            out.append(lds.pop(0)); used = 1
        target = -(-tot * (idx + 1) // n)
        while oth and used < per_gap and done < target:
            x = oth.pop(0); k = size(x)
            out += x if isinstance(x, list) else [x]
            used += k; done += k
    for x in lds + oth: out += x if isinstance(x, list) else [x]
    return out
```

```python
import sys, argparse
from fw import *
KN = "recurrent_scan__sliding_local_dilated__glu_gated_bilinear__prompt"

SLOT = 30720
XB, QB, GU64, GU32, GU16 = 0, 9216, 15360, 23552, 27648
MISC = 153600
CS = MISC
STATL = MISC + 1280
LDS_BYTES = 163840
RBS = 144 * 1024
WS_STAT = 0x900000
WS_FLAG = 0x910000
WS_SIZE = 0x920000
STAMP = 200 << 20
sX, sQ, sG, sU, sWO, sWD, sOUT, sWS, sDBG, sSEL1, sSEL2 = [f"s[{4*i}:{4*i+3}]" for i in range(1, 12)]
def srd(i): return 4 * i
sW, sM, sN, sR, sC = "s68", "s69", "s70", "s71", "s72"
sKx, sKq, sKg, sK6, sInc6 = "s73", "s74", "s75", "s76", "s77"
sOff0, sOff2, sOff6, sOff7 = "s78", "s79", "s80", "s81"
sT0, sT1, sT2, sT3 = "s82", "s83", "s84", "s85"
sNon = "s[86:87]"; sNonL, sNonH = "s86", "s87"
sUo, sUh0, sUh1, sUh2, sU6 = "s88", "s89", "s90", "s91", "s92"
sEx = "s[94:95]"
sB = ["s48", "s49", "s50", "s51"]
sWB = ["s52", "s53", "s54", "s55"]
sTH, sRH = "s56", "s57"
sCnt = "s58"
sSt = lambda k: f"s[{60+0}:{61+0}]"
vL = "v1"
vD0, vD1, vG64, vD4, vD5, vD6, vD7, vB2 = [f"v{i}" for i in range(8, 16)]
RD = 16
BIAS = 36
GAT = 48
NON = 56
SX = 60
ACC = 88
aQ = lambda i: 88 + 4 * i
aK = lambda i: 104 + 4 * i
aV = lambda i: 124 + 4 * i
aG = lambda j, i: 144 + 32 * j + 4 * i
aU = lambda j, i: 160 + 32 * j + 4 * i
aG6 = lambda i: 240 + 4 * i
aU6 = lambda i: 248 + 4 * i
V4 = lambda r: f"v[{r}:{r+3}]"
V2 = lambda r: f"v[{r}:{r+1}]"
A4 = lambda r: f"a[{r}:{r+3}]"
A2 = lambda r: f"a[{r}:{r+1}]"
CSACC = 232
ONES = 252
fA = lambda st, i: 64 * st + 4 * i
fB = lambda st, j: 64 * st + 20 + 4 * j
phys = lambda s: (s + 4) % 5

class G:
    def __init__(self, opt):
        self.opt = opt
        self.nstamp = 0
    def stamp(self, k):
        if not self.opt.stamps: return []
        return mk(f"s_memrealtime s[{96}:{97}]\ns_waitcnt lgkmcnt(0)\nv_writelane_b32 v7, s96, {k}")

    def prologue(self):
        o = self.opt
        c = mk(f"""
s_load_dwordx16 s[48:63], s[0:1], 0
s_load_dwordx4 s[64:67], s[0:1], 64
s_cmp_ge_u32 s2, 256
s_cbranch_scc1 L_end
v_lshrrev_b32 v2, 6, v0
v_and_b32 {vL}, 63, v0
s_and_b32 {sT0}, s2, 7
v_readfirstlane_b32 {sW}, v2
s_lshr_b32 {sT1}, s2, 3
s_lshr_b32 {sM}, {sT0}, 2
s_lshl_b32 {sM}, {sM}, 3
s_lshr_b32 {sT2}, {sT1}, 2
s_add_u32 {sM}, {sM}, {sT2}
s_and_b32 {sN}, {sT0}, 3
s_lshl_b32 {sN}, {sN}, 2
s_and_b32 {sT2}, {sT1}, 3
s_add_u32 {sN}, {sN}, {sT2}
s_lshl_b32 {sR}, {sT0}, 2
s_lshr_b32 {sT2}, {sT1}, 3
s_add_u32 {sR}, {sR}, {sT2}
s_and_b32 {sC}, {sT1}, 7
""")
        if o.stamps:
            c += mk("v_mov_b32 v7, 0") + mk("s_memrealtime s[98:99]")
        c += mk(f"""
; x pattern
v_lshrrev_b32 v2, 2, {vL}
v_lshrrev_b32 v3, 4, {vL}
v_sub_u32 v4, 0, v3
v_xor_b32 v4, v4, {vL}
v_and_b32 v4, 3, v4
v_lshlrev_b32 v4, 4, v4
s_lshl_b32 {sT0}, {sM}, 7
s_lshl_b32 {sT1}, {sW}, 5
s_add_u32 {sT1}, {sT1}, {sT0}
v_add_u32 v5, {sT1}, v2
v_lshl_add_u32 {vD0}, v5, 10, v4
v_add_u32 {vD1}, 0x4000, {vD0}
s_lshl_b32 {sT1}, {sW}, 2
s_add_u32 {sT1}, {sT1}, {sT0}
s_sub_u32 {sT1}, {sT1}, 16
v_add_u32 v5, {sT1}, v3
v_max_i32 v5, 0, v5
s_sub_u32 {sT2}, 0, {sW}
v_xor_b32 v4, {sT2}, v2
v_and_b32 v4, 3, v4
v_lshlrev_b32 v4, 4, v4
v_and_b32 v6, 3, {vL}
v_lshl_add_u32 v4, v6, 2, v4
v_lshl_add_u32 {vD7}, v5, 10, v4
; stats rows: 128m + 8n + 2w
s_lshl_b32 {sT1}, {sN}, 3
s_add_u32 {sT1}, {sT1}, {sT0}
s_lshl_b32 {sT2}, {sW}, 1
s_add_u32 {sT1}, {sT1}, {sT2}
s_lshl_b32 {sT3}, {sT1}, 10
v_lshlrev_b32 v{SX+16}, 4, {vL}
v_lshrrev_b32 v5, 3, {vL}
s_and_b32 {sT2}, {sW}, 1
s_lshl_b32 {sT2}, {sT2}, 2
v_lshrrev_b32 v4, 3, {vL}
v_and_b32 v4, 2, v4
v_or_b32 v4, {sT2}, v4
v_xor_b32 v4, v4, {vL}
v_and_b32 v4, 7, v4
v_lshlrev_b32 v4, 4, v4
s_lshl_b32 {sT2}, {sW}, 3
v_add_u32 v6, {sT2}, v5
s_movk_i32 {sT0}, 3584
s_lshl_b32 {sT2}, {sN}, 7
v_mad_u32_u24 v4, v6, {sT0}, v4
v_add_u32 {vG64}, {sT2}, v4
v_lshrrev_b32 v4, 2, {vL}
v_and_b32 v4, 4, v4
v_xor_b32 v4, v4, {vL}
v_and_b32 v4, 7, v4
v_lshlrev_b32 v4, 4, v4
v_lshl_add_u32 v4, v5, 10, v4
s_lshl_b32 {sT2}, {sC}, 7
v_add_u32 {vB2}, {sT2}, v4
v_lshrrev_b32 v4, 4, {vL}
v_and_b32 v4, 2, v4
v_xor_b32 v4, v4, {vL}
v_and_b32 v4, 3, v4
v_lshlrev_b32 v4, 4, v4
s_and_b32 {sT2}, {sW}, 1
s_lshl_b32 {sT2}, {sT2}, 4
v_add_u32 v6, {sT2}, v2
s_lshl_b32 {sT2}, {sN}, 6
v_add_u32 v4, {sT2}, v4
v_mad_u32_u24 {vD4}, v6, {sT0}, v4
v_add_u32 {vD4}, 0x800, {vD4}
s_movk_i32 {sT1}, 3072
v_mad_u32_u24 {vD5}, v6, {sT1}, v4
v_add_u32 {vD6}, 0x800, {vD5}
s_lshr_b32 {sT2}, {sW}, 1
s_lshl_b32 {sT2}, {sT2}, 10
v_add_u32 {vD5}, {sT2}, {vD5}
v_lshrrev_b32 v5, 1, {vL}
v_and_b32 v6, 0x13, v5
v_and_b32 v4, 4, v5
v_lshl_or_b32 v6, v4, 1, v6
v_lshrrev_b32 v4, 1, v5
v_and_b32 v4, 4, v4
v_or_b32 v6, v6, v4
v_and_b32 v4, 1, {vL}
v_lshlrev_b32 v4, 4, v4
v_mad_u32_u24 v4, v6, {sT0}, v4
s_lshl_b32 {sT2}, {sN}, 5
s_add_u32 {sT2}, {sT2}, 3072
v_add_u32 v4, {sT2}, v4
s_cmp_ge_u32 {sW}, 2
s_cselect_b64 vcc, -1, 0
v_cndmask_b32 {vD6}, {vD6}, v4, vcc
; LDS dest offsets
s_lshl_b32 {sT2}, {sW}, 10
s_lshl_b32 {sOff0}, {sT2}, 1
s_add_u32 {sOff0}, {sOff0}, 1024
s_add_u32 {sOff2}, {sT2}, {GU64}
s_cmp_ge_u32 {sW}, 2
s_cselect_b32 {sOff6}, {GU16 - 2048 - QB - 4096}, 0
s_cselect_b32 {sInc6}, {32*512}, 0
s_add_u32 {sOff6}, {sOff6}, {sT2}
s_add_u32 {sOff6}, {sOff6}, {QB + 4096}
s_add_u32 {sInc6}, {sInc6}, {32*3072}
s_lshl_b32 {sOff7}, {sW}, 8
s_waitcnt lgkmcnt(0)
""")
        def mksrd(i, p, size):
            b = srd(i)
            return mk(f"s_mov_b32 s{b}, s{p}\ns_mov_b32 s{b+1}, s{p+1}\ns_mov_b32 s{b+2}, {size}\ns_mov_b32 s{b+3}, 0x20000")
        c += mksrd(1, 48, 2048 * 1024)
        c += mk(f"""
buffer_load_dwordx4 v[{SX}:{SX+3}], v{SX+16}, {sX}, {sT3} offen
buffer_load_dwordx4 v[{SX+4}:{SX+7}], v{SX+16}, {sX}, {sT3} offen offset:1024
""")
        c += mksrd(2, 50, 512 * 3072) + mksrd(3, 56, 512 * 3584) + mksrd(4, 58, 512 * 3584)
        c += mk(f"""
s_cmp_ge_u32 {sW}, 2
s_cselect_b32 s40, s58, s56
s_cselect_b32 s41, s59, s57
s_mov_b32 s42, {512*3584}
s_mov_b32 s43, 0x20000
s_cselect_b32 s46, s42, s10
s_cselect_b32 s44, s56, s50
s_cselect_b32 s45, s57, s51
s_mov_b32 s47, 0x20000
s_cmp_eq_u32 {sW}, 3
s_cselect_b32 s44, s58, s44
s_cselect_b32 s45, s59, s45
""")
        c += mk(f"""
s_getpc_b64 s[92:93]
L_pc:
s_lshr_b32 {sT0}, s2, 3
s_and_b32 {sT0}, {sT0}, 7
s_lshl_b32 {sT0}, {sT0}, 13
s_min_u32 {sT0}, {sT0}, L_codeend - L_pc - 8192
s_add_u32 s92, s92, {sT0}
s_addc_u32 s93, s93, 0
v_lshlrev_b32 v2, 4, v0
v_add_u32 v3, 0x1000, v2
global_load_dwordx4 v[{SX+8}:{SX+11}], v2, s[92:93]
global_load_dwordx4 v[{SX+12}:{SX+15}], v3, s[92:93]
s_mov_b32 {sKx}, 0
s_mov_b32 {sKq}, 0
s_mov_b32 {sKg}, 0
s_mov_b32 {sK6}, 0
s_mov_b32 {sT0}, {phys(0)*SLOT}
s_mov_b32 {sCnt}, 0
L_pro:
""")
        body = self.dma_stage(sT0) + mk(f"""
s_add_u32 {sT0}, {sT0}, {SLOT}
s_cmp_eq_u32 {sT0}, {5*SLOT}
s_cselect_b32 {sT0}, 0, {sT0}
s_add_u32 {sCnt}, {sCnt}, 1
s_cmp_lt_u32 {sCnt}, 5
s_cbranch_scc1 L_pro
""")
        c.append(Loop(body, 5))
        c += mksrd(5, 52, 512 * 1024) + mksrd(6, 60, 1792 * 1024) + mksrd(7, 62, 2048 * 1024)
        c += mksrd(8, 66, WS_SIZE) + mksrd(9, 64, 256)
        c += mk(f"""
s_or_b32 {sT0}, s2, {sW}
s_cmp_lg_u32 {sT0}, 0
s_cbranch_scc1 L_nononce
s_memrealtime s[92:93]
s_waitcnt lgkmcnt(0)
s_or_b32 s92, s92, 1
v_mov_b32 v2, s92
v_mov_b32 v3, s93
v_mov_b32 v4, 0
s_mov_b64 exec, 1
buffer_store_dwordx2 v[2:3], v4, {sDBG}, 0 offen sc1
s_mov_b64 exec, -1
L_nononce:
""")
        c += mk(f"""
s_and_b32 {sTH}, {sW}, 1
s_lshr_b32 {sRH}, {sW}, 1
v_lshrrev_b32 v2, 4, {vL}
v_bfe_u32 v3, {vL}, 2, 2
v_and_b32 v4, 3, {vL}
; A: (l&15)*64 + ((g ^ ((-(c>>2))&3))*16) + rh*4096
v_sub_u32 v5, 0, v3
v_xor_b32 v5, v5, v2
v_and_b32 v5, 3, v5
v_lshlrev_b32 v5, 4, v5
v_and_b32 v6, 15, {vL}
v_lshl_add_u32 v5, v6, 6, v5
s_lshl_b32 {sT0}, {sRH}, 12
v_add_u32 v{RD}, {sT0}, v5
; B64 base (t=0): (g>>1)*1024 + (8*(g&1)+r)*64 + (g&1)*32 + c4*8
v_lshrrev_b32 v5, 1, v2
v_lshlrev_b32 v5, 10, v5
v_and_b32 v6, 1, v2
v_mul_u32_u24 v{RD+5}, 544, v6
v_add_u32 v5, v5, v{RD+5}
v_lshl_add_u32 v5, v3, 6, v5
v_lshl_add_u32 v5, v4, 3, v5
s_lshl_b32 {sT0}, {sTH}, 5
v_xor_b32 v{RD+1}, {sT0}, v5
; U64 base (t=0): g*1024 + r*128 + (((r>>1)&1)|((g&1)<<1))*32 + c4*8
v_lshlrev_b32 v{RD+2}, 10, v2
v_lshl_add_u32 v{RD+2}, v3, 7, v{RD+2}
v_lshl_add_u32 v{RD+2}, v4, 3, v{RD+2}
v_lshrrev_b32 v{RD+5}, 1, v3
v_lshl_or_b32 v{RD+5}, v6, 1, v{RD+5}
v_lshl_add_u32 v{RD+2}, v{RD+5}, 5, v{RD+2}
v_xor_b32 v{RD+3}, 32, v{RD+2}
v_xor_b32 v{RD+4}, 64, v{RD+2}
s_cmp_eq_u32 {sTH}, 1
s_cselect_b64 vcc, -1, 0
s_cselect_b32 {sT0}, 96, 0
v_xor_b32 v{RD+2}, {sT0}, v{RD+2}
v_cndmask_b32 v{RD+3}, v{RD+3}, v5, vcc
v_cndmask_b32 v{RD+4}, v{RD+4}, v{RD+1}, vcc
; C16: (16*(g>>1) + 4*(g&1) + r)*32 + c4*8
v_lshrrev_b32 v5, 1, v2
v_lshlrev_b32 v5, 9, v5
v_lshl_add_u32 v5, v6, 7, v5
v_lshl_add_u32 v5, v3, 5, v5
v_lshl_add_u32 v{RD+5}, v4, 3, v5
""")
        for k in range(6):
            c += mk(f"v_add_u32 v{RD+6+k}, {2*SLOT}, v{RD+k}\nv_add_u32 v{RD+12+k}, {4*SLOT}, v{RD+k}")
        c += mk(f"""
v_and_b32 v6, 15, {vL}
v_lshlrev_b32 v2, 2, v2
v_sub_u32 v2, v6, v2
v_mov_b32 v3, 0xff800000
""")
        for r in range(4):
            c += mk(f"""
v_subrev_u32 v4, {r}, v2
v_and_b32 v5, 0x80000001, v4
v_cmp_eq_u32 vcc, 0, v5
v_mov_b32 v6, 0x80000000
v_cndmask_b32 v{BIAS+4+r}, v3, 0, vcc
v_cmp_eq_u32 vcc, v6, v5
v_cndmask_b32 v{BIAS+r}, v3, 0, vcc
""".replace(f"v_cndmask_b32 v{BIAS+4+r}, v3, 0, vcc", f"v_cndmask_b32_e64 v{BIAS+4+r}, v3, 0, vcc").replace(f"v_cndmask_b32 v{BIAS+r}, v3, 0, vcc", f"v_cndmask_b32_e64 v{BIAS+r}, v3, 0, vcc"))
        c += mk(f"""
s_or_b32 {sT0}, {sM}, {sRH}
s_cmp_eq_u32 {sT0}, 0
s_cselect_b64 vcc, -1, 0
v_mov_b32 v4, 0x3f803f80
""")
        for r in range(4):
            c += mk(f"v_cndmask_b32 v{BIAS+8+r}, v{BIAS+r}, v3, vcc\nv_accvgpr_write_b32 a{ONES+r}, v4\nv_mov_b32 v{52+r}, 0")
        for b in range(88, 248, 16):
            c += mk(f"v_mfma_f32_32x32x16_bf16 v[{b}:{b+15}], v[52:55], v[52:55], 0")
        c += mk(f"v_mfma_f32_16x16x32_bf16 v[248:251], v[52:55], v[52:55], 0\nv_mfma_f32_16x16x32_bf16 v[252:255], v[52:55], v[52:55], 0")
        for k in range(5):
            c += mk(f"v_mfma_f32_16x16x32_bf16 {A4(CSACC+4*k)}, v[52:55], v[52:55], 0")
        c += mk(f"""
s_lshl_b32 {sT0}, {sM}, 2
s_lshl_b32 {sT1}, {sRH}, 1
s_add_u32 {sT0}, {sT0}, {sT1}
s_mul_i32 {sT0}, {sT0}, 144
s_lshl_b32 {sT1}, {sN}, 1
s_add_u32 {sUo}, {sT0}, {sT1}
s_add_u32 {sUo}, {sUo}, {sTH}
s_lshl_b32 {sT2}, {sN}, 2
s_add_u32 {sT2}, {sT2}, {sT0}
s_add_u32 {sT2}, {sT2}, 32
s_add_u32 {sT1}, {sT1}, {sT0}
s_add_u32 {sT1}, {sT1}, 96
s_cmp_eq_u32 {sTH}, 1
s_cselect_b32 {sT3}, 3, 0
s_add_u32 {sUh0}, {sT2}, {sT3}
s_add_u32 {sT2}, {sT2}, 1
s_cmp_eq_u32 {sTH}, 1
s_cselect_b32 {sUh1}, {sT1}, {sT2}
s_add_u32 {sUh2}, {sUh1}, 1
s_mul_i32 {sT3}, {sTH}, 144
s_add_u32 {sU6}, {sT0}, {sT3}
s_add_u32 {sU6}, {sU6}, {sN}
s_add_u32 {sU6}, {sU6}, 128
s_lshl_b32 {sUo}, {sUo}, 10
s_lshl_b32 {sUh0}, {sUh0}, 10
s_lshl_b32 {sUh1}, {sUh1}, 10
s_lshl_b32 {sUh2}, {sUh2}, 10
s_lshl_b32 {sU6}, {sU6}, 10
s_cmp_eq_u32 {sW}, 1
s_cbranch_scc1 L_w1
s_cmp_eq_u32 {sW}, 2
s_cbranch_scc1 L_w2
s_cmp_eq_u32 {sW}, 3
s_cbranch_scc1 L_w3
""")
        return c

    def dma_stage(self, base):
        b = base
        return mk(f"""
s_add_u32 m0, {sOff0}, {b}
buffer_load_dwordx4 {vD0}, {sX}, {sKx} offen lds
s_add_u32 m0, m0, 1024
buffer_load_dwordx4 {vD1}, {sX}, {sKx} offen lds
s_add_u32 m0, {sOff2}, {b}
buffer_load_dwordx4 {vG64}, {sG}, {sKg} offen lds
s_add_u32 m0, m0, 4096
buffer_load_dwordx4 {vG64}, {sU}, {sKg} offen lds
s_add_u32 m0, m0, {GU32 - GU64 - 4096}
buffer_load_dwordx4 {vD4}, {sSEL1}, {sKg} offen lds
s_sub_u32 m0, m0, {GU32 - QB}
buffer_load_dwordx4 {vD5}, {sQ}, {sKq} offen lds
s_add_u32 m0, {sOff6}, {b}
buffer_load_dwordx4 {vD6}, {sSEL2}, {sK6} offen lds
s_add_u32 m0, {sOff7}, {b}
buffer_load_dword {vD7}, {sX}, {sKx} offen lds
s_add_u32 {sKx}, {sKx}, 64
s_add_u32 {sKg}, {sKg}, {32*3584}
s_add_u32 {sKq}, {sKq}, {32*3072}
s_add_u32 {sK6}, {sK6}, {sInc6}
""")

    def reads(self, w, stage):
        th = w & 1
        st = stage & 1
        p = phys(stage)
        rs = RD + 6 * (p // 2); ib = (p % 2) * SLOT
        out = []
        def tr(j, reg, off, second):
            return [I(f"ds_read_b64_tr_b16 {A2(fB(st, j))}, v{rs+reg} offset:{ib+off}"),
                    I(f"ds_read_b64_tr_b16 {A2(fB(st, j)+2)}, v{rs+reg} offset:{ib+off+second}")]
        for i in range(5):
            out.append(I(f"ds_read_b128 {A4(fA(st, i))}, v{rs} offset:{ib+1024*i}"))
        for mat in range(3):
            out += tr(mat, 1, QB + 2048 * mat, 256)
        for j in range(3):
            if th == 0 or j == 0:
                out += tr(3 + 2 * j, 2 + j, GU64, 512) + tr(4 + 2 * j, 2 + j, GU64 + 4096, 512)
            else:
                out += tr(3 + 2 * j, 2 + j, GU32, 256) + tr(4 + 2 * j, 2 + j, GU32 + 2048, 256)
        out += tr(9, 5, GU16, 256) + tr(10, 5, GU16 + 1024, 256)
        return out

    def mfmas(self, w, stage):
        th = w & 1; rh = w >> 1
        st = stage & 1
        M = "v_mfma_f32_16x16x32_bf16"
        out = []
        def T(d, j, i): out.append(I(f"{M} {V4(d)}, {A4(fB(st, j))}, {A4(fA(st, i))}, {V4(d)}"))
        for i in range(4): T(aQ(i), 0, i + 1)
        for i in range(5): T(aK(i), 1, i)
        for i in range(5): out.append(I(f"{M} {V4(aV(i))}, {A4(fA(st, i))}, {A4(fB(st, 2))}, {V4(aV(i))}"))
        for j in range(3):
            for i in range(4): T(aG(j, i), 3 + 2 * j, i + 1)
            for i in range(4): T(aU(j, i), 4 + 2 * j, i + 1)
        for i in range(2): T(aG6(i), 9, 1 + 2 * th + i)
        for i in range(2): T(aU6(i), 10, 1 + 2 * th + i)
        cs = [0, 1, 2, 3, 4] if rh == 0 else [5, 6, 7, 8, 9 + th]
        for k, j in enumerate(cs):
            d = A4(CSACC + 4 * k)
            if j == 2: out.append(I(f"{M} {d}, {A4(ONES)}, {A4(fB(st, j))}, {d}"))
            else: out.append(I(f"{M} {d}, {A4(fB(st, j))}, {A4(ONES)}, {d}"))
        return out

    def b2row(self, w, i):
        if i < 8: return sWO, 128 * w + 16 * i
        if i < 24: return sWD, 256 * w + 16 * (i - 8)
        if i < 32: return sWD, 1024 + 128 * w + 16 * (i - 24)
        return sWD, 1536 + 64 * w + 16 * (i - 32)

    def b2_dma(self, w, j):
        out = []
        for q in range(15 * j, min(15 * j + 15, 72)):
            if q % 4 != w: continue
            i = q // 4
            s, row = self.b2row(w, i)
            for blk in range(2):
                out += mk(f"s_mov_b32 {sT0}, {(row + 8*blk) * 1024}\ns_mov_b32 m0, {q*2048 + blk*1024}\nbuffer_load_dwordx4 {vB2}, {s}, {sT0} offen lds")
        return out

    def stats_compute(self):
        a = []; b = []
        def row(x, e, t):
            L = []
            for k in range(4):
                L.append(f"v_lshlrev_b32 v{e+2*k}, 16, v{x+k}")
                L.append(f"v_and_b32 v{e+2*k+1}, 0xffff0000, v{x+k}")
            L += [f"v_add_f32 v{x}, v{e}, v{e+1}", f"v_add_f32 v{x+1}, v{e+2}, v{e+3}", f"v_add_f32 v{x+2}, v{e+4}, v{e+5}", f"v_add_f32 v{x+3}, v{e+6}, v{e+7}",
                  f"v_add_f32 v{x}, v{x}, v{x+1}", f"v_add_f32 v{x+2}, v{x+2}, v{x+3}", f"v_add_f32 v{x}, v{x}, v{x+2}"]
            def red(r):
                R = []
                for sh in (8, 4, 2, 1):
                    R.append(f"v_add_f32_dpp v{r}, v{r}, v{r} row_ror:{sh} row_mask:0xf bank_mask:0xf")
                for p in ("16", "32"):
                    R += [f"v_mov_b32 v{r+1}, v{r}", f"v_permlane{p}_swap_b32 v{r}, v{r+1}", f"v_add_f32 v{r}, v{r}, v{r+1}"]
                return R
            L += red(x)
            L.append(f"v_mul_f32 v{t+1}, {1.0/512!r}, v{x}".replace("0.001953125", "0x3b000000"))
            for k in range(8): L.append(f"v_sub_f32 v{e+k}, v{e+k}, v{t+1}")
            L += [f"v_mul_f32 v{x}, v{e}, v{e}", f"v_mul_f32 v{x+1}, v{e+1}, v{e+1}"]
            for k in range(2, 8): L.append(f"v_fmac_f32 v{x+(k&1)}, v{e+k}, v{e+k}")
            L.append(f"v_add_f32 v{x}, v{x}, v{x+1}")
            L += red(x)
            L += [f"v_mov_b32 v{x+1}, 0x3727c5ac", f"v_fmac_f32 v{x+1}, 0x3b000000, v{x}", f"v_rsq_f32 v{t}, v{x+1}"]
            return L
        a = row(SX, SX + 8, SX + 24); b = row(SX + 4, SX + 16, SX + 26)
        out = []
        for p, q in zip(a, b): out += [I(p), I(q)]
        return out

    def publish(self):
        return mk(f"""
v_readfirstlane_b32 {sNonL}, v{NON}
v_readfirstlane_b32 {sNonH}, v{NON+1}
v_cmp_eq_u32 vcc, 1, {vL}
s_lshl_b32 {sT1}, {sM}, 7
s_lshl_b32 {sT2}, {sN}, 3
s_cmp_eq_u32 {sNonL}, 0
s_cbranch_scc1 L_slow_nonce{{w}}
L_back_nonce{{w}}:
v_cndmask_b32 v{SX}, v{SX+24}, v{SX+26}, vcc
v_cndmask_b32 v{SX+1}, v{SX+25}, v{SX+27}, vcc
v_mov_b32 v{SX+2}, {sNonL}
v_mov_b32 v{SX+3}, {sNonH}
s_add_u32 {sT1}, {sT1}, {sT2}
s_lshl_b32 {sT2}, {sW}, 1
s_add_u32 {sT1}, {sT1}, {sT2}
s_lshl_b32 {sT1}, {sT1}, 4
s_add_u32 {sT1}, {sT1}, {WS_STAT}
v_lshlrev_b32 v{SX+4}, 4, {vL}
v_cmp_lt_u32 vcc, 1, {vL}
v_mov_b32 v{SX+5}, 0x80000000
v_cndmask_b32 v{SX+4}, v{SX+4}, v{SX+5}, vcc
buffer_store_dwordx4 v[{SX}:{SX+3}], v{SX+4}, {sWS}, {sT1} offen sc1
""")

    def gather_addr(self):
        return mk(f"""
s_lshl_b32 {sT1}, {sM}, 7
s_lshl_b32 {sT2}, {sRH}, 6
s_add_u32 {sT1}, {sT1}, {sT2}
s_sub_u32 {sT2}, {sT1}, 16
v_add_u32 v{SX}, {sT2}, {vL}
v_max_i32 v{SX}, 0, v{SX}
v_lshlrev_b32 v{SX}, 4, v{SX}
s_add_u32 {sT1}, {sT1}, 48
v_and_b32 v{SX+1}, 15, {vL}
v_add_u32 v{SX+1}, {sT1}, v{SX+1}
v_lshlrev_b32 v{SX+1}, 4, v{SX+1}
s_mov_b32 {sT3}, {WS_STAT}
""")
    def gather_load(self):
        return mk(f"""
buffer_load_dwordx4 v[{GAT}:{GAT+3}], v{SX}, {sWS}, {sT3} offen sc1
buffer_load_dwordx4 v[{GAT+4}:{GAT+7}], v{SX+1}, {sWS}, {sT3} offen sc1
""")

    def wave_code(self, w):
        o = self.opt
        th = w & 1; rh = w >> 1
        c = mk(f"L_w{w}:") if w else []
        vm = [("pre", 0)] * 4 + [("st", s) for s in range(5) for _ in range(8)]
        def waitfor(pred):
            idx = max([k for k, t in enumerate(vm) if pred(t)], default=-1)
            return len([t for t in vm[idx + 1:] if t[0] in ("st", "b2")])
        n = waitfor(lambda t: t == ("st", 0))
        c += mk(f"s_waitcnt vmcnt({n})\ns_barrier")
        c += self.stamp(1)
        c += self.reads(w, 0)
        stats = self.stats_compute()
        third = -(-len(stats) // 6) * 2
        for s in range(16):
            if s < 15:
                n = waitfor(lambda t: t == ("st", s + 1))
                if s == 4: n = min(n, waitfor(lambda t: t == ("non", 0)))
                c += mk(f"s_waitcnt vmcnt({n}) lgkmcnt(0)\ns_barrier")
            else:
                c += mk(f"s_waitcnt lgkmcnt(0)\ns_barrier")
            if o.stamps and s in (1, 5, 11): c += self.stamp({1: 2, 5: 3, 11: 4}[s])
            rd = self.reads(w, s + 1) if s < 15 else []
            other = []
            if s == 0:
                other += mk(f"v_mov_b32 v{NON}, 0\nbuffer_load_dwordx2 v[{NON}:{NON+1}], v{NON}, {sDBG}, 0 offen sc1"); vm.append(("non", 0))
            if s == 11:
                other += self.gather_addr() + self.gather_load(); vm += [("gat", 0)] * 2
            if s <= 10:
                other += self.dma_stage(phys(s + 5) * SLOT); vm += [("st", s + 5)] * 8
            else:
                d = self.b2_dma(w, s - 11); other += d; vm += [("b2", s)] * (len(d) // 3)
            if 1 <= s <= 3:
                other += stats[(s - 1) * third: s * third]
            if s == 4:
                pb = [I(i.text.replace("{w}", str(w))) for i in self.publish()]
                other += pb[:5] + [pb[5:8]] + pb[8:]; vm.append(("pub", 0))
            c += weave(self.mfmas(w, s), rd, other, per_gap=2)
        self.gat_wait = waitfor(lambda t: t == ("gat", 0))
        ids = [3 * th, 3 * th + 1, 3 * th + 2, 6 + 6 * th, 7 + 6 * th] if rh == 0 else [8 + 6 * th, 9 + 6 * th, 10 + 6 * th, 11 + 6 * th, 18 + th]
        c += self.stamp(5)
        c += mk(f"""
v_lshrrev_b32 v2, 4, {vL}
v_lshlrev_b32 v2, 4, v2
v_add_u32 v2, {CS}, v2
v_and_b32 v3, 15, {vL}
v_lshlrev_b32 v3, 2, v3
v_add_u32 v3, {CS}, v3
""")
        for k, id_ in enumerate(ids):
            if rh == 0 and k == 2: c += mk(f"ds_write_b32 v3, a{CSACC+4*k} offset:{id_*64}")
            else: c += mk(f"ds_write_b128 v2, {A4(CSACC+4*k)} offset:{id_*64}")
        c += mk(f"s_waitcnt vmcnt({self.gat_wait})\ns_branch L_epi")
        slow = mk(f"""
L_slow_nonce{w}:
s_mov_b32 {sCnt}, 0
L_sn{w}:
v_mov_b32 v{NON}, 0
buffer_load_dwordx2 v[{NON}:{NON+1}], v{NON}, {sDBG}, 0 offen sc1
s_waitcnt vmcnt(0)
v_readfirstlane_b32 {sNonL}, v{NON}
v_readfirstlane_b32 {sNonH}, v{NON+1}
s_add_u32 {sCnt}, {sCnt}, 1
s_cmp_gt_u32 {sCnt}, 20000
s_cbranch_scc1 L_back_nonce{w}
s_cmp_eq_u32 {sNonL}, 0
s_cbranch_scc1 L_sn{w}
s_branch L_back_nonce{w}
""")
        return c, slow

    def epilogue1(self):
        ST = 24
        S6 = [34, 16]
        c = mk(f"""
L_epi:
v_cmp_ne_u64 vcc, {sNon}, v[{GAT+2}:{GAT+3}]
v_cmp_ne_u64 {sEx}, {sNon}, v[{GAT+6}:{GAT+7}]
v_lshlrev_b32 v4, 2, {vL}
s_mul_i32 {sT0}, {sW}, 640
s_add_u32 {sT0}, {sT0}, {STATL}
s_or_b64 vcc, vcc, {sEx}
s_cbranch_vccnz L_slow_gat
L_back_gat:
v_add_u32 v4, {sT0}, v4
v_and_b32 v5, 15, {vL}
v_lshl_add_u32 v5, v5, 2, {sT0}
ds_write2_b32 v4, v{GAT}, v{GAT+1} offset0:0 offset1:80
ds_write2_b32 v5, v{GAT+4}, v{GAT+5} offset0:64 offset1:144
s_lshl_b32 {sT1}, {sTH}, 7
v_add_u32 v6, {sT1}, v5
""")
        for i in range(5):
            c += mk(f"ds_read2_b32 {V2(ST+2*i)}, v5 offset0:{16*i} offset1:{80+16*i}")
        c += mk(f"""
ds_read2_b32 {V2(S6[0])}, v6 offset0:16 offset1:96
ds_read2_b32 {V2(S6[1])}, v6 offset0:32 offset1:112
v_lshrrev_b32 v2, 4, {vL}
v_lshlrev_b32 v6, 4, v2
v_add_u32 v18, {sT0}, v6
v_add_u32 v6, {CS}, v6
s_mul_i32 {sT1}, {sTH}, 192
v_add_u32 v8, {sT1}, v6
s_lshl_b32 {sT2}, {sT1}, 1
v_add_u32 v9, {sT2}, v6
v_add_u32 v10, {sT1}, v3
v_lshlrev_b32 v2, 4, {vL}
v_add_u32 v3, {RBS}, v2
s_waitcnt lgkmcnt(0)
s_barrier
""")
        for j in range(3):
            c += mk(f"ds_read_b128 {V4(56+8*j)}, v9 offset:{384+128*j}\nds_read_b128 {V4(60+8*j)}, v9 offset:{384+128*j+64}")
        c += mk(f"ds_read_b128 {V4(80)}, v6 offset:{18*64}\nds_read_b128 {V4(84)}, v6 offset:{19*64}")
        c += mk(f"ds_read_b128 {V4(48)}, v8\nds_read_b128 {V4(52)}, v8 offset:64\nds_read_b32 v20, v10 offset:128")
        NEG = "op_sel:[0,1,0] op_sel_hi:[1,1,1] neg_lo:[0,1,0] neg_hi:[0,1,0]"
        def gu(cs, g, u, stp, dst):
            L = []
            for h in range(2):
                L.append(f"v_pk_fma_f32 {V2(g+2*h)}, {V2(cs+2*h)}, {V2(stp)}, {V2(g+2*h)} {NEG}")
            for h in range(2):
                L.append(f"v_pk_fma_f32 {V2(u+2*h)}, {V2(cs+4+2*h)}, {V2(stp)}, {V2(u+2*h)} {NEG}")
            for h in range(2):
                L.append(f"v_pk_mul_f32 {V2(g+2*h)}, {V2(g+2*h)}, {V2(u+2*h)}")
            for h in range(2):
                L.append(f"v_cvt_pk_bf16_f32 v{dst+h}, v{g+2*h}, v{g+2*h+1}")
            return L
        sb = [sUh0, sUh1, sUh2]
        first = True
        for j in range(3):
            c += mk(f"s_waitcnt lgkmcnt({9 - 2*j})")
            for p in range(2):
                d = aU(j, 2 * p)
                a = gu(56 + 8 * j, aG(j, 2 * p), aU(j, 2 * p), ST + 2 * (1 + 2 * p), d)
                b = gu(56 + 8 * j, aG(j, 2 * p + 1), aU(j, 2 * p + 1), ST + 2 * (2 + 2 * p), d + 2)
                for x, y in zip(a, b): c += mk(x + "\n" + y)
                c += mk(f"buffer_store_dwordx4 {V4(d)}, v{2+p}, {sWS}, {sb[j]} offen sc1")
        c += mk("s_waitcnt lgkmcnt(3)")
        d = aU6(0)
        a = gu(80, aG6(0), aU6(0), S6[0], d); b = gu(80, aG6(1), aU6(1), S6[1], d + 2)
        for x, y in zip(a, b): c += mk(x + "\n" + y)
        c += mk(f"buffer_store_dwordx4 {V4(d)}, v2, {sWS}, {sU6} offen sc1")
        c += self.stamp(6)
        VS = 56
        vs = lambda i: 56 + 8 * i if i < 4 else 144
        for i in range(5):
            c += mk(f"ds_read_b128 {V4(vs(i))}, v18 offset:{64*i}\nds_read_b128 {V4(vs(i)+4)}, v18 offset:{320+64*i}")
        KP = 176
        kp = lambda i: 176 + 2 * i
        qp = lambda i: 208 + 2 * i
        vp = lambda i: 216 + 2 * i if i < 4 else 224
        vp = lambda i: 152 + 2 * i
        VP = 210
        c += mk("s_waitcnt lgkmcnt(10)")
        L = []
        for i in range(5):
            k = aK(i); stp = ST + 2 * i
            L.append([f"v_pk_fma_f32 {V2(k)}, {V2(52)}, {V2(stp)}, {V2(k)} {NEG}",
                      f"v_pk_fma_f32 {V2(k+2)}, {V2(54)}, {V2(stp)}, {V2(k+2)} {NEG}",
                      f"v_pk_mul_f32 {V2(k)}, {V2(k)}, {V2(stp)} op_sel_hi:[1,0]",
                      f"v_pk_mul_f32 {V2(k+2)}, {V2(k+2)}, {V2(stp)} op_sel_hi:[1,0]",
                      f"v_cvt_pk_bf16_f32 v{kp(i)}, v{k}, v{k+1}",
                      f"v_cvt_pk_bf16_f32 v{kp(i)+1}, v{k+2}, v{k+3}"])
        for step in range(6):
            for i in range(5): c += mk(L[i][step])
        qp = lambda i: 186 + 2 * i if i < 3 else 208
        L = []
        for i in range(4):
            q = aQ(i); stp = ST + 2 * (i + 1)
            L.append([f"v_pk_fma_f32 {V2(q)}, {V2(48)}, {V2(stp)}, {V2(q)} {NEG}",
                      f"v_pk_fma_f32 {V2(q+2)}, {V2(50)}, {V2(stp)}, {V2(q+2)} {NEG}",
                      f"v_cvt_pk_bf16_f32 v{qp(i)}, v{q}, v{q+1}",
                      f"v_cvt_pk_bf16_f32 v{qp(i)+1}, v{q+2}, v{q+3}"])
        for step in range(4):
            for i in range(4): c += mk(L[i][step])
        sp = lambda i: 88 + 8 * i
        M16 = "v_mfma_f32_16x16x16_bf16"
        for i in range(4):
            bp = BIAS + 8 if i == 0 else BIAS
            c += mk(f"{M16} {V4(sp(i))}, {V2(kp(i))}, {V2(qp(i))}, {V4(bp)}\n{M16} {V4(sp(i)+4)}, {V2(kp(i+1))}, {V2(qp(i))}, {V4(BIAS+4)}")
        vp = lambda i: VP + 2 * i
        c += mk("s_waitcnt lgkmcnt(0)")
        NEGV = "op_sel_hi:[1,0,1] neg_lo:[0,1,0] neg_hi:[0,1,0]"
        L = []
        for i in range(5):
            v = aV(i); s_ = vs(i)
            L.append([f"v_pk_fma_f32 {V2(v)}, {V2(s_+4)}, {V2(20)}, {V2(v)} {NEGV}",
                      f"v_pk_fma_f32 {V2(v+2)}, {V2(s_+6)}, {V2(20)}, {V2(v+2)} {NEGV}",
                      f"v_pk_mul_f32 {V2(v)}, {V2(v)}, {V2(s_)}",
                      f"v_pk_mul_f32 {V2(v+2)}, {V2(v+2)}, {V2(s_+2)}",
                      f"v_cvt_pk_bf16_f32 v{vp(i)}, v{v}, v{v+1}",
                      f"v_cvt_pk_bf16_f32 v{vp(i)+1}, v{v+2}, v{v+3}"])
        for step in range(6):
            for i in range(5): c += mk(L[i][step])
        L = []
        SC = 0.25 * 1.4426950408889634
        import struct
        sch = "0x%08x" % struct.unpack("<I", struct.pack("<f", SC))[0]
        for i in range(4):
            s_ = sp(i); t = 56 + 4 * i; P = 72 + 4 * i
            l = [f"v_max3_f32 v{t}, v{s_}, v{s_+1}, v{s_+2}",
                 f"v_max3_f32 v{t+1}, v{s_+3}, v{s_+4}, v{s_+5}",
                 f"v_max3_f32 v{t}, v{t}, v{s_+6}, v{s_+7}",
                 f"v_mul_f32 v{t+2}, {sch}, v{ST+2*(i+1)}",
                 f"v_max_f32 v{t}, v{t}, v{t+1}",
                 f"v_mov_b32 v{t+1}, v{t}",
                 f"v_permlane16_swap_b32 v{t}, v{t+1}",
                 f"v_max_f32 v{t}, v{t}, v{t+1}",
                 f"v_mov_b32 v{t+1}, v{t}",
                 f"v_permlane32_swap_b32 v{t}, v{t+1}",
                 f"v_max_f32 v{t}, v{t}, v{t+1}",
                 f"v_mul_f32_e64 v{t+3}, -v{t}, v{t+2}"]
            for h in range(4):
                l.append(f"v_pk_fma_f32 {V2(s_+2*h)}, {V2(s_+2*h)}, {V2(t+2)}, {V2(t+2)} op_sel:[0,0,1] op_sel_hi:[1,0,1]")
            for e in range(8): l.append(f"v_exp_f32 v{s_+e}, v{s_+e}")
            for h in range(4): l.append(f"v_cvt_pk_bf16_f32 v{P+h}, v{s_+2*h}, v{s_+2*h+1}")
            L.append(l)
        for step in range(len(L[0])):
            for i in range(4): c += mk(L[i][step])
        M = "v_mfma_f32_16x16x32_bf16"
        O = lambda i: 124 + 4 * i
        LS = lambda i: 144 + 4 * i
        for i in range(4):
            c += mk(f"{M} {V4(LS(i))}, {A4(ONES)}, {V4(72+4*i)}, 0\n{M} {V4(O(i))}, {V4(vp(i))}, {V4(72+4*i)}, 0")
        L = []
        for i in range(4):
            d = 176 + 4 * (i // 2) + 2 * (i % 2)
            L.append([f"v_rcp_f32 v{LS(i)}, v{LS(i)}",
                      f"v_pk_mul_f32 {V2(O(i))}, {V2(O(i))}, {V2(LS(i))} op_sel_hi:[1,0]",
                      f"v_pk_mul_f32 {V2(O(i)+2)}, {V2(O(i)+2)}, {V2(LS(i))} op_sel_hi:[1,0]",
                      f"v_cvt_pk_bf16_f32 v{d}, v{O(i)}, v{O(i)+1}",
                      f"v_cvt_pk_bf16_f32 v{d+1}, v{O(i)+2}, v{O(i)+3}"])
        for step in range(5):
            for i in range(4): c += mk(L[i][step])
        c += mk(f"""
buffer_store_dwordx4 {V4(176)}, v2, {sWS}, {sUo} offen sc1
buffer_store_dwordx4 {V4(180)}, v3, {sWS}, {sUo} offen sc1
""")
        c += self.stamp(7)
        c += mk(f"""
s_lshl_b32 {sT0}, {sM}, 2
s_lshr_b32 {sT1}, {sN}, 2
s_add_u32 {sT0}, {sT0}, {sT1}
s_lshl_b32 {sT0}, {sT0}, 7
s_and_b32 {sT1}, {sN}, 3
s_lshl_b32 {sT1}, {sT1}, 3
s_add_u32 {sT0}, {sT0}, {sT1}
s_add_u32 {sT0}, {sT0}, {WS_FLAG}
v_mov_b32 v4, {sNonL}
v_mov_b32 v5, {sNonH}
v_mov_b32 v6, 0
s_waitcnt vmcnt(0)
s_barrier
s_cmp_lg_u32 {sW}, 0
s_cbranch_scc1 L_noflag
s_mov_b64 exec, 1
buffer_store_dwordx2 v[4:5], v6, {sWS}, {sT0} offen sc1
s_mov_b64 exec, -1
L_noflag:
""")
        c += self.stamp(8)
        slow = mk(f"""
L_slow_gat:
s_mov_b32 {sCnt}, 0
L_sg:
""") + self.gather_load() + mk(f"""
s_waitcnt vmcnt(0)
v_cmp_ne_u64 vcc, {sNon}, v[{GAT+2}:{GAT+3}]
v_cmp_ne_u64 {sEx}, {sNon}, v[{GAT+6}:{GAT+7}]
s_add_u32 {sCnt}, {sCnt}, 1
s_cmp_gt_u32 {sCnt}, 20000
s_cbranch_scc1 L_back_gat
s_or_b64 vcc, vcc, {sEx}
s_cbranch_vccnz L_sg
s_branch L_back_gat
""")
        return c, slow

    def phase2(self):
        o = self.opt
        STG = 64
        BF = 208
        DACC = 64
        ABUF = 128; DEPTH = 8
        PT = 16
        PW = 22
        PP = 25
        PR = 27
        VXO = 29
        XR = 32
        rng = lambda i: 0 if i < 8 else 1 if i < 24 else 2 if i < 32 else 3
        rstart = [0, 8, 24, 32]
        sigma = lambda i: i if i < 18 else 8 + (i - 18) if i < 28 else 8 + (i - 28)
        c = mk(f"""
s_lshl_b32 {sWB[0]}, {sW}, 17
s_lshl_b32 {sWB[1]}, {sW}, 18
s_add_u32 {sWB[2]}, {sWB[0]}, {1024*1024}
s_lshl_b32 {sWB[3]}, {sW}, 16
s_add_u32 {sWB[3]}, {sWB[3]}, {1536*1024}
""")
        for i in range(18, 36):
            for blk in range(2):
                r = STG + 8 * (i - 18) + 4 * blk
                c += mk(f"s_add_u32 {sT0}, {sWB[rng(i)]}, {(16*(i-rstart[rng(i)]) + 8*blk)*1024}\nbuffer_load_dwordx4 {A4(r)}, {vB2}, {sWD}, {sT0} offen")
        c += mk(f"""
s_mul_i32 {sT0}, {sR}, {2*RBS}
s_lshl_b32 {sT1}, {sW}, 13
s_add_u32 {sB[0]}, {sT0}, {sT1}
s_add_u32 {sB[2]}, {sB[0]}, {96*1024}
s_lshl_b32 {sT1}, {sW}, 14
s_add_u32 {sB[1]}, {sT0}, {sT1}
s_add_u32 {sB[1]}, {sB[1]}, {32*1024}
s_lshl_b32 {sT1}, {sW}, 12
s_add_u32 {sB[3]}, {sT0}, {sT1}
s_add_u32 {sB[3]}, {sB[3]}, {128*1024}
v_lshrrev_b32 v4, 2, v0
s_lshl_b32 {sT0}, {sR}, 6
v_add_u32 v4, {sT0}, v4
v_and_b32 v5, 3, {vL}
v_lshlrev_b32 v6, 4, v5
v_lshl_add_u32 v6, v4, 10, v6
s_lshl_b32 {sT1}, {sC}, 7
v_add_u32 v{VXO}, {sT1}, v6
v_lshlrev_b32 v30, 4, v4
buffer_load_dwordx4 {V4(XR)}, v{VXO}, {sX}, 0 offen
buffer_load_dwordx4 {V4(XR+4)}, v{VXO}, {sX}, 0 offen offset:64
v_lshrrev_b32 v4, 2, {vL}
v_lshl_add_u32 v4, v5, 2, v4
v_and_b32 v4, 15, v4
v_lshl_add_u32 v4, v5, 4, v4
v_lshlrev_b32 v4, 4, v4
s_lshl_b32 {sT0}, {sW}, 14
v_add_u32 v{PR}, {sT0}, v4
v_add_u32 v{PR+1}, 0x10000, v{PR}
v_lshrrev_b32 v5, 4, {vL}
v_lshl_add_u32 v4, v5, 2, {vL}
v_and_b32 v4, 15, v4
v_lshl_add_u32 v4, v5, 4, v4
v_lshlrev_b32 v4, 4, v4
s_lshl_b32 {sT0}, {sW}, 11
v_add_u32 v{PP}, {sT0}, v4
v_add_u32 v{PP+1}, 0x10000, v{PP}
v_lshl_add_u32 v{PW}, {vL}, 4, {sT0}
v_add_u32 v{PW+1}, 0x10000, v{PW}
v_add_u32 v{PW+2}, 0x20000, v{PW}
v_lshrrev_b32 v4, 1, v5
v_lshlrev_b32 v4, 10, v4
v_and_b32 v6, 1, v5
v_lshl_add_u32 v4, v6, 9, v4
v_bfe_u32 v6, {vL}, 2, 2
v_lshl_add_u32 v4, v6, 7, v4
v_lshrrev_b32 v6, 1, v6
v_lshl_add_u32 v4, v6, 6, v4
v_and_b32 v6, 3, {vL}
v_lshl_add_u32 v4, v6, 4, v4
v_add_u32 v{PT}, {sT0}, v4
v_xor_b32 v{PT+1}, 64, v{PT}
v_add_u32 v{PT+2}, 0x10000, v{PT}
v_add_u32 v{PT+3}, 0x10000, v{PT+1}
v_add_u32 v{PT+4}, 0x20000, v{PT}
v_add_u32 v{PT+5}, 0x20000, v{PT+1}
s_lshr_b32 {sT0}, {sR}, 1
s_lshl_b32 {sT0}, {sT0}, 2
s_add_u32 {sT0}, {sT0}, {sW}
s_lshl_b32 {sT0}, {sT0}, 7
s_add_u32 {sT0}, {sT0}, {WS_FLAG}
v_lshlrev_b32 v6, 3, v6
s_mov_b32 {sCnt}, 0
""")
        c += self.stamp(9)
        c += mk(f"""
L_poll:
buffer_load_dwordx2 v[4:5], v6, {sWS}, {sT0} offen sc1
s_add_u32 {sCnt}, {sCnt}, 1
s_waitcnt vmcnt(0)
v_cmp_ne_u64 vcc, {sNon}, v[4:5]
s_cmp_gt_u32 {sCnt}, 20000
s_cbranch_scc1 L_go
s_cbranch_vccnz L_poll
L_go:
""")
        c += self.stamp(10)
        def aload(t):
            i = 2 * t; b = ABUF + 16 * (t % DEPTH)
            off = (i - rstart[rng(i)]) * 1024
            return mk(f"""
s_add_u32 {sT0}, {sB[rng(i)]}, {off}
buffer_load_dwordx4 {V4(b)}, v2, {sWS}, {sT0} offen sc1
buffer_load_dwordx4 {V4(b+4)}, v2, {sWS}, {sT0} offen offset:1024 sc1
buffer_load_dwordx4 {V4(b+8)}, v3, {sWS}, {sT0} offen sc1
buffer_load_dwordx4 {V4(b+12)}, v3, {sWS}, {sT0} offen offset:1024 sc1
""")
        def bread(t):
            out = []
            st = t & 1
            for ct in range(4):
                for h in range(2):
                    sg = sigma(2 * t + h)
                    out.append(I(f"ds_read_b64_tr_b16 {A2(BF+16*st+4*ct+2*h)}, v{PT+2*(sg//8)+(ct>>1)} offset:{(sg%8)*8192+(ct&1)*8}"))
            return out
        s_stat = mk(f"s_mov_b32 {sT1}, {WS_STAT}\nbuffer_load_dword v{XR+8}, v30, {sWS}, {sT1} offen sc1")
        c += s_stat
        for t in range(DEPTH): c += aload(t)
        c += bread(0)
        M = "v_mfma_f32_16x16x32_bf16"
        issued = DEPTH
        for t in range(18):
            b = ABUF + 16 * (t % DEPTH)
            c += mk(f"s_waitcnt vmcnt({4*(issued - t - 1)})")
            c += mk(f"v_swap_b32 v{b+2}, v{b+4}\nv_swap_b32 v{b+3}, v{b+5}\nv_swap_b32 v{b+10}, v{b+12}\nv_swap_b32 v{b+11}, v{b+13}")
            c += mk("s_waitcnt lgkmcnt(0)")
            mm = []
            for j in range(4):
                for ct in range(4):
                    k = 16 * j + 4 * ct
                    d = A4(k) if t < 4 else V4(DACC + k)
                    cc = "0" if t in (0, 4) else d
                    mm.append(I(f"{M} {d}, {A4(BF+16*(t&1)+4*ct)}, {V4(b+4*j)}, {cc}"))
            fill = bread(t + 1) if t < 17 else []
            if 4 <= t <= 12:
                jj = t - 4
                for h in range(2):
                    i = 18 + 2 * jj + h; sg = sigma(i)
                    for blk in range(2):
                        fill.append(I(f"ds_write_b128 v{PW+sg//8}, {A4(STG+8*(i-18)+4*blk)} offset:{(sg%8)*8192+blk*1024}"))
            if 5 <= t <= 8:
                for p in range(4 * (t - 5), 4 * (t - 5) + 4):
                    fill.append(I(f"ds_write_b128 v{PP}, {A4(4*p)} offset:{(p>>1)*8192+(p&1)*1024}"))
            c += weave(mm, fill, per_gap=1)
            if issued < 18:
                c += aload(issued); issued += 1
        c += self.stamp(11)
        for p in range(16):
            c += mk(f"ds_write_b128 v{PP+1}, {V4(DACC+4*p)} offset:{(p>>1)*8192+(p&1)*1024}")
        c += mk("s_waitcnt lgkmcnt(0)\ns_barrier")
        for which, base in ((0, 128), (1, 192)):
            for ct in range(4):
                for src in range(4):
                    c += mk(f"ds_read_b128 {V4(base+16*ct+4*src)}, v{PR+which} offset:{(ct>>1)*8192+src*2048+(ct&1)*1024}")
        c += mk(f"v_mul_f32 v{XR+8}, v{XR+8}, v{XR+8}")
        for k in range(8):
            c += mk(f"v_lshlrev_b32 v{64+2*k}, 16, v{XR+k}\nv_and_b32 v{65+2*k}, 0xffff0000, v{XR+k}")
        for which, base in ((0, 128), (1, 192)):
            c += mk(f"s_waitcnt lgkmcnt({15 if which == 0 else 0})")
            for ct in range(4):
                b = base + 16 * ct
                for h in range(2):
                    c += mk(f"v_pk_add_f32 {V2(b+2*h)}, {V2(b+2*h)}, {V2(b+4+2*h)}\nv_pk_add_f32 {V2(b+8+2*h)}, {V2(b+8+2*h)}, {V2(b+12+2*h)}")
            for ct in range(4):
                b = base + 16 * ct
                for h in range(2):
                    c += mk(f"v_pk_add_f32 {V2(b+2*h)}, {V2(b+2*h)}, {V2(b+8+2*h)}")
        c += mk(f"v_mov_b32 v42, 0xbfb8aa3b\nv_mov_b32 v44, 1.0")
        S = lambda ct, h: 128 + 16 * ct + 2 * h
        D = lambda ct, h: 192 + 16 * ct + 2 * h
        E = lambda ct, h: 192 + 16 * ct + 4 + 2 * h
        prs = [(ct, h) for ct in range(4) for h in range(2)]
        for ct, h in prs: c += mk(f"v_pk_mul_f32 {V2(D(ct,h))}, {V2(D(ct,h))}, {V2(XR+8)} op_sel_hi:[1,0]")
        for ct, h in prs: c += mk(f"v_pk_mul_f32 {V2(E(ct,h))}, {V2(D(ct,h))}, {V2(42)} op_sel_hi:[1,0]")
        for ct, h in prs: c += mk(f"v_exp_f32 v{E(ct,h)}, v{E(ct,h)}\nv_exp_f32 v{E(ct,h)+1}, v{E(ct,h)+1}")
        for ct, h in prs: c += mk(f"v_pk_mul_f32 {V2(S(ct,h))}, {V2(S(ct,h))}, {V2(D(ct,h))}")
        for ct, h in prs: c += mk(f"v_pk_add_f32 {V2(E(ct,h))}, {V2(E(ct,h))}, {V2(44)} op_sel_hi:[1,0]")
        for ct, h in prs: c += mk(f"v_rcp_f32 v{E(ct,h)}, v{E(ct,h)}\nv_rcp_f32 v{E(ct,h)+1}, v{E(ct,h)+1}")
        for ct, h in prs:
            x = 64 + 4 * ct + 2 * h
            c += mk(f"v_pk_fma_f32 {V2(x)}, {V2(S(ct,h))}, {V2(E(ct,h))}, {V2(x)}")
        for ct, h in prs:
            x = 64 + 4 * ct + 2 * h
            c += mk(f"v_cvt_pk_bf16_f32 v{80+2*ct+h}, v{x}, v{x+1}")
        c += mk(f"""
buffer_store_dwordx4 {V4(80)}, v{VXO}, {sOUT}, 0 offen
buffer_store_dwordx4 {V4(84)}, v{VXO}, {sOUT}, 0 offen offset:64
""")
        return c

    def finish(self):
        c = []
        if self.opt.stamps:
            c += self.stamp(12)
            c += mk(f"""
s_waitcnt vmcnt(0)
s_memrealtime s[96:97]
s_waitcnt lgkmcnt(0)
v_writelane_b32 v7, s96, 13
v_writelane_b32 v7, s98, 0
s_add_u32 s32, s66, {STAMP}
s_addc_u32 s33, s67, 0
s_mov_b32 s34, 0x100000
s_lshl_b32 {sT0}, s2, 2
s_add_u32 {sT0}, {sT0}, {sW}
s_lshl_b32 {sT0}, {sT0}, 6
v_lshlrev_b32 v4, 2, {vL}
s_mov_b64 exec, 0xffff
buffer_store_dword v7, v4, {sWS}, {sT0} offen
""")
        c += mk("L_end:\ns_endpgm")
        return c

    def build(self):
        pro = self.prologue()
        waves = [self.wave_code(w) for w in range(4)]
        epi, slow_g = self.epilogue1()
        p2 = self.phase2() if not self.opt.p1only else []
        fin = self.finish()
        tot = 0
        for w in range(4):
            tr = pro + waves[w][0] + epi + p2 + fin
            tot += fix_hazards(tr, self.opt.verbose)
        for w in range(4):
            fix_hazards(waves[w][1], self.opt.verbose)
            e, mx = check_waits(pro + waves[w][0] + epi + p2 + fin, f"w{w}")
            print(f"wave {w}: wait errors {e}, max vm outstanding {mx}", file=sys.stderr)
        fix_hazards(slow_g, self.opt.verbose)
        print(f"inserted nop states: {tot}", file=sys.stderr)
        code = pro + waves[0][0] + waves[1][0] + waves[2][0] + waves[3][0] + epi + p2 + fin
        for w in range(4): code += waves[w][1]
        code += slow_g
        L = KN + "_kernel"
        hdr = open("cdna_kernels/" + KN + ".s.ref").read().split("; Override launch")[0] if self.opt.final else ""
        out = hdr + f"; @launch grid=(256,1,1) block=(256,1,1) lds={LDS_BYTES}\n"
        out += f'.amdgcn_target "amdgcn-amd-amdhsa--gfx950"\n.text\n.globl {L}\n.p2align 8\n.type {L},@function\n{L}:\n'
        out += text(code)
        out += "s_endpgm\n.p2align 6\nL_codeend:\n"
        out += f""".section .rodata,"a"
.p2align 6
.amdhsa_kernel {L}
  .amdhsa_next_free_vgpr 512
  .amdhsa_next_free_sgpr 102
  .amdhsa_accum_offset 256
  .amdhsa_group_segment_fixed_size 0
  .amdhsa_kernarg_size 80
  .amdhsa_user_sgpr_count 2
  .amdhsa_user_sgpr_kernarg_segment_ptr 1
  .amdhsa_system_sgpr_workgroup_id_x 1
  .amdhsa_float_denorm_mode_32 3
.end_amdhsa_kernel
"""
        return out

if __name__ == "__main__":
    ap = argparse.ArgumentParser()
    ap.add_argument("-o", default="k.s")
    ap.add_argument("--stamps", action="store_true")
    ap.add_argument("--p1only", action="store_true")
    ap.add_argument("--verbose", action="store_true")
    ap.add_argument("--final", action="store_true")
    opt = ap.parse_args()
    open(opt.o, "w").write(G(opt).build())
```

```python
import re

REG = re.compile(r"^(-|\|)?(v|a|s)(\d+|\[(\d+):(\d+)\])\|?$")
TRANS = ("v_exp_", "v_log_", "v_rcp_", "v_rsq_", "v_sqrt_", "v_sin_", "v_cos_")

def regs(tok):
    tok = tok.strip()
    if tok in ("vcc", "exec"): return {(tok, 0), (tok, 1)}
    if tok in ("vcc_lo", "exec_lo"): return {(tok[:-3], 0)}
    if tok in ("vcc_hi", "exec_hi"): return {(tok[:-3], 1)}
    if tok == "m0": return {("m0", 0)}
    m = REG.match(tok)
    if not m: return set()
    f = m.group(2)
    if m.group(4) is not None:
        return {(f, i) for i in range(int(m.group(4)), int(m.group(5)) + 1)}
    return {(f, int(m.group(3)))}

class I:
    def __init__(self, text):
        self.text = text.strip()
        self.nops = 0
        t = self.text.split(";")[0].strip()
        self.is_label = t.endswith(":") or t.startswith(".") or t == ""
        self.op = ""; self.dst = set(); self.src = set(); self.kind = "none"
        self.srcC = set(); self.srcAB = set(); self.data = set()
        if self.is_label: return
        parts = t.split(None, 1)
        op = self.op = parts[0]
        ops = []
        if len(parts) > 1:
            depth = 0; cur = ""
            for ch in parts[1]:
                if ch in "[(": depth += 1
                if ch in "])": depth -= 1
                if ch == "," and depth == 0: ops.append(cur.strip()); cur = ""
                else: cur += ch
            ops.append(cur.strip())
        mods = ""
        if ops:
            last = ops[-1].split(None, 1)
            ops[-1] = last[0]
            mods = last[1] if len(last) > 1 else ""
        self.mods = mods
        R = [regs(o) for o in ops]
        U = lambda l: set().union(*l) if l else set()
        if op.startswith("v_mfma"):
            self.kind = "mfma"
            self.passes = 8 if "32x32x16" in op else 4 if ("16x16x32" in op or "16x16x16" in op) else 2 if "4x4x4" in op else None
            assert self.passes, op
            self.dst = R[0]; self.srcAB = R[1] | R[2]; self.srcC = R[3]; self.src = self.srcAB | self.srcC
        elif op.startswith("v_"):
            self.kind = "valu"
            if op.startswith("v_swap") or op.startswith("v_permlane"):
                self.dst = R[0] | R[1]; self.src = R[0] | R[1]
            elif op.startswith(("v_add_co", "v_sub_co", "v_addc_co", "v_subb_co", "v_mad_u64")):
                self.dst = R[0] | R[1]; self.src = U(R[2:])
            elif op.startswith("v_nop"):
                pass
            else:
                self.dst = R[0]; self.src = U(R[1:])
                if op.startswith(("v_fmac", "v_dot2c", "v_writelane")) or "dpp" in op or "row_" in mods or "quad_perm" in mods:
                    self.src |= R[0]
                if op.startswith("v_cndmask") and len(ops) == 3: self.src |= regs("vcc")
            self.dpp = ("dpp" in op) or ("row_" in mods) or ("quad_perm" in mods)
            self.trans = op.startswith(TRANS)
        elif op.startswith(("buffer_", "global_")):
            self.kind = "vmem"
            toks = mods.split()
            if "lds" in toks or "_lds_" in op:
                self.lds = True; self.src = U(R) | regs("m0")
            elif "load" in op:
                self.dst = R[0]; self.src = U(R[1:])
            elif "atomic" in op:
                self.src = U(R)
                if "sc0" in toks: self.dst = R[0]
            elif op.startswith("buffer_store"):
                self.data = R[0]; self.src = U(R)
            elif op.startswith("global_store"):
                self.data = R[1]; self.src = U(R)
            else:
                self.src = U(R)
        elif op.startswith("ds_"):
            self.kind = "ds"
            if op.startswith("ds_read") or op.startswith("ds_bpermute") or op.startswith("ds_swizzle"):
                self.dst = R[0]; self.src = U(R[1:])
            else:
                self.src = U(R)
        elif op.startswith(("s_load", "s_buffer_load", "s_memtime", "s_memrealtime")):
            self.kind = "smem"; self.dst = R[0]; self.src = U(R[1:])
        elif op.startswith("s_"):
            self.kind = "salu"
            if op.startswith(("s_cmp", "s_waitcnt", "s_barrier", "s_branch", "s_cbranch", "s_nop", "s_setprio", "s_sleep", "s_endpgm", "s_bitcmp", "s_setpc")):
                self.src = U(R)
            else:
                self.dst = R[0]; self.src = U(R[1:])
                if "saveexec" in op: self.dst |= regs("exec"); self.src |= regs("exec")
        else:
            raise ValueError("unknown op " + t)
    def states(self):
        if self.is_label: return 0
        if self.op == "s_nop": return int(self.text.split()[1], 0) + 1
        return 1
    def lines(self):
        out = []
        n = self.nops
        while n > 0:
            k = min(n, 16); out.append(f"  s_nop {k-1}"); n -= k
        out.append(("" if self.is_label else "  ") + self.text)
        return out

class Loop:
    def __init__(self, body, trips): self.body = body; self.trips = trips

def mk(text):
    return [I(l) for l in text.strip("\n").split("\n") if l.strip()]

def flatten(code):
    out = []
    for c in code:
        if isinstance(c, Loop): out += flatten(c.body)
        elif isinstance(c, list): out += flatten(c)
        else: out.append(c)
    return out

def trace(code):
    out = []
    for c in code:
        if isinstance(c, Loop):
            b = trace(c.body)
            out += b * c.trips
        elif isinstance(c, list): out += trace(c)
        else: out.append(c)
    return out

def text(code):
    return "\n".join(l for i in flatten(code) for l in i.lines()) + "\n"

def isv(r): return r[0] in ("v", "a")
def iss(r): return r[0] in ("s", "vcc")

def need(p, c):
    n = 0
    if p.kind == "valu":
        vd = {r for r in p.dst if isv(r)}; sd = {r for r in p.dst if iss(r)}
        if c.kind == "mfma" and vd & c.src: n = max(n, 2)
        if c.kind == "valu":
            if vd & c.src:
                if c.op.startswith("v_permlane") or c.dpp: n = max(n, 2)
                if c.op.startswith(("v_readfirstlane", "v_readlane")): n = max(n, 1)
                if p.trans and not c.trans: n = max(n, 1)
            if sd & c.src: n = max(n, 4 if c.op.startswith(("v_readlane", "v_writelane")) else 2)
            if ("exec", 0) in p.dst: n = max(n, 5)
        if c.kind == "vmem" and sd & c.src: n = max(n, 5)
        if c.kind in ("salu", "smem") and sd & c.src: n = max(n, 1)
        if p.trans and c.kind in ("vmem", "ds", "mfma") and vd & c.src: n = max(n, 2 if c.kind == "mfma" else 1)
    elif p.kind == "mfma":
        P = {2: 0, 4: 1, 8: 2}[p.passes]
        if c.kind == "mfma":
            if p.dst & c.srcAB: n = max(n, (5, 8, 12)[P])
            if p.dst & c.srcC:
                if p.dst == c.srcC and p.passes == c.passes: n = max(n, (2, 0, 0)[P])
                else: n = max(n, (4, 6, 10)[P])
            if p.dst & c.dst and not (p.dst == c.srcC): n = max(n, (5, 8, 12)[P])
        elif c.kind in ("valu", "vmem", "ds"):
            if p.dst & (c.src | c.dst): n = max(n, (5, 8, 12)[P])
            if c.kind == "valu" and p.srcC & c.dst: n = max(n, (1, 3, 7)[P])
    elif p.kind == "vmem":
        if p.data and len(p.data) >= 3 and p.data & c.dst: n = max(n, 2 if c.kind == "valu" else 1)
    elif p.kind == "salu":
        if ("m0", 0) in p.dst and c.kind == "vmem" and getattr(c, "lds", False): n = max(n, 1)
    return n

def fix_hazards(code, verbose=False):
    total = 0
    for _ in range(50):
        tr = [i for i in trace(code) if not i.is_label]
        changed = False
        for k, c in enumerate(tr):
            dist = c.nops
            j = k - 1
            while j >= 0 and dist < 20:
                p = tr[j]
                q = need(p, c)
                if q > dist:
                    if verbose: print(f"hazard: [{p.text}] -> [{c.text}] need {q} have {dist}")
                    c.nops += q - dist; total += q - dist; changed = True
                    dist = q
                dist += p.states() + p.nops
                j -= 1
        if not changed: break
    return total

def check_waits(code, name=""):
    tr = [i for i in trace(code) if not i.is_label]
    vm = []; lg = []
    errs = 0
    maxvm = 0
    for c in tr:
        if c.op == "s_waitcnt":
            m = re.search(r"vmcnt\((\d+)\)", c.text)
            if m:
                n = int(m.group(1)); vm = vm[len(vm) - n:] if n < len(vm) else vm
                if n == 0: vm = []
            m = re.search(r"lgkmcnt\((\d+)\)", c.text)
            if m:
                n = int(m.group(1))
                if n == 0: lg = []
                elif any(p.kind == "smem" for p in lg): pass
                elif n < len(lg): lg = lg[len(lg) - n:]
            continue
        touch = c.src | c.dst
        for q, nm in ((vm, "vm"), (lg, "lgkm")):
            for p in q:
                if p.dst & touch and not (c.kind == p.kind == "ds" and not (p.dst & c.src)):
                    if errs < 5: print(f"{name} WAIT ERROR ({nm}): [{p.text}] pending at [{c.text}]", file=__import__("sys").stderr)
                    errs += 1
        if c.kind == "vmem": vm.append(c); maxvm = max(maxvm, len(vm))
        if c.kind in ("ds", "smem"): lg.append(c)
    return errs, maxvm

def weave(main, lds, oth=(), per_gap=2, lds_start=0, lds_per_gap=1, oth_start=0):
    lds = list(lds); oth = list(oth)
    out = []
    n = len(main)
    size = lambda x: len([i for i in x if not i.is_label]) if isinstance(x, list) else (0 if x.is_label else 1)
    tot = sum(size(x) for x in oth); done = 0
    for idx, m in enumerate(main):
        out.append(m)
        used = 0
        while lds and idx >= lds_start and used < lds_per_gap:
            out.append(lds.pop(0)); used += 1
        target = -(-tot * (idx + 1 - oth_start) // (n - oth_start)) if idx >= oth_start else 0
        while oth and used < per_gap and done < target:
            x = oth.pop(0); k = size(x)
            out += x if isinstance(x, list) else [x]
            used += k; done += k
    for x in lds + oth: out += x if isinstance(x, list) else [x]
    return out


def cap_vm(code, start=0, limit=60, to=48):
    out = []; n = start
    for c in code:
        if c.op == "s_waitcnt":
            m = re.search(r"vmcnt\((\d+)\)", c.text)
            if m: n = min(n, int(m.group(1)))
        if c.kind == "vmem":
            if n >= limit:
                out.append(I(f"s_waitcnt vmcnt({to})")); n = to
            n += 1
        out.append(c)
    return out


import subprocess, os
NOE64 = ("v_readfirstlane", "v_readlane", "v_writelane", "v_swap", "v_accvgpr", "v_nop", "v_fmac", "v_permlane")
def sizes(asm_text, tmp="_al"):
    open(tmp + ".s", "w").write(asm_text)
    subprocess.check_call(["clang", "-x", "assembler", "-target", "amdgcn-amd-amdhsa", "-mcpu=gfx950", "-c", tmp + ".s", "-o", tmp + ".o"])
    t = subprocess.check_output(["llvm-objdump", "-d", "--mcpu=gfx950", tmp + ".o"], text=True)
    out = []
    for l in t.splitlines():
        m = re.search(r"// ([0-9A-F]{12}): ((?:[0-9A-F]{8} ?)+)", l)
        if m: out.append((int(m.group(1), 16), 4 * len(m.group(2).split())))
    return out

def align8(code, wrap, pad_nop=True):
    flat = [i for i in flatten(code)]
    sz = sizes(wrap(text(code)))
    k = 0; rec = []
    for i in flat:
        n = (i.nops + 15) // 16
        pre = n
        k += n
        if i.is_label: rec.append((i, pre, 0)); continue
        rec.append((i, pre, sz[k][1])); k += 1
    off = sz[0][0] % 8
    cand = None; promoted = 0; padded = 0
    for i, pre, size in rec:
        off = (off + 4 * pre) % 8
        if i.is_label:
            continue
        if size >= 8 and off % 8 == 4:
            if cand is not None:
                parts = cand.text.split(None, 1)
                cand.text = parts[0].replace("_e32", "") + "_e64 " + parts[1]; promoted += 1
                off = 0
            elif pad_nop and i.nops % 16 == 0 and getattr(i, "padok", True):
                i.nops += 1; padded += 1; off = 0
        if size >= 8: cand = None
        elif i.kind == "valu" and not i.op.startswith(NOE64) and "_e64" not in i.op and not getattr(i, "dpp", False):
            cand = i
        off = (off + size) % 8
    return promoted, padded
```

```python
import sys, argparse, struct
from fw import *
KN = "recurrent_scan__sliding_local_dilated__glu_gated_bilinear__prompt"

WSLOT = 20480
XBASE = 5 * WSLOT
XSLOT = 18432
MISC = XBASE + 3 * XSLOT
STATL = MISC
LDS_BYTES = 163840
RBS = 144 * 1024
WS_STAT = 0x900000
WS_FLAG = 0x910000
WS_SIZE = 0x920000
STAMP = 200 << 20
def S4(b): return f"s[{b}:{b+3}]"
bX, bWO, bWD, bOUT, bWS, bDBG = 4, 8, 12, 16, 20, 24
sX, sWO, sWD, sOUT, sWS, sDBG = map(S4, (bX, bWO, bWD, bOUT, bWS, bDBG))
bS = [28, 32, 36, 40, 44]; sS = [S4(b) for b in bS]
sW, sM, sN, sR, sC = "s68", "s69", "s70", "s71", "s72"
sKa, sKb, sIncA = "s73", "s74", "s75"
sWoff, sXoff, sHoff = "s76", "s77", "s78"
sIdx, sTyp = "s79", "s80"
sT0, sT1, sT2, sT3 = "s82", "s83", "s84", "s85"
sNon = "s[86:87]"; sNonL, sNonH = "s86", "s87"
sU = ["s88", "s89", "s90"]
sEx = "s[94:95]"
sB = ["s48", "s49", "s50", "s51"]
sWB = ["s52", "s53", "s54", "s55"]
sCnt = "s58"
sXc = "s93"; sXk = "s92"
vL = "v1"
vX = ["v8", "v9"]; vH = ["v10", "v11"]; vWg = ["v12", "v13", "v14", "v15", "v16"]; vB2 = "v17"
RA = 18
RT = 22
VST = 26
BIAS = 30
GAT = 44
NON = 56
GA = 58
SX = 60
V4 = lambda r: f"v[{r}:{r+3}]"
V2 = lambda r: f"v[{r}:{r+1}]"
A4 = lambda r: f"a[{r}:{r+3}]"
A2 = lambda r: f"a[{r}:{r+1}]"
CSACC = 228
ONES = 252
def f2h(x): return "0x%08x" % struct.unpack("<I", struct.pack("<f", x))[0]
aQ = lambda i: 88 + 4 * i
aK = lambda i: 120 + 4 * i
aV = lambda i: 156 + 4 * i
aG = lambda i: 192 + 4 * i
aU = lambda i: 224 + 4 * i
bAcc = lambda g, i: 96 + 32 * g + 4 * i
bMix = lambda u, i: 224 + 16 * u + 4 * i
NA = {0: 9, 1: 8}; NB = {0: 5, 1: 6}
fA = lambda st, i: 56 * st + 4 * i
def fB(ty, st, j): return 56 * st + 4 * NA[ty] + 4 * j
M16 = "v_mfma_f32_16x16x32_bf16"

class G:
    def __init__(self, opt): self.opt = opt; self.young = {}
    def pstamp(self, k):
        return self.stamp(k, True) if self.opt.prostamps else []
    def stamp(self, k, force=False):
        if not self.opt.stamps: return []
        if (self.opt.prostamps or self.opt.p2stamps) and 2 <= k <= 7 and not force: return []
        return mk(f"s_memrealtime s[96:97]\ns_memtime s[100:101]\ns_waitcnt lgkmcnt(0)\nv_writelane_b32 v7, s96, {k}\nv_writelane_b32 v7, s100, {16+k}")

    def scc_live(self, flat, k):
        for ins in flat[k:]:
            if ins.op.startswith(("s_cselect", "s_cbranch_scc", "s_addc")): return True
            if ins.kind == "salu" and not ins.op.startswith(("s_mov", "s_waitcnt", "s_nop", "s_movk")): return False
        return False
    def mksrd(self, b, p, size):
        return mk(f"s_mov_b32 s{b}, s{p}\ns_mov_b32 s{b+1}, s{p+1}\ns_mov_b32 s{b+2}, {size}\ns_mov_b32 s{b+3}, 0x20000")

    def dma_x(self, p, h, halo=True):
        base = XBASE + (p % 3) * XSLOT
        L = [mk(f"s_add_u32 {sXk}, {sXc}, {h*16384}\ns_add_u32 m0, {sXoff}, {base + 2048*h}\nbuffer_load_dwordx4 {vX[0]}, {sX}, {sXk} offen lds"),
             mk(f"s_add_u32 m0, {sXoff}, {base + 2048*h + 1024}\nbuffer_load_dwordx4 {vX[1]}, {sX}, {sXk} offen lds")]
        if halo:
            L.append(mk(f"s_add_u32 m0, {sHoff}, {base + 256*h}\nbuffer_load_dword {vH[h]}, {sX}, {sXc} offen lds"))
        if h == 1: L[-1] += mk(f"s_add_u32 {sXc}, {sXc}, 128\ns_and_b32 {sXc}, {sXc}, 1023")
        return L
    def dma_w(self, s):
        base = (s % 5) * WSLOT
        L = []
        for g in range(5):
            L.append(mk(f"s_add_u32 m0, {sWoff}, {base + 4096*g}\nbuffer_load_dwordx4 {vWg[g]}, {sS[g]}, {sKa if g < 3 else sKb} offen lds"))
        L[-1] += mk(f"s_add_u32 {sKa}, {sKa}, {sIncA}\ns_add_u32 {sKb}, {sKb}, {32*3584}")
        G = self.opt.kgroups
        if G > 1 and (s + 1) % (16 // G) == 0 and s < 15:
            L[-1].append(mk(f"s_cmp_eq_u32 {sKb}, {512*3584}\ns_cselect_b32 {sKa}, 0, {sKa}\ns_cselect_b32 {sKb}, 0, {sKb}"))
        return L
    def dma_queue(self, ty):
        Q = []
        for s in range(16):
            if s % 2 == 0 and ("x", s // 2) not in self.vm0:
                p = s // 2
                for h in range(2):
                    for a in self.dma_x(p, h, halo=(ty == 0)): Q.append((max(0, 2 * p - 5), ("x", p), a))
            if ("w", s) not in self.vm0:
                for a in self.dma_w(s): Q.append((max(0, s - 5), ("w", s), a))
        return Q

    def prologue(self):
        o = self.opt
        vm = self.vm0 = []
        def note(L, tag):
            L = flatten(L)
            for i in L:
                if i.kind == "vmem": vm.append(tag)
            return L
        c = mk(f"""
s_load_dwordx16 s[48:63], s[0:1], 0
s_load_dwordx4 s[64:67], s[0:1], 64
s_cmp_ge_u32 s2, 256
s_cbranch_scc1 L_end
v_lshrrev_b32 v2, 6, v0
v_and_b32 {vL}, 63, v0
s_and_b32 {sT0}, s2, 7
v_readfirstlane_b32 {sW}, v2
s_lshr_b32 {sT1}, s2, 3
s_lshr_b32 {sM}, {sT0}, 2
s_lshl_b32 {sM}, {sM}, 3
s_lshr_b32 {sT2}, {sT1}, 2
s_add_u32 {sM}, {sM}, {sT2}
""")
        if o.stamps: c += mk("v_mov_b32 v7, 0\ns_memrealtime s[98:99]")
        c += mk(f"""
v_lshrrev_b32 v5, 3, {vL}
v_lshrrev_b32 v3, 4, {vL}
v_xor_b32 v4, v3, {vL}
v_and_b32 v4, 7, v4
v_lshlrev_b32 v4, 4, v4
s_lshl_b32 {sT3}, {sM}, 7
s_lshl_b32 {sT2}, {sW}, 5
s_add_u32 {sT2}, {sT2}, {sT3}
v_add_u32 v6, {sT2}, v5
v_lshl_add_u32 {vX[0]}, v6, 10, v4
v_xor_b32 {vX[1]}, 64, {vX[0]}
v_add_u32 {vX[1]}, 0x2000, {vX[1]}
s_lshl_b32 {sT2}, {sW}, 2
s_add_u32 {sT2}, {sT2}, {sT3}
s_sub_u32 {sT2}, {sT2}, 16
v_lshrrev_b32 v6, 5, {vL}
v_add_u32 v6, {sT2}, v6
s_lshl_b32 {sXoff}, {sW}, 5
v_lshlrev_b32 v4, 2, {vL}
v_and_b32 v4, 0x7f, v4
v_xor_b32 v4, {sXoff}, v4
v_max_i32 v2, 0, v6
v_lshl_add_u32 {vH[0]}, v2, 10, v4
v_add_u32 v6, 2, v6
v_max_i32 v2, 0, v6
v_xor_b32 v4, 16, v4
v_lshl_add_u32 {vH[1]}, v2, 10, v4
s_lshl_b32 {sXoff}, {sW}, 12
s_add_u32 {sXoff}, {sXoff}, 2048
s_lshl_b32 {sHoff}, {sW}, 9
s_lshl_b32 {sWoff}, {sW}, 10
s_and_b32 {sN}, {sT0}, 3
s_lshl_b32 {sIdx}, {sN}, 1
s_lshl_b32 {sN}, {sN}, 2
s_and_b32 {sT2}, {sT1}, 3
s_add_u32 {sN}, {sN}, {sT2}
s_lshr_b32 {sTyp}, {sT2}, 1
s_and_b32 {sT2}, {sT2}, 1
s_add_u32 {sIdx}, {sIdx}, {sT2}
s_lshl_b32 {sR}, {sT0}, 2
s_lshr_b32 {sT2}, {sT1}, 3
s_add_u32 {sR}, {sR}, {sT2}
s_and_b32 {sC}, {sT1}, 7
s_and_b32 {sT2}, {sW}, 1
s_lshl_b32 {sT2}, {sT2}, 2
v_and_b32 v4, 2, v5
v_or_b32 v4, {sT2}, v4
v_xor_b32 v4, v4, {vL}
v_and_b32 v4, 7, v4
v_lshlrev_b32 v4, 4, v4
s_lshl_b32 {sT2}, {sW}, 3
v_add_u32 v6, {sT2}, v5
s_movk_i32 {sKb}, 3584
s_movk_i32 {sKa}, 3072
s_cmp_eq_u32 {sTyp}, 1
s_cselect_b32 {sKa}, {sKb}, {sKa}
s_lshl_b32 {sIncA}, {sKa}, 5
v_mad_u32_u24 v2, v6, {sKa}, v4
v_mad_u32_u24 v3, v6, {sKb}, v4
; a: W0=128a, W1=+1024, W2=+2048, W3=W4=128a ; b: W0=W1=1024+256b, W2=W3=+128
s_lshl_b32 {sT0}, {sIdx}, 7
s_lshl_b32 {sT1}, {sIdx}, 8
s_add_u32 {sT1}, {sT1}, 1024
s_cmp_eq_u32 {sTyp}, 1
s_cselect_b32 {sT2}, {sT1}, {sT0}
s_cselect_b32 {sT3}, 0, 1024
v_add_u32 {vWg[0]}, {sT2}, v2
v_add_u32 {vWg[1]}, {sT3}, {vWg[0]}
s_cselect_b32 {sT3}, 0, 896
s_add_u32 {sT3}, {sT3}, 128
v_add_u32 {vWg[2]}, {sT3}, {vWg[1]}
s_add_u32 {sT1}, {sT1}, 128
s_cmp_eq_u32 {sTyp}, 1
s_cselect_b32 {sT2}, {sT1}, {sT0}
v_add_u32 {vWg[3]}, {sT2}, v3
s_and_b32 {sXc}, {sM}, {o.kgroups - 1}
s_mul_i32 {sXc}, {sXc}, {1024 // o.kgroups}
s_waitcnt lgkmcnt(0)
""")
        c += self.pstamp(2)
        c += self.mksrd(bX, 48, 2048 * 1024)
        c += note(self.dma_x(0, 0) + self.dma_x(0, 1), ("x", 0))
        c += self.pstamp(3)
        c += mk(f"""
v_lshrrev_b32 v4, 4, {vL}
v_and_b32 v4, 2, v4
v_xor_b32 v4, v4, {vL}
v_and_b32 v4, 3, v4
v_lshlrev_b32 v4, 4, v4
s_and_b32 {sT2}, {sW}, 1
s_lshl_b32 {sT2}, {sT2}, 4
v_lshrrev_b32 v6, 2, {vL}
v_add_u32 v6, {sT2}, v6
v_mad_u32_u24 v4, v6, {sKb}, v4
s_lshl_b32 {sT2}, {sIdx}, 6
s_add_u32 {sT2}, {sT2}, 3072
v_add_u32 v4, {sT2}, v4
s_cmp_eq_u32 {sTyp}, 1
s_cselect_b64 vcc, -1, 0
s_and_b32 {sT0}, {sM}, {o.kgroups - 1}
s_mul_i32 {sT0}, {sT0}, {16 // o.kgroups}
s_mul_i32 {sKa}, {sT0}, {sIncA}
s_mul_i32 {sKb}, {sT0}, {32*3584}
s_cmp_eq_u32 {sTyp}, 1
v_cndmask_b32 {vWg[4]}, {vWg[3]}, v4, vcc
s_mov_b32 {sT0}, {512*3072}
s_mov_b32 {sT1}, {512*3584}
s_cselect_b32 s28, s56, s50
s_cselect_b32 s29, s57, s51
s_cselect_b32 s30, {sT1}, {sT0}
s_mov_b32 s31, 0x20000
s_cselect_b32 s32, s58, s50
s_cselect_b32 s33, s59, s51
s_mov_b32 s34, s30
s_mov_b32 s35, 0x20000
s_mov_b32 s36, s28
s_mov_b32 s37, s29
s_mov_b32 s38, s30
s_mov_b32 s39, 0x20000
s_cselect_b32 s40, s58, s56
s_cselect_b32 s41, s59, s57
s_mov_b32 s42, {sT1}
s_mov_b32 s43, 0x20000
s_lshl_b32 {sT0}, {sTyp}, 1
s_cmp_lt_u32 {sW}, {sT0}
s_cselect_b32 s44, s56, s58
s_cselect_b32 s45, s57, s59
s_mov_b32 s46, {sT1}
s_mov_b32 s47, 0x20000
""")
        c += note(self.dma_w(0), ("w", 0))
        c += self.pstamp(4)
        c += note(mk(f"""
s_getpc_b64 s[88:89]
L_pc:
s_lshr_b32 {sT0}, s2, 3
s_and_b32 {sT0}, {sT0}, 7
s_mul_i32 {sT0}, {sT0}, {o.pfslice}
s_add_u32 s88, s88, {sT0}
s_addc_u32 s89, s89, 0
v_lshlrev_b32 v2, 4, v0
v_add_u32 v3, 0x1000, v2
global_load_dwordx4 v[{SX+8}:{SX+11}], v2, s[88:89]
global_load_dwordx4 v[{SX+12}:{SX+15}], v3, s[88:89]
s_lshl_b32 {sT0}, {sM}, 7
s_lshl_b32 {sT1}, {sN}, 3
s_add_u32 {sT1}, {sT1}, {sT0}
s_lshl_b32 {sT2}, {sW}, 1
s_add_u32 {sT1}, {sT1}, {sT2}
s_lshl_b32 {sT3}, {sT1}, 10
v_lshlrev_b32 v{SX+16}, 4, {vL}
buffer_load_dwordx4 v[{SX}:{SX+3}], v{SX+16}, {sX}, {sT3} offen
buffer_load_dwordx4 v[{SX+4}:{SX+7}], v{SX+16}, {sX}, {sT3} offen offset:1024
"""), ("pre", 0))
        if o.tlb:
            c += self.mksrd(bWO, 52, 512 * 1024) + self.mksrd(bWD, 60, 1792 * 1024) + self.mksrd(bOUT, 62, 2048 * 1024) + self.mksrd(bWS, 66, WS_SIZE + 0x100000)
            c += note(mk(f"""
v_lshlrev_b32 v2, {o.tlb}, {vL}
buffer_load_dword a216, v2, {sWO}, 0 offen
buffer_load_dword a217, v2, {sWD}, 0 offen
buffer_load_dword a218, v2, {sOUT}, 0 offen
"""), ("pre", 0))
        c += self.mksrd(bDBG, 64, 256)
        c += mk(f"""
s_or_b32 {sT0}, s2, {sW}
s_cmp_lg_u32 {sT0}, 0
s_cbranch_scc1 L_nononce
s_memrealtime s[86:87]
s_waitcnt lgkmcnt(0)
s_or_b32 s86, s86, 1
v_mov_b32 v2, s86
v_mov_b32 v3, s87
v_mov_b32 v4, 0
s_mov_b64 exec, 1
buffer_store_dwordx2 v[2:3], v4, {sDBG}, 0 offen sc1
s_mov_b64 exec, -1
L_nononce:
""")
        c += note(self.dma_w(1), ("w", 1))
        c += self.pstamp(5)
        su = self.mksrd(bWO, 52, 512 * 1024) + self.mksrd(bWD, 60, 1792 * 1024) + self.mksrd(bOUT, 62, 2048 * 1024) + self.mksrd(bWS, 66, WS_SIZE)
        setup = [su]
        setup.append(mk(f"""
; g=l>>4 (v2), r=(l>>2)&3 (v3), c4=l&3 (v4)
v_lshrrev_b32 v2, 4, {vL}
v_bfe_u32 v3, {vL}, 2, 2
v_and_b32 v4, 3, {vL}
; A: c*128 + ((g ^ (c>>1))&7)*16 + XBASE
v_and_b32 v6, 15, {vL}
v_lshrrev_b32 v5, 1, v6
v_xor_b32 v5, v5, v2
v_lshlrev_b32 v5, 4, v5
v_lshl_add_u32 v5, v6, 7, v5
v_add_u32 v5, {XBASE}, v5
s_lshr_b32 {sT1}, {sW}, 1
s_and_b32 {sT1}, {sT1}, {sTyp}
s_lshl_b32 {sT2}, {sT1}, 13
v_add_u32 v{RA}, {sT2}, v5
v_xor_b32 v{RA+1}, 64, v{RA}
v_subrev_u32 v{RA+2}, {sT2}, v5
v_xor_b32 v{RA+3}, 64, v{RA+2}
s_mul_i32 {sT2}, {sT1}, {2*RBS}
v_lshlrev_b32 v5, 4, {vL}
v_add_u32 v{VST}, {sT2}, v5
v_add_u32 v{VST+1}, {RBS}, v{VST}
v_subrev_u32 v{VST+2}, {sT2}, v5
v_add_u32 v{VST+2}, {2*RBS}, v{VST+2}
v_add_u32 v{VST+3}, {RBS}, v{VST+2}
"""))
        setup.append(mk(f"""
; U64 tr: g*1024 + r*128 + ((w ^ (((r>>1)&1)|((g&1)<<1)))*32) + c4*8
v_and_b32 v6, 1, v2
v_lshrrev_b32 v5, 1, v3
v_lshl_or_b32 v5, v6, 1, v5
v_xor_b32 v5, {sW}, v5
v_lshlrev_b32 v5, 5, v5
v_lshl_add_u32 v5, v2, 10, v5
v_lshl_add_u32 v5, v3, 7, v5
v_lshl_add_u32 v{RT}, v4, 3, v5
v_add_u32 v{RT+1}, {3*WSLOT}, v{RT}
v_lshrrev_b32 v5, 1, v2
v_lshlrev_b32 v5, 10, v5
v_lshl_add_u32 v5, v6, 9, v5
v_lshl_add_u32 v5, v3, 6, v5
v_lshl_add_u32 v5, v4, 3, v5
v_xor_b32 v6, {sW}, v6
v_and_b32 v6, 1, v6
v_lshl_add_u32 v{RT+2}, v6, 5, v5
v_add_u32 v{RT+3}, {3*WSLOT}, v{RT+2}
v_lshrrev_b32 v5, 2, {vL}
v_and_b32 v5, 4, v5
v_xor_b32 v5, v5, {vL}
v_and_b32 v5, 7, v5
v_lshlrev_b32 v5, 4, v5
v_lshrrev_b32 v6, 3, {vL}
v_lshl_add_u32 v5, v6, 10, v5
s_lshl_b32 {sT2}, {sC}, 7
v_add_u32 {vB2}, {sT2}, v5
"""))
        b = mk(f"""
v_and_b32 v6, 15, {vL}
v_lshlrev_b32 v2, 2, v2
v_sub_u32 v2, v6, v2
v_mov_b32 v3, 0xff800000
v_mov_b32 v6, 0x80000000
""")
        for r in range(4):
            b += mk(f"""
v_subrev_u32 v4, {r}, v2
v_and_b32 v5, 0x80000001, v4
v_cmp_eq_u32 vcc, 0, v5
v_cmp_eq_u32 {sEx}, v6, v5
v_mov_b32 v{52+r}, 0
v_cndmask_b32_e64 v{BIAS+4+r}, v3, 0, vcc
v_cndmask_b32_e64 v{BIAS+r}, v3, 0, {sEx}
""")
        setup.append(b)
        b = mk(f"""
s_cmp_eq_u32 {sM}, 0
s_cselect_b64 vcc, -1, 0
v_mov_b32 v4, 0x3f803f80
""")
        for r in range(4):
            b += mk(f"v_cndmask_b32 v{BIAS+8+r}, v{BIAS+r}, v3, vcc\nv_accvgpr_write_b32 a{ONES+r}, v4")
        for k in range(88, 248, 16):
            b += mk(f"v_mfma_f32_32x32x16_bf16 v[{k}:{k+15}], v[52:55], v[52:55], 0")
        b += mk(f"{M16} v[248:251], v[52:55], v[52:55], 0\n{M16} v[252:255], v[52:55], v[52:55], 0")
        for k in range(6):
            b += mk(f"{M16} {A4(CSACC+4*k)}, v[52:55], v[52:55], 0")
        setup.append(b)
        setup.append(mk(f"""
s_mul_i32 {sT1}, {sM}, 576
s_lshl_b32 {sT2}, {sIdx}, 2
s_add_u32 {sT2}, {sT2}, {sW}
s_add_u32 {sU[1]}, {sT1}, {sT2}
s_add_u32 {sU[0]}, {sU[1]}, 32
s_lshl_b32 {sT2}, {sIdx}, 3
s_add_u32 {sT2}, {sT2}, {sW}
s_add_u32 {sT2}, {sT2}, {sT1}
s_add_u32 {sT2}, {sT2}, 64
s_add_u32 {sT3}, {sT2}, 4
s_cmp_eq_u32 {sTyp}, 1
s_cselect_b32 {sU[0]}, {sT2}, {sU[0]}
s_cselect_b32 {sU[1]}, {sT3}, {sU[1]}
s_lshl_b32 {sT2}, {sIdx}, 1
s_and_b32 {sT3}, {sW}, 1
s_add_u32 {sT2}, {sT2}, {sT3}
s_add_u32 {sT2}, {sT2}, {sT1}
s_add_u32 {sU[2]}, {sT2}, 128
s_lshl_b32 {sU[0]}, {sU[0]}, 10
s_lshl_b32 {sU[1]}, {sU[1]}, 10
s_lshl_b32 {sU[2]}, {sU[2]}, 10
s_lshl_b32 {sT1}, {sM}, 7
s_sub_u32 {sT2}, {sT1}, 16
v_add_u32 v5, {sT2}, {vL}
v_max_i32 v{GA}, 0, v5
v_lshlrev_b32 v{GA}, 4, v{GA}
v_add_u32 v5, 64, v5
v_lshlrev_b32 v{GA+1}, 4, v5
s_add_u32 {sT1}, {sT1}, 112
v_and_b32 v5, 15, {vL}
v_add_u32 v5, {sT1}, v5
v_lshlrev_b32 v42, 4, v5
s_and_b32 {sT1}, {sW}, 1
s_lshr_b32 {sT2}, {sW}, 1
s_lshl_b32 {sT2}, {sT2}, 14
s_lshl_b32 {sWB[0]}, {sT1}, 18
s_add_u32 {sWB[0]}, {sWB[0]}, {sT2}
s_mov_b32 {sWB[1]}, {sWB[0]}
s_lshl_b32 {sWB[2]}, {sT1}, 19
s_add_u32 {sWB[2]}, {sWB[2]}, {sT2}
s_add_u32 {sWB[2]}, {sWB[2]}, {512*1024}
s_lshl_b32 {sWB[3]}, {sT1}, 17
s_add_u32 {sWB[3]}, {sWB[3]}, {sT2}
s_add_u32 {sWB[3]}, {sWB[3]}, {1536*1024}
"""))
        rest = [(a, ("x", 1)) for a in self.dma_x(1, 0) + self.dma_x(1, 1)] + [(a, ("w", 2)) for a in self.dma_w(2)]
        if o.proextra >= 1: rest += [(a, ("w", 3)) for a in self.dma_w(3)]
        if o.proextra >= 2: rest += [(a, ("x", 2)) for a in self.dma_x(2, 0) + self.dma_x(2, 1)]
        flat = flatten(setup)
        pts = [k for k in range(1, len(flat)) if flat[k].kind in ("valu", "mfma") and flat[k-1].kind in ("valu", "mfma") and not self.scc_live(flat, k)]
        stepp = len(pts) / (len(rest) + 1)
        at = {pts[int((k + 1) * stepp)]: rest[k] for k in range(len(rest))}
        assert len(at) == len(rest)
        for k, ins in enumerate(flat):
            if k in at: c += note(*at[k])
            c.append(ins)
        c += self.pstamp(6)
        c += mk(f"s_cmp_eq_u32 {sTyp}, 1\ns_cbranch_scc1 L_tb")
        return c

    def reads(self, ty, stage):
        st = stage & 1
        xb = ((stage // 2) % 3) * XSLOT; kh = stage & 1
        ws = stage % 5; rg = ws // 3; wb = (ws % 3) * WSLOT
        out = []
        for i in range(NA[ty]):
            if ty == 0: out.append(I(f"ds_read_b128 {A4(fA(st, i))}, v{RA+kh} offset:{xb + 2048*i}"))
            else: out.append(I(f"ds_read_b128 {A4(fA(st, i))}, v{RA+kh+(2 if i >= 4 else 0)} offset:{xb + 2048*(i+1)}"))
        def tr(j, reg, off, second):
            return [I(f"ds_read_b64_tr_b16 {A2(fB(ty, st, j))}, v{reg} offset:{wb+off}"),
                    I(f"ds_read_b64_tr_b16 {A2(fB(ty, st, j)+2)}, v{reg} offset:{wb+off+second}")]
        B = []
        for g in range(5 if ty == 0 else 4): B += tr(g, RT + rg, 4096 * g, 512)
        if ty == 1: B += tr(4, RT + 2 + rg, 16384, 256) + tr(5, RT + 2 + rg, 16384 + 2048, 256)
        return out + B

    def mfmas(self, ty, stage):
        st = stage & 1
        out = []
        def T(d, j, i): out.append(I(f"{M16} {V4(d)}, {A4(fB(ty, st, j))}, {A4(fA(st, i))}, {V4(d)}"))
        def CS(k, flip=False):
            d = A4(CSACC + 4 * k); f = A4(fB(ty, st, k))
            if self.opt.nocs: return
            out.append(I(f"{M16} {d}, {A4(ONES)}, {f}, {d}" if flip else f"{M16} {d}, {f}, {A4(ONES)}, {d}"))
        if ty == 0:
            for i in range(8): T(aQ(i), 0, i + 1)
            CS(0)
            for i in range(9): T(aK(i), 1, i)
            CS(1)
            for i in range(9): out.append(I(f"{M16} {V4(aV(i))}, {A4(fA(st, i))}, {A4(fB(ty, st, 2))}, {V4(aV(i))}"))
            CS(2, True)
            for i in range(8): T(aG(i), 3, i + 1)
            CS(3)
            for i in range(8): T(aU(i), 4, i + 1)
            CS(4)
        else:
            for g in range(4):
                for i in range(8): T(bAcc(g, i), g, i)
                CS(g)
            for u in range(2):
                for i in range(4): T(bMix(u, i), 4 + u, i)
                CS(4 + u)
        return out

    TILES = [(2, 2*k) for k in range(16)] + [(3, 2*k) for k in range(4)] + [(1, 2*k) for k in range(8)] + [(0, 2*k) for k in range(8)]
    def b2_dma(self, s):
        def free_at(q):
            a = q * 2048
            if a < XBASE: return [s_ for s_ in range(11, 16) if s_ % 5 == a // WSLOT][0]
            return {2: 11, 0: 13, 1: 15}[(a - XBASE) // XSLOT]
        out = []
        for i in range(18):
            if max(free_at(4 * i + w) for w in range(4)) != s: continue
            r, k = self.TILES[i]; srd = sWO if r == 0 else sWD
            for blk in range(2):
                out += mk(f"s_add_u32 {sT0}, {sWB[r]}, {(16*k + 8*blk)*1024}\n"
                          f"s_add_u32 m0, {sT3}, {i*8192 + blk*1024}\nbuffer_load_dwordx4 {vB2}, {srd}, {sT0} offen lds")
        return out

    def l2pf(self, k):
        srd, row0 = [(sWD, 1536), (sWD, 0), (sWD, 256), (sWO, 0), (sWO, 256), (sWD, 512), (sWD, 768), (sWD, 1024), (sWD, 1280)][k]
        L = []
        if k == 0:
            L += mk(f"""
s_lshr_b32 s91, s2, 3
s_lshl_b32 s91, s91, 2
s_add_u32 s91, s91, {sW}
s_lshl_b32 s91, s91, 11
v_lshlrev_b32 v2, 7, {vL}
v_lshrrev_b32 v3, 4, {vL}
v_lshl_or_b32 v2, v3, 28, v2
v_add_u32 v2, s91, v2
""")
        L += mk(f"s_mov_b32 s91, {row0*1024}\nbuffer_load_dword a{216+k}, v2, {srd}, s91 offen")
        return L

    def flagaddr(self, dst, off):
        return mk(f"""
s_lshl_b32 {dst}, {sM}, 2
s_lshr_b32 {sT1}, {sN}, 2
s_add_u32 {dst}, {dst}, {sT1}
s_lshl_b32 {dst}, {dst}, 5
s_and_b32 {sT1}, {sN}, 3
s_lshl_b32 {sT1}, {sT1}, 2
s_add_u32 {dst}, {dst}, {sT1}
s_add_u32 {dst}, {dst}, {sW}
s_lshl_b32 {dst}, {dst}, 3
s_add_u32 {dst}, {dst}, {WS_FLAG + off}
""")
    def flagstore(self, so, r):
        return mk(f"""
v_mov_b32 v{r}, {sNonL}
v_mov_b32 v{r+1}, {sNonH}
v_lshlrev_b32 v{r+2}, 31, {vL}
v_lshl_or_b32 v{r+2}, {vL}, 25, v{r+2}
buffer_store_dwordx2 {V2(r)}, v{r+2}, {sWS}, {so} offen sc1
""")

    def stats_compute(self):
        def row(x, e, t):
            L = []
            for k in range(4):
                L.append(f"v_lshlrev_b32 v{e+2*k}, 16, v{x+k}")
                L.append(f"v_and_b32 v{e+2*k+1}, 0xffff0000, v{x+k}")
            L += [f"v_add_f32 v{x}, v{e}, v{e+1}", f"v_add_f32 v{x+1}, v{e+2}, v{e+3}", f"v_add_f32 v{x+2}, v{e+4}, v{e+5}", f"v_add_f32 v{x+3}, v{e+6}, v{e+7}",
                  f"v_add_f32 v{x}, v{x}, v{x+1}", f"v_add_f32 v{x+2}, v{x+2}, v{x+3}", f"v_add_f32 v{x}, v{x}, v{x+2}"]
            def red(r):
                R = [f"v_add_f32_dpp v{r}, v{r}, v{r} row_ror:{sh} row_mask:0xf bank_mask:0xf" for sh in (8, 4, 2, 1)]
                for p in ("16", "32"):
                    R += [f"v_mov_b32 v{r+1}, v{r}", f"v_permlane{p}_swap_b32 v{r}, v{r+1}", f"v_add_f32 v{r}, v{r}, v{r+1}"]
                return R
            L += red(x)
            L.append(f"v_mul_f32 v{t+1}, 0x3b000000, v{x}")
            for k in range(8): L.append(f"v_sub_f32 v{e+k}, v{e+k}, v{t+1}")
            L += [f"v_mul_f32 v{x}, v{e}, v{e}", f"v_mul_f32 v{x+1}, v{e+1}, v{e+1}"]
            for k in range(2, 8): L.append(f"v_fmac_f32 v{x+(k&1)}, v{e+k}, v{e+k}")
            L.append(f"v_add_f32 v{x}, v{x}, v{x+1}")
            L += red(x)
            L += [f"v_mov_b32 v{x+1}, 0x3727c5ac", f"v_fmac_f32 v{x+1}, 0x3b000000, v{x}", f"v_rsq_f32 v{t}, v{x+1}"]
            return L
        a = row(SX, SX + 8, SX + 24); b = row(SX + 4, SX + 16, SX + 26)
        out = []
        for p, q in zip(a, b): out += [I(p), I(q)]
        return out

    def publish(self, ty):
        L = mk(f"""
v_readfirstlane_b32 {sNonL}, v{NON}
v_readfirstlane_b32 {sNonH}, v{NON+1}
v_cmp_eq_u32 vcc, 1, {vL}
s_lshl_b32 {sT1}, {sM}, 7
s_lshl_b32 {sT2}, {sN}, 3
s_cmp_eq_u32 {sNonL}, 0
s_cbranch_scc1 L_slow_nonce{ty}
L_back_nonce{ty}:
v_cndmask_b32 v{SX}, v{SX+24}, v{SX+26}, vcc
v_cndmask_b32 v{SX+1}, v{SX+25}, v{SX+27}, vcc
v_mov_b32 v{SX+2}, {sNonL}
v_mov_b32 v{SX+3}, {sNonH}
s_add_u32 {sT1}, {sT1}, {sT2}
s_lshl_b32 {sT2}, {sW}, 1
s_add_u32 {sT1}, {sT1}, {sT2}
s_lshl_b32 {sT1}, {sT1}, 4
s_add_u32 {sT1}, {sT1}, {WS_STAT}
v_lshlrev_b32 v{SX+4}, 4, {vL}
v_cmp_lt_u32 vcc, 1, {vL}
v_mov_b32 v{SX+5}, 0x80000000
v_cndmask_b32 v{SX+4}, v{SX+4}, v{SX+5}, vcc
buffer_store_dwordx4 v[{SX}:{SX+3}], v{SX+4}, {sWS}, {sT1} offen sc1
""")
        return L[:5] + [L[5:8]] + L[8:]

    def gather_load(self):
        return mk(f"""
s_mov_b32 {sT1}, {WS_STAT}
buffer_load_dwordx4 {V4(GAT)}, v{GA}, {sWS}, {sT1} offen sc1
buffer_load_dwordx4 {V4(GAT+4)}, v{GA+1}, {sWS}, {sT1} offen sc1
buffer_load_dwordx4 {V4(GAT+8)}, v42, {sWS}, {sT1} offen sc1
""")
    def gather_cmp(self):
        return mk(f"""
v_cmp_ne_u64 vcc, {sNon}, {V2(GAT+2)}
v_cmp_ne_u64 {sEx}, {sNon}, {V2(GAT+6)}
v_cmp_ne_u64 s[92:93], {sNon}, {V2(GAT+10)}
s_or_b64 vcc, vcc, {sEx}
s_or_b64 vcc, vcc, s[92:93]
""")

    ST = 60
    def stats_stage(self, ty):
        ST = self.ST
        L = [self.gather_cmp() + mk(f"s_cbranch_vccnz L_slow_gat{ty}\nL_back_gat{ty}:")]
        L += mk(f"""
s_mul_i32 {sT1}, {sW}, 1152
s_add_u32 {sT1}, {sT1}, {STATL}
v_lshl_add_u32 v4, {vL}, 2, {sT1}
v_and_b32 v5, 15, {vL}
v_lshl_add_u32 v5, v5, 2, {sT1}
ds_write2_b32 v4, v{GAT}, v{GAT+1} offset0:0 offset1:144
ds_write2_b32 v4, v{GAT+4}, v{GAT+5} offset0:64 offset1:208
v_add_u32 v6, 512, v5
ds_write2_b32 v6, v{GAT+8}, v{GAT+9} offset0:0 offset1:144
""")
        if ty == 0:
            L += mk("v_add_u32 v4, 256, v5")
            for i in range(9):
                if i < 4: L += mk(f"ds_read2_b32 {V2(ST+2*i)}, v5 offset0:{16*i} offset1:{144+16*i}")
                else: L += mk(f"ds_read2_b32 {V2(ST+2*i)}, v4 offset0:{16*i-64} offset1:{80+16*i}")
            L += mk(f"v_lshrrev_b32 v6, 4, {vL}\nv_lshl_add_u32 v43, v6, 4, {sT1}")
        else:
            L += mk(f"""
s_lshr_b32 {sT2}, {sW}, 1
s_lshl_b32 {sT2}, {sT2}, 8
v_add_u32 v6, {sT2}, v5
v_subrev_u32 v5, {sT2}, v5
v_add_u32 v5, 256, v5
""")
            for i in range(8):
                L += mk(f"ds_read2_b32 {V2(ST+2*i)}, v{6 if i < 4 else 5} offset0:{16+16*(i%4)} offset1:{160+16*(i%4)}")
        return L

    def type_code(self, ty):
        o = self.opt
        c = mk("L_tb:") if ty else []
        vm = list(self.vm0)
        def waitfor(tags):
            for t in tags: assert vm.count(t) >= {"w": 5, "x": 4}.get(t[0], 1) and all(q[1] != t for q in dq), (t, ty)
            idx = max([k for k, t in enumerate(vm) if t in tags], default=-1)
            return len([t for t in vm[idx + 1:] if t[0] in ("x", "w", "b2")])
        def note(L, tag):
            for i in flatten(L):
                if i.kind == "vmem": vm.append(tag)
            return L
        need = lambda s: [("w", s), ("x", s // 2)]
        dq = []
        c += mk(f"s_lshl_b32 {sT3}, {sW}, 11\ns_waitcnt vmcnt({waitfor(need(0))})\ns_barrier")
        c += self.stamp(1)
        c += self.reads(ty, 0)
        stats = self.stats_compute()
        dq = self.dma_queue(ty)
        stl = self.staged(); self.nin = sum(o.stsched); assert self.nin <= 26
        third = -(-len(stats) // 6) * 2
        SN, SP, SG, SS = 1, 5, 10, 14
        for s in range(16):
            tags = need(s + 1) if s < 15 else []
            if s == 1: tags = tags + [("pre", 0)]
            if s == SP: tags = tags + [("non", 0)]
            if s == SS: tags = tags + [("gat", 0)]
            c += mk((f"s_waitcnt vmcnt({waitfor(tags)}) lgkmcnt(0)" if tags else "s_waitcnt lgkmcnt(0)") + "\ns_barrier")
            if o.stamps and s in (1, 5, 11): c += self.stamp({1: 2, 5: 3, 11: 4}[s])
            rd = self.reads(ty, s + 1) if s < 15 else []
            other = []
            if s == SN:
                other += note(mk(f"v_mov_b32 v{NON}, 0\nbuffer_load_dwordx2 {V2(NON)}, v{NON}, {sDBG}, 0 offen sc1"), ("non", 0))
            if s == SG: other += note(self.gather_load(), ("gat", 0))
            k = 0
            while dq and dq[0][0] <= s and k < o.quota:
                _, tag, atom = dq.pop(0); other += note(atom, tag); k += 1
            if s > 10:
                assert not dq
                other += note(self.b2_dma(s), ("b2", s))
            if o.pf0 <= s < o.pf0 + 9 and not o.nopf: other += note(self.l2pf(s - o.pf0), ("pf", 0))
            for _ in range(o.stsched[s]):
                other += note(stl.pop(0), ("b2", -1))
            if 2 <= s <= 4: other += stats[(s - 2) * third: (s - 1) * third]
            if s == SP: other += note(self.publish(ty), ("pub", 0))
            if s == SS: other += self.stats_stage(ty)
            mm = self.mfmas(ty, s)
            if o.nomfma: mm = [I("s_nop 0") for _ in mm]
            if o.noreads: rd = []
            c += weave(mm, rd, other, per_gap=2)
        c += self.stamp(5)
        c += self.epi_a() if ty == 0 else self.epi_b()
        if ty == 0: c += mk("s_branch L_join")
        c = cap_vm(flatten(c), len(self.vm0))
        slow = mk(f"""
L_slow_nonce{ty}:
s_mov_b32 {sCnt}, 0
L_sn{ty}:
v_mov_b32 v{NON}, 0
buffer_load_dwordx2 {V2(NON)}, v{NON}, {sDBG}, 0 offen sc1
s_waitcnt vmcnt(0)
v_readfirstlane_b32 {sNonL}, v{NON}
v_readfirstlane_b32 {sNonH}, v{NON+1}
s_add_u32 {sCnt}, {sCnt}, 1
s_cmp_gt_u32 {sCnt}, 20000
s_cbranch_scc1 L_back_nonce{ty}
s_cmp_eq_u32 {sNonL}, 0
s_cbranch_scc1 L_sn{ty}
s_branch L_back_nonce{ty}
L_slow_gat{ty}:
s_mov_b32 {sCnt}, 0
L_sg{ty}:
""") + self.gather_load() + mk("s_waitcnt vmcnt(0)") + self.gather_cmp() + mk(f"""
s_add_u32 {sCnt}, {sCnt}, 1
s_cmp_gt_u32 {sCnt}, 20000
s_cbranch_scc1 L_back_gat{ty}
s_cbranch_vccnz L_sg{ty}
s_branch L_back_gat{ty}
""")
        return c, slow

    def stg(self, i, blk):
        j = i - 18
        return (112 + 8 * j if j < 13 else 64 + 8 * (j - 13)) + 4 * blk
    def staged(self):
        L = []
        for i in range(18, 36):
            for blk in range(2):
                r = self.stg(i, blk); g, k = self.TILES[i]
                L.append(mk(f"s_add_u32 {sT0}, {sWB[g]}, {(16*k + 8*blk)*1024}\nbuffer_load_dwordx4 {A4(r)}, {vB2}, {sWO if g == 0 else sWD}, {sT0} offen"))
        return L
    def sprinkle(self, code, items, start, stop):
        out = []; n = len(items); k = 0
        for idx, ins in enumerate(code):
            out.append(ins)
            while k < n and idx >= start and (idx - start + 1) * n >= (k + 1) * (stop - start):
                out += items[k]; k += 1
        for it in items[k:]: out += it
        return out
    NEG = "op_sel:[0,1,0] op_sel_hi:[1,1,1] neg_lo:[0,1,0] neg_hi:[0,1,0]"
    def gu(self, cs, g, u, stp, dst):
        NEG = self.NEG
        L = [f"v_pk_fma_f32 {V2(g+2*h)}, {V2(cs+2*h)}, {V2(stp)}, {V2(g+2*h)} {NEG}" for h in range(2)]
        L += [f"v_pk_fma_f32 {V2(u+2*h)}, {V2(cs+4+2*h)}, {V2(stp)}, {V2(u+2*h)} {NEG}" for h in range(2)]
        L += [f"v_pk_mul_f32 {V2(g+2*h)}, {V2(g+2*h)}, {V2(u+2*h)}" for h in range(2)]
        L += [f"v_cvt_pk_bf16_f32 v{dst+h}, v{g+2*h}, v{g+2*h+1}" for h in range(2)]
        return L
    def gu_unit(self, cs, g0, u0, g1, u1, st0, st1, vo, so):
        c = []
        for x, y in zip(self.gu(cs, g0, u0, st0, u0), self.gu(cs, g1, u1, st1, u0 + 2)): c += mk(x + "\n" + y)
        return c + self.unit_store(u0, vo, so)
    def unit_store(self, r, vo, so):
        return mk(f"v_permlane16_swap_b32 v{r}, v{r+2}\nv_permlane16_swap_b32 v{r+1}, v{r+3}\nbuffer_store_dwordx4 {V4(r)}, v{vo}, {sWS}, {so} offen sc1")
    def csread(self, dst, k, n=4):
        return [I(f"v_accvgpr_read_b32 v{dst+r}, a{CSACC+4*k+r}") for r in range(n)]

    def epi_b(self):
        ST = self.ST
        c = []
        for k in range(6): c += self.csread(8 + 4 * k if k < 2 else 36 + 4 * k, k)
        for P in range(2):
            cs = 8 if P == 0 else 44
            for j in range(4):
                c += self.gu_unit(cs, bAcc(2*P, 2*j), bAcc(2*P+1, 2*j), bAcc(2*P, 2*j+1), bAcc(2*P+1, 2*j+1), ST+4*j, ST+4*j+2, VST+j, sU[P])
        for j in range(2):
            c += self.gu_unit(52, bMix(0, 2*j), bMix(1, 2*j), bMix(0, 2*j+1), bMix(1, 2*j+1), ST+4*j, ST+4*j+2, VST+j, sU[2])
        c += self.stamp(6)
        st = self.staged()[self.nin:]; nb = min(self.opt.nstage_b, len(st))
        c += self.flagaddr(sT2, 0) + self.polladdr()
        for it in st[:nb]: c += it
        c += self.p2setup()
        c += mk(f"s_waitcnt vmcnt({nb + 2})") + self.flagstore(sT2, 8) + self.stamp(7)
        c += self.poll_issue(0)
        for it in st[nb:]: c += it
        c += mk(f"s_waitcnt vmcnt({len(st) - nb})")
        return c

    def epi_a(self):
        ST = self.ST; NEG = self.NEG
        c = []
        c += self.csread(8, 3) + self.csread(12, 4) + self.csread(44, 0) + self.csread(48, 1) + self.csread(52, 2, 1)
        for j in range(4):
            c += self.gu_unit(8, aG(2*j), aU(2*j), aG(2*j+1), aU(2*j+1), ST+2+4*j, ST+4+4*j, VST+j, sU[0])
        c += self.stamp(6)
        head = c; c = []
        vs = lambda i: 192 + 8 * (i % 4) if i < 8 else 78
        def vsread(i): return mk(f"ds_read_b128 {V4(vs(i))}, v43 offset:{64*i}\nds_read_b128 {V4(vs(i)+4)}, v43 offset:{576+64*i}")
        for i in (0, 1, 2, 3, 8): c += vsread(i)
        kp = lambda i: 8 + 2 * i if i < 4 else 18 + 2 * (i - 4) if i < 8 else 86
        def inter(LL):
            out = []
            for step in range(max(len(l) for l in LL)):
                for l in LL:
                    if step < len(l): out += mk(l[step])
            return out
        def kfix(i):
            k = aK(i); stp = ST + 2 * i
            return [f"v_pk_fma_f32 {V2(k)}, {V2(48)}, {V2(stp)}, {V2(k)} {NEG}",
                    f"v_pk_fma_f32 {V2(k+2)}, {V2(50)}, {V2(stp)}, {V2(k+2)} {NEG}",
                    f"v_pk_mul_f32 {V2(k)}, {V2(k)}, {V2(stp)} op_sel_hi:[1,0]",
                    f"v_pk_mul_f32 {V2(k+2)}, {V2(k+2)}, {V2(stp)} op_sel_hi:[1,0]",
                    f"v_cvt_pk_bf16_f32 v{kp(i)}, v{k}, v{k+1}",
                    f"v_cvt_pk_bf16_f32 v{kp(i)+1}, v{k+2}, v{k+3}"]
        c += inter([kfix(i) for i in range(9)])
        qp = lambda i: 120 + 2 * i
        def qfix(i):
            q = aQ(i); stp = ST + 2 * (i + 1)
            return [f"v_pk_fma_f32 {V2(q)}, {V2(44)}, {V2(stp)}, {V2(q)} {NEG}",
                    f"v_pk_fma_f32 {V2(q+2)}, {V2(46)}, {V2(stp)}, {V2(q+2)} {NEG}",
                    f"v_cvt_pk_bf16_f32 v{qp(i)}, v{q}, v{q+1}",
                    f"v_cvt_pk_bf16_f32 v{qp(i)+1}, v{q+2}, v{q+3}"]
        c += inter([qfix(i) for i in range(8)])
        NEGV = "op_sel_hi:[1,0,1] neg_lo:[0,1,0] neg_hi:[0,1,0]"
        vp = lambda i: 136 + 2 * i
        def vfix(i):
            v = aV(i); s_ = vs(i)
            return [f"v_pk_fma_f32 {V2(v)}, {V2(s_+4)}, {V2(52)}, {V2(v)} {NEGV}",
                    f"v_pk_fma_f32 {V2(v+2)}, {V2(s_+6)}, {V2(52)}, {V2(v+2)} {NEGV}",
                    f"v_pk_mul_f32 {V2(v)}, {V2(v)}, {V2(s_)}",
                    f"v_pk_mul_f32 {V2(v+2)}, {V2(v+2)}, {V2(s_+2)}",
                    f"v_cvt_pk_bf16_f32 v{vp(i)}, v{v}, v{v+1}",
                    f"v_cvt_pk_bf16_f32 v{vp(i)+1}, v{v+2}, v{v+3}"]
        MK = "v_mfma_f32_16x16x16_bf16"
        sp = lambda i: 88 + 8 * i if i < 4 else 156 + 8 * (i - 4)
        def smf(i):
            bp = BIAS + 8 if i == 0 else BIAS
            return mk(f"{MK} {V4(sp(i))}, {V2(kp(i))}, {V2(qp(i))}, {V4(bp)}\n{MK} {V4(sp(i)+4)}, {V2(kp(i+1))}, {V2(qp(i))}, {V4(BIAS+4)}")
        for i in range(4): c += smf(i)
        c += mk("s_waitcnt lgkmcnt(0)")
        c += inter([vfix(i) for i in (0, 1, 2, 3, 8)])
        for i in range(4, 8): c += vsread(i)
        sch = f2h(0.25 * 1.4426950408889634)
        def soft(i, t, P):
            s_ = sp(i)
            l = [f"v_max3_f32 v{t}, v{s_}, v{s_+1}, v{s_+2}",
                 f"v_max3_f32 v{t+1}, v{s_+3}, v{s_+4}, v{s_+5}",
                 f"v_max3_f32 v{t}, v{t}, v{s_+6}, v{s_+7}",
                 f"v_mul_f32 v{t+2}, {sch}, v{ST+2*(i+1)}",
                 f"v_max_f32 v{t}, v{t}, v{t+1}",
                 f"v_mov_b32 v{t+1}, v{t}",
                 f"v_permlane16_swap_b32 v{t}, v{t+1}",
                 f"v_max_f32 v{t}, v{t}, v{t+1}",
                 f"v_mov_b32 v{t+1}, v{t}",
                 f"v_permlane32_swap_b32 v{t}, v{t+1}",
                 f"v_max_f32 v{t}, v{t}, v{t+1}",
                 f"v_mul_f32_e64 v{t+3}, -v{t}, v{t+2}"]
            l += [f"v_pk_fma_f32 {V2(s_+2*h)}, {V2(s_+2*h)}, {V2(t+2)}, {V2(t+2)} op_sel:[0,0,1] op_sel_hi:[1,0,1]" for h in range(4)]
            l += [f"v_exp_f32 v{s_+e}, v{s_+e}" for e in range(8)]
            l += [f"v_cvt_pk_bf16_f32 v{P+h}, v{s_+2*h}, v{s_+2*h+1}" for h in range(4)]
            return l
        tmp = [228, 236, 244, 252]
        Pq = [44, 48, 54, 78]
        c += inter([soft(i, tmp[i], Pq[i]) for i in range(4)])
        c += mk("s_waitcnt lgkmcnt(0)")
        c += inter([vfix(i) for i in range(4, 8)])
        for i in range(4, 8): c += smf(i)
        LS = lambda i: sp(i)
        O = lambda i: sp(i) + 4
        def pv(i, P): return mk(f"{M16} {V4(LS(i))}, {A4(ONES)}, {V4(P)}, 0\n{M16} {V4(O(i))}, {V4(vp(i))}, {V4(P)}, 0")
        for i in range(4): c += pv(i, Pq[i])
        def fin(i, d):
            return [f"v_rcp_f32 v{LS(i)}, v{LS(i)}",
                    f"v_pk_mul_f32 {V2(O(i))}, {V2(O(i))}, {V2(LS(i))} op_sel_hi:[1,0]",
                    f"v_pk_mul_f32 {V2(O(i)+2)}, {V2(O(i)+2)}, {V2(LS(i))} op_sel_hi:[1,0]",
                    f"v_cvt_pk_bf16_f32 v{d}, v{O(i)}, v{O(i)+1}",
                    f"v_cvt_pk_bf16_f32 v{d+1}, v{O(i)+2}, v{O(i)+3}"]
        oq = lambda i: 192 + 4 * (i // 2) + 2 * (i % 2)
        Pq2 = [208, 212, 216, 220]
        second = [soft(i, tmp[i - 4], Pq2[i - 4]) for i in range(4, 8)]
        c += inter([l[:12] for l in second])
        c += inter([fin(i, oq(i)) for i in range(4)])
        c += self.unit_store(192, VST, sU[1]) + self.unit_store(196, VST + 1, sU[1])
        c += inter([l[12:] for l in second])
        for i in range(4, 8): c += pv(i, Pq2[i - 4])
        c += inter([fin(i, oq(i)) for i in range(4, 8)])
        st = self.staged()[self.nin:]
        kf = len(st) // 3
        st[kf] = st[kf] + self.flagaddr(sT2, 0) + mk(f"s_waitcnt vmcnt({kf + 1})") + self.flagstore(sT2, 2)
        st.append(self.polladdr() + self.poll_issue(0))
        c = head + self.sprinkle(c, st, 0, len(c) - self.opt.pollpos)
        c += self.unit_store(200, VST + 2, sU[1]) + self.unit_store(204, VST + 3, sU[1])
        c += self.stamp(7)
        c += self.p2setup() + self.flagaddr(sT2, 128) + mk("s_waitcnt vmcnt(4)")
        return c

    POLL = 58
    def polladdr(self):
        return mk(f"""
s_lshr_b32 s81, {sR}, 1
s_lshl_b32 s81, s81, 1
s_and_b32 {sT1}, {sW}, 1
s_add_u32 s81, s81, {sT1}
s_lshl_b32 s81, s81, 9
s_add_u32 s81, s81, {WS_FLAG}
v_and_b32 v16, 15, {vL}
v_lshlrev_b32 v16, 3, v16
v_bfe_u32 v{self.POLL}, {vL}, 4, 1
v_lshl_add_u32 v16, v{self.POLL}, 8, v16
""")
    def poll_issue(self, off, reg=None):
        return mk(f"buffer_load_dwordx2 {V2(reg or self.POLL)}, v16, {sWS}, s81 offen offset:{off} sc1")
    PT = 18; PW = 24; PX = 27; PY = 29; VXO = 34; XR = 36
    def p2setup(self):
        PT, PW, PX, PY, VXO, XR = self.PT, self.PW, self.PX, self.PY, self.VXO, self.XR
        c = mk(f"""
s_lshl_b32 {sT0}, {sR}, 1
s_lshr_b32 {sT1}, {sW}, 1
s_add_u32 {sT0}, {sT0}, {sT1}
s_lshl_b32 s59, {sT0}, 5
s_mul_i32 {sT0}, {sT0}, {RBS}
s_and_b32 {sT1}, {sW}, 1
s_lshl_b32 {sB[0]}, {sT1}, 14
s_add_u32 {sB[0]}, {sB[0]}, {sT0}
s_add_u32 {sB[1]}, {sB[0]}, {32*1024}
s_lshl_b32 {sB[2]}, {sT1}, 15
s_add_u32 {sB[2]}, {sB[2]}, {sT0}
s_add_u32 {sB[2]}, {sB[2]}, {64*1024}
s_lshl_b32 {sB[3]}, {sT1}, 13
s_add_u32 {sB[3]}, {sB[3]}, {sT0}
s_add_u32 {sB[3]}, {sB[3]}, {128*1024}
v_lshlrev_b32 v2, 4, {vL}
v_lshrrev_b32 v4, 2, {vL}
v_add_u32 v6, s59, v4
v_and_b32 v5, 3, {vL}
v_lshlrev_b32 v3, 4, v5
v_lshl_add_u32 v6, v6, 10, v3
s_lshl_b32 {sT0}, {sC}, 7
s_lshl_b32 {sT1}, {sT1}, 6
s_add_u32 {sT0}, {sT0}, {sT1}
v_add_u32 v{VXO}, {sT0}, v6
v_add_u32 v{VXO+1}, 0x4000, v{VXO}
buffer_load_dwordx4 {V4(XR)}, v{VXO}, {sX}, 0 offen
buffer_load_dwordx4 {V4(XR+4)}, v{VXO+1}, {sX}, 0 offen
v_and_b32 v6, 31, {vL}
v_add_u32 v3, s59, v6
v_lshlrev_b32 v33, 4, v3
v_add_u32 v{PW}, {sT3}, v2
v_add_u32 v{PW+1}, 0x10000, v{PW}
v_add_u32 v{PW+2}, 0x20000, v{PW}
v_xor_b32 v{PX}, 0x800, v{PW}
v_lshrrev_b32 v3, 5, {vL}
v_bfe_u32 v{PY}, {vL}, 1, 2
v_xor_b32 v3, v3, v{PY}
v_lshlrev_b32 v3, 4, v3
v_lshl_add_u32 v3, v6, 6, v3
s_add_u32 {sT0}, {sT3}, 0x20000
v_add_u32 v{PY}, {sT0}, v3
v_xor_b32 v{PY+1}, 32, v{PY}
v_bfe_u32 v3, {vL}, 3, 2
v_xor_b32 v3, v3, v5
v_lshlrev_b32 v3, 4, v3
v_lshl_add_u32 v3, v4, 6, v3
v_add_u32 v{PY+2}, {sT0}, v3
v_lshrrev_b32 v4, 5, {vL}
v_lshlrev_b32 v4, 10, v4
v_bfe_u32 v6, {vL}, 2, 2
v_lshl_add_u32 v4, v6, 7, v4
v_lshrrev_b32 v6, 1, v6
v_lshl_add_u32 v4, v6, 6, v4
v_bfe_u32 v6, {vL}, 4, 1
v_lshl_add_u32 v4, v6, 5, v4
v_and_b32 v6, 1, {vL}
v_lshl_add_u32 v4, v6, 4, v4
v_bfe_u32 v6, {vL}, 1, 1
v_lshl_add_u32 v4, v6, 3, v4
v_xor_b32 v4, {sT1}, v4
s_lshl_b32 {sT1}, {sT1}, 5
v_add_u32 v{PT}, {sT1}, v4
v_xor_b32 v{PT+1}, 64, v{PT}
v_add_u32 v{PT+2}, 0x10000, v{PT}
v_add_u32 v{PT+3}, 0x10000, v{PT+1}
v_add_u32 v{PT+4}, 0x20000, v{PT}
v_add_u32 v{PT+5}, 0x20000, v{PT+1}
""")
        return c

    def phase2(self):
        o = self.opt
        BF = [216, 32]; DACC = 64; ABUF = 128; DEPTH = o.depth
        PT, PW, PX, PY, VXO, XR, POLL = self.PT, self.PW, self.PX, self.PY, self.VXO, self.XR, self.POLL
        TILES = self.TILES
        c = mk("L_join:")
        c += self.stamp(8)
        if o.p1only:
            return c + mk(f"s_waitcnt vmcnt(0)\ns_cmp_eq_u32 {sTyp}, 1\ns_cbranch_scc1 L_noflag") + self.flagstore(sT2, 8) + mk("L_noflag:")
        def bread(t):
            out = []
            for h in range(4):
                sg = (4 * t + h) % 36
                for cb in range(2):
                    for e in range(2):
                        out.append(I(f"ds_read_b64_tr_b16 {A2(BF[t&1]+8*h+4*cb+2*e)}, v{PT+2*(sg//16)+cb} offset:{(sg%16)*4096+e*512}"))
            return out
        c += mk(f"""
v_cmp_ne_u64 vcc, {sNon}, {V2(POLL)}
s_cbranch_vccnz L_slow_e
L_go:
""")
        self.slow2 = mk(f"""
L_slow_e:
s_mov_b32 {sCnt}, 0
L_se:
""") + self.poll_issue(0) + mk(f"""
s_add_u32 {sCnt}, {sCnt}, 1
s_waitcnt vmcnt(0)
v_cmp_ne_u64 vcc, {sNon}, {V2(POLL)}
s_cmp_gt_u32 {sCnt}, 20000
s_cbranch_scc1 L_go
s_cbranch_vccnz L_se
s_branch L_go
L_slow_o:
s_mov_b32 {sCnt}, 0
L_so:
""") + self.poll_issue(128) + mk(f"""
s_add_u32 {sCnt}, {sCnt}, 1
s_waitcnt vmcnt(0)
v_cmp_ne_u64 vcc, {sNon}, {V2(POLL)}
s_and_b32 vcc_lo, vcc_lo, 0xff00ff
s_cbranch_scc0 L_back_o
s_cmp_gt_u32 {sCnt}, 20000
s_cbranch_scc0 L_so
s_branch L_back_o
""")
        c += self.stamp(9) + self.stamp(10)
        vm = []
        def aload(t):
            r, k = TILES[2 * t]; b = ABUF + 16 * (t % DEPTH)
            vm.extend([("a", t)] * 4)
            return mk(f"s_add_u32 {sT0}, {sB[r]}, {k*1024}") + [I(f"buffer_load_dwordx4 {V4(b+4*h)}, v2, {sWS}, {sT0} offen offset:{1024*h} sc1") for h in range(4)]
        def young(tag): return len(vm) - 1 - max(k for k, t in enumerate(vm) if t == tag)
        for t in range(o.burst): c += aload(t)
        c += mk(f"s_mov_b32 {sT1}, {WS_STAT}\nbuffer_load_dword v{XR+8}, v33, {sWS}, {sT1} offen sc1"); vm.append(("rs", 0))
        c += mk(f"s_waitcnt vmcnt({len(vm)})\ns_cmp_eq_u32 {sTyp}, 1\ns_cbranch_scc1 L_noflag")
        c += self.flagstore(sT2, 8) + mk("L_noflag:\ns_barrier")
        c += bread(0)
        M32 = "v_mfma_f32_32x32x16_bf16"
        issued = o.burst; nwr = 0
        TP = 14 - 2 * o.burst
        xo = [0, 1024, 8192, 9216]
        RX = ABUF + 16 * (10 % DEPTH)
        TM = ABUF + 16 * (11 % DEPTH)
        dval = mk(f"v_mul_f32 v{XR+8}, v{XR+8}, v{XR+8}")
        el = range(16)
        dval += [I(f"v_add_f32 v{DACC+e}, v{DACC+e}, v{RX+e}") for e in el]
        dval += [I(f"v_mul_f32 v{DACC+e}, v{XR+8}, v{DACC+e}") for e in el]
        dval += [I(f"v_mul_f32 v{TM+e}, 0xbfb8aa3b, v{DACC+e}") for e in el]
        dval += [I(f"v_exp_f32 v{TM+e}, v{TM+e}") for e in el]
        dval += [I(f"v_add_f32 v{TM+e}, 1.0, v{TM+e}") for e in el]
        dval += [I(f"v_rcp_f32 v{TM+e}, v{TM+e}") for e in el]
        dval += [I(f"v_mul_f32 v{DACC+e}, v{DACC+e}, v{TM+e}") for e in el]
        for k in range(8):
            dval += mk(f"v_lshlrev_b32 v{46+2*k}, 16, v{XR+k}\nv_and_b32 v{47+2*k}, 0xffff0000, v{XR+k}")
        WS_ = [int(ch) for ch in o.wsched]; wdone = 0; assert sum(WS_) == 36
        BARS = [int(x) for x in o.bars.split(",")]
        for t in range(18):
            b = ABUF + 16 * (t % DEPTH)
            bar = t in BARS
            c += mk(f"s_waitcnt vmcnt({young(('a', t))}) lgkmcnt({0 if (bar or t == 16) else nwr})" + ("\ns_barrier" if bar else ""))
            if o.p2stamps and t in (0, 4, 9, 14, 16, 17): c += self.stamp({0: 2, 4: 3, 9: 4, 14: 5, 16: 6, 17: 7}[t], True)
            mm = []
            for h in range(4):
                for cb in range(2):
                    k = 16 * cb
                    d = f"a[{k}:{k+15}]" if t >= 14 else f"v[{DACC+k}:{DACC+k+15}]"
                    cc = "0" if (t in (0, 14) and h == 0) else d
                    mm.append(I(f"{M32} {d}, {A4(BF[t&1]+8*h+4*cb)}, {V4(b+4*h)}, {cc}"))
            lds = bread(t + 1) if t < 17 else []
            wr = []
            if True:
                for k in range(wdone, min(36, wdone + WS_[t])):
                    u = 18 + k // 2; blk = k & 1; sg = u - 18; wdone += 1
                    lastbar = max(x for x in BARS if x <= t); nextbar = min(x for x in BARS if x > t)
                    assert 2 * sg + 1 <= 4 * lastbar + 3 and 8 + (2 * sg) // 4 >= nextbar, (t, k)
                    wr.append(I(f"ds_write_b128 v{PW+sg//8}, {A4(self.stg(u, blk))} offset:{(sg%8)*8192+blk*1024}"))
            if t == 14:
                wr += [I(f"ds_write_b128 v{PW}, {V4(DACC+16+4*p)} offset:{xo[p]}") for p in range(4)]
            if t == 15:
                lds = [I(f"ds_read_b128 {V4(RX+4*p)}, v{PX} offset:{xo[p]}") for p in range(4)] + lds
            if t >= 16:
                n = o.dshadow // 2
                wr = dval[:n]; dval = dval[n:]
            ld = []
            if t == TP: ld += self.poll_issue(128); vm.append(("po", 0))
            if issued < 18 and issued - DEPTH < t:
                if issued == 14:
                    ld.append(mk(f"s_waitcnt vmcnt({young(('po', 0))})\nv_cmp_ne_u64 vcc, {sNon}, {V2(POLL)}\ns_nop 0\ns_and_b32 vcc_lo, vcc_lo, 0xff00ff\ns_cbranch_scc1 L_slow_o\nL_back_o:"))
                ld += aload(issued); issued += 1
            seq = []
            while ld or wr:
                if ld: seq.append(ld.pop(0))
                if wr: seq.append(wr.pop(0))
            if "m" in o.p2: mm = [I("s_nop 0") for _ in mm]
            if "w" in o.p2: seq = [x for x in seq if isinstance(x, list) or not x.op.startswith("ds_write")]
            wv = weave(mm, lds, seq, per_gap=(6 if t >= 16 else o.p2gap), lds_per_gap=o.p2lds, oth_start=(2 if t == 14 else 0))
            dsl = [x for x in wv if x.kind == "ds"]
            last = max([k for k, x in enumerate(dsl) if x.op.startswith("ds_read")], default=-1)
            nwr = len(dsl) - 1 - last
            c += wv
        c += self.stamp(11)
        lead = min(12, len(dval))
        c += dval[:lead]; dval = dval[lead:]
        per = -(-len(dval) // 8)
        for p in range(4):
            c += mk(f"ds_write_b128 v{PW}, {A4(16+4*p)} offset:{16384+xo[p]}") + dval[:per]; dval = dval[per:]
        SV = 96
        c += mk("s_waitcnt lgkmcnt(0)\ns_barrier")
        c += [I(f"ds_read_b128 {V4(RX+4*p)}, v{PX} offset:{16384+xo[p]}") for p in range(4)]
        c += dval
        c += [I(f"v_accvgpr_read_b32 v{SV+e}, a{e}") for e in el]
        c += mk("s_waitcnt lgkmcnt(0)")
        c += [I(f"v_pk_add_f32 {V2(SV+2*e)}, {V2(SV+2*e)}, {V2(RX+2*e)}") for e in range(8)]
        c += [I(f"v_pk_mul_f32 {V2(SV+2*e)}, {V2(SV+2*e)}, {V2(DACC+2*e)}") for e in range(8)]
        c += [I(f"v_cvt_pk_bf16_f32 v{8+e}, v{SV+2*e}, v{SV+2*e+1}") for e in range(8)]
        c += mk(f"""
ds_write_b128 v{PY}, {V4(8)}
ds_write_b128 v{PY+1}, {V4(12)}
ds_read_b128 {V4(112)}, v{PY+2}
ds_read_b128 {V4(116)}, v{PY+2} offset:1024
""")
        for hh in range(2):
            c += mk(f"s_waitcnt lgkmcnt({1-hh})")
            for k in range(4):
                c += mk(f"v_lshlrev_b32 v{SV+8*hh+2*k}, 16, v{112+4*hh+k}\nv_and_b32 v{SV+8*hh+2*k+1}, 0xffff0000, v{112+4*hh+k}")
            for k in range(4): c += mk(f"v_pk_add_f32 {V2(SV+8*hh+2*k)}, {V2(SV+8*hh+2*k)}, {V2(46+8*hh+2*k)}")
            for k in range(4): c += mk(f"v_cvt_pk_bf16_f32 v{120+4*hh+k}, v{SV+8*hh+2*k}, v{SV+8*hh+2*k+1}")
            c += mk(f"buffer_store_dwordx4 {V4(120+4*hh)}, v{VXO+hh}, {sOUT}, 0 offen")
        return c

    def finish(self):
        c = []
        if self.opt.stamps:
            c += self.stamp(12)
            c += mk(f"""
s_waitcnt vmcnt(0)
s_memrealtime s[96:97]
s_waitcnt lgkmcnt(0)
v_writelane_b32 v7, s96, 13
v_writelane_b32 v7, s98, 0
v_writelane_b32 v7, {sTyp}, 14
s_add_u32 s{bWS}, s66, {STAMP}
s_addc_u32 s{bWS+1}, s67, 0
s_mov_b32 s{bWS+2}, 0x100000
s_lshl_b32 {sT0}, s2, 2
s_add_u32 {sT0}, {sT0}, {sW}
s_lshl_b32 {sT0}, {sT0}, 7
v_lshlrev_b32 v4, 2, {vL}
s_mov_b64 exec, 0xffffffff
buffer_store_dword v7, v4, {sWS}, {sT0} offen
""")
        c += mk("L_end:\ns_endpgm")
        return c

    def build(self):
        pro = self.prologue()
        tys = [self.type_code(t) for t in range(2)]
        p2 = self.phase2()
        fin = self.finish()
        tot = 0
        for t in range(2):
            tot += fix_hazards(pro + tys[t][0] + p2 + fin, self.opt.verbose)
        for t in range(2):
            fix_hazards(tys[t][1], self.opt.verbose)
            e, mx = check_waits(pro + tys[t][0] + p2 + fin, f"t{t}")
            print(f"type {t}: wait errors {e}, max vm outstanding {mx}", file=sys.stderr)
        print(f"inserted nop states: {tot}", file=sys.stderr)
        slow2 = getattr(self, "slow2", [])
        fix_hazards(slow2)
        code = pro + tys[0][0] + tys[1][0] + p2 + fin + tys[0][1] + tys[1][1] + slow2
        L = KN + "_kernel"
        if self.opt.align:
            wrap = lambda t: f'.amdgcn_target "amdgcn-amd-amdhsa--gfx950"\n.text\n.p2align 8\n{t}L_codeend:\n'
            print("align (promoted, padded):", align8(code, wrap, self.opt.align > 1), file=sys.stderr)
        hdr = open("cdna_kernels/" + KN + ".s.ref").read().split("; Override launch")[0] if self.opt.final else ""
        out = hdr + f"; @launch grid=(256,1,1) block=(256,1,1) lds={LDS_BYTES}\n"
        out += f'.amdgcn_target "amdgcn-amd-amdhsa--gfx950"\n.text\n.globl {L}\n.p2align 8\n.type {L},@function\n{L}:\n'
        out += text(code)
        out += "s_endpgm\n.p2align 6\nL_codeend:\n"
        out += f""".section .rodata,"a"
.p2align 6
.amdhsa_kernel {L}
  .amdhsa_next_free_vgpr 512
  .amdhsa_next_free_sgpr 102
  .amdhsa_accum_offset 256
  .amdhsa_group_segment_fixed_size 0
  .amdhsa_kernarg_size 80
  .amdhsa_user_sgpr_count 2
  .amdhsa_user_sgpr_kernarg_segment_ptr 1
  .amdhsa_system_sgpr_workgroup_id_x 1
  .amdhsa_float_denorm_mode_32 3
.end_amdhsa_kernel
"""
        return out

if __name__ == "__main__":
    ap = argparse.ArgumentParser()
    ap.add_argument("-o", default="k.s")
    for f in ("stamps", "p1only", "verbose", "final", "nomfma", "noreads", "nocs", "nopf", "prostamps", "p2stamps"): ap.add_argument("--" + f, action="store_true")
    ap.add_argument("--p2", default="")
    ap.add_argument("--p2gap", type=int, default=5)
    ap.add_argument("--burst", type=int, default=4)
    ap.add_argument("--ramp", type=int, default=2)
    ap.add_argument("--nstage_b", type=int, default=0)
    ap.add_argument("--depth", type=int, default=8)
    ap.add_argument("--pf0", type=int, default=2)
    ap.add_argument("--tlb", type=int, default=0)
    ap.add_argument("--kgroups", type=int, default=1)
    ap.add_argument("--quota", type=int, default=10)
    ap.add_argument("--wsched", default="033333333333300000")
    ap.add_argument("--bars", default="1,3,5,7,9,11,13,15")
    ap.add_argument("--align", type=int, default=2)
    ap.add_argument("--proextra", type=int, default=0)
    ap.add_argument("--dshadow", type=int, default=60)
    ap.add_argument("--pollpos", type=int, default=30)
    ap.add_argument("--stsched", type=lambda x: [int(ch) for ch in x], default=[int(ch) for ch in "0000000000033334"])
    ap.add_argument("--p2lds", type=int, default=3)
    ap.add_argument("--pfslice", type=int, default=4096)
    opt = ap.parse_args()
    import subprocess, re, os
    for _ in range(2):
        open(opt.o, "w").write(G(opt).build())
        subprocess.check_call(["clang", "-x", "assembler", "-target", "amdgcn-amd-amdhsa", "-mcpu=gfx950", "-c", opt.o, "-o", opt.o + ".o"])
        t = subprocess.check_output(["llvm-objdump", "-t", opt.o + ".o"], text=True)
        sym = {m.group(2): int(m.group(1), 16) for m in re.finditer(r"^([0-9a-f]{16}) .* (L_\w+)$", t, re.M)}
        n = sym["L_codeend"] - sym["L_pc"]
        opt.pfslice = (n - 8192) // 7 // 16 * 16
        assert 0 < opt.pfslice <= 8192
        opt.verbose = False
    os.remove(opt.o + ".o")
    print("code bytes", sym["L_codeend"], "pfslice", opt.pfslice, {k: v for k, v in sym.items() if k in ("L_pc", "L_tb", "L_join", "L_go", "L_end")}, file=sys.stderr)
```

```python
import sys, argparse, struct
from fw import *
KN = "recurrent_scan__sliding_local_dilated__glu_gated_bilinear__prompt"

WSLOT = 20480
XBASE = 5 * WSLOT
XSLOT = 18432
MISC = XBASE + 3 * XSLOT
STATL = MISC
LDS_BYTES = 163840
RBS = 144 * 1024
WS_STAT = 0x900000
WS_FLAG = 0x910000
WS_SIZE = 0x920000
STAMP = 200 << 20
def S4(b): return f"s[{b}:{b+3}]"
bX, bWO, bWD, bOUT, bWS, bDBG = 4, 8, 12, 16, 20, 24
sX, sWO, sWD, sOUT, sWS, sDBG = map(S4, (bX, bWO, bWD, bOUT, bWS, bDBG))
bS = [28, 32, 36, 40, 44]; sS = [S4(b) for b in bS]
sW, sM, sN, sR, sC = "s68", "s69", "s70", "s71", "s72"
sKa, sKb, sIncA = "s73", "s74", "s75"
sWoff, sXoff, sHoff = "s76", "s77", "s78"
sIdx, sTyp = "s79", "s80"
sT0, sT1, sT2, sT3 = "s82", "s83", "s84", "s85"
sNon = "s[86:87]"; sNonL, sNonH = "s86", "s87"
sU = ["s88", "s89", "s90"]
sEx = "s[94:95]"
sB = ["s48", "s49", "s50", "s51"]
sWB = ["s52", "s53", "s54", "s55"]
sCnt = "s58"
sXc = "s93"; sXk = "s92"
vL = "v1"
vX = ["v8", "v9"]; vH = ["v10", "v11"]; vWg = ["v12", "v13", "v14", "v15", "v16"]; vB2 = "v17"
RA = 18
RT = 22
VST = 26
BIAS = 30
GAT = 44
NON = 56
GA = 58
SX = 60
V4 = lambda r: f"v[{r}:{r+3}]"
V2 = lambda r: f"v[{r}:{r+1}]"
A4 = lambda r: f"a[{r}:{r+3}]"
A2 = lambda r: f"a[{r}:{r+1}]"
CSACC = 228
ONES = 252
def f2h(x): return "0x%08x" % struct.unpack("<I", struct.pack("<f", x))[0]
aQ = lambda i: 88 + 4 * i
aK = lambda i: 120 + 4 * i
aV = lambda i: 156 + 4 * i
aG = lambda i: 192 + 4 * i
aU = lambda i: 224 + 4 * i
bAcc = lambda g, i: 96 + 32 * g + 4 * i
bMix = lambda u, i: 224 + 16 * u + 4 * i
NA = {0: 9, 1: 8}; NB = {0: 5, 1: 6}
fA = lambda st, i: 56 * st + 4 * i
def fB(ty, st, j): return 56 * st + 4 * NA[ty] + 4 * j
M16 = "v_mfma_f32_16x16x32_bf16"

class G:
    def __init__(self, opt): self.opt = opt; self.young = {}
    def pstamp(self, k):
        return self.stamp(k, True) if self.opt.prostamps else []
    def stamp(self, k, force=False):
        if not self.opt.stamps: return []
        if (self.opt.prostamps or self.opt.p2stamps) and 2 <= k <= 7 and not force: return []
        return mk(f"s_memrealtime s[96:97]\ns_memtime s[100:101]\ns_waitcnt lgkmcnt(0)\nv_writelane_b32 v7, s96, {k}\nv_writelane_b32 v7, s100, {16+k}")

    def scc_live(self, flat, k):
        for ins in flat[k:]:
            if ins.op.startswith(("s_cselect", "s_cbranch_scc", "s_addc")): return True
            if ins.kind == "salu" and not ins.op.startswith(("s_mov", "s_waitcnt", "s_nop", "s_movk")): return False
        return False
    def mksrd(self, b, p, size):
        return mk(f"s_mov_b32 s{b}, s{p}\ns_mov_b32 s{b+1}, s{p+1}\ns_mov_b32 s{b+2}, {size}\ns_mov_b32 s{b+3}, 0x20000")

    def dma_x(self, p, h, halo=True):
        base = XBASE + (p % 3) * XSLOT
        L = [mk(f"s_add_u32 {sXk}, {sXc}, {h*16384}\ns_add_u32 m0, {sXoff}, {base + 2048*h}\nbuffer_load_dwordx4 {vX[0]}, {sX}, {sXk} offen lds"),
             mk(f"s_add_u32 m0, {sXoff}, {base + 2048*h + 1024}\nbuffer_load_dwordx4 {vX[1]}, {sX}, {sXk} offen lds")]
        if halo:
            L.append(mk(f"s_add_u32 m0, {sHoff}, {base + 256*h}\nbuffer_load_dword {vH[h]}, {sX}, {sXc} offen lds"))
        if h == 1: L[-1] += mk(f"s_add_u32 {sXc}, {sXc}, 128\ns_and_b32 {sXc}, {sXc}, 1023")
        return L
    def dma_w(self, s):
        base = (s % 5) * WSLOT
        L = []
        for g in range(5):
            L.append(mk(f"s_add_u32 m0, {sWoff}, {base + 4096*g}\nbuffer_load_dwordx4 {vWg[g]}, {sS[g]}, {sKa if g < 3 else sKb} offen lds"))
        L[-1] += mk(f"s_add_u32 {sKa}, {sKa}, {sIncA}\ns_add_u32 {sKb}, {sKb}, {32*3584}")
        G = self.opt.kgroups
        if G > 1 and (s + 1) % (16 // G) == 0 and s < 15:
            L[-1].append(mk(f"s_cmp_eq_u32 {sKb}, {512*3584}\ns_cselect_b32 {sKa}, 0, {sKa}\ns_cselect_b32 {sKb}, 0, {sKb}"))
        return L
    def dma_queue(self, ty):
        Q = []
        for s in range(16):
            if s % 2 == 0 and ("x", s // 2) not in self.vm0:
                p = s // 2
                for h in range(2):
                    for a in self.dma_x(p, h, halo=(ty == 0)): Q.append((max(0, 2 * p - 5), ("x", p), a))
            if ("w", s) not in self.vm0:
                for a in self.dma_w(s): Q.append((max(0, s - 5), ("w", s), a))
        return Q

    def prologue(self):
        o = self.opt
        vm = self.vm0 = []
        def note(L, tag):
            L = flatten(L)
            for i in L:
                if i.kind == "vmem": vm.append(tag)
            return L
        c = mk(f"""
s_load_dwordx16 s[48:63], s[0:1], 0
s_load_dwordx4 s[64:67], s[0:1], 64
s_cmp_ge_u32 s2, 256
s_cbranch_scc1 L_end
v_lshrrev_b32 v2, 6, v0
v_and_b32 {vL}, 63, v0
s_and_b32 {sT0}, s2, 7
v_readfirstlane_b32 {sW}, v2
s_lshr_b32 {sT1}, s2, 3
s_lshr_b32 {sM}, {sT0}, 2
s_lshl_b32 {sM}, {sM}, 3
s_lshr_b32 {sT2}, {sT1}, 2
s_add_u32 {sM}, {sM}, {sT2}
""")
        if o.stamps: c += mk("v_mov_b32 v7, 0\ns_memrealtime s[98:99]")
        c += mk(f"""
v_lshrrev_b32 v5, 3, {vL}
v_lshrrev_b32 v3, 4, {vL}
v_xor_b32 v4, v3, {vL}
v_and_b32 v4, 7, v4
v_lshlrev_b32 v4, 4, v4
s_lshl_b32 {sT3}, {sM}, 7
s_lshl_b32 {sT2}, {sW}, 5
s_add_u32 {sT2}, {sT2}, {sT3}
v_add_u32 v6, {sT2}, v5
v_lshl_add_u32 {vX[0]}, v6, 10, v4
v_xor_b32 {vX[1]}, 64, {vX[0]}
v_add_u32 {vX[1]}, 0x2000, {vX[1]}
s_lshl_b32 {sT2}, {sW}, 2
s_add_u32 {sT2}, {sT2}, {sT3}
s_sub_u32 {sT2}, {sT2}, 16
v_lshrrev_b32 v6, 5, {vL}
v_add_u32 v6, {sT2}, v6
s_lshl_b32 {sXoff}, {sW}, 5
v_lshlrev_b32 v4, 2, {vL}
v_and_b32 v4, 0x7f, v4
v_xor_b32 v4, {sXoff}, v4
v_max_i32 v2, 0, v6
v_lshl_add_u32 {vH[0]}, v2, 10, v4
v_add_u32 v6, 2, v6
v_max_i32 v2, 0, v6
v_xor_b32 v4, 16, v4
v_lshl_add_u32 {vH[1]}, v2, 10, v4
s_lshl_b32 {sXoff}, {sW}, 12
s_add_u32 {sXoff}, {sXoff}, 2048
s_lshl_b32 {sHoff}, {sW}, 9
s_lshl_b32 {sWoff}, {sW}, 10
s_and_b32 {sN}, {sT0}, 3
s_lshl_b32 {sIdx}, {sN}, 1
s_lshl_b32 {sN}, {sN}, 2
s_and_b32 {sT2}, {sT1}, 3
s_add_u32 {sN}, {sN}, {sT2}
s_lshr_b32 {sTyp}, {sT2}, 1
s_and_b32 {sT2}, {sT2}, 1
s_add_u32 {sIdx}, {sIdx}, {sT2}
s_lshl_b32 {sR}, {sT0}, 2
s_lshr_b32 {sT2}, {sT1}, 3
s_add_u32 {sR}, {sR}, {sT2}
s_and_b32 {sC}, {sT1}, 7
s_and_b32 {sT2}, {sW}, 1
s_lshl_b32 {sT2}, {sT2}, 2
v_and_b32 v4, 2, v5
v_or_b32 v4, {sT2}, v4
v_xor_b32 v4, v4, {vL}
v_and_b32 v4, 7, v4
v_lshlrev_b32 v4, 4, v4
s_lshl_b32 {sT2}, {sW}, 3
v_add_u32 v6, {sT2}, v5
s_movk_i32 {sKb}, 3584
s_movk_i32 {sKa}, 3072
s_cmp_eq_u32 {sTyp}, 1
s_cselect_b32 {sKa}, {sKb}, {sKa}
s_lshl_b32 {sIncA}, {sKa}, 5
v_mad_u32_u24 v2, v6, {sKa}, v4
v_mad_u32_u24 v3, v6, {sKb}, v4
; a: W0=128a, W1=+1024, W2=+2048, W3=W4=128a ; b: W0=W1=1024+256b, W2=W3=+128
s_lshl_b32 {sT0}, {sIdx}, 7
s_lshl_b32 {sT1}, {sIdx}, 8
s_add_u32 {sT1}, {sT1}, 1024
s_cmp_eq_u32 {sTyp}, 1
s_cselect_b32 {sT2}, {sT1}, {sT0}
s_cselect_b32 {sT3}, 0, 1024
v_add_u32 {vWg[0]}, {sT2}, v2
v_add_u32 {vWg[1]}, {sT3}, {vWg[0]}
s_cselect_b32 {sT3}, 0, 896
s_add_u32 {sT3}, {sT3}, 128
v_add_u32 {vWg[2]}, {sT3}, {vWg[1]}
s_add_u32 {sT1}, {sT1}, 128
s_cmp_eq_u32 {sTyp}, 1
s_cselect_b32 {sT2}, {sT1}, {sT0}
v_add_u32 {vWg[3]}, {sT2}, v3
s_and_b32 {sXc}, {sM}, {o.kgroups - 1}
s_mul_i32 {sXc}, {sXc}, {1024 // o.kgroups}
s_waitcnt lgkmcnt(0)
""")
        c += self.pstamp(2)
        c += self.mksrd(bX, 48, 2048 * 1024)
        c += note(self.dma_x(0, 0) + self.dma_x(0, 1), ("x", 0))
        c += self.pstamp(3)
        c += mk(f"""
v_lshrrev_b32 v4, 4, {vL}
v_and_b32 v4, 2, v4
v_xor_b32 v4, v4, {vL}
v_and_b32 v4, 3, v4
v_lshlrev_b32 v4, 4, v4
s_and_b32 {sT2}, {sW}, 1
s_lshl_b32 {sT2}, {sT2}, 4
v_lshrrev_b32 v6, 2, {vL}
v_add_u32 v6, {sT2}, v6
v_mad_u32_u24 v4, v6, {sKb}, v4
s_lshl_b32 {sT2}, {sIdx}, 6
s_add_u32 {sT2}, {sT2}, 3072
v_add_u32 v4, {sT2}, v4
s_cmp_eq_u32 {sTyp}, 1
s_cselect_b64 vcc, -1, 0
s_and_b32 {sT0}, {sM}, {o.kgroups - 1}
s_mul_i32 {sT0}, {sT0}, {16 // o.kgroups}
s_mul_i32 {sKa}, {sT0}, {sIncA}
s_mul_i32 {sKb}, {sT0}, {32*3584}
s_cmp_eq_u32 {sTyp}, 1
v_cndmask_b32 {vWg[4]}, {vWg[3]}, v4, vcc
s_mov_b32 {sT0}, {512*3072}
s_mov_b32 {sT1}, {512*3584}
s_cselect_b32 s28, s56, s50
s_cselect_b32 s29, s57, s51
s_cselect_b32 s30, {sT1}, {sT0}
s_mov_b32 s31, 0x20000
s_cselect_b32 s32, s58, s50
s_cselect_b32 s33, s59, s51
s_mov_b32 s34, s30
s_mov_b32 s35, 0x20000
s_mov_b32 s36, s28
s_mov_b32 s37, s29
s_mov_b32 s38, s30
s_mov_b32 s39, 0x20000
s_cselect_b32 s40, s58, s56
s_cselect_b32 s41, s59, s57
s_mov_b32 s42, {sT1}
s_mov_b32 s43, 0x20000
s_lshl_b32 {sT0}, {sTyp}, 1
s_cmp_lt_u32 {sW}, {sT0}
s_cselect_b32 s44, s56, s58
s_cselect_b32 s45, s57, s59
s_mov_b32 s46, {sT1}
s_mov_b32 s47, 0x20000
""")
        c += note(self.dma_w(0), ("w", 0))
        c += self.pstamp(4)
        c += note(mk(f"""
s_getpc_b64 s[88:89]
L_pc:
s_lshr_b32 {sT0}, s2, 3
s_and_b32 {sT0}, {sT0}, 7
s_mul_i32 {sT0}, {sT0}, {o.pfslice}
s_add_u32 s88, s88, {sT0}
s_addc_u32 s89, s89, 0
v_lshlrev_b32 v2, 4, v0
v_add_u32 v3, 0x1000, v2
global_load_dwordx4 v[{SX+8}:{SX+11}], v2, s[88:89]
global_load_dwordx4 v[{SX+12}:{SX+15}], v3, s[88:89]
s_lshl_b32 {sT0}, {sM}, 7
s_lshl_b32 {sT1}, {sN}, 3
s_add_u32 {sT1}, {sT1}, {sT0}
s_lshl_b32 {sT2}, {sW}, 1
s_add_u32 {sT1}, {sT1}, {sT2}
s_lshl_b32 {sT3}, {sT1}, 10
v_lshlrev_b32 v{SX+16}, 4, {vL}
buffer_load_dwordx4 v[{SX}:{SX+3}], v{SX+16}, {sX}, {sT3} offen
buffer_load_dwordx4 v[{SX+4}:{SX+7}], v{SX+16}, {sX}, {sT3} offen offset:1024
"""), ("pre", 0))
        if o.tlb:
            c += self.mksrd(bWO, 52, 512 * 1024) + self.mksrd(bWD, 60, 1792 * 1024) + self.mksrd(bOUT, 62, 2048 * 1024) + self.mksrd(bWS, 66, WS_SIZE + 0x100000)
            c += note(mk(f"""
v_lshlrev_b32 v2, {o.tlb}, {vL}
buffer_load_dword a216, v2, {sWO}, 0 offen
buffer_load_dword a217, v2, {sWD}, 0 offen
buffer_load_dword a218, v2, {sOUT}, 0 offen
"""), ("pre", 0))
        c += self.mksrd(bDBG, 64, 256)
        c += mk(f"""
s_or_b32 {sT0}, s2, {sW}
s_cmp_lg_u32 {sT0}, 0
s_cbranch_scc1 L_nononce
s_memrealtime s[86:87]
s_waitcnt lgkmcnt(0)
s_or_b32 s86, s86, 1
v_mov_b32 v2, s86
v_mov_b32 v3, s87
v_mov_b32 v4, 0
s_mov_b64 exec, 1
buffer_store_dwordx2 v[2:3], v4, {sDBG}, 0 offen sc1
s_mov_b64 exec, -1
L_nononce:
""")
        c += note(self.dma_w(1), ("w", 1))
        c += self.pstamp(5)
        su = self.mksrd(bWO, 52, 512 * 1024) + self.mksrd(bWD, 60, 1792 * 1024) + self.mksrd(bOUT, 62, 2048 * 1024) + self.mksrd(bWS, 66, WS_SIZE)
        setup = [su]
        setup.append(mk(f"""
; g=l>>4 (v2), r=(l>>2)&3 (v3), c4=l&3 (v4)
v_lshrrev_b32 v2, 4, {vL}
v_bfe_u32 v3, {vL}, 2, 2
v_and_b32 v4, 3, {vL}
; A: c*128 + ((g ^ (c>>1))&7)*16 + XBASE
v_and_b32 v6, 15, {vL}
v_lshrrev_b32 v5, 1, v6
v_xor_b32 v5, v5, v2
v_lshlrev_b32 v5, 4, v5
v_lshl_add_u32 v5, v6, 7, v5
v_add_u32 v5, {XBASE}, v5
s_lshr_b32 {sT1}, {sW}, 1
s_and_b32 {sT1}, {sT1}, {sTyp}
s_lshl_b32 {sT2}, {sT1}, 13
v_add_u32 v{RA}, {sT2}, v5
v_xor_b32 v{RA+1}, 64, v{RA}
v_subrev_u32 v{RA+2}, {sT2}, v5
v_xor_b32 v{RA+3}, 64, v{RA+2}
s_mul_i32 {sT2}, {sT1}, {2*RBS}
v_lshlrev_b32 v5, 4, {vL}
v_add_u32 v{VST}, {sT2}, v5
v_add_u32 v{VST+1}, {RBS}, v{VST}
v_subrev_u32 v{VST+2}, {sT2}, v5
v_add_u32 v{VST+2}, {2*RBS}, v{VST+2}
v_add_u32 v{VST+3}, {RBS}, v{VST+2}
"""))
        setup.append(mk(f"""
; U64 tr: g*1024 + r*128 + ((w ^ (((r>>1)&1)|((g&1)<<1)))*32) + c4*8
v_and_b32 v6, 1, v2
v_lshrrev_b32 v5, 1, v3
v_lshl_or_b32 v5, v6, 1, v5
v_xor_b32 v5, {sW}, v5
v_lshlrev_b32 v5, 5, v5
v_lshl_add_u32 v5, v2, 10, v5
v_lshl_add_u32 v5, v3, 7, v5
v_lshl_add_u32 v{RT}, v4, 3, v5
v_add_u32 v{RT+1}, {3*WSLOT}, v{RT}
v_lshrrev_b32 v5, 1, v2
v_lshlrev_b32 v5, 10, v5
v_lshl_add_u32 v5, v6, 9, v5
v_lshl_add_u32 v5, v3, 6, v5
v_lshl_add_u32 v5, v4, 3, v5
v_xor_b32 v6, {sW}, v6
v_and_b32 v6, 1, v6
v_lshl_add_u32 v{RT+2}, v6, 5, v5
v_add_u32 v{RT+3}, {3*WSLOT}, v{RT+2}
v_lshrrev_b32 v5, 2, {vL}
v_and_b32 v5, 4, v5
v_xor_b32 v5, v5, {vL}
v_and_b32 v5, 7, v5
v_lshlrev_b32 v5, 4, v5
v_lshrrev_b32 v6, 3, {vL}
v_lshl_add_u32 v5, v6, 10, v5
s_lshl_b32 {sT2}, {sC}, 7
v_add_u32 {vB2}, {sT2}, v5
"""))
        b = mk(f"""
v_and_b32 v6, 15, {vL}
v_lshlrev_b32 v2, 2, v2
v_sub_u32 v2, v6, v2
v_mov_b32 v3, 0xff800000
v_mov_b32 v6, 0x80000000
""")
        for r in range(4):
            b += mk(f"""
v_subrev_u32 v4, {r}, v2
v_and_b32 v5, 0x80000001, v4
v_cmp_eq_u32 vcc, 0, v5
v_cmp_eq_u32 {sEx}, v6, v5
v_mov_b32 v{52+r}, 0
v_cndmask_b32_e64 v{BIAS+4+r}, v3, 0, vcc
v_cndmask_b32_e64 v{BIAS+r}, v3, 0, {sEx}
""")
        setup.append(b)
        b = mk(f"""
s_cmp_eq_u32 {sM}, 0
s_cselect_b64 vcc, -1, 0
v_mov_b32 v4, 0x3f803f80
""")
        for r in range(4):
            b += mk(f"v_cndmask_b32 v{BIAS+8+r}, v{BIAS+r}, v3, vcc\nv_accvgpr_write_b32 a{ONES+r}, v4")
        for k in range(88, 248, 16):
            b += mk(f"v_mfma_f32_32x32x16_bf16 v[{k}:{k+15}], v[52:55], v[52:55], 0")
        b += mk(f"{M16} v[248:251], v[52:55], v[52:55], 0\n{M16} v[252:255], v[52:55], v[52:55], 0")
        for k in range(6):
            b += mk(f"{M16} {A4(CSACC+4*k)}, v[52:55], v[52:55], 0")
        setup.append(b)
        setup.append(mk(f"""
s_mul_i32 {sT1}, {sM}, 576
s_lshl_b32 {sT2}, {sIdx}, 2
s_add_u32 {sT2}, {sT2}, {sW}
s_add_u32 {sU[1]}, {sT1}, {sT2}
s_add_u32 {sU[0]}, {sU[1]}, 32
s_lshl_b32 {sT2}, {sIdx}, 3
s_add_u32 {sT2}, {sT2}, {sW}
s_add_u32 {sT2}, {sT2}, {sT1}
s_add_u32 {sT2}, {sT2}, 64
s_add_u32 {sT3}, {sT2}, 4
s_cmp_eq_u32 {sTyp}, 1
s_cselect_b32 {sU[0]}, {sT2}, {sU[0]}
s_cselect_b32 {sU[1]}, {sT3}, {sU[1]}
s_lshl_b32 {sT2}, {sIdx}, 1
s_and_b32 {sT3}, {sW}, 1
s_add_u32 {sT2}, {sT2}, {sT3}
s_add_u32 {sT2}, {sT2}, {sT1}
s_add_u32 {sU[2]}, {sT2}, 128
s_lshl_b32 {sU[0]}, {sU[0]}, 10
s_lshl_b32 {sU[1]}, {sU[1]}, 10
s_lshl_b32 {sU[2]}, {sU[2]}, 10
s_lshl_b32 {sT1}, {sM}, 7
s_sub_u32 {sT2}, {sT1}, 16
v_add_u32 v5, {sT2}, {vL}
v_max_i32 v{GA}, 0, v5
v_lshlrev_b32 v{GA}, 4, v{GA}
v_add_u32 v5, 64, v5
v_lshlrev_b32 v{GA+1}, 4, v5
s_add_u32 {sT1}, {sT1}, 112
v_and_b32 v5, 15, {vL}
v_add_u32 v5, {sT1}, v5
v_lshlrev_b32 v42, 4, v5
s_and_b32 {sT1}, {sW}, 1
s_lshr_b32 {sT2}, {sW}, 1
s_lshl_b32 {sT2}, {sT2}, 14
s_lshl_b32 {sWB[0]}, {sT1}, 18
s_add_u32 {sWB[0]}, {sWB[0]}, {sT2}
s_mov_b32 {sWB[1]}, {sWB[0]}
s_lshl_b32 {sWB[2]}, {sT1}, 19
s_add_u32 {sWB[2]}, {sWB[2]}, {sT2}
s_add_u32 {sWB[2]}, {sWB[2]}, {512*1024}
s_lshl_b32 {sWB[3]}, {sT1}, 17
s_add_u32 {sWB[3]}, {sWB[3]}, {sT2}
s_add_u32 {sWB[3]}, {sWB[3]}, {1536*1024}
"""))
        rest = [(a, ("x", 1)) for a in self.dma_x(1, 0) + self.dma_x(1, 1)] + [(a, ("w", 2)) for a in self.dma_w(2)]
        if o.proextra >= 1: rest += [(a, ("w", 3)) for a in self.dma_w(3)]
        if o.proextra >= 2: rest += [(a, ("x", 2)) for a in self.dma_x(2, 0) + self.dma_x(2, 1)]
        flat = flatten(setup)
        pts = [k for k in range(1, len(flat)) if flat[k].kind in ("valu", "mfma") and flat[k-1].kind in ("valu", "mfma") and not self.scc_live(flat, k)]
        stepp = len(pts) / (len(rest) + 1)
        at = {pts[int((k + 1) * stepp)]: rest[k] for k in range(len(rest))}
        assert len(at) == len(rest)
        for k, ins in enumerate(flat):
            if k in at: c += note(*at[k])
            c.append(ins)
        c += self.pstamp(6)
        c += mk(f"s_cmp_eq_u32 {sTyp}, 1\ns_cbranch_scc1 L_tb")
        return c

    def reads(self, ty, stage):
        st = stage & 1
        xb = ((stage // 2) % 3) * XSLOT; kh = stage & 1
        ws = stage % 5; rg = ws // 3; wb = (ws % 3) * WSLOT
        out = []
        for i in range(NA[ty]):
            if ty == 0: out.append(I(f"ds_read_b128 {A4(fA(st, i))}, v{RA+kh} offset:{xb + 2048*i}"))
            else: out.append(I(f"ds_read_b128 {A4(fA(st, i))}, v{RA+kh+(2 if i >= 4 else 0)} offset:{xb + 2048*(i+1)}"))
        def tr(j, reg, off, second):
            return [I(f"ds_read_b64_tr_b16 {A2(fB(ty, st, j))}, v{reg} offset:{wb+off}"),
                    I(f"ds_read_b64_tr_b16 {A2(fB(ty, st, j)+2)}, v{reg} offset:{wb+off+second}")]
        B = []
        for g in range(5 if ty == 0 else 4): B += tr(g, RT + rg, 4096 * g, 512)
        if ty == 1: B += tr(4, RT + 2 + rg, 16384, 256) + tr(5, RT + 2 + rg, 16384 + 2048, 256)
        return out + B

    def mfmas(self, ty, stage):
        st = stage & 1
        out = []
        def T(d, j, i): out.append(I(f"{M16} {V4(d)}, {A4(fB(ty, st, j))}, {A4(fA(st, i))}, {V4(d)}"))
        def CS(k, flip=False):
            d = A4(CSACC + 4 * k); f = A4(fB(ty, st, k))
            if self.opt.nocs: return
            out.append(I(f"{M16} {d}, {A4(ONES)}, {f}, {d}" if flip else f"{M16} {d}, {f}, {A4(ONES)}, {d}"))
        if ty == 0:
            for i in range(8): T(aQ(i), 0, i + 1)
            CS(0)
            for i in range(9): T(aK(i), 1, i)
            CS(1)
            for i in range(9): out.append(I(f"{M16} {V4(aV(i))}, {A4(fA(st, i))}, {A4(fB(ty, st, 2))}, {V4(aV(i))}"))
            CS(2, True)
            for i in range(8): T(aG(i), 3, i + 1)
            CS(3)
            for i in range(8): T(aU(i), 4, i + 1)
            CS(4)
        else:
            for g in range(4):
                for i in range(8): T(bAcc(g, i), g, i)
                CS(g)
            for u in range(2):
                for i in range(4): T(bMix(u, i), 4 + u, i)
                CS(4 + u)
        return out

    TILES = [(2, 2*k) for k in range(16)] + [(3, 2*k) for k in range(4)] + [(1, 2*k) for k in range(8)] + [(0, 2*k) for k in range(8)]
    def b2_dma(self, s):
        def free_at(q):
            a = q * 2048
            if a < XBASE: return [s_ for s_ in range(11, 16) if s_ % 5 == a // WSLOT][0]
            return {2: 11, 0: 13, 1: 15}[(a - XBASE) // XSLOT]
        out = []
        for i in range(18):
            if max(free_at(4 * i + w) for w in range(4)) != s: continue
            r, k = self.TILES[i]; srd = sWO if r == 0 else sWD
            for blk in range(2):
                out += mk(f"s_add_u32 {sT0}, {sWB[r]}, {(16*k + 8*blk)*1024}\n"
                          f"s_add_u32 m0, {sT3}, {i*8192 + blk*1024}\nbuffer_load_dwordx4 {vB2}, {srd}, {sT0} offen lds")
        return out

    def l2pf(self, k):
        srd, row0 = [(sWD, 1536), (sWD, 0), (sWD, 256), (sWO, 0), (sWO, 256), (sWD, 512), (sWD, 768), (sWD, 1024), (sWD, 1280)][k]
        L = []
        if k == 0:
            L += mk(f"""
s_lshr_b32 s91, s2, 3
s_lshl_b32 s91, s91, 2
s_add_u32 s91, s91, {sW}
s_lshl_b32 s91, s91, 11
v_lshlrev_b32 v2, 7, {vL}
v_lshrrev_b32 v3, 4, {vL}
v_lshl_or_b32 v2, v3, 28, v2
v_add_u32 v2, s91, v2
""")
        L += mk(f"s_mov_b32 s91, {row0*1024}\nbuffer_load_dword a{216+k}, v2, {srd}, s91 offen")
        return L

    def flagaddr(self, dst, off):
        return mk(f"""
s_lshl_b32 {dst}, {sM}, 2
s_lshr_b32 {sT1}, {sN}, 2
s_add_u32 {dst}, {dst}, {sT1}
s_lshl_b32 {dst}, {dst}, 5
s_and_b32 {sT1}, {sN}, 3
s_lshl_b32 {sT1}, {sT1}, 2
s_add_u32 {dst}, {dst}, {sT1}
s_add_u32 {dst}, {dst}, {sW}
s_lshl_b32 {dst}, {dst}, 3
s_add_u32 {dst}, {dst}, {WS_FLAG + off}
""")
    def flagstore(self, so, r):
        return mk(f"""
v_mov_b32 v{r}, {sNonL}
v_mov_b32 v{r+1}, {sNonH}
v_lshlrev_b32 v{r+2}, 31, {vL}
v_lshl_or_b32 v{r+2}, {vL}, 25, v{r+2}
buffer_store_dwordx2 {V2(r)}, v{r+2}, {sWS}, {so} offen sc1
""")

    def stats_compute(self):
        def row(x, e, t):
            L = []
            for k in range(4):
                L.append(f"v_lshlrev_b32 v{e+2*k}, 16, v{x+k}")
                L.append(f"v_and_b32 v{e+2*k+1}, 0xffff0000, v{x+k}")
            L += [f"v_add_f32 v{x}, v{e}, v{e+1}", f"v_add_f32 v{x+1}, v{e+2}, v{e+3}", f"v_add_f32 v{x+2}, v{e+4}, v{e+5}", f"v_add_f32 v{x+3}, v{e+6}, v{e+7}",
                  f"v_add_f32 v{x}, v{x}, v{x+1}", f"v_add_f32 v{x+2}, v{x+2}, v{x+3}", f"v_add_f32 v{x}, v{x}, v{x+2}"]
            def red(r):
                R = [f"v_add_f32_dpp v{r}, v{r}, v{r} row_ror:{sh} row_mask:0xf bank_mask:0xf" for sh in (8, 4, 2, 1)]
                for p in ("16", "32"):
                    R += [f"v_mov_b32 v{r+1}, v{r}", f"v_permlane{p}_swap_b32 v{r}, v{r+1}", f"v_add_f32 v{r}, v{r}, v{r+1}"]
                return R
            L += red(x)
            L.append(f"v_mul_f32 v{t+1}, 0x3b000000, v{x}")
            for k in range(8): L.append(f"v_sub_f32 v{e+k}, v{e+k}, v{t+1}")
            L += [f"v_mul_f32 v{x}, v{e}, v{e}", f"v_mul_f32 v{x+1}, v{e+1}, v{e+1}"]
            for k in range(2, 8): L.append(f"v_fmac_f32 v{x+(k&1)}, v{e+k}, v{e+k}")
            L.append(f"v_add_f32 v{x}, v{x}, v{x+1}")
            L += red(x)
            L += [f"v_mov_b32 v{x+1}, 0x3727c5ac", f"v_fmac_f32 v{x+1}, 0x3b000000, v{x}", f"v_rsq_f32 v{t}, v{x+1}"]
            return L
        a = row(SX, SX + 8, SX + 24); b = row(SX + 4, SX + 16, SX + 26)
        out = []
        for p, q in zip(a, b): out += [I(p), I(q)]
        return out

    def publish(self, ty):
        L = mk(f"""
v_readfirstlane_b32 {sNonL}, v{NON}
v_readfirstlane_b32 {sNonH}, v{NON+1}
v_cmp_eq_u32 vcc, 1, {vL}
s_lshl_b32 {sT1}, {sM}, 7
s_lshl_b32 {sT2}, {sN}, 3
s_cmp_eq_u32 {sNonL}, 0
s_cbranch_scc1 L_slow_nonce{ty}
L_back_nonce{ty}:
v_cndmask_b32 v{SX}, v{SX+24}, v{SX+26}, vcc
v_cndmask_b32 v{SX+1}, v{SX+25}, v{SX+27}, vcc
v_mov_b32 v{SX+2}, {sNonL}
v_mov_b32 v{SX+3}, {sNonH}
s_add_u32 {sT1}, {sT1}, {sT2}
s_lshl_b32 {sT2}, {sW}, 1
s_add_u32 {sT1}, {sT1}, {sT2}
s_lshl_b32 {sT1}, {sT1}, 4
s_add_u32 {sT1}, {sT1}, {WS_STAT}
v_lshlrev_b32 v{SX+4}, 4, {vL}
v_cmp_lt_u32 vcc, 1, {vL}
v_mov_b32 v{SX+5}, 0x80000000
v_cndmask_b32 v{SX+4}, v{SX+4}, v{SX+5}, vcc
buffer_store_dwordx4 v[{SX}:{SX+3}], v{SX+4}, {sWS}, {sT1} offen sc1
""")
        return L[:5] + [L[5:8]] + L[8:]

    def gather_load(self):
        return mk(f"""
s_mov_b32 {sT1}, {WS_STAT}
buffer_load_dwordx4 {V4(GAT)}, v{GA}, {sWS}, {sT1} offen sc1
buffer_load_dwordx4 {V4(GAT+4)}, v{GA+1}, {sWS}, {sT1} offen sc1
buffer_load_dwordx4 {V4(GAT+8)}, v42, {sWS}, {sT1} offen sc1
""")
    def gather_cmp(self):
        return mk(f"""
v_cmp_ne_u64 vcc, {sNon}, {V2(GAT+2)}
v_cmp_ne_u64 {sEx}, {sNon}, {V2(GAT+6)}
v_cmp_ne_u64 s[92:93], {sNon}, {V2(GAT+10)}
s_or_b64 vcc, vcc, {sEx}
s_or_b64 vcc, vcc, s[92:93]
""")

    ST = 60
    def stats_stage(self, ty):
        ST = self.ST
        L = [self.gather_cmp() + mk(f"s_cbranch_vccnz L_slow_gat{ty}\nL_back_gat{ty}:")]
        L += mk(f"""
s_mul_i32 {sT1}, {sW}, 1152
s_add_u32 {sT1}, {sT1}, {STATL}
v_lshl_add_u32 v4, {vL}, 2, {sT1}
v_and_b32 v5, 15, {vL}
v_lshl_add_u32 v5, v5, 2, {sT1}
ds_write2_b32 v4, v{GAT}, v{GAT+1} offset0:0 offset1:144
ds_write2_b32 v4, v{GAT+4}, v{GAT+5} offset0:64 offset1:208
v_add_u32 v6, 512, v5
ds_write2_b32 v6, v{GAT+8}, v{GAT+9} offset0:0 offset1:144
""")
        if ty == 0:
            L += mk("v_add_u32 v4, 256, v5")
            for i in range(9):
                if i < 4: L += mk(f"ds_read2_b32 {V2(ST+2*i)}, v5 offset0:{16*i} offset1:{144+16*i}")
                else: L += mk(f"ds_read2_b32 {V2(ST+2*i)}, v4 offset0:{16*i-64} offset1:{80+16*i}")
            L += mk(f"v_lshrrev_b32 v6, 4, {vL}\nv_lshl_add_u32 v43, v6, 4, {sT1}")
        else:
            L += mk(f"""
s_lshr_b32 {sT2}, {sW}, 1
s_lshl_b32 {sT2}, {sT2}, 8
v_add_u32 v6, {sT2}, v5
v_subrev_u32 v5, {sT2}, v5
v_add_u32 v5, 256, v5
""")
            for i in range(8):
                L += mk(f"ds_read2_b32 {V2(ST+2*i)}, v{6 if i < 4 else 5} offset0:{16+16*(i%4)} offset1:{160+16*(i%4)}")
        return L

    def type_code(self, ty):
        o = self.opt
        c = mk("L_tb:") if ty else []
        vm = list(self.vm0)
        def waitfor(tags):
            for t in tags: assert vm.count(t) >= {"w": 5, "x": 4}.get(t[0], 1) and all(q[1] != t for q in dq), (t, ty)
            idx = max([k for k, t in enumerate(vm) if t in tags], default=-1)
            return len([t for t in vm[idx + 1:] if t[0] in ("x", "w", "b2")])
        def note(L, tag):
            for i in flatten(L):
                if i.kind == "vmem": vm.append(tag)
            return L
        need = lambda s: [("w", s), ("x", s // 2)]
        dq = []
        c += mk(f"s_lshl_b32 {sT3}, {sW}, 11\ns_waitcnt vmcnt({waitfor(need(0))})\ns_barrier")
        c += self.stamp(1)
        c += self.reads(ty, 0)
        stats = self.stats_compute()
        dq = self.dma_queue(ty)
        stl = self.staged(); self.nin = sum(o.stsched); assert self.nin <= 26
        third = -(-len(stats) // 6) * 2
        SN, SP, SG, SS = 1, 5, 10, 14
        for s in range(16):
            tags = need(s + 1) if s < 15 else []
            if s == 1: tags = tags + [("pre", 0)]
            if s == SP: tags = tags + [("non", 0)]
            if s == SS: tags = tags + [("gat", 0)]
            c += mk((f"s_waitcnt vmcnt({waitfor(tags)}) lgkmcnt(0)" if tags else "s_waitcnt lgkmcnt(0)") + "\ns_barrier")
            if o.stamps and s in (1, 5, 11): c += self.stamp({1: 2, 5: 3, 11: 4}[s])
            rd = self.reads(ty, s + 1) if s < 15 else []
            other = []
            if s == SN:
                other += note(mk(f"v_mov_b32 v{NON}, 0\nbuffer_load_dwordx2 {V2(NON)}, v{NON}, {sDBG}, 0 offen sc1"), ("non", 0))
            if s == SG: other += note(self.gather_load(), ("gat", 0))
            k = 0
            while dq and dq[0][0] <= s and k < o.quota:
                _, tag, atom = dq.pop(0); other += note(atom, tag); k += 1
            if s > 10:
                assert not dq
                other += note(self.b2_dma(s), ("b2", s))
            if o.pf0 <= s < o.pf0 + 9 and not o.nopf: other += note(self.l2pf(s - o.pf0), ("pf", 0))
            for _ in range(o.stsched[s]):
                other += note(stl.pop(0), ("b2", -1))
            if 2 <= s <= 4: other += stats[(s - 2) * third: (s - 1) * third]
            if s == SP: other += note(self.publish(ty), ("pub", 0))
            if s == SS: other += self.stats_stage(ty)
            mm = self.mfmas(ty, s)
            if o.nomfma: mm = [I("s_nop 0") for _ in mm]
            if o.noreads: rd = []
            c += weave(mm, rd, other, per_gap=2)
        c += self.stamp(5)
        c += self.epi_a() if ty == 0 else self.epi_b()
        if ty == 0: c += mk("s_branch L_join")
        c = cap_vm(flatten(c), len(self.vm0))
        slow = mk(f"""
L_slow_nonce{ty}:
s_mov_b32 {sCnt}, 0
L_sn{ty}:
v_mov_b32 v{NON}, 0
buffer_load_dwordx2 {V2(NON)}, v{NON}, {sDBG}, 0 offen sc1
s_waitcnt vmcnt(0)
v_readfirstlane_b32 {sNonL}, v{NON}
v_readfirstlane_b32 {sNonH}, v{NON+1}
s_add_u32 {sCnt}, {sCnt}, 1
s_cmp_gt_u32 {sCnt}, 20000
s_cbranch_scc1 L_back_nonce{ty}
s_cmp_eq_u32 {sNonL}, 0
s_cbranch_scc1 L_sn{ty}
s_branch L_back_nonce{ty}
L_slow_gat{ty}:
s_mov_b32 {sCnt}, 0
L_sg{ty}:
""") + self.gather_load() + mk("s_waitcnt vmcnt(0)") + self.gather_cmp() + mk(f"""
s_add_u32 {sCnt}, {sCnt}, 1
s_cmp_gt_u32 {sCnt}, 20000
s_cbranch_scc1 L_back_gat{ty}
s_cbranch_vccnz L_sg{ty}
s_branch L_back_gat{ty}
""")
        return c, slow

    def stg(self, i, blk):
        j = i - 18
        return (112 + 8 * j if j < 13 else 64 + 8 * (j - 13)) + 4 * blk
    def staged(self):
        L = []
        for i in range(18, 36):
            for blk in range(2):
                r = self.stg(i, blk); g, k = self.TILES[i]
                L.append(mk(f"s_add_u32 {sT0}, {sWB[g]}, {(16*k + 8*blk)*1024}\nbuffer_load_dwordx4 {A4(r)}, {vB2}, {sWO if g == 0 else sWD}, {sT0} offen"))
        return L
    def sprinkle(self, code, items, start, stop):
        out = []; n = len(items); k = 0
        for idx, ins in enumerate(code):
            out.append(ins)
            while k < n and idx >= start and (idx - start + 1) * n >= (k + 1) * (stop - start):
                out += items[k]; k += 1
        for it in items[k:]: out += it
        return out
    NEG = "op_sel:[0,1,0] op_sel_hi:[1,1,1] neg_lo:[0,1,0] neg_hi:[0,1,0]"
    def gu(self, cs, g, u, stp, dst):
        NEG = self.NEG
        L = [f"v_pk_fma_f32 {V2(g+2*h)}, {V2(cs+2*h)}, {V2(stp)}, {V2(g+2*h)} {NEG}" for h in range(2)]
        L += [f"v_pk_fma_f32 {V2(u+2*h)}, {V2(cs+4+2*h)}, {V2(stp)}, {V2(u+2*h)} {NEG}" for h in range(2)]
        L += [f"v_pk_mul_f32 {V2(g+2*h)}, {V2(g+2*h)}, {V2(u+2*h)}" for h in range(2)]
        L += [f"v_cvt_pk_bf16_f32 v{dst+h}, v{g+2*h}, v{g+2*h+1}" for h in range(2)]
        return L
    def gu_unit(self, cs, g0, u0, g1, u1, st0, st1, vo, so):
        c = []
        for x, y in zip(self.gu(cs, g0, u0, st0, u0), self.gu(cs, g1, u1, st1, u0 + 2)): c += mk(x + "\n" + y)
        return c + self.unit_store(u0, vo, so)
    def unit_store(self, r, vo, so):
        return mk(f"v_permlane16_swap_b32 v{r}, v{r+2}\nv_permlane16_swap_b32 v{r+1}, v{r+3}\nbuffer_store_dwordx4 {V4(r)}, v{vo}, {sWS}, {so} offen sc1")
    def csread(self, dst, k, n=4):
        return [I(f"v_accvgpr_read_b32 v{dst+r}, a{CSACC+4*k+r}") for r in range(n)]

    def epi_b(self):
        ST = self.ST
        c = []
        for k in range(6): c += self.csread(8 + 4 * k if k < 2 else 36 + 4 * k, k)
        for P in range(2):
            cs = 8 if P == 0 else 44
            for j in range(4):
                c += self.gu_unit(cs, bAcc(2*P, 2*j), bAcc(2*P+1, 2*j), bAcc(2*P, 2*j+1), bAcc(2*P+1, 2*j+1), ST+4*j, ST+4*j+2, VST+j, sU[P])
        for j in range(2):
            c += self.gu_unit(52, bMix(0, 2*j), bMix(1, 2*j), bMix(0, 2*j+1), bMix(1, 2*j+1), ST+4*j, ST+4*j+2, VST+j, sU[2])
        c += self.stamp(6)
        st = self.staged()[self.nin:]; nb = min(self.opt.nstage_b, len(st))
        c += self.flagaddr(sT2, 0) + self.polladdr()
        for it in st[:nb]: c += it
        c += self.p2setup()
        c += mk(f"s_waitcnt vmcnt({nb + 2})") + self.flagstore(sT2, 8) + self.stamp(7)
        c += self.poll_issue(0)
        for it in st[nb:]: c += it
        c += mk(f"s_waitcnt vmcnt({len(st) - nb})")
        return c

    def epi_a(self):
        ST = self.ST; NEG = self.NEG
        c = []
        c += self.csread(8, 3) + self.csread(12, 4) + self.csread(44, 0) + self.csread(48, 1) + self.csread(52, 2, 1)
        for j in range(4):
            c += self.gu_unit(8, aG(2*j), aU(2*j), aG(2*j+1), aU(2*j+1), ST+2+4*j, ST+4+4*j, VST+j, sU[0])
        c += self.stamp(6)
        head = c; c = []
        vs = lambda i: 192 + 8 * (i % 4) if i < 8 else 78
        def vsread(i): return mk(f"ds_read_b128 {V4(vs(i))}, v43 offset:{64*i}\nds_read_b128 {V4(vs(i)+4)}, v43 offset:{576+64*i}")
        for i in (0, 1, 2, 3, 8): c += vsread(i)
        kp = lambda i: 8 + 2 * i if i < 4 else 18 + 2 * (i - 4) if i < 8 else 86
        def inter(LL):
            out = []
            for step in range(max(len(l) for l in LL)):
                for l in LL:
                    if step < len(l): out += mk(l[step])
            return out
        def kfix(i):
            k = aK(i); stp = ST + 2 * i
            return [f"v_pk_fma_f32 {V2(k)}, {V2(48)}, {V2(stp)}, {V2(k)} {NEG}",
                    f"v_pk_fma_f32 {V2(k+2)}, {V2(50)}, {V2(stp)}, {V2(k+2)} {NEG}",
                    f"v_pk_mul_f32 {V2(k)}, {V2(k)}, {V2(stp)} op_sel_hi:[1,0]",
                    f"v_pk_mul_f32 {V2(k+2)}, {V2(k+2)}, {V2(stp)} op_sel_hi:[1,0]",
                    f"v_cvt_pk_bf16_f32 v{kp(i)}, v{k}, v{k+1}",
                    f"v_cvt_pk_bf16_f32 v{kp(i)+1}, v{k+2}, v{k+3}"]
        c += inter([kfix(i) for i in range(9)])
        qp = lambda i: 120 + 2 * i
        def qfix(i):
            q = aQ(i); stp = ST + 2 * (i + 1)
            return [f"v_pk_fma_f32 {V2(q)}, {V2(44)}, {V2(stp)}, {V2(q)} {NEG}",
                    f"v_pk_fma_f32 {V2(q+2)}, {V2(46)}, {V2(stp)}, {V2(q+2)} {NEG}",
                    f"v_cvt_pk_bf16_f32 v{qp(i)}, v{q}, v{q+1}",
                    f"v_cvt_pk_bf16_f32 v{qp(i)+1}, v{q+2}, v{q+3}"]
        c += inter([qfix(i) for i in range(8)])
        NEGV = "op_sel_hi:[1,0,1] neg_lo:[0,1,0] neg_hi:[0,1,0]"
        vp = lambda i: 136 + 2 * i
        def vfix(i):
            v = aV(i); s_ = vs(i)
            return [f"v_pk_fma_f32 {V2(v)}, {V2(s_+4)}, {V2(52)}, {V2(v)} {NEGV}",
                    f"v_pk_fma_f32 {V2(v+2)}, {V2(s_+6)}, {V2(52)}, {V2(v+2)} {NEGV}",
                    f"v_pk_mul_f32 {V2(v)}, {V2(v)}, {V2(s_)}",
                    f"v_pk_mul_f32 {V2(v+2)}, {V2(v+2)}, {V2(s_+2)}",
                    f"v_cvt_pk_bf16_f32 v{vp(i)}, v{v}, v{v+1}",
                    f"v_cvt_pk_bf16_f32 v{vp(i)+1}, v{v+2}, v{v+3}"]
        MK = "v_mfma_f32_16x16x16_bf16"
        sp = lambda i: 88 + 8 * i if i < 4 else 156 + 8 * (i - 4)
        def smf(i):
            bp = BIAS + 8 if i == 0 else BIAS
            return mk(f"{MK} {V4(sp(i))}, {V2(kp(i))}, {V2(qp(i))}, {V4(bp)}\n{MK} {V4(sp(i)+4)}, {V2(kp(i+1))}, {V2(qp(i))}, {V4(BIAS+4)}")
        for i in range(4): c += smf(i)
        c += mk("s_waitcnt lgkmcnt(0)")
        c += inter([vfix(i) for i in (0, 1, 2, 3, 8)])
        for i in range(4, 8): c += vsread(i)
        sch = f2h(0.25 * 1.4426950408889634)
        def soft(i, t, P):
            s_ = sp(i)
            l = [f"v_max3_f32 v{t}, v{s_}, v{s_+1}, v{s_+2}",
                 f"v_max3_f32 v{t+1}, v{s_+3}, v{s_+4}, v{s_+5}",
                 f"v_max3_f32 v{t}, v{t}, v{s_+6}, v{s_+7}",
                 f"v_mul_f32 v{t+2}, {sch}, v{ST+2*(i+1)}",
                 f"v_max_f32 v{t}, v{t}, v{t+1}",
                 f"v_mov_b32 v{t+1}, v{t}",
                 f"v_permlane16_swap_b32 v{t}, v{t+1}",
                 f"v_max_f32 v{t}, v{t}, v{t+1}",
                 f"v_mov_b32 v{t+1}, v{t}",
                 f"v_permlane32_swap_b32 v{t}, v{t+1}",
                 f"v_max_f32 v{t}, v{t}, v{t+1}",
                 f"v_mul_f32_e64 v{t+3}, -v{t}, v{t+2}"]
            l += [f"v_pk_fma_f32 {V2(s_+2*h)}, {V2(s_+2*h)}, {V2(t+2)}, {V2(t+2)} op_sel:[0,0,1] op_sel_hi:[1,0,1]" for h in range(4)]
            l += [f"v_exp_f32 v{s_+e}, v{s_+e}" for e in range(8)]
            l += [f"v_cvt_pk_bf16_f32 v{P+h}, v{s_+2*h}, v{s_+2*h+1}" for h in range(4)]
            return l
        tmp = [228, 236, 244, 252]
        Pq = [44, 48, 54, 78]
        c += inter([soft(i, tmp[i], Pq[i]) for i in range(4)])
        c += mk("s_waitcnt lgkmcnt(0)")
        c += inter([vfix(i) for i in range(4, 8)])
        for i in range(4, 8): c += smf(i)
        LS = lambda i: sp(i)
        O = lambda i: sp(i) + 4
        def pv(i, P): return mk(f"{M16} {V4(LS(i))}, {A4(ONES)}, {V4(P)}, 0\n{M16} {V4(O(i))}, {V4(vp(i))}, {V4(P)}, 0")
        for i in range(4): c += pv(i, Pq[i])
        def fin(i, d):
            return [f"v_rcp_f32 v{LS(i)}, v{LS(i)}",
                    f"v_pk_mul_f32 {V2(O(i))}, {V2(O(i))}, {V2(LS(i))} op_sel_hi:[1,0]",
                    f"v_pk_mul_f32 {V2(O(i)+2)}, {V2(O(i)+2)}, {V2(LS(i))} op_sel_hi:[1,0]",
                    f"v_cvt_pk_bf16_f32 v{d}, v{O(i)}, v{O(i)+1}",
                    f"v_cvt_pk_bf16_f32 v{d+1}, v{O(i)+2}, v{O(i)+3}"]
        oq = lambda i: 192 + 4 * (i // 2) + 2 * (i % 2)
        Pq2 = [208, 212, 216, 220]
        second = [soft(i, tmp[i - 4], Pq2[i - 4]) for i in range(4, 8)]
        c += inter([l[:12] for l in second])
        c += inter([fin(i, oq(i)) for i in range(4)])
        c += self.unit_store(192, VST, sU[1]) + self.unit_store(196, VST + 1, sU[1])
        c += inter([l[12:] for l in second])
        for i in range(4, 8): c += pv(i, Pq2[i - 4])
        c += inter([fin(i, oq(i)) for i in range(4, 8)])
        st = self.staged()[self.nin:]
        kf = len(st) // 3
        st[kf] = st[kf] + self.flagaddr(sT2, 0) + mk(f"s_waitcnt vmcnt({kf + 1})") + self.flagstore(sT2, 2)
        st.append(self.polladdr() + self.poll_issue(0))
        c = head + self.sprinkle(c, st, 0, len(c) - self.opt.pollpos)
        c += self.unit_store(200, VST + 2, sU[1]) + self.unit_store(204, VST + 3, sU[1])
        c += self.stamp(7)
        c += self.p2setup() + self.flagaddr(sT2, 128) + mk("s_waitcnt vmcnt(4)")
        return c

    POLL = 58
    def polladdr(self):
        return mk(f"""
s_lshr_b32 s81, {sR}, 1
s_lshl_b32 s81, s81, 1
s_and_b32 {sT1}, {sW}, 1
s_add_u32 s81, s81, {sT1}
s_lshl_b32 s81, s81, 9
s_add_u32 s81, s81, {WS_FLAG}
v_and_b32 v16, 15, {vL}
v_lshlrev_b32 v16, 3, v16
v_bfe_u32 v{self.POLL}, {vL}, 4, 1
v_lshl_add_u32 v16, v{self.POLL}, 8, v16
""")
    def poll_issue(self, off, reg=None):
        return mk(f"buffer_load_dwordx2 {V2(reg or self.POLL)}, v16, {sWS}, s81 offen offset:{off} sc1")
    PT = 18; PW = 24; PX = 27; PY = 29; VXO = 34; XR = 36
    def p2setup(self):
        PT, PW, PX, PY, VXO, XR = self.PT, self.PW, self.PX, self.PY, self.VXO, self.XR
        c = mk(f"""
s_lshl_b32 {sT0}, {sR}, 1
s_lshr_b32 {sT1}, {sW}, 1
s_add_u32 {sT0}, {sT0}, {sT1}
s_lshl_b32 s59, {sT0}, 5
s_mul_i32 {sT0}, {sT0}, {RBS}
s_and_b32 {sT1}, {sW}, 1
s_lshl_b32 {sB[0]}, {sT1}, 14
s_add_u32 {sB[0]}, {sB[0]}, {sT0}
s_add_u32 {sB[1]}, {sB[0]}, {32*1024}
s_lshl_b32 {sB[2]}, {sT1}, 15
s_add_u32 {sB[2]}, {sB[2]}, {sT0}
s_add_u32 {sB[2]}, {sB[2]}, {64*1024}
s_lshl_b32 {sB[3]}, {sT1}, 13
s_add_u32 {sB[3]}, {sB[3]}, {sT0}
s_add_u32 {sB[3]}, {sB[3]}, {128*1024}
v_lshlrev_b32 v2, 4, {vL}
v_lshrrev_b32 v4, 2, {vL}
v_add_u32 v6, s59, v4
v_and_b32 v5, 3, {vL}
v_lshlrev_b32 v3, 4, v5
v_lshl_add_u32 v6, v6, 10, v3
s_lshl_b32 {sT0}, {sC}, 7
s_lshl_b32 {sT1}, {sT1}, 6
s_add_u32 {sT0}, {sT0}, {sT1}
v_add_u32 v{VXO}, {sT0}, v6
v_add_u32 v{VXO+1}, 0x4000, v{VXO}
buffer_load_dwordx4 {V4(XR)}, v{VXO}, {sX}, 0 offen
buffer_load_dwordx4 {V4(XR+4)}, v{VXO+1}, {sX}, 0 offen
v_and_b32 v6, 31, {vL}
v_add_u32 v3, s59, v6
v_lshlrev_b32 v33, 4, v3
v_add_u32 v{PW}, {sT3}, v2
v_add_u32 v{PW+1}, 0x10000, v{PW}
v_add_u32 v{PW+2}, 0x20000, v{PW}
v_xor_b32 v{PX}, 0x800, v{PW}
v_lshrrev_b32 v3, 5, {vL}
v_bfe_u32 v{PY}, {vL}, 1, 2
v_xor_b32 v3, v3, v{PY}
v_lshlrev_b32 v3, 4, v3
v_lshl_add_u32 v3, v6, 6, v3
s_add_u32 {sT0}, {sT3}, 0x20000
v_add_u32 v{PY}, {sT0}, v3
v_xor_b32 v{PY+1}, 32, v{PY}
v_bfe_u32 v3, {vL}, 3, 2
v_xor_b32 v3, v3, v5
v_lshlrev_b32 v3, 4, v3
v_lshl_add_u32 v3, v4, 6, v3
v_add_u32 v{PY+2}, {sT0}, v3
v_lshrrev_b32 v4, 5, {vL}
v_lshlrev_b32 v4, 10, v4
v_bfe_u32 v6, {vL}, 2, 2
v_lshl_add_u32 v4, v6, 7, v4
v_lshrrev_b32 v6, 1, v6
v_lshl_add_u32 v4, v6, 6, v4
v_bfe_u32 v6, {vL}, 4, 1
v_lshl_add_u32 v4, v6, 5, v4
v_and_b32 v6, 1, {vL}
v_lshl_add_u32 v4, v6, 4, v4
v_bfe_u32 v6, {vL}, 1, 1
v_lshl_add_u32 v4, v6, 3, v4
v_xor_b32 v4, {sT1}, v4
s_lshl_b32 {sT1}, {sT1}, 5
v_add_u32 v{PT}, {sT1}, v4
v_xor_b32 v{PT+1}, 64, v{PT}
v_add_u32 v{PT+2}, 0x10000, v{PT}
v_add_u32 v{PT+3}, 0x10000, v{PT+1}
v_add_u32 v{PT+4}, 0x20000, v{PT}
v_add_u32 v{PT+5}, 0x20000, v{PT+1}
""")
        return c

    def phase2(self):
        o = self.opt
        BF = [216, 32]; DACC = 64; ABUF = 128; DEPTH = o.depth
        PT, PW, PX, PY, VXO, XR, POLL = self.PT, self.PW, self.PX, self.PY, self.VXO, self.XR, self.POLL
        TILES = self.TILES
        c = mk("L_join:")
        c += self.stamp(8)
        if o.p1only:
            return c + mk(f"s_waitcnt vmcnt(0)\ns_cmp_eq_u32 {sTyp}, 1\ns_cbranch_scc1 L_noflag") + self.flagstore(sT2, 8) + mk("L_noflag:")
        def bread(t):
            out = []
            for h in range(4):
                sg = (4 * t + h) % 36
                for cb in range(2):
                    for e in range(2):
                        out.append(I(f"ds_read_b64_tr_b16 {A2(BF[t&1]+8*h+4*cb+2*e)}, v{PT+2*(sg//16)+cb} offset:{(sg%16)*4096+e*512}"))
            return out
        c += mk(f"""
v_cmp_ne_u64 vcc, {sNon}, {V2(POLL)}
s_cbranch_vccnz L_slow_e
L_go:
""")
        self.slow2 = mk(f"""
L_slow_e:
s_mov_b32 {sCnt}, 0
L_se:
""") + self.poll_issue(0) + mk(f"""
s_add_u32 {sCnt}, {sCnt}, 1
s_waitcnt vmcnt(0)
v_cmp_ne_u64 vcc, {sNon}, {V2(POLL)}
s_cmp_gt_u32 {sCnt}, 20000
s_cbranch_scc1 L_go
s_cbranch_vccnz L_se
s_branch L_go
L_slow_o:
s_mov_b32 {sCnt}, 0
L_so:
""") + self.poll_issue(128) + mk(f"""
s_add_u32 {sCnt}, {sCnt}, 1
s_waitcnt vmcnt(0)
v_cmp_ne_u64 vcc, {sNon}, {V2(POLL)}
s_and_b32 vcc_lo, vcc_lo, 0xff00ff
s_cbranch_scc0 L_back_o
s_cmp_gt_u32 {sCnt}, 20000
s_cbranch_scc0 L_so
s_branch L_back_o
""")
        c += self.stamp(9) + self.stamp(10)
        vm = []
        def aload(t):
            r, k = TILES[2 * t]; b = ABUF + 16 * (t % DEPTH)
            vm.extend([("a", t)] * 4)
            return mk(f"s_add_u32 {sT0}, {sB[r]}, {k*1024}") + [I(f"buffer_load_dwordx4 {V4(b+4*h)}, v2, {sWS}, {sT0} offen offset:{1024*h} sc1") for h in range(4)]
        def young(tag): return len(vm) - 1 - max(k for k, t in enumerate(vm) if t == tag)
        for t in range(o.burst): c += aload(t)
        c += mk(f"s_mov_b32 {sT1}, {WS_STAT}\nbuffer_load_dword v{XR+8}, v33, {sWS}, {sT1} offen sc1"); vm.append(("rs", 0))
        c += mk(f"s_waitcnt vmcnt({len(vm)})\ns_cmp_eq_u32 {sTyp}, 1\ns_cbranch_scc1 L_noflag")
        c += self.flagstore(sT2, 8) + mk("L_noflag:\ns_barrier")
        c += bread(0)
        M32 = "v_mfma_f32_32x32x16_bf16"
        issued = o.burst; nwr = 0
        TP = 14 - 2 * o.burst
        xo = [0, 1024, 8192, 9216]
        RX = ABUF + 16 * (10 % DEPTH)
        TM = ABUF + 16 * (11 % DEPTH)
        dval = mk(f"v_mul_f32 v{XR+8}, v{XR+8}, v{XR+8}")
        el = range(16)
        dval += [I(f"v_add_f32 v{DACC+e}, v{DACC+e}, v{RX+e}") for e in el]
        dval += [I(f"v_mul_f32 v{DACC+e}, v{XR+8}, v{DACC+e}") for e in el]
        dval += [I(f"v_mul_f32 v{TM+e}, 0xbfb8aa3b, v{DACC+e}") for e in el]
        dval += [I(f"v_exp_f32 v{TM+e}, v{TM+e}") for e in el]
        dval += [I(f"v_add_f32 v{TM+e}, 1.0, v{TM+e}") for e in el]
        dval += [I(f"v_rcp_f32 v{TM+e}, v{TM+e}") for e in el]
        dval += [I(f"v_mul_f32 v{DACC+e}, v{DACC+e}, v{TM+e}") for e in el]
        for k in range(8):
            dval += mk(f"v_lshlrev_b32 v{46+2*k}, 16, v{XR+k}\nv_and_b32 v{47+2*k}, 0xffff0000, v{XR+k}")
        WS_ = [int(ch) for ch in o.wsched]; wdone = 0; assert sum(WS_) == 36
        BARS = [int(x) for x in o.bars.split(",")]
        for t in range(18):
            b = ABUF + 16 * (t % DEPTH)
            bar = t in BARS
            c += mk(f"s_waitcnt vmcnt({young(('a', t))}) lgkmcnt({0 if (bar or t == 16) else nwr})" + ("\ns_barrier" if bar else ""))
            if o.p2stamps and t in (0, 4, 9, 14, 16, 17): c += self.stamp({0: 2, 4: 3, 9: 4, 14: 5, 16: 6, 17: 7}[t], True)
            mm = []
            for h in range(4):
                for cb in range(2):
                    k = 16 * cb
                    d = f"a[{k}:{k+15}]" if t >= 14 else f"v[{DACC+k}:{DACC+k+15}]"
                    cc = "0" if (t in (0, 14) and h == 0) else d
                    mm.append(I(f"{M32} {d}, {A4(BF[t&1]+8*h+4*cb)}, {V4(b+4*h)}, {cc}"))
            lds = bread(t + 1) if t < 17 else []
            wr = []
            if True:
                for k in range(wdone, min(36, wdone + WS_[t])):
                    u = 18 + k // 2; blk = k & 1; sg = u - 18; wdone += 1
                    lastbar = max(x for x in BARS if x <= t); nextbar = min(x for x in BARS if x > t)
                    assert 2 * sg + 1 <= 4 * lastbar + 3 and 8 + (2 * sg) // 4 >= nextbar, (t, k)
                    wr.append(I(f"ds_write_b128 v{PW+sg//8}, {A4(self.stg(u, blk))} offset:{(sg%8)*8192+blk*1024}"))
            if t == 14:
                wr += [I(f"ds_write_b128 v{PW}, {V4(DACC+16+4*p)} offset:{xo[p]}") for p in range(4)]
            if t == 15:
                lds = [I(f"ds_read_b128 {V4(RX+4*p)}, v{PX} offset:{xo[p]}") for p in range(4)] + lds
            if t >= 16:
                n = o.dshadow // 2
                wr = dval[:n]; dval = dval[n:]
            ld = []
            if t == TP: ld += self.poll_issue(128); vm.append(("po", 0))
            if issued < 18 and issued - DEPTH < t:
                if issued == 14:
                    ld.append(mk(f"s_waitcnt vmcnt({young(('po', 0))})\nv_cmp_ne_u64 vcc, {sNon}, {V2(POLL)}\ns_nop 0\ns_and_b32 vcc_lo, vcc_lo, 0xff00ff\ns_cbranch_scc1 L_slow_o\nL_back_o:"))
                ld += aload(issued); issued += 1
            seq = []
            while ld or wr:
                if ld: seq.append(ld.pop(0))
                if wr: seq.append(wr.pop(0))
            if "m" in o.p2: mm = [I("s_nop 0") for _ in mm]
            if "w" in o.p2: seq = [x for x in seq if isinstance(x, list) or not x.op.startswith("ds_write")]
            wv = weave(mm, lds, seq, per_gap=(6 if t >= 16 else o.p2gap), lds_per_gap=o.p2lds, oth_start=(2 if t == 14 else 0))
            dsl = [x for x in wv if x.kind == "ds"]
            last = max([k for k, x in enumerate(dsl) if x.op.startswith("ds_read")], default=-1)
            nwr = len(dsl) - 1 - last
            c += wv
        c += self.stamp(11)
        lead = min(12, len(dval))
        c += dval[:lead]; dval = dval[lead:]
        per = -(-len(dval) // 8)
        for p in range(4):
            c += mk(f"ds_write_b128 v{PW}, {A4(16+4*p)} offset:{16384+xo[p]}") + dval[:per]; dval = dval[per:]
        SV = 96
        c += mk("s_waitcnt lgkmcnt(0)\ns_barrier")
        c += [I(f"ds_read_b128 {V4(RX+4*p)}, v{PX} offset:{16384+xo[p]}") for p in range(4)]
        c += dval
        c += [I(f"v_accvgpr_read_b32 v{SV+e}, a{e}") for e in el]
        c += mk("s_waitcnt lgkmcnt(0)")
        c += [I(f"v_pk_add_f32 {V2(SV+2*e)}, {V2(SV+2*e)}, {V2(RX+2*e)}") for e in range(8)]
        c += [I(f"v_pk_mul_f32 {V2(SV+2*e)}, {V2(SV+2*e)}, {V2(DACC+2*e)}") for e in range(8)]
        c += [I(f"v_cvt_pk_bf16_f32 v{8+e}, v{SV+2*e}, v{SV+2*e+1}") for e in range(8)]
        c += mk(f"""
ds_write_b128 v{PY}, {V4(8)}
ds_write_b128 v{PY+1}, {V4(12)}
ds_read_b128 {V4(112)}, v{PY+2}
ds_read_b128 {V4(116)}, v{PY+2} offset:1024
""")
        for hh in range(2):
            c += mk(f"s_waitcnt lgkmcnt({1-hh})")
            for k in range(4):
                c += mk(f"v_lshlrev_b32 v{SV+8*hh+2*k}, 16, v{112+4*hh+k}\nv_and_b32 v{SV+8*hh+2*k+1}, 0xffff0000, v{112+4*hh+k}")
            for k in range(4): c += mk(f"v_pk_add_f32 {V2(SV+8*hh+2*k)}, {V2(SV+8*hh+2*k)}, {V2(46+8*hh+2*k)}")
            for k in range(4): c += mk(f"v_cvt_pk_bf16_f32 v{120+4*hh+k}, v{SV+8*hh+2*k}, v{SV+8*hh+2*k+1}")
            c += mk(f"buffer_store_dwordx4 {V4(120+4*hh)}, v{VXO+hh}, {sOUT}, 0 offen")
        return c

    def finish(self):
        c = []
        if self.opt.amp:
            k, mult = self.opt.amp
            c += self.stamp(12)
            c += mk(f"""
s_waitcnt vmcnt(0)
s_cmp_lg_u32 s2, 77
s_cbranch_scc1 L_end
v_readlane_b32 s96, v7, {k}
s_sub_u32 s96, s96, s98
s_mul_i32 s96, s96, {mult}
s_min_u32 s96, s96, 100000
s_memrealtime s[100:101]
s_waitcnt lgkmcnt(0)
s_add_u32 s96, s96, s100
L_amp:
s_memrealtime s[100:101]
s_waitcnt lgkmcnt(0)
s_sub_u32 s97, s96, s100
s_cmp_gt_i32 s97, 0
s_cbranch_scc1 L_amp
L_end:
s_endpgm
""")
            return c
        if self.opt.stamps:
            c += self.stamp(12)
            c += mk(f"""
s_waitcnt vmcnt(0)
s_memrealtime s[96:97]
s_waitcnt lgkmcnt(0)
v_writelane_b32 v7, s96, 13
v_writelane_b32 v7, s98, 0
v_writelane_b32 v7, {sTyp}, 14
s_add_u32 s{bWS}, s66, {STAMP}
s_addc_u32 s{bWS+1}, s67, 0
s_mov_b32 s{bWS+2}, 0x100000
s_lshl_b32 {sT0}, s2, 2
s_add_u32 {sT0}, {sT0}, {sW}
s_lshl_b32 {sT0}, {sT0}, 7
v_lshlrev_b32 v4, 2, {vL}
s_mov_b64 exec, 0xffffffff
buffer_store_dword v7, v4, {sWS}, {sT0} offen
""")
        c += mk("L_end:\ns_endpgm")
        return c

    def build(self):
        pro = self.prologue()
        tys = [self.type_code(t) for t in range(2)]
        p2 = self.phase2()
        fin = self.finish()
        tot = 0
        for t in range(2):
            tot += fix_hazards(pro + tys[t][0] + p2 + fin, self.opt.verbose)
        for t in range(2):
            fix_hazards(tys[t][1], self.opt.verbose)
            e, mx = check_waits(pro + tys[t][0] + p2 + fin, f"t{t}")
            print(f"type {t}: wait errors {e}, max vm outstanding {mx}", file=sys.stderr)
        print(f"inserted nop states: {tot}", file=sys.stderr)
        slow2 = getattr(self, "slow2", [])
        fix_hazards(slow2)
        code = pro + tys[0][0] + tys[1][0] + p2 + fin + tys[0][1] + tys[1][1] + slow2
        L = KN + "_kernel"
        if self.opt.align:
            wrap = lambda t: f'.amdgcn_target "amdgcn-amd-amdhsa--gfx950"\n.text\n.p2align 8\n{t}L_codeend:\n'
            print("align (promoted, padded):", align8(code, wrap, self.opt.align > 1), file=sys.stderr)
        hdr = open("cdna_kernels/" + KN + ".s.ref").read().split("; Override launch")[0] if self.opt.final else ""
        out = hdr + f"; @launch grid=(256,1,1) block=(256,1,1) lds={LDS_BYTES}\n"
        out += f'.amdgcn_target "amdgcn-amd-amdhsa--gfx950"\n.text\n.globl {L}\n.p2align 8\n.type {L},@function\n{L}:\n'
        out += text(code)
        out += "s_endpgm\n.p2align 6\nL_codeend:\n"
        out += f""".section .rodata,"a"
.p2align 6
.amdhsa_kernel {L}
  .amdhsa_next_free_vgpr 512
  .amdhsa_next_free_sgpr 102
  .amdhsa_accum_offset 256
  .amdhsa_group_segment_fixed_size 0
  .amdhsa_kernarg_size 80
  .amdhsa_user_sgpr_count 2
  .amdhsa_user_sgpr_kernarg_segment_ptr 1
  .amdhsa_system_sgpr_workgroup_id_x 1
  .amdhsa_float_denorm_mode_32 3
.end_amdhsa_kernel
"""
        return out

if __name__ == "__main__":
    ap = argparse.ArgumentParser()
    ap.add_argument("-o", default="k.s")
    for f in ("stamps", "p1only", "verbose", "final", "nomfma", "noreads", "nocs", "nopf", "prostamps", "p2stamps"): ap.add_argument("--" + f, action="store_true")
    ap.add_argument("--p2", default="")
    ap.add_argument("--p2gap", type=int, default=5)
    ap.add_argument("--burst", type=int, default=4)
    ap.add_argument("--ramp", type=int, default=2)
    ap.add_argument("--nstage_b", type=int, default=0)
    ap.add_argument("--depth", type=int, default=8)
    ap.add_argument("--pf0", type=int, default=2)
    ap.add_argument("--tlb", type=int, default=0)
    ap.add_argument("--kgroups", type=int, default=1)
    ap.add_argument("--quota", type=int, default=10)
    ap.add_argument("--amp", type=lambda x: tuple(int(v) for v in x.split(",")), default=None)
    ap.add_argument("--wsched", default="033333333333300000")
    ap.add_argument("--bars", default="1,3,5,7,9,11,13,15")
    ap.add_argument("--align", type=int, default=2)
    ap.add_argument("--proextra", type=int, default=0)
    ap.add_argument("--dshadow", type=int, default=60)
    ap.add_argument("--pollpos", type=int, default=30)
    ap.add_argument("--stsched", type=lambda x: [int(ch) for ch in x], default=[int(ch) for ch in "0000000000033334"])
    ap.add_argument("--p2lds", type=int, default=3)
    ap.add_argument("--pfslice", type=int, default=4096)
    opt = ap.parse_args()
    import subprocess, re, os
    for _ in range(2):
        open(opt.o, "w").write(G(opt).build())
        subprocess.check_call(["clang", "-x", "assembler", "-target", "amdgcn-amd-amdhsa", "-mcpu=gfx950", "-c", opt.o, "-o", opt.o + ".o"])
        t = subprocess.check_output(["llvm-objdump", "-t", opt.o + ".o"], text=True)
        sym = {m.group(2): int(m.group(1), 16) for m in re.finditer(r"^([0-9a-f]{16}) .* (L_\w+)$", t, re.M)}
        n = sym["L_codeend"] - sym["L_pc"]
        opt.pfslice = (n - 8192) // 7 // 16 * 16
        assert 0 < opt.pfslice <= 8192
        opt.verbose = False
    os.remove(opt.o + ".o")
    print("code bytes", sym["L_codeend"], "pfslice", opt.pfslice, {k: v for k, v in sym.items() if k in ("L_pc", "L_tb", "L_join", "L_go", "L_end")}, file=sys.stderr)
```

```python
import sys, argparse, struct
from fw import *
KN = "recurrent_scan__sliding_local_dilated__glu_gated_bilinear__prompt"

WSLOT = 20480
XBASE = 5 * WSLOT
XSLOT = 18432
MISC = XBASE + 3 * XSLOT
STATL = MISC
LDS_BYTES = 163840
RBS = 144 * 1024
WS_STAT = 0x900000
WS_FLAG = 0x910000
WS_SIZE = 0x920000
STAMP = 200 << 20
def S4(b): return f"s[{b}:{b+3}]"
bX, bWO, bWD, bOUT, bWS, bDBG = 4, 8, 12, 16, 20, 24
sX, sWO, sWD, sOUT, sWS, sDBG = map(S4, (bX, bWO, bWD, bOUT, bWS, bDBG))
bS = [28, 32, 36, 40, 44]; sS = [S4(b) for b in bS]
sW, sM, sN, sR, sC = "s68", "s69", "s70", "s71", "s72"
sKa, sKb, sIncA = "s73", "s74", "s75"
sWoff, sXoff, sHoff = "s76", "s77", "s78"
sIdx, sTyp = "s79", "s80"
sT0, sT1, sT2, sT3 = "s82", "s83", "s84", "s85"
sNon = "s[86:87]"; sNonL, sNonH = "s86", "s87"
sU = ["s88", "s89", "s90"]
sEx = "s[94:95]"
sB = ["s48", "s49", "s50", "s51"]
sWB = ["s52", "s53", "s56", "s57"]
sCnt = "s58"
sXc = "s93"; sXk = "s92"
vL = "v1"
vX = ["v8", "v9"]; vH = ["v10", "v11"]; vWg = ["v12", "v13", "v14", "v15", "v16"]; vB2 = "v17"
RA = 18
RT = 22
VST = 26
BIAS = 30
GAT = 44
NON = 56
GA = 58
SX = 60
V4 = lambda r: f"v[{r}:{r+3}]"
V2 = lambda r: f"v[{r}:{r+1}]"
A4 = lambda r: f"a[{r}:{r+3}]"
A2 = lambda r: f"a[{r}:{r+1}]"
CSACC = 228
ONES = 252
def f2h(x): return "0x%08x" % struct.unpack("<I", struct.pack("<f", x))[0]
aQ = lambda i: 88 + 4 * i
aK = lambda i: 120 + 4 * i
aV = lambda i: 156 + 4 * i
aG = lambda i: 192 + 4 * i
aU = lambda i: 224 + 4 * i
bAcc = lambda g, i: 96 + 32 * g + 4 * i
bMix = lambda u, i: 224 + 16 * u + 4 * i
NA = {0: 9, 1: 8}; NB = {0: 5, 1: 6}
fA = lambda st, i: 56 * st + 4 * i
def fB(ty, st, j): return 56 * st + 4 * NA[ty] + 4 * j
M16 = "v_mfma_f32_16x16x32_bf16"

class G:
    def __init__(self, opt): self.opt = opt; self.young = {}
    def pstamp(self, k):
        return self.stamp(k, True) if self.opt.prostamps else []
    def stamp(self, k, force=False):
        if not self.opt.stamps: return []
        if (self.opt.prostamps or self.opt.p2stamps) and 2 <= k <= 7 and not force: return []
        return mk(f"s_memrealtime s[96:97]\ns_memtime s[100:101]\ns_waitcnt lgkmcnt(0)\nv_writelane_b32 v7, s96, {k}\nv_writelane_b32 v7, s100, {16+k}")

    def scc_live(self, flat, k):
        for ins in flat[k:]:
            if ins.op.startswith(("s_cselect", "s_cbranch_scc", "s_addc")): return True
            if ins.kind == "salu" and not ins.op.startswith(("s_mov", "s_waitcnt", "s_nop", "s_movk")): return False
        return False
    def mksrd(self, b, p, size):
        return mk(f"s_mov_b32 s{b}, s{p}\ns_mov_b32 s{b+1}, s{p+1}\ns_mov_b32 s{b+2}, {size}\ns_mov_b32 s{b+3}, 0x20000")

    def dma_x(self, p, h, halo=True):
        base = XBASE + (p % 3) * XSLOT
        L = [mk(f"s_add_u32 {sXk}, {sXc}, {h*16384}\ns_add_u32 m0, {sXoff}, {base + 2048*h}\nbuffer_load_dwordx4 {vX[0]}, {sX}, {sXk} offen lds"),
             mk(f"s_add_u32 m0, {sXoff}, {base + 2048*h + 1024}\nbuffer_load_dwordx4 {vX[1]}, {sX}, {sXk} offen lds")]
        if halo:
            L.append(mk(f"s_add_u32 m0, {sHoff}, {base + 256*h}\nbuffer_load_dword {vH[h]}, {sX}, {sXc} offen lds"))
        if h == 1: L[-1] += mk(f"s_add_u32 {sXc}, {sXc}, 128\ns_and_b32 {sXc}, {sXc}, 1023")
        if p < self.opt.ntx:
            for a in L:
                for i in a:
                    if i.kind == "vmem": i.text = i.text.replace(" lds", " nt lds")
        if "x" in self.opt.ko and p > 0:
            for a in L:
                for i in a:
                    if i.kind == "vmem": i.text = i.text.replace(sXk, "0").replace(sXc, "0")
        return L
    def dma_w(self, s):
        base = (s % 5) * WSLOT
        L = []
        for g in range(5):
            L.append(mk(f"s_add_u32 m0, {sWoff}, {base + 4096*g}\nbuffer_load_dwordx4 {vWg[g]}, {sS[g]}, {sKa if g < 3 else sKb} offen{' nt' if s < self.opt.ntw else ''} lds"))
        if "w" not in self.opt.ko: L[-1] += mk(f"s_add_u32 {sKa}, {sKa}, {sIncA}\ns_add_u32 {sKb}, {sKb}, {32*3584}")
        G = self.opt.kgroups
        if G > 1 and (s + 1) % (16 // G) == 0 and s < 15:
            L[-1].append(mk(f"s_cmp_eq_u32 {sKb}, {512*3584}\ns_cselect_b32 {sKa}, 0, {sKa}\ns_cselect_b32 {sKb}, 0, {sKb}"))
        return L
    def dma_queue(self, ty):
        Q = []
        for s in range(16):
            if s % 2 == 0 and ("x", s // 2) not in self.vm0:
                p = s // 2
                for h in range(2):
                    for a in self.dma_x(p, h, halo=(ty == 0)): Q.append((max(0, 2 * p - 5), ("x", p), a))
            if ("w", s) not in self.vm0:
                for a in self.dma_w(s): Q.append((max(0, s - 5), ("w", s), a))
        return Q

    def wtouch(self, n):
        return mk(f"""
v_add_u32 v44, 2, v44
v_and_b32 v44, 15, v44
v_lshl_add_u32 v48, v44, 5, v45
v_mad_u32_u24 v49, v48, s86, v46
v_mad_u32_u24 v48, v48, s87, v47
buffer_load_dword a{220 + 2 * n}, v49, s[88:91], s54 offen{' nt' if self.opt.ntt else ''}
buffer_load_dword a{221 + 2 * n}, v48, {sS[4]}, s55 offen{' nt' if self.opt.ntt else ''}
""")
    def prologue(self):
        o = self.opt
        vm = self.vm0 = []
        def note(L, tag):
            L = flatten(L)
            for i in L:
                if i.kind == "vmem": vm.append(tag)
            return L
        c = mk(f"""
s_load_dwordx16 s[48:63], s[0:1], 0
s_load_dwordx4 s[64:67], s[0:1], 64
s_cmp_ge_u32 s2, 256
s_cbranch_scc1 L_end
""")
        if o.stamps: c += mk("v_mov_b32 v7, 0\ns_memrealtime s[98:99]")
        c += note(mk(f"""
s_getpc_b64 s[88:89]
L_pc:
v_lshlrev_b32 v2, 4, v0
s_lshr_b32 {sT1}, s2, 3
s_and_b32 {sT0}, {sT1}, 7
s_mul_i32 {sT0}, {sT0}, {o.pfslice}
global_load_dwordx4 a[112:115], v2, s[88:89]
v_add_u32 v3, 0x1000, v2
s_add_u32 s88, s88, {sT0}
s_addc_u32 s89, s89, 0
global_load_dwordx4 a[116:119], v3, s[88:89]
v_add_u32 v3, 0x1000, v3
global_load_dwordx4 a[120:123], v3, s[88:89]
"""), ("pre", 0))
        c += mk(f"""
v_lshrrev_b32 v2, 6, v0
v_and_b32 {vL}, 63, v0
s_and_b32 {sT0}, s2, 7
v_readfirstlane_b32 {sW}, v2
s_lshr_b32 {sM}, {sT0}, 2
s_lshl_b32 {sM}, {sM}, 3
s_lshr_b32 {sT2}, {sT1}, 2
s_add_u32 {sM}, {sM}, {sT2}
v_lshrrev_b32 v5, 3, {vL}
v_lshrrev_b32 v3, 4, {vL}
v_xor_b32 v4, v3, {vL}
v_and_b32 v4, 7, v4
v_lshlrev_b32 v4, 4, v4
s_lshl_b32 {sT3}, {sM}, 7
s_lshl_b32 {sT2}, {sW}, 5
s_add_u32 {sT2}, {sT2}, {sT3}
v_add_u32 v6, {sT2}, v5
v_lshl_add_u32 {vX[0]}, v6, 10, v4
v_xor_b32 {vX[1]}, 64, {vX[0]}
v_add_u32 {vX[1]}, 0x2000, {vX[1]}
s_lshl_b32 {sT2}, {sW}, 2
s_add_u32 {sT2}, {sT2}, {sT3}
s_sub_u32 {sT2}, {sT2}, 16
v_lshrrev_b32 v6, 5, {vL}
v_add_u32 v6, {sT2}, v6
s_lshl_b32 {sXoff}, {sW}, 5
v_lshlrev_b32 v4, 2, {vL}
v_and_b32 v4, 0x7f, v4
v_xor_b32 v4, {sXoff}, v4
v_max_i32 v2, 0, v6
v_lshl_add_u32 {vH[0]}, v2, 10, v4
v_add_u32 v6, 2, v6
v_max_i32 v2, 0, v6
v_xor_b32 v4, 16, v4
v_lshl_add_u32 {vH[1]}, v2, 10, v4
s_lshl_b32 {sXoff}, {sW}, 12
s_add_u32 {sXoff}, {sXoff}, 2048
s_lshl_b32 {sHoff}, {sW}, 9
s_lshl_b32 {sXc}, s2, 1
s_and_b32 {sXk}, s2, 4
s_add_u32 {sXc}, {sXc}, {sXk}
s_and_b32 {sXc}, {sXc}, {o.rotmask}
s_lshl_b32 s81, {sXc}, 1
s_lshl_b32 {sXc}, {sXc}, 7
s_mov_b32 s{bX+2}, {2048*1024}
s_mov_b32 s{bX+3}, 0x20000
s_waitcnt lgkmcnt(0)
s_mov_b32 s{bX}, s48
s_mov_b32 s{bX+1}, s49
""")
        c += self.pstamp(2)
        c += note(self.dma_x(0, 0) + self.dma_x(0, 1), ("x", 0))
        c += self.pstamp(3)
        c += mk(f"""
s_lshl_b32 {sWoff}, {sW}, 10
s_and_b32 {sN}, {sT0}, 3
s_lshl_b32 {sIdx}, {sN}, 1
s_lshl_b32 {sN}, {sN}, 2
s_and_b32 {sT2}, {sT1}, 3
s_add_u32 {sN}, {sN}, {sT2}
s_lshr_b32 {sTyp}, {sT2}, 1
s_and_b32 {sT2}, {sT2}, 1
s_add_u32 {sIdx}, {sIdx}, {sT2}
s_and_b32 {sT2}, {sW}, 1
s_lshl_b32 {sT3}, {sT2}, 2
v_and_b32 v4, 2, v5
v_or_b32 v4, {sT3}, v4
v_xor_b32 v4, v4, {vL}
v_and_b32 v4, 7, v4
v_lshlrev_b32 v4, 4, v4
s_lshl_b32 {sT3}, {sW}, 3
v_add_u32 v6, {sT3}, v5
s_movk_i32 s87, 3584
s_movk_i32 s86, 3072
s_lshl_b32 s95, {sIdx}, 7
s_lshl_b32 {sT3}, {sIdx}, 8
s_add_u32 {sT3}, {sT3}, 1024
s_add_u32 s49, s95, 1024
s_add_u32 s94, s95, 2048
s_add_u32 s54, {sT3}, 128
s_lshl_b32 s55, {sIdx}, 6
s_add_u32 s55, s55, 3072
s_cmp_eq_u32 {sTyp}, 1
s_cselect_b32 s86, s87, s86
s_cselect_b32 s48, {sT3}, s95
s_cselect_b32 s49, {sT3}, s49
s_cselect_b32 s94, s54, s94
s_cselect_b32 s55, s55, s95
s_cselect_b32 s95, s54, s95
s_cselect_b64 vcc, -1, 0
s_cselect_b32 s28, s56, s50
s_cselect_b32 s29, s57, s51
s_cselect_b32 s32, s58, s50
s_cselect_b32 s33, s59, s51
s_cselect_b32 s40, s58, s56
s_cselect_b32 s41, s59, s57
v_mad_u32_u24 v2, v6, s86, v4
v_mad_u32_u24 v3, v6, s87, v4
s_lshl_b32 s30, s86, 9
s_lshl_b32 {sIncA}, s86, 5
v_add_u32 {vWg[0]}, s48, v2
v_add_u32 {vWg[1]}, s49, v2
v_add_u32 {vWg[2]}, s94, v2
v_add_u32 {vWg[3]}, s95, v3
s_mov_b32 s31, 0x20000
s_mov_b32 s34, s30
s_mov_b32 s35, 0x20000
s_mov_b32 s36, s28
s_mov_b32 s37, s29
s_mov_b32 s38, s30
s_mov_b32 s39, 0x20000
s_mov_b32 s42, {512*3584}
s_mov_b32 s43, 0x20000
v_lshrrev_b32 v4, 4, {vL}
v_and_b32 v4, 2, v4
v_xor_b32 v4, v4, {vL}
v_and_b32 v4, 3, v4
v_lshlrev_b32 v4, 4, v4
s_lshl_b32 {sT2}, {sT2}, 4
v_lshrrev_b32 v6, 2, {vL}
v_add_u32 v6, {sT2}, v6
v_mad_u32_u24 v4, v6, s87, v4
s_lshl_b32 {sT2}, {sTyp}, 1
s_cmp_lt_u32 {sW}, {sT2}
s_cselect_b32 s44, s56, s58
s_cselect_b32 s45, s57, s59
s_mov_b32 s46, s42
s_mov_b32 s47, 0x20000
v_cndmask_b32 v4, v3, v4, vcc
s_mul_i32 {sKa}, s81, {sIncA}
s_mul_i32 {sKb}, s81, {32*3584}
v_add_u32 {vWg[4]}, s55, v4
""")
        c += note(self.dma_w(0), ("w", 0))
        c += self.pstamp(4)
        c += mk(f"""
v_lshrrev_b32 v2, 4, {vL}
v_bfe_u32 v3, {vL}, 2, 2
v_and_b32 v4, 3, {vL}
v_and_b32 v6, 15, {vL}
v_lshrrev_b32 v5, 1, v6
v_xor_b32 v5, v5, v2
v_lshlrev_b32 v5, 4, v5
v_lshl_add_u32 v5, v6, 7, v5
v_add_u32 v5, {XBASE}, v5
s_lshr_b32 {sT2}, {sW}, 1
s_and_b32 {sT2}, {sT2}, {sTyp}
s_lshl_b32 {sT2}, {sT2}, 13
v_add_u32 v{RA}, {sT2}, v5
v_xor_b32 v{RA+1}, 64, v{RA}
v_subrev_u32 v{RA+2}, {sT2}, v5
v_xor_b32 v{RA+3}, 64, v{RA+2}
v_and_b32 v6, 1, v2
v_lshrrev_b32 v5, 1, v3
v_lshl_or_b32 v5, v6, 1, v5
v_xor_b32 v5, {sW}, v5
v_lshlrev_b32 v5, 5, v5
v_lshl_add_u32 v5, v2, 10, v5
v_lshl_add_u32 v5, v3, 7, v5
v_lshl_add_u32 v{RT}, v4, 3, v5
v_add_u32 v{RT+1}, {3*WSLOT}, v{RT}
v_lshrrev_b32 v5, 1, v2
v_lshlrev_b32 v5, 10, v5
v_lshl_add_u32 v5, v6, 9, v5
v_lshl_add_u32 v5, v3, 6, v5
v_lshl_add_u32 v5, v4, 3, v5
v_xor_b32 v6, {sW}, v6
v_and_b32 v6, 1, v6
v_lshl_add_u32 v{RT+2}, v6, 5, v5
v_add_u32 v{RT+3}, {3*WSLOT}, v{RT+2}
v_mov_b32 v5, 0x3f803f80
s_cmp_eq_u32 {sW}, 1
s_cselect_b32 s54, s49, s48
s_cselect_b32 s88, s32, s28
s_cselect_b32 s89, s33, s29
s_cmp_eq_u32 {sW}, 2
s_cselect_b32 s54, s94, s54
s_cmp_eq_u32 {sW}, 3
s_cselect_b32 s54, s95, s54
s_cselect_b32 s88, s40, s88
s_cselect_b32 s89, s41, s89
s_cselect_b32 s90, s42, s30
s_cselect_b32 s86, s87, s86
s_mov_b32 s91, 0x20000
v_accvgpr_write_b32 a{ONES}, v5
v_accvgpr_write_b32 a{ONES+1}, v5
v_accvgpr_write_b32 a{ONES+2}, v5
v_accvgpr_write_b32 a{ONES+3}, v5
s_add_u32 s81, s81, {o.wfirst - 2}
v_lshrrev_b32 v5, 2, {vL}
v_add_u32 v44, s81, v5
s_and_b32 {sT2}, {sM}, 7
s_lshl_b32 {sT2}, {sT2}, 2
v_add_u32 v45, {sT2}, v4
v_lshrrev_b32 v46, 3, {vL}
v_lshlrev_b32 v46, 28, v46
s_lshl_b32 {sT2}, {sTyp}, 1
s_sub_u32 {sT2}, 3, {sT2}
v_xor_b32 v5, {sW}, {vL}
v_and_b32 v5, {sT2}, v5
v_lshl_or_b32 v47, v5, 26, v46
""")
        c += self.mksrd(bDBG, 64, 256)
        c += mk(f"""
s_or_b32 {sT2}, s2, {sW}
s_cmp_lg_u32 {sT2}, 0
s_cbranch_scc1 L_nononce
s_memrealtime s[94:95]
s_waitcnt lgkmcnt(0)
s_or_b32 s94, s94, 1
v_mov_b32 v2, s94
v_mov_b32 v3, s95
v_mov_b32 v4, 0
s_mov_b64 exec, 1
buffer_store_dwordx2 v[2:3], v4, {sDBG}, 0 offen sc1
s_mov_b64 exec, -1
L_nononce:
""")
        c += self.pstamp(7)
        for n in range(o.protouch): c += note(self.wtouch(n + 1), ("wt", 0))
        c += note(self.dma_w(1), ("w", 1))
        c += self.pstamp(5)
        if o.proextra >= 1: c += note(self.dma_x(1, 0) + self.dma_x(1, 1), ("x", 1))
        if o.proextra >= 2: c += note(self.dma_w(2), ("w", 2))
        c += self.pstamp(6)
        c += mk(f"s_cmp_eq_u32 {sTyp}, 1\ns_cbranch_scc1 L_tb")
        return c

    def deferred(self, ty):
        o = self.opt
        A = []
        A += self.mksrd(bWS, 66, WS_SIZE) + self.mksrd(bWO, 52, 512 * 1024) + self.mksrd(bWD, 60, 1792 * 1024) + self.mksrd(bOUT, 62, 2048 * 1024)
        A += mk(f"""
s_lshr_b32 {sT1}, s2, 3
s_and_b32 {sT2}, s2, 7
s_lshr_b32 {sR}, {sT2}, 1
s_lshl_b32 {sR}, {sR}, 3
s_lshr_b32 s64, {sT1}, 2
s_add_u32 {sR}, {sR}, s64
s_and_b32 {sC}, {sT1}, 3
s_and_b32 {sT2}, {sT2}, 1
s_lshl_b32 {sT2}, {sT2}, 2
s_add_u32 {sC}, {sC}, {sT2}
s_lshl_b32 {sT3}, {sW}, 11
v_lshrrev_b32 v5, 2, {vL}
v_and_b32 v5, 4, v5
v_xor_b32 v5, v5, {vL}
v_and_b32 v5, 7, v5
v_lshlrev_b32 v5, 4, v5
v_lshrrev_b32 v6, 3, {vL}
v_lshl_add_u32 v5, v6, 10, v5
s_lshl_b32 {sT2}, {sC}, 7
v_add_u32 {vB2}, {sT2}, v5
s_and_b32 {sT1}, {sW}, 1
s_lshr_b32 {sT2}, {sW}, 1
s_lshl_b32 {sT2}, {sT2}, 14
s_lshl_b32 {sWB[0]}, {sT1}, 18
s_add_u32 {sWB[0]}, {sWB[0]}, {sT2}
s_mov_b32 {sWB[1]}, {sWB[0]}
s_lshl_b32 s64, {sT1}, 19
s_add_u32 s64, s64, {sT2}
s_add_u32 s56, s64, {512*1024}
s_lshl_b32 s64, {sT1}, 17
s_add_u32 s64, s64, {sT2}
s_add_u32 s57, s64, {1536*1024}
s_lshl_b32 {sT1}, {sM}, 7
s_sub_u32 {sT2}, {sT1}, 16
v_add_u32 v5, {sT2}, {vL}
v_max_i32 v{GA}, 0, v5
v_lshlrev_b32 v{GA}, 4, v{GA}
v_add_u32 v5, 64, v5
v_lshlrev_b32 v{GA+1}, 4, v5
s_add_u32 {sT1}, {sT1}, 112
v_and_b32 v5, 15, {vL}
v_add_u32 v5, {sT1}, v5
v_lshlrev_b32 v42, 4, v5
""")
        B = []
        if ty == 0:
            B += mk(f"""
v_lshlrev_b32 v{VST}, 4, {vL}
v_add_u32 v{VST+1}, {RBS}, v{VST}
v_add_u32 v{VST+2}, {2*RBS}, v{VST}
v_add_u32 v{VST+3}, {3*RBS}, v{VST}
s_mul_i32 {sT1}, {sM}, 576
s_lshl_b32 {sT2}, {sIdx}, 2
s_add_u32 {sT2}, {sT2}, {sW}
s_add_u32 {sU[1]}, {sT1}, {sT2}
s_add_u32 {sU[0]}, {sU[1]}, 32
s_lshl_b32 {sU[0]}, {sU[0]}, 10
s_lshl_b32 {sU[1]}, {sU[1]}, 10
v_lshrrev_b32 v4, 4, {vL}
v_and_b32 v6, 15, {vL}
v_lshlrev_b32 v4, 2, v4
v_sub_u32 v4, v6, v4
v_mov_b32 v3, 0xff800000
v_mov_b32 v6, 0x80000000
""")
            for r in range(4):
                B += mk(f"""
v_subrev_u32 v5, {r}, v4
v_and_b32 v5, 0x80000001, v5
v_cmp_eq_u32 vcc, 0, v5
v_cmp_eq_u32 {sEx}, v6, v5
v_cndmask_b32_e64 v{BIAS+4+r}, v3, 0, vcc
v_cndmask_b32_e64 v{BIAS+r}, v3, 0, {sEx}
""")
            B.append(mk(f"s_cmp_eq_u32 {sM}, 0\ns_cselect_b64 vcc, -1, 0"))
            for r in range(4): B += mk(f"v_cndmask_b32 v{BIAS+8+r}, v{BIAS+r}, v3, vcc")
        else:
            B += mk(f"""
s_lshr_b32 {sT1}, {sW}, 1
s_mul_i32 {sT2}, {sT1}, {2*RBS}
v_lshlrev_b32 v5, 4, {vL}
v_add_u32 v{VST}, {sT2}, v5
v_add_u32 v{VST+1}, {RBS}, v{VST}
v_subrev_u32 v{VST+2}, {sT2}, v5
v_add_u32 v{VST+2}, {2*RBS}, v{VST+2}
v_add_u32 v{VST+3}, {RBS}, v{VST+2}
s_mul_i32 {sT1}, {sM}, 576
s_lshl_b32 {sT2}, {sIdx}, 3
s_add_u32 {sT2}, {sT2}, {sW}
s_add_u32 {sT2}, {sT2}, {sT1}
s_add_u32 {sU[0]}, {sT2}, 64
s_add_u32 {sU[1]}, {sT2}, 68
s_lshl_b32 {sT2}, {sIdx}, 1
s_and_b32 s64, {sW}, 1
s_add_u32 {sT2}, {sT2}, s64
s_add_u32 {sT2}, {sT2}, {sT1}
s_add_u32 {sU[2]}, {sT2}, 128
s_lshl_b32 {sU[0]}, {sU[0]}, 10
s_lshl_b32 {sU[1]}, {sU[1]}, 10
s_lshl_b32 {sU[2]}, {sU[2]}, 10
""")
        return A, B

    def reads(self, ty, stage):
        st = stage & 1
        xb = ((stage // 2) % 3) * XSLOT; kh = stage & 1
        ws = stage % 5; rg = ws // 3; wb = (ws % 3) * WSLOT
        out = []
        for i in range(NA[ty]):
            if ty == 0: out.append(I(f"ds_read_b128 {A4(fA(st, i))}, v{RA+kh} offset:{xb + 2048*i}"))
            else: out.append(I(f"ds_read_b128 {A4(fA(st, i))}, v{RA+kh+(2 if i >= 4 else 0)} offset:{xb + 2048*(i+1)}"))
        def tr(j, reg, off, second):
            return [I(f"ds_read_b64_tr_b16 {A2(fB(ty, st, j))}, v{reg} offset:{wb+off}"),
                    I(f"ds_read_b64_tr_b16 {A2(fB(ty, st, j)+2)}, v{reg} offset:{wb+off+second}")]
        B = []
        for g in range(5 if ty == 0 else 4): B += tr(g, RT + rg, 4096 * g, 512)
        if ty == 1: B += tr(4, RT + 2 + rg, 16384, 256) + tr(5, RT + 2 + rg, 16384 + 2048, 256)
        return out + B

    def mfmas(self, ty, stage):
        st = stage & 1
        out = []
        Z = lambda d: "0" if stage == 0 else d
        def T(d, j, i): out.append(I(f"{M16} {V4(d)}, {A4(fB(ty, st, j))}, {A4(fA(st, i))}, {Z(V4(d))}"))
        def CS(k, flip=False):
            d = A4(CSACC + 4 * k); f = A4(fB(ty, st, k))
            if self.opt.nocs: return
            out.append(I(f"{M16} {d}, {A4(ONES)}, {f}, {Z(d)}" if flip else f"{M16} {d}, {f}, {A4(ONES)}, {Z(d)}"))
        if ty == 0:
            for i in range(8): T(aQ(i), 0, i + 1)
            CS(0)
            for i in range(9): T(aK(i), 1, i)
            CS(1)
            for i in range(9): out.append(I(f"{M16} {V4(aV(i))}, {A4(fA(st, i))}, {A4(fB(ty, st, 2))}, {Z(V4(aV(i)))}"))
            CS(2, True)
            for i in range(8): T(aG(i), 3, i + 1)
            CS(3)
            for i in range(8): T(aU(i), 4, i + 1)
            CS(4)
        else:
            for g in range(4):
                for i in range(8): T(bAcc(g, i), g, i)
                CS(g)
            for u in range(2):
                for i in range(4): T(bMix(u, i), 4 + u, i)
                CS(4 + u)
        return out

    TILES = [(2, 2*k) for k in range(16)] + [(3, 2*k) for k in range(4)] + [(1, 2*k) for k in range(8)] + [(0, 2*k) for k in range(8)]
    def b2_dma(self, s):
        def free_at(q):
            a = q * 2048
            if a < XBASE: return [s_ for s_ in range(11, 16) if s_ % 5 == a // WSLOT][0]
            return {2: 11, 0: 13, 1: 15}[(a - XBASE) // XSLOT]
        out = []
        for i in range(18):
            if max(free_at(4 * i + w) for w in range(4)) != s: continue
            r, k = self.TILES[i]; srd = sWO if r == 0 else sWD
            for blk in range(2):
                out += mk(f"s_add_u32 {sT0}, {sWB[r]}, {(16*k + 8*blk)*1024}\n"
                          f"s_add_u32 m0, {sT3}, {i*8192 + blk*1024}\nbuffer_load_dwordx4 {vB2}, {srd}, {sT0} offen lds")
        return out

    PFG = {"h2": (sWD, 512, 4), "h3": (sWD, 1536, 1), "h1": (sWD, 0, 2), "o": (sWO, 0, 2)}
    def l2pf(self, grp, k, seq):
        srd, row0, n = self.PFG[grp]
        L = []
        if seq == 0:
            L += mk(f"""
s_lshr_b32 s91, s2, 3
s_lshl_b32 s91, s91, 2
s_add_u32 s91, s91, {sW}
s_lshl_b32 s91, s91, 11
v_lshrrev_b32 v3, 3, {vL}
v_lshlrev_b32 v3, 28, v3
s_and_b32 s65, s2, 1
s_lshl_b32 s65, s65, 9
s_add_u32 s91, s91, s65
v_and_b32 v2, 3, {vL}
v_lshl_or_b32 v3, v2, 7, v3
v_bfe_u32 v2, {vL}, 2, 1
v_lshl_or_b32 v2, v2, 10, v3
v_add_u32 v2, s91, v2
s_lshr_b32 s91, s2, 1
""")
        L += mk(f"""
s_add_u32 s65, s91, {k}
s_and_b32 s65, s65, {(n - 1) & self.opt.pfrot}
s_lshl_b32 s65, s65, 18
s_add_u32 s65, s65, {row0 * 1024}
buffer_load_dword a{216 + seq % 12}, v2, {srd}, s65 offen
""")
        return L

    def flagaddr(self, dst, off):
        return mk(f"""
s_lshl_b32 {dst}, {sM}, 2
s_lshr_b32 {sT1}, {sN}, 2
s_add_u32 {dst}, {dst}, {sT1}
s_lshl_b32 {dst}, {dst}, 5
s_and_b32 {sT1}, {sN}, 3
s_lshl_b32 {sT1}, {sT1}, 2
s_add_u32 {dst}, {dst}, {sT1}
s_add_u32 {dst}, {dst}, {sW}
s_lshl_b32 {dst}, {dst}, 3
s_add_u32 {dst}, {dst}, {WS_FLAG + off}
""")
    def flagstore(self, so, r):
        return mk(f"""
v_mov_b32 v{r}, {sNonL}
v_mov_b32 v{r+1}, {sNonH}
v_lshlrev_b32 v{r+2}, 31, {vL}
v_lshl_or_b32 v{r+2}, {vL}, 25, v{r+2}
buffer_store_dwordx2 {V2(r)}, v{r+2}, {sWS}, {so} offen sc1
""")

    def stats_load(self):
        return mk(f"""
s_lshl_b32 {sT2}, {sM}, 7
s_lshl_b32 {sT1}, {sN}, 3
s_add_u32 {sT1}, {sT1}, {sT2}
s_lshl_b32 {sT2}, {sW}, 1
s_add_u32 {sT1}, {sT1}, {sT2}
s_lshl_b32 {sT1}, {sT1}, 10
v_lshlrev_b32 v{SX+16}, 4, {vL}
buffer_load_dwordx4 v[{SX}:{SX+3}], v{SX+16}, {sX}, {sT1} offen
buffer_load_dwordx4 v[{SX+4}:{SX+7}], v{SX+16}, {sX}, {sT1} offen offset:1024
""")

    def stats_compute(self):
        def row(x, e, t):
            L = []
            for k in range(4):
                L.append(f"v_lshlrev_b32 v{e+2*k}, 16, v{x+k}")
                L.append(f"v_and_b32 v{e+2*k+1}, 0xffff0000, v{x+k}")
            L += [f"v_add_f32 v{x}, v{e}, v{e+1}", f"v_add_f32 v{x+1}, v{e+2}, v{e+3}", f"v_add_f32 v{x+2}, v{e+4}, v{e+5}", f"v_add_f32 v{x+3}, v{e+6}, v{e+7}",
                  f"v_add_f32 v{x}, v{x}, v{x+1}", f"v_add_f32 v{x+2}, v{x+2}, v{x+3}", f"v_add_f32 v{x}, v{x}, v{x+2}"]
            def red(r):
                R = [f"v_add_f32_dpp v{r}, v{r}, v{r} row_ror:{sh} row_mask:0xf bank_mask:0xf" for sh in (8, 4, 2, 1)]
                for p in ("16", "32"):
                    R += [f"v_mov_b32 v{r+1}, v{r}", f"v_permlane{p}_swap_b32 v{r}, v{r+1}", f"v_add_f32 v{r}, v{r}, v{r+1}"]
                return R
            L += red(x)
            L.append(f"v_mul_f32 v{t+1}, 0x3b000000, v{x}")
            for k in range(8): L.append(f"v_sub_f32 v{e+k}, v{e+k}, v{t+1}")
            L += [f"v_mul_f32 v{x}, v{e}, v{e}", f"v_mul_f32 v{x+1}, v{e+1}, v{e+1}"]
            for k in range(2, 8): L.append(f"v_fmac_f32 v{x+(k&1)}, v{e+k}, v{e+k}")
            L.append(f"v_add_f32 v{x}, v{x}, v{x+1}")
            L += red(x)
            L += [f"v_mov_b32 v{x+1}, 0x3727c5ac", f"v_fmac_f32 v{x+1}, 0x3b000000, v{x}", f"v_rsq_f32 v{t}, v{x+1}"]
            return L
        a = row(SX, SX + 8, SX + 24); b = row(SX + 4, SX + 16, SX + 26)
        out = []
        for p, q in zip(a, b): out += [I(p), I(q)]
        return out

    def publish(self, ty):
        L = mk(f"""
v_readfirstlane_b32 {sNonL}, v{NON}
v_readfirstlane_b32 {sNonH}, v{NON+1}
v_cmp_eq_u32 vcc, 1, {vL}
s_lshl_b32 {sT1}, {sM}, 7
s_lshl_b32 {sT2}, {sN}, 3
s_cmp_eq_u32 {sNonL}, 0
s_cbranch_scc1 L_slow_nonce{ty}
L_back_nonce{ty}:
v_cndmask_b32 v{SX}, v{SX+24}, v{SX+26}, vcc
v_cndmask_b32 v{SX+1}, v{SX+25}, v{SX+27}, vcc
v_mov_b32 v{SX+2}, {sNonL}
v_mov_b32 v{SX+3}, {sNonH}
s_add_u32 {sT1}, {sT1}, {sT2}
s_lshl_b32 {sT2}, {sW}, 1
s_add_u32 {sT1}, {sT1}, {sT2}
s_lshl_b32 {sT1}, {sT1}, 4
s_add_u32 {sT1}, {sT1}, {WS_STAT}
v_lshlrev_b32 v{SX+4}, 4, {vL}
v_cmp_lt_u32 vcc, 1, {vL}
v_mov_b32 v{SX+5}, 0x80000000
v_cndmask_b32 v{SX+4}, v{SX+4}, v{SX+5}, vcc
buffer_store_dwordx4 v[{SX}:{SX+3}], v{SX+4}, {sWS}, {sT1} offen sc1
""")
        return L[:5] + [L[5:8]] + L[8:]

    def gather_load(self):
        return mk(f"""
s_mov_b32 {sT1}, {WS_STAT}
buffer_load_dwordx4 {V4(GAT)}, v{GA}, {sWS}, {sT1} offen sc1
buffer_load_dwordx4 {V4(GAT+4)}, v{GA+1}, {sWS}, {sT1} offen sc1
buffer_load_dwordx4 {V4(GAT+8)}, v42, {sWS}, {sT1} offen sc1
""")
    def gather_cmp(self):
        return mk(f"""
v_cmp_ne_u64 vcc, {sNon}, {V2(GAT+2)}
v_cmp_ne_u64 {sEx}, {sNon}, {V2(GAT+6)}
v_cmp_ne_u64 s[92:93], {sNon}, {V2(GAT+10)}
s_or_b64 vcc, vcc, {sEx}
s_or_b64 vcc, vcc, s[92:93]
""")

    ST = 60
    def stats_stage(self, ty):
        ST = self.ST
        L = [self.gather_cmp() + mk(f"s_cbranch_vccnz L_slow_gat{ty}\nL_back_gat{ty}:")]
        L += mk(f"""
s_mul_i32 {sT1}, {sW}, 1152
s_add_u32 {sT1}, {sT1}, {STATL}
v_lshl_add_u32 v4, {vL}, 2, {sT1}
v_and_b32 v5, 15, {vL}
v_lshl_add_u32 v5, v5, 2, {sT1}
ds_write2_b32 v4, v{GAT}, v{GAT+1} offset0:0 offset1:144
ds_write2_b32 v4, v{GAT+4}, v{GAT+5} offset0:64 offset1:208
v_add_u32 v6, 512, v5
ds_write2_b32 v6, v{GAT+8}, v{GAT+9} offset0:0 offset1:144
""")
        if ty == 0:
            L += mk("v_add_u32 v4, 256, v5")
            for i in range(9):
                if i < 4: L += mk(f"ds_read2_b32 {V2(ST+2*i)}, v5 offset0:{16*i} offset1:{144+16*i}")
                else: L += mk(f"ds_read2_b32 {V2(ST+2*i)}, v4 offset0:{16*i-64} offset1:{80+16*i}")
            L += mk(f"v_lshrrev_b32 v6, 4, {vL}\nv_lshl_add_u32 v43, v6, 4, {sT1}")
        else:
            L += mk(f"""
s_lshr_b32 {sT2}, {sW}, 1
s_lshl_b32 {sT2}, {sT2}, 8
v_add_u32 v6, {sT2}, v5
v_subrev_u32 v5, {sT2}, v5
v_add_u32 v5, 256, v5
""")
            for i in range(8):
                L += mk(f"ds_read2_b32 {V2(ST+2*i)}, v{6 if i < 4 else 5} offset0:{16+16*(i%4)} offset1:{160+16*(i%4)}")
        return L

    def type_code(self, ty):
        o = self.opt
        c = mk("L_tb:") if ty else []
        vm = list(self.vm0)
        def waitfor(tags):
            for t in tags: assert vm.count(t) >= {"w": 5, "x": 4}.get(t[0], 1) and all(q[1] != t for q in dq), (t, ty)
            idx = max([k for k, t in enumerate(vm) if t in tags], default=-1)
            return len(vm) - 1 - idx
        def note(L, tag):
            for i in flatten(L):
                if i.kind == "vmem": vm.append(tag)
            return L
        need = lambda s: [("w", s), ("x", s // 2)]
        dq = []
        c += mk(f"s_waitcnt vmcnt({waitfor(need(0))})\ns_barrier")
        defA, defB = self.deferred(ty)
        c += self.stamp(1)
        c += self.reads(ty, 0)
        stats = self.stats_compute()
        dq = self.dma_queue(ty)
        pfq = [(g, k) for g in o.pford.split(",") for k in range(self.PFG[g][2])]; pfn = 0
        stl = self.staged(); self.nin = sum(o.stsched); assert self.nin <= 26
        third = -(-len(stats) // 6) * 2
        SL = o.statstep; SC = SL + o.statlag
        SN, SP, SG, SS = 1, SC + 3, 11, 14
        for s in range(16):
            tags = need(s + 1) if s < 15 else []
            if s == SC: tags = tags + [("sl", 0)]
            if s == SP: tags = tags + [("non", 0)]
            if s == SS: tags = tags + [("gat", 0)]
            c += mk((f"s_waitcnt vmcnt({waitfor(tags)}) lgkmcnt(0)" if tags else "s_waitcnt lgkmcnt(0)") + "\ns_barrier")
            if o.stamps and s in (1, 5, 11): c += self.stamp({1: 2, 5: 3, 11: 4}[s])
            rd = self.reads(ty, s + 1) if s < 15 else []
            other = []
            if s == SN:
                other += note(mk(f"v_mov_b32 v{NON}, 0\nbuffer_load_dwordx2 {V2(NON)}, v{NON}, {sDBG}, 0 offen sc1"), ("non", 0))
            if s == SG: other += note(self.gather_load(), ("gat", 0))
            if s == SL: other += note(self.stats_load(), ("sl", 0))
            if s < o.wtouch and o.tfirst: other += note(self.wtouch(s % 3), ("wt", 0))
            k = 0
            while dq and dq[0][0] <= s and k < (o.quota0 if s == 0 else o.quota):
                _, tag, atom = dq.pop(0); other += note(atom, tag); k += 1
            if s < o.wtouch and not o.tfirst: other += note(self.wtouch(s % 3), ("wt", 0))
            if s == 0: other += defA[:27]
            if s == 1: other += defA[27:]
            if s == max(o.wtouch, 2): other += defB
            if s > 10:
                assert not dq or s <= 11
                other += note(self.b2_dma(s), ("b2", s))
            if not o.nopf:
                for _ in range(int(o.pfsched[s])):
                    if not pfq: break
                    g, k = pfq.pop(0); other += note(self.l2pf(g, k, pfn), ("pf", 0)); pfn += 1
            for _ in range(o.stsched[s]):
                other += note(stl.pop(0), ("b2", -1))
            if SC <= s <= SC + 2: other += stats[(s - SC) * third: (s - SC + 1) * third]
            if s == SP: other += note(self.publish(ty), ("pub", 0))
            if s == SS: other += self.stats_stage(ty)
            mm = self.mfmas(ty, s)
            if o.nomfma: mm = [I("s_nop 0") for _ in mm]
            if o.noreads: rd = []
            no = len([i for i in flatten(other) if not i.is_label])
            room = 2 * (len(mm) - len(rd))
            ost = len(rd) if no <= room else max(0, len(rd) - (no - room))
            wv = weave(mm, rd, other, per_gap=2, oth_start=(ost if o.late else 0))
            if o.align == 3:
                for i in wv: i.padok = False
            c += wv
        c += self.stamp(5)
        c += self.epi_a() if ty == 0 else self.epi_b()
        if ty == 0: c += mk("s_branch L_join")
        c = cap_vm(flatten(c), len(self.vm0))
        slow = mk(f"""
L_slow_nonce{ty}:
s_mov_b32 {sCnt}, 0
L_sn{ty}:
v_mov_b32 v{NON}, 0
buffer_load_dwordx2 {V2(NON)}, v{NON}, {sDBG}, 0 offen sc1
s_waitcnt vmcnt(0)
v_readfirstlane_b32 {sNonL}, v{NON}
v_readfirstlane_b32 {sNonH}, v{NON+1}
s_add_u32 {sCnt}, {sCnt}, 1
s_cmp_gt_u32 {sCnt}, 20000
s_cbranch_scc1 L_back_nonce{ty}
s_cmp_eq_u32 {sNonL}, 0
s_cbranch_scc1 L_sn{ty}
s_branch L_back_nonce{ty}
L_slow_gat{ty}:
s_mov_b32 {sCnt}, 0
L_sg{ty}:
""") + self.gather_load() + mk("s_waitcnt vmcnt(0)") + self.gather_cmp() + mk(f"""
s_add_u32 {sCnt}, {sCnt}, 1
s_cmp_gt_u32 {sCnt}, 20000
s_cbranch_scc1 L_back_gat{ty}
s_cbranch_vccnz L_sg{ty}
s_branch L_back_gat{ty}
""")
        return c, slow

    def stg(self, i, blk):
        j = i - 18
        return (112 + 8 * j if j < 13 else 64 + 8 * (j - 13)) + 4 * blk
    def staged(self):
        L = []
        for i in range(18, 36):
            for blk in range(2):
                r = self.stg(i, blk); g, k = self.TILES[i]
                if "s" in self.opt.ko: g, k = 2, 0
                L.append(mk(f"s_add_u32 {sT0}, {sWB[g]}, {(16*k + 8*blk)*1024}\nbuffer_load_dwordx4 {A4(r)}, {vB2}, {sWO if g == 0 else sWD}, {sT0} offen"))
        return L
    def sprinkle(self, code, items, start, stop):
        out = []; n = len(items); k = 0
        for idx, ins in enumerate(code):
            out.append(ins)
            while k < n and idx >= start and (idx - start + 1) * n >= (k + 1) * (stop - start):
                out += items[k]; k += 1
        for it in items[k:]: out += it
        return out
    NEG = "op_sel:[0,1,0] op_sel_hi:[1,1,1] neg_lo:[0,1,0] neg_hi:[0,1,0]"
    def gu(self, cs, g, u, stp, dst):
        NEG = self.NEG
        L = [f"v_pk_fma_f32 {V2(g+2*h)}, {V2(cs+2*h)}, {V2(stp)}, {V2(g+2*h)} {NEG}" for h in range(2)]
        L += [f"v_pk_fma_f32 {V2(u+2*h)}, {V2(cs+4+2*h)}, {V2(stp)}, {V2(u+2*h)} {NEG}" for h in range(2)]
        L += [f"v_pk_mul_f32 {V2(g+2*h)}, {V2(g+2*h)}, {V2(u+2*h)}" for h in range(2)]
        L += [f"v_cvt_pk_bf16_f32 v{dst+h}, v{g+2*h}, v{g+2*h+1}" for h in range(2)]
        return L
    def gu_unit(self, cs, g0, u0, g1, u1, st0, st1, vo, so):
        c = []
        for x, y in zip(self.gu(cs, g0, u0, st0, u0), self.gu(cs, g1, u1, st1, u0 + 2)): c += mk(x + "\n" + y)
        return c + self.unit_store(u0, vo, so)
    def unit_store(self, r, vo, so):
        return mk(f"v_permlane16_swap_b32 v{r}, v{r+2}\nv_permlane16_swap_b32 v{r+1}, v{r+3}\nbuffer_store_dwordx4 {V4(r)}, v{vo}, {sWS}, {so} offen" + ("" if "p" in self.opt.ko else " sc1"))
    def csread(self, dst, k, n=4):
        return [I(f"v_accvgpr_read_b32 v{dst+r}, a{CSACC+4*k+r}") for r in range(n)]

    def epi_b(self):
        ST = self.ST
        c = []
        for k in range(6): c += self.csread(8 + 4 * k if k < 2 else 36 + 4 * k, k)
        for P in range(2):
            cs = 8 if P == 0 else 44
            for j in range(4):
                c += self.gu_unit(cs, bAcc(2*P, 2*j), bAcc(2*P+1, 2*j), bAcc(2*P, 2*j+1), bAcc(2*P+1, 2*j+1), ST+4*j, ST+4*j+2, VST+j, sU[P])
        for j in range(2):
            c += self.gu_unit(52, bMix(0, 2*j), bMix(1, 2*j), bMix(0, 2*j+1), bMix(1, 2*j+1), ST+4*j, ST+4*j+2, VST+j, sU[2])
        c += self.stamp(6)
        st = self.staged()[self.nin:]; nb = min(self.opt.nstage_b, len(st))
        c += self.flagaddr(sT2, 0) + self.polladdr()
        for it in st[:nb]: c += it
        c += self.p2setup()
        c += mk(f"s_waitcnt vmcnt({nb + 2})") + self.flagstore(sT2, 8) + self.stamp(7)
        c += self.poll_issue(0)
        for it in st[nb:]: c += it
        c += mk(f"s_waitcnt vmcnt({len(st) - nb})")
        return c

    def epi_a(self):
        ST = self.ST; NEG = self.NEG
        c = []
        c += self.csread(8, 3) + self.csread(12, 4) + self.csread(44, 0) + self.csread(48, 1) + self.csread(52, 2, 1)
        for j in range(4):
            c += self.gu_unit(8, aG(2*j), aU(2*j), aG(2*j+1), aU(2*j+1), ST+2+4*j, ST+4+4*j, VST+j, sU[0])
        c += self.stamp(6)
        head = c; c = []
        vs = lambda i: 192 + 8 * (i % 4) if i < 8 else 78
        def vsread(i): return mk(f"ds_read_b128 {V4(vs(i))}, v43 offset:{64*i}\nds_read_b128 {V4(vs(i)+4)}, v43 offset:{576+64*i}")
        for i in (0, 1, 2, 3, 8): c += vsread(i)
        kp = lambda i: 8 + 2 * i if i < 4 else 18 + 2 * (i - 4) if i < 8 else 86
        def inter(LL):
            out = []
            for step in range(max(len(l) for l in LL)):
                for l in LL:
                    if step < len(l): out += mk(l[step])
            return out
        def kfix(i):
            k = aK(i); stp = ST + 2 * i
            return [f"v_pk_fma_f32 {V2(k)}, {V2(48)}, {V2(stp)}, {V2(k)} {NEG}",
                    f"v_pk_fma_f32 {V2(k+2)}, {V2(50)}, {V2(stp)}, {V2(k+2)} {NEG}",
                    f"v_pk_mul_f32 {V2(k)}, {V2(k)}, {V2(stp)} op_sel_hi:[1,0]",
                    f"v_pk_mul_f32 {V2(k+2)}, {V2(k+2)}, {V2(stp)} op_sel_hi:[1,0]",
                    f"v_cvt_pk_bf16_f32 v{kp(i)}, v{k}, v{k+1}",
                    f"v_cvt_pk_bf16_f32 v{kp(i)+1}, v{k+2}, v{k+3}"]
        c += inter([kfix(i) for i in range(9)])
        qp = lambda i: 120 + 2 * i
        def qfix(i):
            q = aQ(i); stp = ST + 2 * (i + 1)
            return [f"v_pk_fma_f32 {V2(q)}, {V2(44)}, {V2(stp)}, {V2(q)} {NEG}",
                    f"v_pk_fma_f32 {V2(q+2)}, {V2(46)}, {V2(stp)}, {V2(q+2)} {NEG}",
                    f"v_cvt_pk_bf16_f32 v{qp(i)}, v{q}, v{q+1}",
                    f"v_cvt_pk_bf16_f32 v{qp(i)+1}, v{q+2}, v{q+3}"]
        c += inter([qfix(i) for i in range(8)])
        NEGV = "op_sel_hi:[1,0,1] neg_lo:[0,1,0] neg_hi:[0,1,0]"
        vp = lambda i: 136 + 2 * i
        def vfix(i):
            v = aV(i); s_ = vs(i)
            return [f"v_pk_fma_f32 {V2(v)}, {V2(s_+4)}, {V2(52)}, {V2(v)} {NEGV}",
                    f"v_pk_fma_f32 {V2(v+2)}, {V2(s_+6)}, {V2(52)}, {V2(v+2)} {NEGV}",
                    f"v_pk_mul_f32 {V2(v)}, {V2(v)}, {V2(s_)}",
                    f"v_pk_mul_f32 {V2(v+2)}, {V2(v+2)}, {V2(s_+2)}",
                    f"v_cvt_pk_bf16_f32 v{vp(i)}, v{v}, v{v+1}",
                    f"v_cvt_pk_bf16_f32 v{vp(i)+1}, v{v+2}, v{v+3}"]
        MK = "v_mfma_f32_16x16x16_bf16"
        sp = lambda i: 88 + 8 * i if i < 4 else 156 + 8 * (i - 4)
        def smf(i):
            bp = BIAS + 8 if i == 0 else BIAS
            return mk(f"{MK} {V4(sp(i))}, {V2(kp(i))}, {V2(qp(i))}, {V4(bp)}\n{MK} {V4(sp(i)+4)}, {V2(kp(i+1))}, {V2(qp(i))}, {V4(BIAS+4)}")
        for i in range(4): c += smf(i)
        c += mk("s_waitcnt lgkmcnt(0)")
        c += inter([vfix(i) for i in (0, 1, 2, 3, 8)])
        for i in range(4, 8): c += vsread(i)
        sch = f2h(0.25 * 1.4426950408889634)
        def soft(i, t, P):
            s_ = sp(i)
            l = [f"v_max3_f32 v{t}, v{s_}, v{s_+1}, v{s_+2}",
                 f"v_max3_f32 v{t+1}, v{s_+3}, v{s_+4}, v{s_+5}",
                 f"v_max3_f32 v{t}, v{t}, v{s_+6}, v{s_+7}",
                 f"v_mul_f32 v{t+2}, {sch}, v{ST+2*(i+1)}",
                 f"v_max_f32 v{t}, v{t}, v{t+1}",
                 f"v_mov_b32 v{t+1}, v{t}",
                 f"v_permlane16_swap_b32 v{t}, v{t+1}",
                 f"v_max_f32 v{t}, v{t}, v{t+1}",
                 f"v_mov_b32 v{t+1}, v{t}",
                 f"v_permlane32_swap_b32 v{t}, v{t+1}",
                 f"v_max_f32 v{t}, v{t}, v{t+1}",
                 f"v_mul_f32_e64 v{t+3}, -v{t}, v{t+2}"]
            l += [f"v_pk_fma_f32 {V2(s_+2*h)}, {V2(s_+2*h)}, {V2(t+2)}, {V2(t+2)} op_sel:[0,0,1] op_sel_hi:[1,0,1]" for h in range(4)]
            l += [f"v_exp_f32 v{s_+e}, v{s_+e}" for e in range(8)]
            l += [f"v_cvt_pk_bf16_f32 v{P+h}, v{s_+2*h}, v{s_+2*h+1}" for h in range(4)]
            return l
        tmp = [228, 236, 244, 252]
        Pq = [44, 48, 54, 78]
        c += inter([soft(i, tmp[i], Pq[i]) for i in range(4)])
        c += mk("s_waitcnt lgkmcnt(0)")
        c += inter([vfix(i) for i in range(4, 8)])
        for i in range(4, 8): c += smf(i)
        LS = lambda i: sp(i)
        O = lambda i: sp(i) + 4
        def pv(i, P): return mk(f"{M16} {V4(LS(i))}, {A4(ONES)}, {V4(P)}, 0\n{M16} {V4(O(i))}, {V4(vp(i))}, {V4(P)}, 0")
        for i in range(4): c += pv(i, Pq[i])
        def fin(i, d):
            return [f"v_rcp_f32 v{LS(i)}, v{LS(i)}",
                    f"v_pk_mul_f32 {V2(O(i))}, {V2(O(i))}, {V2(LS(i))} op_sel_hi:[1,0]",
                    f"v_pk_mul_f32 {V2(O(i)+2)}, {V2(O(i)+2)}, {V2(LS(i))} op_sel_hi:[1,0]",
                    f"v_cvt_pk_bf16_f32 v{d}, v{O(i)}, v{O(i)+1}",
                    f"v_cvt_pk_bf16_f32 v{d+1}, v{O(i)+2}, v{O(i)+3}"]
        oq = lambda i: 192 + 4 * (i // 2) + 2 * (i % 2)
        Pq2 = [208, 212, 216, 220]
        second = [soft(i, tmp[i - 4], Pq2[i - 4]) for i in range(4, 8)]
        c += inter([l[:12] for l in second])
        c += inter([fin(i, oq(i)) for i in range(4)])
        c += self.unit_store(192, VST, sU[1]) + self.unit_store(196, VST + 1, sU[1])
        c += inter([l[12:] for l in second])
        for i in range(4, 8): c += pv(i, Pq2[i - 4])
        c += inter([fin(i, oq(i)) for i in range(4, 8)])
        st = self.staged()[self.nin:]
        kf = int(len(st) * self.opt.hflag)
        st[kf] = st[kf] + self.flagaddr(sT2, 0) + mk(f"s_waitcnt vmcnt({kf + 1})") + self.flagstore(sT2, 2)
        st.append(self.polladdr() + self.poll_issue(0))
        c = head + self.sprinkle(c, st, 0, len(c) - self.opt.pollpos)
        c += self.unit_store(200, VST + 2, sU[1]) + self.unit_store(204, VST + 3, sU[1])
        c += self.stamp(7)
        c += self.p2setup() + self.flagaddr(sT2, 128) + mk("s_waitcnt vmcnt(4)")
        return c

    POLL = 58
    def polladdr(self):
        return mk(f"""
s_lshr_b32 s81, {sR}, 1
s_lshl_b32 s81, s81, 1
s_and_b32 {sT1}, {sW}, 1
s_add_u32 s81, s81, {sT1}
s_lshl_b32 s81, s81, 9
s_add_u32 s81, s81, {WS_FLAG}
v_and_b32 v16, 15, {vL}
v_lshlrev_b32 v16, 3, v16
v_bfe_u32 v{self.POLL}, {vL}, 4, 1
v_lshl_add_u32 v16, v{self.POLL}, 8, v16
""")
    def poll_issue(self, off, reg=None):
        return mk(f"buffer_load_dwordx2 {V2(reg or self.POLL)}, v16, {sWS}, s81 offen offset:{off} sc1")
    PT = 18; PW = 24; PX = 27; PY = 29; VXO = 34; XR = 36
    def p2setup(self):
        PT, PW, PX, PY, VXO, XR = self.PT, self.PW, self.PX, self.PY, self.VXO, self.XR
        c = mk(f"""
s_lshl_b32 {sT0}, {sR}, 1
s_lshr_b32 {sT1}, {sW}, 1
s_add_u32 {sT0}, {sT0}, {sT1}
s_lshl_b32 s59, {sT0}, 5
s_mul_i32 {sT0}, {sT0}, {RBS}
s_and_b32 {sT1}, {sW}, 1
s_lshl_b32 {sB[0]}, {sT1}, 14
s_add_u32 {sB[0]}, {sB[0]}, {sT0}
s_add_u32 {sB[1]}, {sB[0]}, {32*1024}
s_lshl_b32 {sB[2]}, {sT1}, 15
s_add_u32 {sB[2]}, {sB[2]}, {sT0}
s_add_u32 {sB[2]}, {sB[2]}, {64*1024}
s_lshl_b32 {sB[3]}, {sT1}, 13
s_add_u32 {sB[3]}, {sB[3]}, {sT0}
s_add_u32 {sB[3]}, {sB[3]}, {128*1024}
v_lshlrev_b32 v2, 4, {vL}
v_lshrrev_b32 v4, 2, {vL}
v_add_u32 v6, s59, v4
v_and_b32 v5, 3, {vL}
v_lshlrev_b32 v3, 4, v5
v_lshl_add_u32 v6, v6, 10, v3
s_lshl_b32 {sT0}, {sC}, 7
s_lshl_b32 {sT1}, {sT1}, 6
s_add_u32 {sT0}, {sT0}, {sT1}
v_add_u32 v{VXO}, {sT0}, v6
v_add_u32 v{VXO+1}, 0x4000, v{VXO}
buffer_load_dwordx4 {V4(XR)}, v{VXO}, {sX}, 0 offen
buffer_load_dwordx4 {V4(XR+4)}, v{VXO+1}, {sX}, 0 offen
v_and_b32 v6, 31, {vL}
v_add_u32 v3, s59, v6
v_lshlrev_b32 v33, 4, v3
v_add_u32 v{PW}, {sT3}, v2
v_add_u32 v{PW+1}, 0x10000, v{PW}
v_add_u32 v{PW+2}, 0x20000, v{PW}
v_xor_b32 v{PX}, 0x800, v{PW}
v_lshrrev_b32 v3, 5, {vL}
v_bfe_u32 v{PY}, {vL}, 1, 2
v_xor_b32 v3, v3, v{PY}
v_lshlrev_b32 v3, 4, v3
v_lshl_add_u32 v3, v6, 6, v3
s_add_u32 {sT0}, {sT3}, 0x20000
v_add_u32 v{PY}, {sT0}, v3
v_xor_b32 v{PY+1}, 32, v{PY}
v_bfe_u32 v3, {vL}, 3, 2
v_xor_b32 v3, v3, v5
v_lshlrev_b32 v3, 4, v3
v_lshl_add_u32 v3, v4, 6, v3
v_add_u32 v{PY+2}, {sT0}, v3
v_lshrrev_b32 v4, 5, {vL}
v_lshlrev_b32 v4, 10, v4
v_bfe_u32 v6, {vL}, 2, 2
v_lshl_add_u32 v4, v6, 7, v4
v_lshrrev_b32 v6, 1, v6
v_lshl_add_u32 v4, v6, 6, v4
v_bfe_u32 v6, {vL}, 4, 1
v_lshl_add_u32 v4, v6, 5, v4
v_and_b32 v6, 1, {vL}
v_lshl_add_u32 v4, v6, 4, v4
v_bfe_u32 v6, {vL}, 1, 1
v_lshl_add_u32 v4, v6, 3, v4
v_xor_b32 v4, {sT1}, v4
s_lshl_b32 {sT1}, {sT1}, 5
v_add_u32 v{PT}, {sT1}, v4
v_xor_b32 v{PT+1}, 64, v{PT}
v_add_u32 v{PT+2}, 0x10000, v{PT}
v_add_u32 v{PT+3}, 0x10000, v{PT+1}
v_add_u32 v{PT+4}, 0x20000, v{PT}
v_add_u32 v{PT+5}, 0x20000, v{PT+1}
""")
        return c

    def phase2(self):
        o = self.opt
        BF = [216, 32]; DACC = 64; ABUF = 128; DEPTH = o.depth
        PT, PW, PX, PY, VXO, XR, POLL = self.PT, self.PW, self.PX, self.PY, self.VXO, self.XR, self.POLL
        TILES = self.TILES
        c = mk("L_join:")
        c += self.stamp(8)
        if o.p1only:
            return c + mk(f"s_waitcnt vmcnt(0)\ns_cmp_eq_u32 {sTyp}, 1\ns_cbranch_scc1 L_noflag") + self.flagstore(sT2, 8) + mk("L_noflag:")
        def bread(t):
            out = []
            for h in range(4):
                sg = (4 * t + h) % 36
                for cb in range(2):
                    for e in range(2):
                        out.append(I(f"ds_read_b64_tr_b16 {A2(BF[t&1]+8*h+4*cb+2*e)}, v{PT+2*(sg//16)+cb} offset:{(sg%16)*4096+e*512}"))
            return out
        c += mk(f"""
v_cmp_ne_u64 vcc, {sNon}, {V2(POLL)}
s_cbranch_vccnz L_slow_e
L_go:
""")
        self.slow2 = mk(f"""
L_slow_e:
s_mov_b32 {sCnt}, 0
L_se:
""") + self.poll_issue(0) + mk(f"""
s_add_u32 {sCnt}, {sCnt}, 1
s_waitcnt vmcnt(0)
v_cmp_ne_u64 vcc, {sNon}, {V2(POLL)}
s_cmp_gt_u32 {sCnt}, 20000
s_cbranch_scc1 L_go
s_cbranch_vccnz L_se
s_branch L_go
L_slow_o:
s_mov_b32 {sCnt}, 0
L_so:
""") + self.poll_issue(128) + mk(f"""
s_add_u32 {sCnt}, {sCnt}, 1
s_waitcnt vmcnt(0)
v_cmp_ne_u64 vcc, {sNon}, {V2(POLL)}
s_and_b32 vcc_lo, vcc_lo, 0xff00ff
s_cbranch_scc0 L_back_o
s_cmp_gt_u32 {sCnt}, 20000
s_cbranch_scc0 L_so
s_branch L_back_o
""")
        c += self.stamp(9) + self.stamp(10)
        vm = []
        def aload(t):
            r, k = TILES[2 * t]; b = ABUF + 16 * (t % DEPTH)
            vm.extend([("a", t)] * 4)
            return mk(f"s_add_u32 {sT0}, {sB[r]}, {k*1024}") + [I(f"buffer_load_dwordx4 {V4(b+4*h)}, v2, {sWS}, {sT0} offen offset:{1024*h} sc1") for h in range(4)]
        def young(tag): return len(vm) - 1 - max(k for k, t in enumerate(vm) if t == tag)
        for t in range(o.burst): c += aload(t)
        c += mk(f"s_mov_b32 {sT1}, {WS_STAT}\nbuffer_load_dword v{XR+8}, v33, {sWS}, {sT1} offen sc1"); vm.append(("rs", 0))
        c += mk(f"s_waitcnt vmcnt({len(vm)})\ns_cmp_eq_u32 {sTyp}, 1\ns_cbranch_scc1 L_noflag")
        c += self.flagstore(sT2, 8) + mk("L_noflag:\ns_barrier")
        c += bread(0)
        M32 = "v_mfma_f32_32x32x16_bf16"
        issued = o.burst; nwr = 0
        TP = 14 - 2 * o.burst
        xo = [0, 1024, 8192, 9216]
        RX = ABUF + 16 * (10 % DEPTH)
        TM = ABUF + 16 * (11 % DEPTH)
        dval = mk(f"v_mul_f32 v{XR+8}, v{XR+8}, v{XR+8}")
        el = range(16)
        dval += [I(f"v_add_f32 v{DACC+e}, v{DACC+e}, v{RX+e}") for e in el]
        dval += [I(f"v_mul_f32 v{DACC+e}, v{XR+8}, v{DACC+e}") for e in el]
        dval += [I(f"v_mul_f32 v{TM+e}, 0xbfb8aa3b, v{DACC+e}") for e in el]
        dval += [I(f"v_exp_f32 v{TM+e}, v{TM+e}") for e in el]
        dval += [I(f"v_add_f32 v{TM+e}, 1.0, v{TM+e}") for e in el]
        dval += [I(f"v_rcp_f32 v{TM+e}, v{TM+e}") for e in el]
        dval += [I(f"v_mul_f32 v{DACC+e}, v{DACC+e}, v{TM+e}") for e in el]
        for k in range(8):
            dval += mk(f"v_lshlrev_b32 v{46+2*k}, 16, v{XR+k}\nv_and_b32 v{47+2*k}, 0xffff0000, v{XR+k}")
        WS_ = [int(ch) for ch in o.wsched]; wdone = 0; assert sum(WS_) == 36
        BARS = [int(x) for x in o.bars.split(",")]
        for t in range(18):
            b = ABUF + 16 * (t % DEPTH)
            bar = t in BARS
            c += mk(f"s_waitcnt vmcnt({young(('a', t))}) lgkmcnt({0 if (bar or t == 16) else nwr})" + ("\ns_barrier" if bar else ""))
            if o.p2stamps and t in (0, 4, 9, 14, 16, 17): c += self.stamp({0: 2, 4: 3, 9: 4, 14: 5, 16: 6, 17: 7}[t], True)
            mm = []
            for h in range(4):
                for cb in range(2):
                    k = 16 * cb
                    d = f"a[{k}:{k+15}]" if t >= 14 else f"v[{DACC+k}:{DACC+k+15}]"
                    cc = "0" if (t in (0, 14) and h == 0) else d
                    mm.append(I(f"{M32} {d}, {A4(BF[t&1]+8*h+4*cb)}, {V4(b+4*h)}, {cc}"))
            lds = bread(t + 1) if t < 17 else []
            wr = []
            if True:
                for k in range(wdone, min(36, wdone + WS_[t])):
                    u = 18 + k // 2; blk = k & 1; sg = u - 18; wdone += 1
                    lastbar = max(x for x in BARS if x <= t); nextbar = min(x for x in BARS if x > t)
                    assert 2 * sg + 1 <= 4 * lastbar + 3 and 8 + (2 * sg) // 4 >= nextbar, (t, k)
                    wr.append(I(f"ds_write_b128 v{PW+sg//8}, {A4(self.stg(u, blk))} offset:{(sg%8)*8192+blk*1024}"))
            if t == 14:
                wr += [I(f"ds_write_b128 v{PW}, {V4(DACC+16+4*p)} offset:{xo[p]}") for p in range(4)]
            if t == 15:
                lds = [I(f"ds_read_b128 {V4(RX+4*p)}, v{PX} offset:{xo[p]}") for p in range(4)] + lds
            if t >= 16:
                n = o.dshadow // 2
                wr = dval[:n]; dval = dval[n:]
            ld = []
            if t == TP: ld += self.poll_issue(128); vm.append(("po", 0))
            if issued < 18 and issued - DEPTH < t:
                if issued == 14:
                    ld.append(mk(f"s_waitcnt vmcnt({young(('po', 0))})\nv_cmp_ne_u64 vcc, {sNon}, {V2(POLL)}\ns_nop 0\ns_and_b32 vcc_lo, vcc_lo, 0xff00ff\ns_cbranch_scc1 L_slow_o\nL_back_o:"))
                ld += aload(issued); issued += 1
            seq = []
            while ld or wr:
                if ld: seq.append(ld.pop(0))
                if wr: seq.append(wr.pop(0))
            if "m" in o.p2: mm = [I("s_nop 0") for _ in mm]
            if "w" in o.p2: seq = [x for x in seq if isinstance(x, list) or not x.op.startswith("ds_write")]
            wv = weave(mm, lds, seq, per_gap=(6 if t >= 16 else o.p2gap), lds_per_gap=o.p2lds, oth_start=(2 if t == 14 else 0))
            dsl = [x for x in wv if x.kind == "ds"]
            last = max([k for k, x in enumerate(dsl) if x.op.startswith("ds_read")], default=-1)
            nwr = len(dsl) - 1 - last
            if o.align == 3:
                for i in wv: i.padok = False
            c += wv
        c += self.stamp(11)
        lead = min(12, len(dval))
        c += dval[:lead]; dval = dval[lead:]
        per = -(-len(dval) // 8)
        for p in range(4):
            c += mk(f"ds_write_b128 v{PW}, {A4(16+4*p)} offset:{16384+xo[p]}") + dval[:per]; dval = dval[per:]
        SV = 96
        c += mk("s_waitcnt lgkmcnt(0)\ns_barrier")
        c += [I(f"ds_read_b128 {V4(RX+4*p)}, v{PX} offset:{16384+xo[p]}") for p in range(4)]
        c += dval
        c += [I(f"v_accvgpr_read_b32 v{SV+e}, a{e}") for e in el]
        c += mk("s_waitcnt lgkmcnt(0)")
        c += [I(f"v_pk_add_f32 {V2(SV+2*e)}, {V2(SV+2*e)}, {V2(RX+2*e)}") for e in range(8)]
        c += [I(f"v_pk_mul_f32 {V2(SV+2*e)}, {V2(SV+2*e)}, {V2(DACC+2*e)}") for e in range(8)]
        c += [I(f"v_cvt_pk_bf16_f32 v{8+e}, v{SV+2*e}, v{SV+2*e+1}") for e in range(8)]
        c += mk(f"""
ds_write_b128 v{PY}, {V4(8)}
ds_write_b128 v{PY+1}, {V4(12)}
ds_read_b128 {V4(112)}, v{PY+2}
ds_read_b128 {V4(116)}, v{PY+2} offset:1024
""")
        for hh in range(2):
            c += mk(f"s_waitcnt lgkmcnt({1-hh})")
            for k in range(4):
                c += mk(f"v_lshlrev_b32 v{SV+8*hh+2*k}, 16, v{112+4*hh+k}\nv_and_b32 v{SV+8*hh+2*k+1}, 0xffff0000, v{112+4*hh+k}")
            for k in range(4): c += mk(f"v_pk_add_f32 {V2(SV+8*hh+2*k)}, {V2(SV+8*hh+2*k)}, {V2(46+8*hh+2*k)}")
            for k in range(4): c += mk(f"v_cvt_pk_bf16_f32 v{120+4*hh+k}, v{SV+8*hh+2*k}, v{SV+8*hh+2*k+1}")
            c += mk(f"buffer_store_dwordx4 {V4(120+4*hh)}, v{VXO+hh}, {sOUT}, 0 offen")
        return c

    def finish(self):
        c = []
        if self.opt.amp:
            k, mult = self.opt.amp
            c += self.stamp(12)
            c += mk(f"""
s_waitcnt vmcnt(0)
s_cmp_lg_u32 s2, 77
s_cbranch_scc1 L_end
v_readlane_b32 s96, v7, {k}
s_sub_u32 s96, s96, s98
s_mul_i32 s96, s96, {mult}
s_min_u32 s96, s96, 100000
s_memrealtime s[100:101]
s_waitcnt lgkmcnt(0)
s_add_u32 s96, s96, s100
L_amp:
s_memrealtime s[100:101]
s_waitcnt lgkmcnt(0)
s_sub_u32 s97, s96, s100
s_cmp_gt_i32 s97, 0
s_cbranch_scc1 L_amp
L_end:
s_endpgm
""")
            return c
        if self.opt.stamps:
            c += self.stamp(12)
            c += mk(f"""
s_waitcnt vmcnt(0)
s_memrealtime s[96:97]
s_waitcnt lgkmcnt(0)
v_writelane_b32 v7, s96, 13
v_writelane_b32 v7, s98, 0
v_writelane_b32 v7, {sTyp}, 14
s_add_u32 s{bWS}, s66, {STAMP}
s_addc_u32 s{bWS+1}, s67, 0
s_mov_b32 s{bWS+2}, 0x100000
s_lshl_b32 {sT0}, s2, 2
s_add_u32 {sT0}, {sT0}, {sW}
s_lshl_b32 {sT0}, {sT0}, 7
v_lshlrev_b32 v4, 2, {vL}
s_mov_b64 exec, 0xffffffff
buffer_store_dword v7, v4, {sWS}, {sT0} offen
""")
        c += mk("L_end:\ns_endpgm")
        return c

    def build(self):
        pro = self.prologue()
        tys = [self.type_code(t) for t in range(2)]
        p2 = self.phase2()
        fin = self.finish()
        tot = 0
        for t in range(2):
            tot += fix_hazards(pro + tys[t][0] + p2 + fin, self.opt.verbose)
        for t in range(2):
            fix_hazards(tys[t][1], self.opt.verbose)
            e, mx = check_waits(pro + tys[t][0] + p2 + fin, f"t{t}")
            print(f"type {t}: wait errors {e}, max vm outstanding {mx}", file=sys.stderr)
        print(f"inserted nop states: {tot}", file=sys.stderr)
        slow2 = getattr(self, "slow2", [])
        fix_hazards(slow2)
        code = pro + tys[0][0] + tys[1][0] + p2 + fin + tys[0][1] + tys[1][1] + slow2
        L = KN + "_kernel"
        if self.opt.align:
            wrap = lambda t: f'.amdgcn_target "amdgcn-amd-amdhsa--gfx950"\n.text\n.p2align 8\n{t}L_codeend:\n'
            print("align (promoted, padded):", align8(code, wrap, self.opt.align > 1), file=sys.stderr)
        hdr = open("cdna_kernels/" + KN + ".s.ref").read().split("; Override launch")[0] if self.opt.final else ""
        out = hdr + f"; @launch grid=(256,1,1) block=(256,1,1) lds={LDS_BYTES}\n"
        out += f'.amdgcn_target "amdgcn-amd-amdhsa--gfx950"\n.text\n.globl {L}\n.p2align 8\n.type {L},@function\n{L}:\n'
        out += text(code)
        out += "s_endpgm\n.p2align 6\nL_codeend:\n"
        out += f""".section .rodata,"a"
.p2align 6
.amdhsa_kernel {L}
  .amdhsa_next_free_vgpr 512
  .amdhsa_next_free_sgpr 102
  .amdhsa_accum_offset 256
  .amdhsa_group_segment_fixed_size 0
  .amdhsa_kernarg_size 80
  .amdhsa_user_sgpr_count 2
  .amdhsa_user_sgpr_kernarg_segment_ptr 1
  .amdhsa_system_sgpr_workgroup_id_x 1
  .amdhsa_float_denorm_mode_32 3
.end_amdhsa_kernel
"""
        return out

if __name__ == "__main__":
    ap = argparse.ArgumentParser()
    ap.add_argument("-o", default="k.s")
    for f in ("stamps", "p1only", "verbose", "final", "nomfma", "noreads", "nocs", "nopf", "prostamps", "p2stamps"): ap.add_argument("--" + f, action="store_true")
    ap.add_argument("--p2", default="")
    ap.add_argument("--p2gap", type=int, default=4)
    ap.add_argument("--burst", type=int, default=3)
    ap.add_argument("--ramp", type=int, default=2)
    ap.add_argument("--nstage_b", type=int, default=0)
    ap.add_argument("--depth", type=int, default=8)
    ap.add_argument("--pf0", type=int, default=2)
    ap.add_argument("--tlb", type=int, default=0)
    ap.add_argument("--kgroups", type=int, default=4)
    ap.add_argument("--quota", type=int, default=10)
    ap.add_argument("--ko", default="")
    ap.add_argument("--protouch", type=int, default=0)
    ap.add_argument("--tfirst", type=int, default=0)
    ap.add_argument("--ntx", type=int, default=0)
    ap.add_argument("--ntw", type=int, default=0)
    ap.add_argument("--ntt", type=int, default=0)
    ap.add_argument("--late", type=int, default=0)
    ap.add_argument("--pford", default="h2,h3,h1,o")
    ap.add_argument("--hflag", type=float, default=0.34)
    ap.add_argument("--csplit", type=int, default=1)
    ap.add_argument("--quota0", type=int, default=11)
    ap.add_argument("--wtouch", type=int, default=3)
    ap.add_argument("--wfirst", type=int, default=3)
    ap.add_argument("--statlag", type=int, default=3)
    ap.add_argument("--rotmask", type=int, default=6)
    ap.add_argument("--pfsched", default="0001111111110000")
    ap.add_argument("--statstep", type=int, default=1)
    ap.add_argument("--pfrot", type=int, default=7)
    ap.add_argument("--amp", type=lambda x: tuple(int(v) for v in x.split(",")), default=None)
    ap.add_argument("--wsched", default="033333333333300000")
    ap.add_argument("--bars", default="1,3,5,7,9,11,13,15")
    ap.add_argument("--align", type=int, default=3)
    ap.add_argument("--proextra", type=int, default=0)
    ap.add_argument("--dshadow", type=int, default=60)
    ap.add_argument("--pollpos", type=int, default=30)
    ap.add_argument("--stsched", type=lambda x: [int(ch) for ch in x], default=[int(ch) for ch in "0000000000033334"])
    ap.add_argument("--p2lds", type=int, default=4)
    ap.add_argument("--pfslice", type=int, default=4096)
    opt = ap.parse_args()
    import subprocess, re, os
    for _ in range(2):
        open(opt.o, "w").write(G(opt).build())
        subprocess.check_call(["clang", "-x", "assembler", "-target", "amdgcn-amd-amdhsa", "-mcpu=gfx950", "-c", opt.o, "-o", opt.o + ".o"])
        t = subprocess.check_output(["llvm-objdump", "-t", opt.o + ".o"], text=True)
        sym = {m.group(2): int(m.group(1), 16) for m in re.finditer(r"^([0-9a-f]{16}) .* (L_\w+)$", t, re.M)}
        n = sym["L_codeend"] - sym["L_pc"]
        opt.pfslice = (n - 12288) // 7 // 16 * 16
        assert 0 < opt.pfslice <= 8192
        opt.verbose = False
    os.remove(opt.o + ".o")
    print("code bytes", sym["L_codeend"], "pfslice", opt.pfslice, {k: v for k, v in sym.items() if k in ("L_pc", "L_tb", "L_join", "L_go", "L_end")}, file=sys.stderr)
```

```python
import sys, argparse, struct
from fw import *
KN = "recurrent_scan__sliding_local_dilated__glu_gated_bilinear__prompt"

WSLOT = 20480
XBASE = 5 * WSLOT
XSLOT = 18432
MISC = XBASE + 3 * XSLOT
STATL = MISC
LDS_BYTES = 163840
RBS = 144 * 1024
WS_STAT = 0x900000
WS_FLAG = 0x910000
WS_SIZE = 0x920000
STAMP = 200 << 20
def S4(b): return f"s[{b}:{b+3}]"
bX, bWO, bWD, bOUT, bWS, bDBG = 4, 8, 12, 16, 20, 24
sX, sWO, sWD, sOUT, sWS, sDBG = map(S4, (bX, bWO, bWD, bOUT, bWS, bDBG))
bS = [28, 32, 36, 40, 44]; sS = [S4(b) for b in bS]
sW, sM, sN, sR, sC = "s68", "s69", "s70", "s71", "s72"
sKa, sKb, sIncA = "s73", "s74", "s75"
sWoff, sXoff, sHoff = "s76", "s77", "s78"
sIdx, sTyp = "s79", "s80"
sT0, sT1, sT2, sT3 = "s82", "s83", "s84", "s85"
sNon = "s[86:87]"; sNonL, sNonH = "s86", "s87"
sU = ["s88", "s89", "s90"]
sEx = "s[94:95]"
sB = ["s48", "s49", "s50", "s51"]
sWB = ["s52", "s53", "s56", "s57"]
sCnt = "s58"
sXc = "s93"; sXk = "s92"
vL = "v1"
vX = ["v8", "v9"]; vH = ["v10", "v11"]; vWg = ["v12", "v13", "v14", "v15", "v16"]; vB2 = "v17"
RA = 18
RT = 22
VST = 26
BIAS = 30
GAT = 44
NON = 56
GA = 58
SX = 60
V4 = lambda r: f"v[{r}:{r+3}]"
V2 = lambda r: f"v[{r}:{r+1}]"
A4 = lambda r: f"a[{r}:{r+3}]"
A2 = lambda r: f"a[{r}:{r+1}]"
CSACC = 228
ONES = 252
def f2h(x): return "0x%08x" % struct.unpack("<I", struct.pack("<f", x))[0]
aQ = lambda i: 88 + 4 * i
aK = lambda i: 120 + 4 * i
aV = lambda i: 156 + 4 * i
aG = lambda i: 192 + 4 * i
aU = lambda i: 224 + 4 * i
bAcc = lambda g, i: 96 + 32 * g + 4 * i
bMix = lambda u, i: 224 + 16 * u + 4 * i
NA = {0: 9, 1: 8}; NB = {0: 5, 1: 6}
fA = lambda st, i: 56 * st + 4 * i
def fB(ty, st, j): return 56 * st + 4 * NA[ty] + 4 * j
M16 = "v_mfma_f32_16x16x32_bf16"

class G:
    def __init__(self, opt): self.opt = opt; self.young = {}
    def pstamp(self, k):
        return self.stamp(k, True) if self.opt.prostamps else []
    def stamp(self, k, force=False):
        if not self.opt.stamps: return []
        if (self.opt.prostamps or self.opt.p2stamps) and 2 <= k <= 7 and not force: return []
        return mk(f"s_memrealtime s[96:97]\ns_memtime s[100:101]\ns_waitcnt lgkmcnt(0)\nv_writelane_b32 v7, s96, {k}\nv_writelane_b32 v7, s100, {16+k}")

    def scc_live(self, flat, k):
        for ins in flat[k:]:
            if ins.op.startswith(("s_cselect", "s_cbranch_scc", "s_addc")): return True
            if ins.kind == "salu" and not ins.op.startswith(("s_mov", "s_waitcnt", "s_nop", "s_movk")): return False
        return False
    def mksrd(self, b, p, size):
        return mk(f"s_mov_b32 s{b}, s{p}\ns_mov_b32 s{b+1}, s{p+1}\ns_mov_b32 s{b+2}, {size}\ns_mov_b32 s{b+3}, 0x20000")

    def dma_x(self, p, h, halo=True):
        base = XBASE + (p % 3) * XSLOT
        L = [mk(f"s_add_u32 {sXk}, {sXc}, {h*16384}\ns_add_u32 m0, {sXoff}, {base + 2048*h}\nbuffer_load_dwordx4 {vX[0]}, {sX}, {sXk} offen lds"),
             mk(f"s_add_u32 m0, {sXoff}, {base + 2048*h + 1024}\nbuffer_load_dwordx4 {vX[1]}, {sX}, {sXk} offen lds")]
        if halo:
            L.append(mk(f"s_add_u32 m0, {sHoff}, {base + 256*h}\nbuffer_load_dword {vH[h]}, {sX}, {sXc} offen lds"))
        if h == 1: L[-1] += mk(f"s_add_u32 {sXc}, {sXc}, 128\ns_and_b32 {sXc}, {sXc}, 1023")
        if p < self.opt.ntx:
            for a in L:
                for i in a:
                    if i.kind == "vmem": i.text = i.text.replace(" lds", " nt lds")
        if "x" in self.opt.ko and p > 0:
            for a in L:
                for i in a:
                    if i.kind == "vmem": i.text = i.text.replace(sXk, "0").replace(sXc, "0")
        return L
    def dma_w(self, s):
        base = (s % 5) * WSLOT
        L = []
        for g in range(5):
            L.append(mk(f"s_add_u32 m0, {sWoff}, {base + 4096*g}\nbuffer_load_dwordx4 {vWg[g]}, {sS[g]}, {sKa if g < 3 else sKb} offen{' nt' if s < self.opt.ntw else ''} lds"))
        if "w" not in self.opt.ko: L[-1] += mk(f"s_add_u32 {sKa}, {sKa}, {sIncA}\ns_add_u32 {sKb}, {sKb}, {32*3584}")
        G = self.opt.kgroups
        if G > 1 and (s + 1) % (16 // G) == 0 and s < 15:
            L[-1].append(mk(f"s_cmp_eq_u32 {sKb}, {512*3584}\ns_cselect_b32 {sKa}, 0, {sKa}\ns_cselect_b32 {sKb}, 0, {sKb}"))
        return L
    def dma_queue(self, ty):
        Q = []
        for s in range(16):
            if s % 2 == 0 and ("x", s // 2) not in self.vm0:
                p = s // 2
                for h in range(2):
                    for a in self.dma_x(p, h, halo=(ty == 0)): Q.append((max(0, 2 * p - 5), ("x", p), a))
            if ("w", s) not in self.vm0:
                for a in self.dma_w(s): Q.append((max(0, s - 5), ("w", s), a))
        return Q

    def wtouch(self, n):
        return mk(f"""
v_add_u32 v44, 2, v44
v_and_b32 v44, 15, v44
v_lshl_add_u32 v48, v44, 5, v45
v_mad_u32_u24 v49, v48, s86, v46
v_mad_u32_u24 v48, v48, s87, v47
buffer_load_dword a{220 + 2 * n}, v49, s[88:91], s54 offen{' nt' if self.opt.ntt else ''}
buffer_load_dword a{221 + 2 * n}, v48, {sS[4]}, s55 offen{' nt' if self.opt.ntt else ''}
""")
    def prologue(self):
        o = self.opt
        vm = self.vm0 = []
        def note(L, tag):
            L = flatten(L)
            for i in L:
                if i.kind == "vmem": vm.append(tag)
            return L
        c = mk(f"""
s_load_dwordx16 s[48:63], s[0:1], 0
s_load_dwordx4 s[64:67], s[0:1], 64
s_cmp_ge_u32 s2, 256
s_cbranch_scc1 L_end
""")
        if o.stamps: c += mk("v_mov_b32 v7, 0\ns_memrealtime s[98:99]")
        c += note(mk(f"""
s_getpc_b64 s[88:89]
L_pc:
v_lshlrev_b32 v2, 4, v0
s_lshr_b32 {sT1}, s2, 3
s_and_b32 {sT0}, {sT1}, 7
s_mul_i32 {sT0}, {sT0}, {o.pfslice}
global_load_dwordx4 a[112:115], v2, s[88:89]
v_add_u32 v3, 0x1000, v2
s_add_u32 s88, s88, {sT0}
s_addc_u32 s89, s89, 0
global_load_dwordx4 a[116:119], v3, s[88:89]
v_add_u32 v3, 0x1000, v3
global_load_dwordx4 a[120:123], v3, s[88:89]
"""), ("pre", 0))
        c += mk(f"""
v_lshrrev_b32 v2, 6, v0
v_and_b32 {vL}, 63, v0
s_and_b32 {sT0}, s2, 7
v_readfirstlane_b32 {sW}, v2
s_lshr_b32 {sM}, {sT0}, 2
s_lshl_b32 {sM}, {sM}, 3
s_lshr_b32 {sT2}, {sT1}, 2
s_add_u32 {sM}, {sM}, {sT2}
v_lshrrev_b32 v5, 3, {vL}
v_lshrrev_b32 v3, 4, {vL}
v_xor_b32 v4, v3, {vL}
v_and_b32 v4, 7, v4
v_lshlrev_b32 v4, 4, v4
s_lshl_b32 {sT3}, {sM}, 7
s_lshl_b32 {sT2}, {sW}, 5
s_add_u32 {sT2}, {sT2}, {sT3}
v_add_u32 v6, {sT2}, v5
v_lshl_add_u32 {vX[0]}, v6, 10, v4
v_xor_b32 {vX[1]}, 64, {vX[0]}
v_add_u32 {vX[1]}, 0x2000, {vX[1]}
s_lshl_b32 {sT2}, {sW}, 2
s_add_u32 {sT2}, {sT2}, {sT3}
s_sub_u32 {sT2}, {sT2}, 16
v_lshrrev_b32 v6, 5, {vL}
v_add_u32 v6, {sT2}, v6
s_lshl_b32 {sXoff}, {sW}, 5
v_lshlrev_b32 v4, 2, {vL}
v_and_b32 v4, 0x7f, v4
v_xor_b32 v4, {sXoff}, v4
v_max_i32 v2, 0, v6
v_lshl_add_u32 {vH[0]}, v2, 10, v4
v_add_u32 v6, 2, v6
v_max_i32 v2, 0, v6
v_xor_b32 v4, 16, v4
v_lshl_add_u32 {vH[1]}, v2, 10, v4
s_lshl_b32 {sXoff}, {sW}, 12
s_add_u32 {sXoff}, {sXoff}, 2048
s_lshl_b32 {sHoff}, {sW}, 9
s_lshl_b32 {sXc}, s2, 1
s_and_b32 {sXk}, s2, 4
s_add_u32 {sXc}, {sXc}, {sXk}
s_and_b32 {sXc}, {sXc}, {o.rotmask}
s_lshl_b32 s81, {sXc}, 1
s_lshl_b32 {sXc}, {sXc}, 7
s_mov_b32 s{bX+2}, {2048*1024}
s_mov_b32 s{bX+3}, 0x20000
s_waitcnt lgkmcnt(0)
s_mov_b32 s{bX}, s48
s_mov_b32 s{bX+1}, s49
""")
        c += self.pstamp(2)
        c += note(self.dma_x(0, 0) + self.dma_x(0, 1), ("x", 0))
        c += self.pstamp(3)
        c += mk(f"""
s_lshl_b32 {sWoff}, {sW}, 10
s_and_b32 {sN}, {sT0}, 3
s_lshl_b32 {sIdx}, {sN}, 1
s_lshl_b32 {sN}, {sN}, 2
s_and_b32 {sT2}, {sT1}, 3
s_add_u32 {sN}, {sN}, {sT2}
s_lshr_b32 {sTyp}, {sT2}, 1
s_and_b32 {sT2}, {sT2}, 1
s_add_u32 {sIdx}, {sIdx}, {sT2}
s_and_b32 {sT2}, {sW}, 1
s_lshl_b32 {sT3}, {sT2}, 2
v_and_b32 v4, 2, v5
v_or_b32 v4, {sT3}, v4
v_xor_b32 v4, v4, {vL}
v_and_b32 v4, 7, v4
v_lshlrev_b32 v4, 4, v4
s_lshl_b32 {sT3}, {sW}, 3
v_add_u32 v6, {sT3}, v5
s_movk_i32 s87, 3584
s_movk_i32 s86, 3072
s_lshl_b32 s95, {sIdx}, 7
s_lshl_b32 {sT3}, {sIdx}, 8
s_add_u32 {sT3}, {sT3}, 1024
s_add_u32 s49, s95, 1024
s_add_u32 s94, s95, 2048
s_add_u32 s54, {sT3}, 128
s_lshl_b32 s55, {sIdx}, 6
s_add_u32 s55, s55, 3072
s_cmp_eq_u32 {sTyp}, 1
s_cselect_b32 s86, s87, s86
s_cselect_b32 s48, {sT3}, s95
s_cselect_b32 s49, {sT3}, s49
s_cselect_b32 s94, s54, s94
s_cselect_b32 s55, s55, s95
s_cselect_b32 s95, s54, s95
s_cselect_b64 vcc, -1, 0
s_cselect_b32 s28, s56, s50
s_cselect_b32 s29, s57, s51
s_cselect_b32 s32, s58, s50
s_cselect_b32 s33, s59, s51
s_cselect_b32 s40, s58, s56
s_cselect_b32 s41, s59, s57
v_mad_u32_u24 v2, v6, s86, v4
v_mad_u32_u24 v3, v6, s87, v4
s_lshl_b32 s30, s86, 9
s_lshl_b32 {sIncA}, s86, 5
v_add_u32 {vWg[0]}, s48, v2
v_add_u32 {vWg[1]}, s49, v2
v_add_u32 {vWg[2]}, s94, v2
v_add_u32 {vWg[3]}, s95, v3
s_mov_b32 s31, 0x20000
s_mov_b32 s34, s30
s_mov_b32 s35, 0x20000
s_mov_b32 s36, s28
s_mov_b32 s37, s29
s_mov_b32 s38, s30
s_mov_b32 s39, 0x20000
s_mov_b32 s42, {512*3584}
s_mov_b32 s43, 0x20000
v_lshrrev_b32 v4, 4, {vL}
v_and_b32 v4, 2, v4
v_xor_b32 v4, v4, {vL}
v_and_b32 v4, 3, v4
v_lshlrev_b32 v4, 4, v4
s_lshl_b32 {sT2}, {sT2}, 4
v_lshrrev_b32 v6, 2, {vL}
v_add_u32 v6, {sT2}, v6
v_mad_u32_u24 v4, v6, s87, v4
s_lshl_b32 {sT2}, {sTyp}, 1
s_cmp_lt_u32 {sW}, {sT2}
s_cselect_b32 s44, s56, s58
s_cselect_b32 s45, s57, s59
s_mov_b32 s46, s42
s_mov_b32 s47, 0x20000
v_cndmask_b32 v4, v3, v4, vcc
s_mul_i32 {sKa}, s81, {sIncA}
s_mul_i32 {sKb}, s81, {32*3584}
v_add_u32 {vWg[4]}, s55, v4
""")
        c += note(self.dma_w(0), ("w", 0))
        c += self.pstamp(4)
        c += mk(f"""
v_lshrrev_b32 v2, 4, {vL}
v_bfe_u32 v3, {vL}, 2, 2
v_and_b32 v4, 3, {vL}
v_and_b32 v6, 15, {vL}
v_lshrrev_b32 v5, 1, v6
v_xor_b32 v5, v5, v2
v_lshlrev_b32 v5, 4, v5
v_lshl_add_u32 v5, v6, 7, v5
v_add_u32 v5, {XBASE}, v5
s_lshr_b32 {sT2}, {sW}, 1
s_and_b32 {sT2}, {sT2}, {sTyp}
s_lshl_b32 {sT2}, {sT2}, 13
v_add_u32 v{RA}, {sT2}, v5
v_xor_b32 v{RA+1}, 64, v{RA}
v_subrev_u32 v{RA+2}, {sT2}, v5
v_xor_b32 v{RA+3}, 64, v{RA+2}
v_and_b32 v6, 1, v2
v_lshrrev_b32 v5, 1, v3
v_lshl_or_b32 v5, v6, 1, v5
v_xor_b32 v5, {sW}, v5
v_lshlrev_b32 v5, 5, v5
v_lshl_add_u32 v5, v2, 10, v5
v_lshl_add_u32 v5, v3, 7, v5
v_lshl_add_u32 v{RT}, v4, 3, v5
v_add_u32 v{RT+1}, {3*WSLOT}, v{RT}
v_lshrrev_b32 v5, 1, v2
v_lshlrev_b32 v5, 10, v5
v_lshl_add_u32 v5, v6, 9, v5
v_lshl_add_u32 v5, v3, 6, v5
v_lshl_add_u32 v5, v4, 3, v5
v_xor_b32 v6, {sW}, v6
v_and_b32 v6, 1, v6
v_lshl_add_u32 v{RT+2}, v6, 5, v5
v_add_u32 v{RT+3}, {3*WSLOT}, v{RT+2}
v_mov_b32 v5, 0x3f803f80
s_cmp_eq_u32 {sW}, 1
s_cselect_b32 s54, s49, s48
s_cselect_b32 s88, s32, s28
s_cselect_b32 s89, s33, s29
s_cmp_eq_u32 {sW}, 2
s_cselect_b32 s54, s94, s54
s_cmp_eq_u32 {sW}, 3
s_cselect_b32 s54, s95, s54
s_cselect_b32 s88, s40, s88
s_cselect_b32 s89, s41, s89
s_cselect_b32 s90, s42, s30
s_cselect_b32 s86, s87, s86
s_mov_b32 s91, 0x20000
v_accvgpr_write_b32 a{ONES}, v5
v_accvgpr_write_b32 a{ONES+1}, v5
v_accvgpr_write_b32 a{ONES+2}, v5
v_accvgpr_write_b32 a{ONES+3}, v5
s_add_u32 s81, s81, {o.wfirst - 2}
v_lshrrev_b32 v5, 2, {vL}
v_add_u32 v44, s81, v5
s_and_b32 {sT2}, {sM}, 7
s_lshl_b32 {sT2}, {sT2}, 2
v_add_u32 v45, {sT2}, v4
v_lshrrev_b32 v46, 3, {vL}
v_lshlrev_b32 v46, 28, v46
s_lshl_b32 {sT2}, {sTyp}, 1
s_sub_u32 {sT2}, 3, {sT2}
v_xor_b32 v5, {sW}, {vL}
v_and_b32 v5, {sT2}, v5
v_lshl_or_b32 v47, v5, 26, v46
""")
        c += self.mksrd(bDBG, 64, 256)
        c += mk(f"""
s_or_b32 {sT2}, s2, {sW}
s_cmp_lg_u32 {sT2}, 0
s_cbranch_scc1 L_nononce
s_memrealtime s[94:95]
s_waitcnt lgkmcnt(0)
s_or_b32 s94, s94, 1
v_mov_b32 v2, s94
v_mov_b32 v3, s95
v_mov_b32 v4, 0
s_mov_b64 exec, 1
buffer_store_dwordx2 v[2:3], v4, {sDBG}, 0 offen sc1
s_mov_b64 exec, -1
L_nononce:
""")
        c += self.pstamp(7)
        for n in range(o.protouch): c += note(self.wtouch(n + 1), ("wt", 0))
        c += note(self.dma_w(1), ("w", 1))
        c += self.pstamp(5)
        if o.proextra >= 1: c += note(self.dma_x(1, 0) + self.dma_x(1, 1), ("x", 1))
        if o.proextra >= 2: c += note(self.dma_w(2), ("w", 2))
        c += self.pstamp(6)
        c += mk(f"s_cmp_eq_u32 {sTyp}, 1\ns_cbranch_scc1 L_tb")
        return c

    def deferred(self, ty):
        o = self.opt
        A = []
        A += self.mksrd(bWS, 66, WS_SIZE) + self.mksrd(bWO, 52, 512 * 1024) + self.mksrd(bWD, 60, 1792 * 1024) + self.mksrd(bOUT, 62, 2048 * 1024)
        A += mk(f"""
s_lshr_b32 {sT1}, s2, 3
s_and_b32 {sT2}, s2, 7
s_lshr_b32 {sR}, {sT2}, 1
s_lshl_b32 {sR}, {sR}, 3
s_lshr_b32 s64, {sT1}, 2
s_add_u32 {sR}, {sR}, s64
s_and_b32 {sC}, {sT1}, 3
s_and_b32 {sT2}, {sT2}, 1
s_lshl_b32 {sT2}, {sT2}, 2
s_add_u32 {sC}, {sC}, {sT2}
s_lshl_b32 {sT3}, {sW}, 11
v_lshrrev_b32 v5, 2, {vL}
v_and_b32 v5, 4, v5
v_xor_b32 v5, v5, {vL}
v_and_b32 v5, 7, v5
v_lshlrev_b32 v5, 4, v5
v_lshrrev_b32 v6, 3, {vL}
v_lshl_add_u32 v5, v6, 10, v5
s_lshl_b32 {sT2}, {sC}, 7
v_add_u32 {vB2}, {sT2}, v5
s_and_b32 {sT1}, {sW}, 1
s_lshr_b32 {sT2}, {sW}, 1
s_lshl_b32 {sT2}, {sT2}, 14
s_lshl_b32 {sWB[0]}, {sT1}, 18
s_add_u32 {sWB[0]}, {sWB[0]}, {sT2}
s_mov_b32 {sWB[1]}, {sWB[0]}
s_lshl_b32 s64, {sT1}, 19
s_add_u32 s64, s64, {sT2}
s_add_u32 s56, s64, {512*1024}
s_lshl_b32 s64, {sT1}, 17
s_add_u32 s64, s64, {sT2}
s_add_u32 s57, s64, {1536*1024}
s_lshl_b32 {sT1}, {sM}, 7
s_sub_u32 {sT2}, {sT1}, 16
v_add_u32 v5, {sT2}, {vL}
v_max_i32 v{GA}, 0, v5
v_lshlrev_b32 v{GA}, 4, v{GA}
v_add_u32 v5, 64, v5
v_lshlrev_b32 v{GA+1}, 4, v5
s_add_u32 {sT1}, {sT1}, 112
v_and_b32 v5, 15, {vL}
v_add_u32 v5, {sT1}, v5
v_lshlrev_b32 v42, 4, v5
""")
        B = []
        if ty == 0:
            B += mk(f"""
v_lshlrev_b32 v{VST}, 4, {vL}
v_add_u32 v{VST+1}, {RBS}, v{VST}
v_add_u32 v{VST+2}, {2*RBS}, v{VST}
v_add_u32 v{VST+3}, {3*RBS}, v{VST}
s_mul_i32 {sT1}, {sM}, 576
s_lshl_b32 {sT2}, {sIdx}, 2
s_add_u32 {sT2}, {sT2}, {sW}
s_add_u32 {sU[1]}, {sT1}, {sT2}
s_add_u32 {sU[0]}, {sU[1]}, 32
s_lshl_b32 {sU[0]}, {sU[0]}, 10
s_lshl_b32 {sU[1]}, {sU[1]}, 10
v_lshrrev_b32 v4, 4, {vL}
v_and_b32 v6, 15, {vL}
v_lshlrev_b32 v4, 2, v4
v_sub_u32 v4, v6, v4
v_mov_b32 v3, 0xff800000
v_mov_b32 v6, 0x80000000
""")
            for r in range(4):
                B += mk(f"""
v_subrev_u32 v5, {r}, v4
v_and_b32 v5, 0x80000001, v5
v_cmp_eq_u32 vcc, 0, v5
v_cmp_eq_u32 {sEx}, v6, v5
v_cndmask_b32_e64 v{BIAS+4+r}, v3, 0, vcc
v_cndmask_b32_e64 v{BIAS+r}, v3, 0, {sEx}
""")
            B.append(mk(f"s_cmp_eq_u32 {sM}, 0\ns_cselect_b64 vcc, -1, 0"))
            for r in range(4): B += mk(f"v_cndmask_b32 v{BIAS+8+r}, v{BIAS+r}, v3, vcc")
        else:
            B += mk(f"""
s_lshr_b32 {sT1}, {sW}, 1
s_mul_i32 {sT2}, {sT1}, {2*RBS}
v_lshlrev_b32 v5, 4, {vL}
v_add_u32 v{VST}, {sT2}, v5
v_add_u32 v{VST+1}, {RBS}, v{VST}
v_subrev_u32 v{VST+2}, {sT2}, v5
v_add_u32 v{VST+2}, {2*RBS}, v{VST+2}
v_add_u32 v{VST+3}, {RBS}, v{VST+2}
s_mul_i32 {sT1}, {sM}, 576
s_lshl_b32 {sT2}, {sIdx}, 3
s_add_u32 {sT2}, {sT2}, {sW}
s_add_u32 {sT2}, {sT2}, {sT1}
s_add_u32 {sU[0]}, {sT2}, 64
s_add_u32 {sU[1]}, {sT2}, 68
s_lshl_b32 {sT2}, {sIdx}, 1
s_and_b32 s64, {sW}, 1
s_add_u32 {sT2}, {sT2}, s64
s_add_u32 {sT2}, {sT2}, {sT1}
s_add_u32 {sU[2]}, {sT2}, 128
s_lshl_b32 {sU[0]}, {sU[0]}, 10
s_lshl_b32 {sU[1]}, {sU[1]}, 10
s_lshl_b32 {sU[2]}, {sU[2]}, 10
""")
        return A, B

    def reads(self, ty, stage):
        st = stage & 1
        xb = ((stage // 2) % 3) * XSLOT; kh = stage & 1
        ws = stage % 5; rg = ws // 3; wb = (ws % 3) * WSLOT
        out = []
        for i in range(NA[ty]):
            if ty == 0: out.append(I(f"ds_read_b128 {A4(fA(st, i))}, v{RA+kh} offset:{xb + 2048*i}"))
            else: out.append(I(f"ds_read_b128 {A4(fA(st, i))}, v{RA+kh+(2 if i >= 4 else 0)} offset:{xb + 2048*(i+1)}"))
        def tr(j, reg, off, second):
            return [I(f"ds_read_b64_tr_b16 {A2(fB(ty, st, j))}, v{reg} offset:{wb+off}"),
                    I(f"ds_read_b64_tr_b16 {A2(fB(ty, st, j)+2)}, v{reg} offset:{wb+off+second}")]
        B = []
        for g in range(5 if ty == 0 else 4): B += tr(g, RT + rg, 4096 * g, 512)
        if ty == 1: B += tr(4, RT + 2 + rg, 16384, 256) + tr(5, RT + 2 + rg, 16384 + 2048, 256)
        return out + B

    def mfmas(self, ty, stage):
        st = stage & 1
        out = []
        Z = lambda d: "0" if stage == 0 else d
        def T(d, j, i): out.append(I(f"{M16} {V4(d)}, {A4(fB(ty, st, j))}, {A4(fA(st, i))}, {Z(V4(d))}"))
        def CS(k, flip=False):
            d = A4(CSACC + 4 * k); f = A4(fB(ty, st, k))
            if self.opt.nocs: return
            out.append(I(f"{M16} {d}, {A4(ONES)}, {f}, {Z(d)}" if flip else f"{M16} {d}, {f}, {A4(ONES)}, {Z(d)}"))
        if ty == 0:
            for i in range(8): T(aQ(i), 0, i + 1)
            CS(0)
            for i in range(9): T(aK(i), 1, i)
            CS(1)
            for i in range(9): out.append(I(f"{M16} {V4(aV(i))}, {A4(fA(st, i))}, {A4(fB(ty, st, 2))}, {Z(V4(aV(i)))}"))
            CS(2, True)
            for i in range(8): T(aG(i), 3, i + 1)
            CS(3)
            for i in range(8): T(aU(i), 4, i + 1)
            CS(4)
        else:
            for g in range(4):
                for i in range(8): T(bAcc(g, i), g, i)
                CS(g)
            for u in range(2):
                for i in range(4): T(bMix(u, i), 4 + u, i)
                CS(4 + u)
        return out

    TILES = [(2, 2*k) for k in range(16)] + [(3, 2*k) for k in range(4)] + [(1, 2*k) for k in range(8)] + [(0, 2*k) for k in range(8)]
    def b2_dma(self, s):
        def free_at(q):
            a = q * 2048
            if a < XBASE: return [s_ for s_ in range(11, 16) if s_ % 5 == a // WSLOT][0]
            return {2: 11, 0: 13, 1: 15}[(a - XBASE) // XSLOT]
        out = []
        for i in range(18):
            if max(free_at(4 * i + w) for w in range(4)) != s: continue
            r, k = self.TILES[i]; srd = sWO if r == 0 else sWD
            for blk in range(2):
                out += mk(f"s_add_u32 {sT0}, {sWB[r]}, {(16*k + 8*blk)*1024}\n"
                          f"s_add_u32 m0, {sT3}, {i*8192 + blk*1024}\nbuffer_load_dwordx4 {vB2}, {srd}, {sT0} offen lds")
        return out

    PFG = {"h2": (sWD, 512, 4), "h3": (sWD, 1536, 1), "h1": (sWD, 0, 2), "o": (sWO, 0, 2)}
    def l2pf(self, grp, k, seq):
        srd, row0, n = self.PFG[grp]
        L = []
        if seq == 0:
            L += mk(f"""
s_lshr_b32 s91, s2, 3
s_lshl_b32 s91, s91, 2
s_add_u32 s91, s91, {sW}
s_lshl_b32 s91, s91, 11
v_lshrrev_b32 v3, 3, {vL}
v_lshlrev_b32 v3, 28, v3
s_and_b32 s65, s2, 1
s_lshl_b32 s65, s65, 9
s_add_u32 s91, s91, s65
v_and_b32 v2, 3, {vL}
v_lshl_or_b32 v3, v2, 7, v3
v_bfe_u32 v2, {vL}, 2, 1
v_lshl_or_b32 v2, v2, 10, v3
v_add_u32 v2, s91, v2
s_lshr_b32 s91, s2, 1
""")
        L += mk(f"""
s_add_u32 s65, s91, {k}
s_and_b32 s65, s65, {(n - 1) & self.opt.pfrot}
s_lshl_b32 s65, s65, 18
s_add_u32 s65, s65, {row0 * 1024}
buffer_load_dword a{216 + seq % 12}, v2, {srd}, s65 offen
""")
        return L

    def flagaddr(self, dst, off):
        return mk(f"""
s_lshl_b32 {dst}, {sM}, 2
s_lshr_b32 {sT1}, {sN}, 2
s_add_u32 {dst}, {dst}, {sT1}
s_lshl_b32 {dst}, {dst}, 5
s_and_b32 {sT1}, {sN}, 3
s_lshl_b32 {sT1}, {sT1}, 2
s_add_u32 {dst}, {dst}, {sT1}
s_add_u32 {dst}, {dst}, {sW}
s_lshl_b32 {dst}, {dst}, 3
s_add_u32 {dst}, {dst}, {WS_FLAG + off}
""")
    def flagstore(self, so, r):
        return mk(f"""
v_mov_b32 v{r}, {sNonL}
v_mov_b32 v{r+1}, {sNonH}
v_lshlrev_b32 v{r+2}, 31, {vL}
v_lshl_or_b32 v{r+2}, {vL}, 25, v{r+2}
buffer_store_dwordx2 {V2(r)}, v{r+2}, {sWS}, {so} offen sc1
""")

    def stats_load(self):
        return mk(f"""
s_lshl_b32 {sT2}, {sM}, 7
s_lshl_b32 {sT1}, {sN}, 3
s_add_u32 {sT1}, {sT1}, {sT2}
s_lshl_b32 {sT2}, {sW}, 1
s_add_u32 {sT1}, {sT1}, {sT2}
s_lshl_b32 {sT1}, {sT1}, 10
v_lshlrev_b32 v{SX+16}, 4, {vL}
buffer_load_dwordx4 v[{SX}:{SX+3}], v{SX+16}, {sX}, {sT1} offen
buffer_load_dwordx4 v[{SX+4}:{SX+7}], v{SX+16}, {sX}, {sT1} offen offset:1024
""")

    def stats_compute(self):
        def row(x, e, t):
            L = []
            for k in range(4):
                L.append(f"v_lshlrev_b32 v{e+2*k}, 16, v{x+k}")
                L.append(f"v_and_b32 v{e+2*k+1}, 0xffff0000, v{x+k}")
            L += [f"v_add_f32 v{x}, v{e}, v{e+1}", f"v_add_f32 v{x+1}, v{e+2}, v{e+3}", f"v_add_f32 v{x+2}, v{e+4}, v{e+5}", f"v_add_f32 v{x+3}, v{e+6}, v{e+7}",
                  f"v_add_f32 v{x}, v{x}, v{x+1}", f"v_add_f32 v{x+2}, v{x+2}, v{x+3}", f"v_add_f32 v{x}, v{x}, v{x+2}"]
            def red(r):
                R = [f"v_add_f32_dpp v{r}, v{r}, v{r} row_ror:{sh} row_mask:0xf bank_mask:0xf" for sh in (8, 4, 2, 1)]
                for p in ("16", "32"):
                    R += [f"v_mov_b32 v{r+1}, v{r}", f"v_permlane{p}_swap_b32 v{r}, v{r+1}", f"v_add_f32 v{r}, v{r}, v{r+1}"]
                return R
            L += red(x)
            L.append(f"v_mul_f32 v{t+1}, 0x3b000000, v{x}")
            for k in range(8): L.append(f"v_sub_f32 v{e+k}, v{e+k}, v{t+1}")
            L += [f"v_mul_f32 v{x}, v{e}, v{e}", f"v_mul_f32 v{x+1}, v{e+1}, v{e+1}"]
            for k in range(2, 8): L.append(f"v_fmac_f32 v{x+(k&1)}, v{e+k}, v{e+k}")
            L.append(f"v_add_f32 v{x}, v{x}, v{x+1}")
            L += red(x)
            L += [f"v_mov_b32 v{x+1}, 0x3727c5ac", f"v_fmac_f32 v{x+1}, 0x3b000000, v{x}", f"v_rsq_f32 v{t}, v{x+1}"]
            return L
        a = row(SX, SX + 8, SX + 24); b = row(SX + 4, SX + 16, SX + 26)
        out = []
        for p, q in zip(a, b): out += [I(p), I(q)]
        return out

    def publish(self, ty):
        L = mk(f"""
v_readfirstlane_b32 {sNonL}, v{NON}
v_readfirstlane_b32 {sNonH}, v{NON+1}
v_cmp_eq_u32 vcc, 1, {vL}
s_lshl_b32 {sT1}, {sM}, 7
s_lshl_b32 {sT2}, {sN}, 3
s_cmp_eq_u32 {sNonL}, 0
s_cbranch_scc1 L_slow_nonce{ty}
L_back_nonce{ty}:
v_cndmask_b32 v{SX}, v{SX+24}, v{SX+26}, vcc
v_cndmask_b32 v{SX+1}, v{SX+25}, v{SX+27}, vcc
v_mov_b32 v{SX+2}, {sNonL}
v_mov_b32 v{SX+3}, {sNonH}
s_add_u32 {sT1}, {sT1}, {sT2}
s_lshl_b32 {sT2}, {sW}, 1
s_add_u32 {sT1}, {sT1}, {sT2}
s_lshl_b32 {sT1}, {sT1}, 4
s_add_u32 {sT1}, {sT1}, {WS_STAT}
v_lshlrev_b32 v{SX+4}, 4, {vL}
v_cmp_lt_u32 vcc, 1, {vL}
v_mov_b32 v{SX+5}, 0x80000000
v_cndmask_b32 v{SX+4}, v{SX+4}, v{SX+5}, vcc
buffer_store_dwordx4 v[{SX}:{SX+3}], v{SX+4}, {sWS}, {sT1} offen sc1
""")
        return L[:5] + [L[5:8]] + L[8:]

    def gather_load(self):
        return mk(f"""
s_mov_b32 {sT1}, {WS_STAT}
buffer_load_dwordx4 {V4(GAT)}, v{GA}, {sWS}, {sT1} offen sc1
buffer_load_dwordx4 {V4(GAT+4)}, v{GA+1}, {sWS}, {sT1} offen sc1
buffer_load_dwordx4 {V4(GAT+8)}, v42, {sWS}, {sT1} offen sc1
""")
    def gather_cmp(self):
        return mk(f"""
v_cmp_ne_u64 vcc, {sNon}, {V2(GAT+2)}
v_cmp_ne_u64 {sEx}, {sNon}, {V2(GAT+6)}
v_cmp_ne_u64 s[92:93], {sNon}, {V2(GAT+10)}
s_or_b64 vcc, vcc, {sEx}
s_or_b64 vcc, vcc, s[92:93]
""")

    ST = 60
    def stats_stage(self, ty):
        ST = self.ST
        L = [self.gather_cmp() + mk(f"s_cbranch_vccnz L_slow_gat{ty}\nL_back_gat{ty}:")]
        L += mk(f"""
s_mul_i32 {sT1}, {sW}, 1152
s_add_u32 {sT1}, {sT1}, {STATL}
v_lshl_add_u32 v4, {vL}, 2, {sT1}
v_and_b32 v5, 15, {vL}
v_lshl_add_u32 v5, v5, 2, {sT1}
ds_write2_b32 v4, v{GAT}, v{GAT+1} offset0:0 offset1:144
ds_write2_b32 v4, v{GAT+4}, v{GAT+5} offset0:64 offset1:208
v_add_u32 v6, 512, v5
ds_write2_b32 v6, v{GAT+8}, v{GAT+9} offset0:0 offset1:144
""")
        if ty == 0:
            L += mk("v_add_u32 v4, 256, v5")
            for i in range(9):
                if i < 4: L += mk(f"ds_read2_b32 {V2(ST+2*i)}, v5 offset0:{16*i} offset1:{144+16*i}")
                else: L += mk(f"ds_read2_b32 {V2(ST+2*i)}, v4 offset0:{16*i-64} offset1:{80+16*i}")
            L += mk(f"v_lshrrev_b32 v6, 4, {vL}\nv_lshl_add_u32 v43, v6, 4, {sT1}")
        else:
            L += mk(f"""
s_lshr_b32 {sT2}, {sW}, 1
s_lshl_b32 {sT2}, {sT2}, 8
v_add_u32 v6, {sT2}, v5
v_subrev_u32 v5, {sT2}, v5
v_add_u32 v5, 256, v5
""")
            for i in range(8):
                L += mk(f"ds_read2_b32 {V2(ST+2*i)}, v{6 if i < 4 else 5} offset0:{16+16*(i%4)} offset1:{160+16*(i%4)}")
        return L

    def type_code(self, ty):
        o = self.opt
        c = mk("L_tb:") if ty else []
        vm = list(self.vm0)
        def waitfor(tags):
            for t in tags: assert vm.count(t) >= {"w": 5, "x": 4}.get(t[0], 1) and all(q[1] != t for q in dq), (t, ty)
            idx = max([k for k, t in enumerate(vm) if t in tags], default=-1)
            return len(vm) - 1 - idx
        def note(L, tag):
            for i in flatten(L):
                if i.kind == "vmem": vm.append(tag)
            return L
        need = lambda s: [("w", s), ("x", s // 2)]
        dq = []
        c += mk(f"s_waitcnt vmcnt({waitfor(need(0))})\ns_barrier")
        defA, defB = self.deferred(ty)
        c += self.stamp(1)
        c += self.reads(ty, 0)
        stats = self.stats_compute()
        dq = self.dma_queue(ty)
        pfq = [(g, k) for g in o.pford.split(",") for k in range(self.PFG[g][2])]; pfn = 0
        stl = self.staged(); self.nin = sum(o.stsched); assert self.nin <= 26
        third = -(-len(stats) // 6) * 2
        SL = o.statstep; SC = SL + o.statlag
        SN, SP, SG, SS = 1, SC + 3, 11, 14
        for s in range(16):
            tags = need(s + 1) if s < 15 else []
            if s == SC: tags = tags + [("sl", 0)]
            if s == SP: tags = tags + [("non", 0)]
            if s == SS: tags = tags + [("gat", 0)]
            c += mk((f"s_waitcnt vmcnt({waitfor(tags)}) lgkmcnt(0)" if tags else "s_waitcnt lgkmcnt(0)") + "\ns_barrier")
            if o.stamps and s in (1, 5, 11): c += self.stamp({1: 2, 5: 3, 11: 4}[s])
            rd = self.reads(ty, s + 1) if s < 15 else []
            other = []
            if s == SN:
                other += note(mk(f"v_mov_b32 v{NON}, 0\nbuffer_load_dwordx2 {V2(NON)}, v{NON}, {sDBG}, 0 offen sc1"), ("non", 0))
            if s == SG: other += note(self.gather_load(), ("gat", 0))
            if s == SL: other += note(self.stats_load(), ("sl", 0))
            if s < o.wtouch and o.tfirst: other += note(self.wtouch(s % 3), ("wt", 0))
            k = 0
            while dq and dq[0][0] <= s and k < (o.quota0 if s == 0 else o.quota):
                _, tag, atom = dq.pop(0); other += note(atom, tag); k += 1
            if s < o.wtouch and not o.tfirst: other += note(self.wtouch(s % 3), ("wt", 0))
            if s == 0: other += defA[:27]
            if s == 1: other += defA[27:]
            if s == max(o.wtouch, 2): other += defB
            if s > 10:
                assert not dq or s <= 11
                other += note(self.b2_dma(s), ("b2", s))
            if not o.nopf:
                for _ in range(int(o.pfsched[s])):
                    if not pfq: break
                    g, k = pfq.pop(0); other += note(self.l2pf(g, k, pfn), ("pf", 0)); pfn += 1
            for _ in range(o.stsched[s]):
                other += note(stl.pop(0), ("b2", -1))
            if SC <= s <= SC + 2: other += stats[(s - SC) * third: (s - SC + 1) * third]
            if s == SP: other += note(self.publish(ty), ("pub", 0))
            if s == SS: other += self.stats_stage(ty)
            mm = self.mfmas(ty, s)
            if o.nomfma: mm = [I("s_nop 0") for _ in mm]
            if o.noreads: rd = []
            no = len([i for i in flatten(other) if not i.is_label])
            room = 2 * (len(mm) - len(rd))
            ost = len(rd) if no <= room else max(0, len(rd) - (no - room))
            wv = weave(mm, rd, other, per_gap=2, oth_start=(ost if o.late else 0))
            if o.align == 3:
                for i in wv: i.padok = False
            c += wv
        c += self.stamp(5)
        c += self.epi_a() if ty == 0 else self.epi_b()
        if ty == 0: c += mk("s_branch L_join")
        c = cap_vm(flatten(c), len(self.vm0))
        slow = mk(f"""
L_slow_nonce{ty}:
s_mov_b32 {sCnt}, 0
L_sn{ty}:
v_mov_b32 v{NON}, 0
buffer_load_dwordx2 {V2(NON)}, v{NON}, {sDBG}, 0 offen sc1
s_waitcnt vmcnt(0)
v_readfirstlane_b32 {sNonL}, v{NON}
v_readfirstlane_b32 {sNonH}, v{NON+1}
s_add_u32 {sCnt}, {sCnt}, 1
s_cmp_gt_u32 {sCnt}, 20000
s_cbranch_scc1 L_back_nonce{ty}
s_cmp_eq_u32 {sNonL}, 0
s_cbranch_scc1 L_sn{ty}
s_branch L_back_nonce{ty}
L_slow_gat{ty}:
s_mov_b32 {sCnt}, 0
L_sg{ty}:
""") + self.gather_load() + mk("s_waitcnt vmcnt(0)") + self.gather_cmp() + mk(f"""
s_add_u32 {sCnt}, {sCnt}, 1
s_cmp_gt_u32 {sCnt}, 20000
s_cbranch_scc1 L_back_gat{ty}
s_cbranch_vccnz L_sg{ty}
s_branch L_back_gat{ty}
""")
        return c, slow

    def stg(self, i, blk):
        j = i - 18
        return (112 + 8 * j if j < 13 else 64 + 8 * (j - 13)) + 4 * blk
    def staged(self):
        L = []
        for i in range(18, 36):
            for blk in range(2):
                r = self.stg(i, blk); g, k = self.TILES[i]
                if "s" in self.opt.ko: g, k = 2, 0
                L.append(mk(f"s_add_u32 {sT0}, {sWB[g]}, {(16*k + 8*blk)*1024}\nbuffer_load_dwordx4 {A4(r)}, {vB2}, {sWO if g == 0 else sWD}, {sT0} offen"))
        return L
    def sprinkle(self, code, items, start, stop):
        out = []; n = len(items); k = 0
        for idx, ins in enumerate(code):
            out.append(ins)
            while k < n and idx >= start and (idx - start + 1) * n >= (k + 1) * (stop - start):
                out += items[k]; k += 1
        for it in items[k:]: out += it
        return out
    NEG = "op_sel:[0,1,0] op_sel_hi:[1,1,1] neg_lo:[0,1,0] neg_hi:[0,1,0]"
    def gu(self, cs, g, u, stp, dst):
        NEG = self.NEG
        L = [f"v_pk_fma_f32 {V2(g+2*h)}, {V2(cs+2*h)}, {V2(stp)}, {V2(g+2*h)} {NEG}" for h in range(2)]
        L += [f"v_pk_fma_f32 {V2(u+2*h)}, {V2(cs+4+2*h)}, {V2(stp)}, {V2(u+2*h)} {NEG}" for h in range(2)]
        L += [f"v_pk_mul_f32 {V2(g+2*h)}, {V2(g+2*h)}, {V2(u+2*h)}" for h in range(2)]
        L += [f"v_cvt_pk_bf16_f32 v{dst+h}, v{g+2*h}, v{g+2*h+1}" for h in range(2)]
        return L
    def gu_unit(self, cs, g0, u0, g1, u1, st0, st1, vo, so):
        c = []
        for x, y in zip(self.gu(cs, g0, u0, st0, u0), self.gu(cs, g1, u1, st1, u0 + 2)): c += mk(x + "\n" + y)
        return c + self.unit_store(u0, vo, so)
    def unit_store(self, r, vo, so):
        return mk(f"v_permlane16_swap_b32 v{r}, v{r+2}\nv_permlane16_swap_b32 v{r+1}, v{r+3}\nbuffer_store_dwordx4 {V4(r)}, v{vo}, {sWS}, {so} offen" + ("" if "p" in self.opt.ko else " sc1"))
    def csread(self, dst, k, n=4):
        return [I(f"v_accvgpr_read_b32 v{dst+r}, a{CSACC+4*k+r}") for r in range(n)]

    def epi_b(self):
        ST = self.ST
        c = []
        for k in range(6): c += self.csread(8 + 4 * k if k < 2 else 36 + 4 * k, k)
        for P in range(2):
            cs = 8 if P == 0 else 44
            for j in range(4):
                c += self.gu_unit(cs, bAcc(2*P, 2*j), bAcc(2*P+1, 2*j), bAcc(2*P, 2*j+1), bAcc(2*P+1, 2*j+1), ST+4*j, ST+4*j+2, VST+j, sU[P])
        for j in range(2):
            c += self.gu_unit(52, bMix(0, 2*j), bMix(1, 2*j), bMix(0, 2*j+1), bMix(1, 2*j+1), ST+4*j, ST+4*j+2, VST+j, sU[2])
        c += self.stamp(6)
        st = self.staged()[self.nin:]; nb = min(self.opt.nstage_b, len(st))
        c += self.flagaddr(sT2, 0) + self.polladdr()
        for it in st[:nb]: c += it
        c += self.p2setup()
        c += mk(f"s_waitcnt vmcnt({nb + 2})") + self.flagstore(sT2, 8) + self.stamp(7)
        c += self.poll_issue(0)
        for it in st[nb:]: c += it
        c += mk(f"s_waitcnt vmcnt({len(st) - nb})")
        return c

    def epi_a(self):
        ST = self.ST; NEG = self.NEG
        c = []
        c += self.csread(8, 3) + self.csread(12, 4) + self.csread(44, 0) + self.csread(48, 1) + self.csread(52, 2, 1)
        for j in range(4):
            c += self.gu_unit(8, aG(2*j), aU(2*j), aG(2*j+1), aU(2*j+1), ST+2+4*j, ST+4+4*j, VST+j, sU[0])
        c += self.stamp(6)
        head = c; c = []
        vs = lambda i: 192 + 8 * (i % 4) if i < 8 else 78
        def vsread(i): return mk(f"ds_read_b128 {V4(vs(i))}, v43 offset:{64*i}\nds_read_b128 {V4(vs(i)+4)}, v43 offset:{576+64*i}")
        for i in (0, 1, 2, 3, 8): c += vsread(i)
        kp = lambda i: 8 + 2 * i if i < 4 else 18 + 2 * (i - 4) if i < 8 else 86
        def inter(LL):
            out = []
            for step in range(max(len(l) for l in LL)):
                for l in LL:
                    if step < len(l): out += mk(l[step])
            return out
        def kfix(i):
            k = aK(i); stp = ST + 2 * i
            return [f"v_pk_fma_f32 {V2(k)}, {V2(48)}, {V2(stp)}, {V2(k)} {NEG}",
                    f"v_pk_fma_f32 {V2(k+2)}, {V2(50)}, {V2(stp)}, {V2(k+2)} {NEG}",
                    f"v_pk_mul_f32 {V2(k)}, {V2(k)}, {V2(stp)} op_sel_hi:[1,0]",
                    f"v_pk_mul_f32 {V2(k+2)}, {V2(k+2)}, {V2(stp)} op_sel_hi:[1,0]",
                    f"v_cvt_pk_bf16_f32 v{kp(i)}, v{k}, v{k+1}",
                    f"v_cvt_pk_bf16_f32 v{kp(i)+1}, v{k+2}, v{k+3}"]
        c += inter([kfix(i) for i in range(9)])
        qp = lambda i: 120 + 2 * i
        def qfix(i):
            q = aQ(i); stp = ST + 2 * (i + 1)
            return [f"v_pk_fma_f32 {V2(q)}, {V2(44)}, {V2(stp)}, {V2(q)} {NEG}",
                    f"v_pk_fma_f32 {V2(q+2)}, {V2(46)}, {V2(stp)}, {V2(q+2)} {NEG}",
                    f"v_cvt_pk_bf16_f32 v{qp(i)}, v{q}, v{q+1}",
                    f"v_cvt_pk_bf16_f32 v{qp(i)+1}, v{q+2}, v{q+3}"]
        c += inter([qfix(i) for i in range(8)])
        NEGV = "op_sel_hi:[1,0,1] neg_lo:[0,1,0] neg_hi:[0,1,0]"
        vp = lambda i: 136 + 2 * i
        def vfix(i):
            v = aV(i); s_ = vs(i)
            return [f"v_pk_fma_f32 {V2(v)}, {V2(s_+4)}, {V2(52)}, {V2(v)} {NEGV}",
                    f"v_pk_fma_f32 {V2(v+2)}, {V2(s_+6)}, {V2(52)}, {V2(v+2)} {NEGV}",
                    f"v_pk_mul_f32 {V2(v)}, {V2(v)}, {V2(s_)}",
                    f"v_pk_mul_f32 {V2(v+2)}, {V2(v+2)}, {V2(s_+2)}",
                    f"v_cvt_pk_bf16_f32 v{vp(i)}, v{v}, v{v+1}",
                    f"v_cvt_pk_bf16_f32 v{vp(i)+1}, v{v+2}, v{v+3}"]
        MK = "v_mfma_f32_16x16x16_bf16"
        sp = lambda i: 88 + 8 * i if i < 4 else 156 + 8 * (i - 4)
        def smf(i):
            bp = BIAS + 8 if i == 0 else BIAS
            return mk(f"{MK} {V4(sp(i))}, {V2(kp(i))}, {V2(qp(i))}, {V4(bp)}\n{MK} {V4(sp(i)+4)}, {V2(kp(i+1))}, {V2(qp(i))}, {V4(BIAS+4)}")
        for i in range(4): c += smf(i)
        c += mk("s_waitcnt lgkmcnt(0)")
        c += inter([vfix(i) for i in (0, 1, 2, 3, 8)])
        for i in range(4, 8): c += vsread(i)
        sch = f2h(0.25 * 1.4426950408889634)
        def soft(i, t, P):
            s_ = sp(i)
            l = [f"v_max3_f32 v{t}, v{s_}, v{s_+1}, v{s_+2}",
                 f"v_max3_f32 v{t+1}, v{s_+3}, v{s_+4}, v{s_+5}",
                 f"v_max3_f32 v{t}, v{t}, v{s_+6}, v{s_+7}",
                 f"v_mul_f32 v{t+2}, {sch}, v{ST+2*(i+1)}",
                 f"v_max_f32 v{t}, v{t}, v{t+1}",
                 f"v_mov_b32 v{t+1}, v{t}",
                 f"v_permlane16_swap_b32 v{t}, v{t+1}",
                 f"v_max_f32 v{t}, v{t}, v{t+1}",
                 f"v_mov_b32 v{t+1}, v{t}",
                 f"v_permlane32_swap_b32 v{t}, v{t+1}",
                 f"v_max_f32 v{t}, v{t}, v{t+1}",
                 f"v_mul_f32_e64 v{t+3}, -v{t}, v{t+2}"]
            l += [f"v_pk_fma_f32 {V2(s_+2*h)}, {V2(s_+2*h)}, {V2(t+2)}, {V2(t+2)} op_sel:[0,0,1] op_sel_hi:[1,0,1]" for h in range(4)]
            l += [f"v_exp_f32 v{s_+e}, v{s_+e}" for e in range(8)]
            l += [f"v_cvt_pk_bf16_f32 v{P+h}, v{s_+2*h}, v{s_+2*h+1}" for h in range(4)]
            return l
        tmp = [228, 236, 244, 252]
        Pq = [44, 48, 54, 78]
        c += inter([soft(i, tmp[i], Pq[i]) for i in range(4)])
        c += mk("s_waitcnt lgkmcnt(0)")
        c += inter([vfix(i) for i in range(4, 8)])
        for i in range(4, 8): c += smf(i)
        LS = lambda i: sp(i)
        O = lambda i: sp(i) + 4
        def pv(i, P): return mk(f"{M16} {V4(LS(i))}, {A4(ONES)}, {V4(P)}, 0\n{M16} {V4(O(i))}, {V4(vp(i))}, {V4(P)}, 0")
        for i in range(4): c += pv(i, Pq[i])
        def fin(i, d):
            return [f"v_rcp_f32 v{LS(i)}, v{LS(i)}",
                    f"v_pk_mul_f32 {V2(O(i))}, {V2(O(i))}, {V2(LS(i))} op_sel_hi:[1,0]",
                    f"v_pk_mul_f32 {V2(O(i)+2)}, {V2(O(i)+2)}, {V2(LS(i))} op_sel_hi:[1,0]",
                    f"v_cvt_pk_bf16_f32 v{d}, v{O(i)}, v{O(i)+1}",
                    f"v_cvt_pk_bf16_f32 v{d+1}, v{O(i)+2}, v{O(i)+3}"]
        oq = lambda i: 192 + 4 * (i // 2) + 2 * (i % 2)
        Pq2 = [208, 212, 216, 220]
        second = [soft(i, tmp[i - 4], Pq2[i - 4]) for i in range(4, 8)]
        c += inter([l[:12] for l in second])
        c += inter([fin(i, oq(i)) for i in range(4)])
        c += self.unit_store(192, VST, sU[1]) + self.unit_store(196, VST + 1, sU[1])
        c += inter([l[12:] for l in second])
        for i in range(4, 8): c += pv(i, Pq2[i - 4])
        c += inter([fin(i, oq(i)) for i in range(4, 8)])
        st = self.staged()[self.nin:]
        kf = int(len(st) * self.opt.hflag)
        st[kf] = st[kf] + self.flagaddr(sT2, 0) + mk(f"s_waitcnt vmcnt({kf + 1})") + self.flagstore(sT2, 2)
        st.append(self.polladdr() + self.poll_issue(0))
        c = head + self.sprinkle(c, st, 0, len(c) - self.opt.pollpos)
        c += self.unit_store(200, VST + 2, sU[1]) + self.unit_store(204, VST + 3, sU[1])
        c += self.stamp(7)
        c += self.p2setup() + self.flagaddr(sT2, 128) + mk("s_waitcnt vmcnt(4)")
        return c

    POLL = 58
    def polladdr(self):
        return mk(f"""
s_lshr_b32 s81, {sR}, 1
s_lshl_b32 s81, s81, 1
s_and_b32 {sT1}, {sW}, 1
s_add_u32 s81, s81, {sT1}
s_lshl_b32 s81, s81, 9
s_add_u32 s81, s81, {WS_FLAG}
v_and_b32 v16, 15, {vL}
v_lshlrev_b32 v16, 3, v16
v_bfe_u32 v{self.POLL}, {vL}, 4, 1
v_lshl_add_u32 v16, v{self.POLL}, 8, v16
""")
    def poll_issue(self, off, reg=None):
        return mk(f"buffer_load_dwordx2 {V2(reg or self.POLL)}, v16, {sWS}, s81 offen offset:{off} sc1")
    PT = 18; PW = 24; PX = 27; PY = 29; VXO = 34; XR = 36
    def p2setup(self):
        PT, PW, PX, PY, VXO, XR = self.PT, self.PW, self.PX, self.PY, self.VXO, self.XR
        c = mk(f"""
s_lshl_b32 {sT0}, {sR}, 1
s_lshr_b32 {sT1}, {sW}, 1
s_add_u32 {sT0}, {sT0}, {sT1}
s_lshl_b32 s59, {sT0}, 5
s_mul_i32 {sT0}, {sT0}, {RBS}
s_and_b32 {sT1}, {sW}, 1
s_lshl_b32 {sB[0]}, {sT1}, 14
s_add_u32 {sB[0]}, {sB[0]}, {sT0}
s_add_u32 {sB[1]}, {sB[0]}, {32*1024}
s_lshl_b32 {sB[2]}, {sT1}, 15
s_add_u32 {sB[2]}, {sB[2]}, {sT0}
s_add_u32 {sB[2]}, {sB[2]}, {64*1024}
s_lshl_b32 {sB[3]}, {sT1}, 13
s_add_u32 {sB[3]}, {sB[3]}, {sT0}
s_add_u32 {sB[3]}, {sB[3]}, {128*1024}
v_lshlrev_b32 v2, 4, {vL}
v_lshrrev_b32 v4, 2, {vL}
v_add_u32 v6, s59, v4
v_and_b32 v5, 3, {vL}
v_lshlrev_b32 v3, 4, v5
v_lshl_add_u32 v6, v6, 10, v3
s_lshl_b32 {sT0}, {sC}, 7
s_lshl_b32 {sT1}, {sT1}, 6
s_add_u32 {sT0}, {sT0}, {sT1}
v_add_u32 v{VXO}, {sT0}, v6
v_add_u32 v{VXO+1}, 0x4000, v{VXO}
buffer_load_dwordx4 {V4(XR)}, v{VXO}, {sX}, 0 offen
buffer_load_dwordx4 {V4(XR+4)}, v{VXO+1}, {sX}, 0 offen
v_and_b32 v6, 31, {vL}
v_add_u32 v3, s59, v6
v_lshlrev_b32 v33, 4, v3
v_add_u32 v{PW}, {sT3}, v2
v_add_u32 v{PW+1}, 0x10000, v{PW}
v_add_u32 v{PW+2}, 0x20000, v{PW}
v_xor_b32 v{PX}, 0x800, v{PW}
v_lshrrev_b32 v3, 5, {vL}
v_bfe_u32 v{PY}, {vL}, 1, 2
v_xor_b32 v3, v3, v{PY}
v_lshlrev_b32 v3, 4, v3
v_lshl_add_u32 v3, v6, 6, v3
s_add_u32 {sT0}, {sT3}, 0x20000
v_add_u32 v{PY}, {sT0}, v3
v_xor_b32 v{PY+1}, 32, v{PY}
v_bfe_u32 v3, {vL}, 3, 2
v_xor_b32 v3, v3, v5
v_lshlrev_b32 v3, 4, v3
v_lshl_add_u32 v3, v4, 6, v3
v_add_u32 v{PY+2}, {sT0}, v3
v_lshrrev_b32 v4, 5, {vL}
v_lshlrev_b32 v4, 10, v4
v_bfe_u32 v6, {vL}, 2, 2
v_lshl_add_u32 v4, v6, 7, v4
v_lshrrev_b32 v6, 1, v6
v_lshl_add_u32 v4, v6, 6, v4
v_bfe_u32 v6, {vL}, 4, 1
v_lshl_add_u32 v4, v6, 5, v4
v_and_b32 v6, 1, {vL}
v_lshl_add_u32 v4, v6, 4, v4
v_bfe_u32 v6, {vL}, 1, 1
v_lshl_add_u32 v4, v6, 3, v4
v_xor_b32 v4, {sT1}, v4
s_lshl_b32 {sT1}, {sT1}, 5
v_add_u32 v{PT}, {sT1}, v4
v_xor_b32 v{PT+1}, 64, v{PT}
v_add_u32 v{PT+2}, 0x10000, v{PT}
v_add_u32 v{PT+3}, 0x10000, v{PT+1}
v_add_u32 v{PT+4}, 0x20000, v{PT}
v_add_u32 v{PT+5}, 0x20000, v{PT+1}
""")
        return c

    def phase2(self):
        o = self.opt
        BF = [216, 32]; DACC = 64; ABUF = 128; DEPTH = o.depth
        PT, PW, PX, PY, VXO, XR, POLL = self.PT, self.PW, self.PX, self.PY, self.VXO, self.XR, self.POLL
        TILES = self.TILES
        c = mk("L_join:")
        c += self.stamp(8)
        if o.p1only:
            return c + mk(f"s_waitcnt vmcnt(0)\ns_cmp_eq_u32 {sTyp}, 1\ns_cbranch_scc1 L_noflag") + self.flagstore(sT2, 8) + mk("L_noflag:")
        def bread(t):
            out = []
            for h in range(4):
                sg = (4 * t + h) % 36
                for cb in range(2):
                    for e in range(2):
                        out.append(I(f"ds_read_b64_tr_b16 {A2(BF[t&1]+8*h+4*cb+2*e)}, v{PT+2*(sg//16)+cb} offset:{(sg%16)*4096+e*512}"))
            return out
        c += mk(f"""
v_cmp_ne_u64 vcc, {sNon}, {V2(POLL)}
s_cbranch_vccnz L_slow_e
L_go:
""")
        self.slow2 = mk(f"""
L_slow_e:
s_mov_b32 {sCnt}, 0
L_se:
""") + self.poll_issue(0) + mk(f"""
s_add_u32 {sCnt}, {sCnt}, 1
s_waitcnt vmcnt(0)
v_cmp_ne_u64 vcc, {sNon}, {V2(POLL)}
s_cmp_gt_u32 {sCnt}, 20000
s_cbranch_scc1 L_go
s_cbranch_vccnz L_se
s_branch L_go
L_slow_o:
s_mov_b32 {sCnt}, 0
L_so:
""") + self.poll_issue(128) + mk(f"""
s_add_u32 {sCnt}, {sCnt}, 1
s_waitcnt vmcnt(0)
v_cmp_ne_u64 vcc, {sNon}, {V2(POLL)}
s_and_b32 vcc_lo, vcc_lo, 0xff00ff
s_cbranch_scc0 L_back_o
s_cmp_gt_u32 {sCnt}, 20000
s_cbranch_scc0 L_so
s_branch L_back_o
""")
        c += self.stamp(9) + self.stamp(10)
        vm = []
        def aload(t):
            r, k = TILES[2 * t]; b = ABUF + 16 * (t % DEPTH)
            vm.extend([("a", t)] * 4)
            return mk(f"s_add_u32 {sT0}, {sB[r]}, {k*1024}") + [I(f"buffer_load_dwordx4 {V4(b+4*h)}, v2, {sWS}, {sT0} offen offset:{1024*h} sc1") for h in range(4)]
        def young(tag): return len(vm) - 1 - max(k for k, t in enumerate(vm) if t == tag)
        for t in range(o.burst): c += aload(t)
        c += mk(f"s_mov_b32 {sT1}, {WS_STAT}\nbuffer_load_dword v{XR+8}, v33, {sWS}, {sT1} offen sc1"); vm.append(("rs", 0))
        c += mk(f"s_waitcnt vmcnt({len(vm)})\ns_cmp_eq_u32 {sTyp}, 1\ns_cbranch_scc1 L_noflag")
        c += self.flagstore(sT2, 8) + mk("L_noflag:\ns_barrier")
        c += bread(0)
        M32 = "v_mfma_f32_32x32x16_bf16"
        issued = o.burst; nwr = 0
        TP = 14 - 2 * o.burst
        xo = [0, 1024, 8192, 9216]
        RX = ABUF + 16 * (10 % DEPTH)
        TM = ABUF + 16 * (11 % DEPTH)
        dval = mk(f"v_mul_f32 v{XR+8}, v{XR+8}, v{XR+8}")
        el = range(16)
        dval += [I(f"v_add_f32 v{DACC+e}, v{DACC+e}, v{RX+e}") for e in el]
        dval += [I(f"v_mul_f32 v{DACC+e}, v{XR+8}, v{DACC+e}") for e in el]
        dval += [I(f"v_mul_f32 v{TM+e}, 0xbfb8aa3b, v{DACC+e}") for e in el]
        dval += [I(f"v_exp_f32 v{TM+e}, v{TM+e}") for e in el]
        dval += [I(f"v_add_f32 v{TM+e}, 1.0, v{TM+e}") for e in el]
        dval += [I(f"v_rcp_f32 v{TM+e}, v{TM+e}") for e in el]
        dval += [I(f"v_mul_f32 v{DACC+e}, v{DACC+e}, v{TM+e}") for e in el]
        for k in range(8):
            dval += mk(f"v_lshlrev_b32 v{46+2*k}, 16, v{XR+k}\nv_and_b32 v{47+2*k}, 0xffff0000, v{XR+k}")
        WS_ = [int(ch) for ch in o.wsched]; wdone = 0; assert sum(WS_) == 36
        BARS = [int(x) for x in o.bars.split(",")]
        for t in range(18):
            b = ABUF + 16 * (t % DEPTH)
            bar = t in BARS
            c += mk(f"s_waitcnt vmcnt({young(('a', t))}) lgkmcnt({0 if (bar or t == 16) else nwr})" + ("\ns_barrier" if bar else ""))
            if o.p2stamps and t in (0, 4, 9, 14, 16, 17): c += self.stamp({0: 2, 4: 3, 9: 4, 14: 5, 16: 6, 17: 7}[t], True)
            mm = []
            for h in range(4):
                for cb in range(2):
                    k = 16 * cb
                    d = f"a[{k}:{k+15}]" if t >= 14 else f"v[{DACC+k}:{DACC+k+15}]"
                    cc = "0" if (t in (0, 14) and h == 0) else d
                    mm.append(I(f"{M32} {d}, {A4(BF[t&1]+8*h+4*cb)}, {V4(b+4*h)}, {cc}"))
            lds = bread(t + 1) if t < 17 else []
            wr = []
            if True:
                for k in range(wdone, min(36, wdone + WS_[t])):
                    u = 18 + k // 2; blk = k & 1; sg = u - 18; wdone += 1
                    lastbar = max(x for x in BARS if x <= t); nextbar = min(x for x in BARS if x > t)
                    assert 2 * sg + 1 <= 4 * lastbar + 3 and 8 + (2 * sg) // 4 >= nextbar, (t, k)
                    wr.append(I(f"ds_write_b128 v{PW+sg//8}, {A4(self.stg(u, blk))} offset:{(sg%8)*8192+blk*1024}"))
            if t == 14:
                wr += [I(f"ds_write_b128 v{PW}, {V4(DACC+16+4*p)} offset:{xo[p]}") for p in range(4)]
            if t == 15:
                lds = [I(f"ds_read_b128 {V4(RX+4*p)}, v{PX} offset:{xo[p]}") for p in range(4)] + lds
            if t >= 16:
                n = o.dshadow // 2
                wr = dval[:n]; dval = dval[n:]
            ld = []
            if t == TP: ld += self.poll_issue(128); vm.append(("po", 0))
            if issued < 18 and issued - DEPTH < t:
                if issued == 14:
                    ld.append(mk(f"s_waitcnt vmcnt({young(('po', 0))})\nv_cmp_ne_u64 vcc, {sNon}, {V2(POLL)}\ns_nop 0\ns_and_b32 vcc_lo, vcc_lo, 0xff00ff\ns_cbranch_scc1 L_slow_o\nL_back_o:"))
                ld += aload(issued); issued += 1
            seq = []
            while ld or wr:
                if ld: seq.append(ld.pop(0))
                if wr: seq.append(wr.pop(0))
            if "m" in o.p2: mm = [I("s_nop 0") for _ in mm]
            if "w" in o.p2: seq = [x for x in seq if isinstance(x, list) or not x.op.startswith("ds_write")]
            wv = weave(mm, lds, seq, per_gap=(6 if t >= 16 else o.p2gap), lds_per_gap=o.p2lds, oth_start=(2 if t == 14 else 0))
            dsl = [x for x in wv if x.kind == "ds"]
            last = max([k for k, x in enumerate(dsl) if x.op.startswith("ds_read")], default=-1)
            nwr = len(dsl) - 1 - last
            if o.align == 3:
                for i in wv: i.padok = False
            c += wv
        c += self.stamp(11)
        lead = min(12, len(dval))
        c += dval[:lead]; dval = dval[lead:]
        per = -(-len(dval) // 8)
        for p in range(4):
            c += mk(f"ds_write_b128 v{PW}, {A4(16+4*p)} offset:{16384+xo[p]}") + dval[:per]; dval = dval[per:]
        SV = 96
        c += mk("s_waitcnt lgkmcnt(0)\ns_barrier")
        c += [I(f"ds_read_b128 {V4(RX+4*p)}, v{PX} offset:{16384+xo[p]}") for p in range(4)]
        c += dval
        c += [I(f"v_accvgpr_read_b32 v{SV+e}, a{e}") for e in el]
        c += mk("s_waitcnt lgkmcnt(0)")
        c += [I(f"v_pk_add_f32 {V2(SV+2*e)}, {V2(SV+2*e)}, {V2(RX+2*e)}") for e in range(8)]
        c += [I(f"v_pk_mul_f32 {V2(SV+2*e)}, {V2(SV+2*e)}, {V2(DACC+2*e)}") for e in range(8)]
        c += [I(f"v_cvt_pk_bf16_f32 v{8+e}, v{SV+2*e}, v{SV+2*e+1}") for e in range(8)]
        c += mk(f"""
ds_write_b128 v{PY}, {V4(8)}
ds_write_b128 v{PY+1}, {V4(12)}
ds_read_b128 {V4(112)}, v{PY+2}
ds_read_b128 {V4(116)}, v{PY+2} offset:1024
""")
        for hh in range(2):
            c += mk(f"s_waitcnt lgkmcnt({1-hh})")
            for k in range(4):
                c += mk(f"v_lshlrev_b32 v{SV+8*hh+2*k}, 16, v{112+4*hh+k}\nv_and_b32 v{SV+8*hh+2*k+1}, 0xffff0000, v{112+4*hh+k}")
            for k in range(4): c += mk(f"v_pk_add_f32 {V2(SV+8*hh+2*k)}, {V2(SV+8*hh+2*k)}, {V2(46+8*hh+2*k)}")
            for k in range(4): c += mk(f"v_cvt_pk_bf16_f32 v{120+4*hh+k}, v{SV+8*hh+2*k}, v{SV+8*hh+2*k+1}")
            c += mk(f"buffer_store_dwordx4 {V4(120+4*hh)}, v{VXO+hh}, {sOUT}, 0 offen {o.outfl}")
        return c

    def finish(self):
        c = []
        if self.opt.amp:
            k, mult = self.opt.amp
            c += self.stamp(12)
            c += mk(f"""
s_waitcnt vmcnt(0)
s_cmp_lg_u32 s2, 77
s_cbranch_scc1 L_end
v_readlane_b32 s96, v7, {k}
s_sub_u32 s96, s96, s98
s_mul_i32 s96, s96, {mult}
s_min_u32 s96, s96, 100000
s_memrealtime s[100:101]
s_waitcnt lgkmcnt(0)
s_add_u32 s96, s96, s100
L_amp:
s_memrealtime s[100:101]
s_waitcnt lgkmcnt(0)
s_sub_u32 s97, s96, s100
s_cmp_gt_i32 s97, 0
s_cbranch_scc1 L_amp
L_end:
s_endpgm
""")
            return c
        if self.opt.stamps:
            c += self.stamp(12)
            c += mk(f"""
s_waitcnt vmcnt(0)
s_memrealtime s[96:97]
s_waitcnt lgkmcnt(0)
v_writelane_b32 v7, s96, 13
v_writelane_b32 v7, s98, 0
v_writelane_b32 v7, {sTyp}, 14
s_add_u32 s{bWS}, s66, {STAMP}
s_addc_u32 s{bWS+1}, s67, 0
s_mov_b32 s{bWS+2}, 0x100000
s_lshl_b32 {sT0}, s2, 2
s_add_u32 {sT0}, {sT0}, {sW}
s_lshl_b32 {sT0}, {sT0}, 7
v_lshlrev_b32 v4, 2, {vL}
s_mov_b64 exec, 0xffffffff
buffer_store_dword v7, v4, {sWS}, {sT0} offen
""")
        c += mk("L_end:\ns_endpgm")
        return c

    def build(self):
        pro = self.prologue()
        tys = [self.type_code(t) for t in range(2)]
        p2 = self.phase2()
        fin = self.finish()
        tot = 0
        for t in range(2):
            tot += fix_hazards(pro + tys[t][0] + p2 + fin, self.opt.verbose)
        for t in range(2):
            fix_hazards(tys[t][1], self.opt.verbose)
            e, mx = check_waits(pro + tys[t][0] + p2 + fin, f"t{t}")
            print(f"type {t}: wait errors {e}, max vm outstanding {mx}", file=sys.stderr)
        print(f"inserted nop states: {tot}", file=sys.stderr)
        slow2 = getattr(self, "slow2", [])
        fix_hazards(slow2)
        code = pro + tys[0][0] + tys[1][0] + p2 + fin + tys[0][1] + tys[1][1] + slow2
        L = KN + "_kernel"
        if self.opt.align:
            wrap = lambda t: f'.amdgcn_target "amdgcn-amd-amdhsa--gfx950"\n.text\n.p2align 8\n{t}L_codeend:\n'
            print("align (promoted, padded):", align8(code, wrap, self.opt.align > 1), file=sys.stderr)
        hdr = open("cdna_kernels/" + KN + ".s.ref").read().split("; Override launch")[0] if self.opt.final else ""
        out = hdr + f"; @launch grid=(256,1,1) block=(256,1,1) lds={LDS_BYTES}\n"
        out += f'.amdgcn_target "amdgcn-amd-amdhsa--gfx950"\n.text\n.globl {L}\n.p2align 8\n.type {L},@function\n{L}:\n'
        out += text(code)
        out += "s_endpgm\n.p2align 6\nL_codeend:\n"
        out += f""".section .rodata,"a"
.p2align 6
.amdhsa_kernel {L}
  .amdhsa_next_free_vgpr 512
  .amdhsa_next_free_sgpr 102
  .amdhsa_accum_offset 256
  .amdhsa_group_segment_fixed_size 0
  .amdhsa_kernarg_size 80
  .amdhsa_user_sgpr_count 2
  .amdhsa_user_sgpr_kernarg_segment_ptr 1
  .amdhsa_system_sgpr_workgroup_id_x 1
  .amdhsa_float_denorm_mode_32 3
.end_amdhsa_kernel
"""
        return out

if __name__ == "__main__":
    ap = argparse.ArgumentParser()
    ap.add_argument("-o", default="k.s")
    for f in ("stamps", "p1only", "verbose", "final", "nomfma", "noreads", "nocs", "nopf", "prostamps", "p2stamps"): ap.add_argument("--" + f, action="store_true")
    ap.add_argument("--p2", default="")
    ap.add_argument("--p2gap", type=int, default=4)
    ap.add_argument("--burst", type=int, default=3)
    ap.add_argument("--ramp", type=int, default=2)
    ap.add_argument("--nstage_b", type=int, default=0)
    ap.add_argument("--depth", type=int, default=8)
    ap.add_argument("--pf0", type=int, default=2)
    ap.add_argument("--tlb", type=int, default=0)
    ap.add_argument("--kgroups", type=int, default=4)
    ap.add_argument("--quota", type=int, default=10)
    ap.add_argument("--ko", default="")
    ap.add_argument("--outfl", default="")
    ap.add_argument("--protouch", type=int, default=2)
    ap.add_argument("--tfirst", type=int, default=1)
    ap.add_argument("--ntx", type=int, default=0)
    ap.add_argument("--ntw", type=int, default=0)
    ap.add_argument("--ntt", type=int, default=0)
    ap.add_argument("--late", type=int, default=0)
    ap.add_argument("--pford", default="h2,h3,h1,o")
    ap.add_argument("--hflag", type=float, default=0.34)
    ap.add_argument("--csplit", type=int, default=1)
    ap.add_argument("--quota0", type=int, default=11)
    ap.add_argument("--wtouch", type=int, default=2)
    ap.add_argument("--wfirst", type=int, default=1)
    ap.add_argument("--statlag", type=int, default=3)
    ap.add_argument("--rotmask", type=int, default=6)
    ap.add_argument("--pfsched", default="0001111111110000")
    ap.add_argument("--statstep", type=int, default=1)
    ap.add_argument("--pfrot", type=int, default=7)
    ap.add_argument("--amp", type=lambda x: tuple(int(v) for v in x.split(",")), default=None)
    ap.add_argument("--wsched", default="033333333333300000")
    ap.add_argument("--bars", default="1,3,5,7,9,11,13,15")
    ap.add_argument("--align", type=int, default=3)
    ap.add_argument("--proextra", type=int, default=1)
    ap.add_argument("--dshadow", type=int, default=60)
    ap.add_argument("--pollpos", type=int, default=30)
    ap.add_argument("--stsched", type=lambda x: [int(ch) for ch in x], default=[int(ch) for ch in "0000000000033334"])
    ap.add_argument("--p2lds", type=int, default=4)
    ap.add_argument("--pfslice", type=int, default=4096)
    opt = ap.parse_args()
    import subprocess, re, os
    for _ in range(2):
        open(opt.o, "w").write(G(opt).build())
        subprocess.check_call(["clang", "-x", "assembler", "-target", "amdgcn-amd-amdhsa", "-mcpu=gfx950", "-c", opt.o, "-o", opt.o + ".o"])
        t = subprocess.check_output(["llvm-objdump", "-t", opt.o + ".o"], text=True)
        sym = {m.group(2): int(m.group(1), 16) for m in re.finditer(r"^([0-9a-f]{16}) .* (L_\w+)$", t, re.M)}
        n = sym["L_codeend"] - sym["L_pc"]
        opt.pfslice = (n - 12288) // 7 // 16 * 16
        assert 0 < opt.pfslice <= 8192
        opt.verbose = False
    os.remove(opt.o + ".o")
    print("code bytes", sym["L_codeend"], "pfslice", opt.pfslice, {k: v for k, v in sym.items() if k in ("L_pc", "L_tb", "L_join", "L_go", "L_end")}, file=sys.stderr)
```

```python
import sys, argparse, struct
from fw import *
KN = "recurrent_scan__sliding_local_dilated__glu_gated_bilinear__prompt"

WSLOT = 20480
XBASE = 5 * WSLOT
XSLOT = 18432
MISC = XBASE + 3 * XSLOT
STATL = MISC
LDS_BYTES = 163840
RBS = 144 * 1024
WS_STAT = 0x900000
WS_FLAG = 0x910000
WS_SIZE = 0x920000
STAMP = 200 << 20
def S4(b): return f"s[{b}:{b+3}]"
bX, bWO, bWD, bOUT, bWS, bDBG = 4, 8, 12, 16, 20, 24
sX, sWO, sWD, sOUT, sWS, sDBG = map(S4, (bX, bWO, bWD, bOUT, bWS, bDBG))
bS = [28, 32, 36, 40, 44]; sS = [S4(b) for b in bS]
sW, sM, sN, sR, sC = "s68", "s69", "s70", "s71", "s72"
sKa, sKb, sIncA = "s73", "s74", "s75"
sWoff, sXoff, sHoff = "s76", "s77", "s78"
sIdx, sTyp = "s79", "s80"
sT0, sT1, sT2, sT3 = "s82", "s83", "s84", "s85"
sNon = "s[86:87]"; sNonL, sNonH = "s86", "s87"
sU = ["s88", "s89", "s90"]
sEx = "s[94:95]"
sB = ["s48", "s49", "s50", "s51"]
sWB = ["s52", "s53", "s56", "s57"]
sCnt = "s58"
sXc = "s93"; sXk = "s92"
vL = "v1"
vX = ["v8", "v9"]; vH = ["v10", "v11"]; vWg = ["v12", "v13", "v14", "v15", "v16"]; vB2 = "v17"
RA = 18
RT = 22
VST = 26
BIAS = 30
GAT = 44
NON = 56
GA = 58
SX = 60
V4 = lambda r: f"v[{r}:{r+3}]"
V2 = lambda r: f"v[{r}:{r+1}]"
A4 = lambda r: f"a[{r}:{r+3}]"
A2 = lambda r: f"a[{r}:{r+1}]"
CSACC = 228
ONES = 252
def f2h(x): return "0x%08x" % struct.unpack("<I", struct.pack("<f", x))[0]
aQ = lambda i: 88 + 4 * i
aK = lambda i: 120 + 4 * i
aV = lambda i: 156 + 4 * i
aG = lambda i: 192 + 4 * i
aU = lambda i: 224 + 4 * i
bAcc = lambda g, i: 96 + 32 * g + 4 * i
bMix = lambda u, i: 224 + 16 * u + 4 * i
NA = {0: 9, 1: 8}; NB = {0: 5, 1: 6}
fA = lambda st, i: 56 * st + 4 * i
def fB(ty, st, j): return 56 * st + 4 * NA[ty] + 4 * j
M16 = "v_mfma_f32_16x16x32_bf16"

class G:
    def __init__(self, opt): self.opt = opt; self.young = {}
    def pstamp(self, k):
        return self.stamp(k, True) if self.opt.prostamps else []
    def stamp(self, k, force=False):
        if not self.opt.stamps: return []
        if (self.opt.prostamps or self.opt.p2stamps) and 2 <= k <= 7 and not force: return []
        if self.opt.probe >= 0 and k in (2, 3) and not force: return []
        if self.opt.epistamps and k in (2, 3, 4) and not force: return []
        return mk(f"s_memrealtime s[96:97]\ns_memtime s[100:101]\ns_waitcnt lgkmcnt(0)\nv_writelane_b32 v7, s96, {k}\nv_writelane_b32 v7, s100, {16+k}")

    def scc_live(self, flat, k):
        for ins in flat[k:]:
            if ins.op.startswith(("s_cselect", "s_cbranch_scc", "s_addc")): return True
            if ins.kind == "salu" and not ins.op.startswith(("s_mov", "s_waitcnt", "s_nop", "s_movk")): return False
        return False
    def mksrd(self, b, p, size):
        return mk(f"s_mov_b32 s{b}, s{p}\ns_mov_b32 s{b+1}, s{p+1}\ns_mov_b32 s{b+2}, {size}\ns_mov_b32 s{b+3}, 0x20000")

    def dma_x(self, p, h, halo=True):
        base = XBASE + (p % 3) * XSLOT
        L = [mk(f"s_add_u32 {sXk}, {sXc}, {h*16384}\ns_add_u32 m0, {sXoff}, {base + 2048*h}\nbuffer_load_dwordx4 {vX[0]}, {sX}, {sXk} offen lds"),
             mk(f"s_add_u32 m0, {sXoff}, {base + 2048*h + 1024}\nbuffer_load_dwordx4 {vX[1]}, {sX}, {sXk} offen lds")]
        if halo:
            ho = "s3" if (self.opt.halo and h == 0) else sHoff
            L.append(mk(f"s_add_u32 m0, {ho}, {base + 256*h}\nbuffer_load_dword {vH[h]}, {sX}, {sXc} offen lds"))
        if h == 1: L[-1] += mk(f"s_add_u32 {sXc}, {sXc}, 128\ns_and_b32 {sXc}, {sXc}, 1023")
        if p < self.opt.ntx:
            for a in L:
                for i in a:
                    if i.kind == "vmem": i.text = i.text.replace(" lds", " nt lds")
        if "x" in self.opt.ko and p > 0:
            for a in L:
                for i in a:
                    if i.kind == "vmem": i.text = i.text.replace(sXk, "0").replace(sXc, "0")
        return L
    def dma_w(self, s):
        base = (s % 5) * WSLOT
        L = []
        for g in range(5):
            L.append(mk(f"s_add_u32 m0, {sWoff}, {base + 4096*g}\nbuffer_load_dwordx4 {vWg[g]}, {sS[g]}, {sKa if g < 3 else sKb} offen{' nt' if s < self.opt.ntw else ''} lds"))
        if "w" not in self.opt.ko: L[-1] += mk(f"s_add_u32 {sKa}, {sKa}, {sIncA}\ns_add_u32 {sKb}, {sKb}, {32*3584}")
        G = self.opt.kgroups
        if G > 1 and (s + 1) % (16 // G) == 0 and s < 15:
            L[-1].append(mk(f"s_cmp_eq_u32 {sKb}, {512*3584}\ns_cselect_b32 {sKa}, 0, {sKa}\ns_cselect_b32 {sKb}, 0, {sKb}"))
        return L
    def dma_queue(self, ty):
        Q = []
        for s in range(16):
            if s % 2 == 0 and ("x", s // 2) not in self.vm0:
                p = s // 2
                for h in range(2):
                    for a in self.dma_x(p, h, halo=(ty == 0)): Q.append((max(0, 2 * p - 5), ("x", p), a))
            if ("w", s) not in self.vm0:
                for a in self.dma_w(s): Q.append((max(0, s - 5), ("w", s), a))
        return Q

    def wtouch(self, n):
        return mk(f"""
v_add_u32 v44, 2, v44
v_and_b32 v44, 15, v44
v_lshl_add_u32 v48, v44, 5, v45
v_mad_u32_u24 v49, v48, s86, v46
v_mad_u32_u24 v48, v48, s87, v47
buffer_load_dword a{220 + 2 * n}, v49, s[88:91], s54 offen{' nt' if self.opt.ntt else ''}
buffer_load_dword a{221 + 2 * n}, v48, {sS[4]}, s55 offen{' nt' if self.opt.ntt else ''}
""")
    def prologue(self):
        o = self.opt
        vm = self.vm0 = []
        def note(L, tag):
            L = flatten(L)
            for i in L:
                if i.kind == "vmem": vm.append(tag)
            return L
        c = mk(f"""
s_load_dwordx16 s[48:63], s[0:1], 0
s_load_dwordx4 s[64:67], s[0:1], 64
s_cmp_ge_u32 s2, 256
s_cbranch_scc1 L_end
""")
        if o.stamps: c += mk("v_mov_b32 v7, 0\ns_memrealtime s[98:99]")
        c += note(mk(f"""
s_getpc_b64 s[88:89]
L_pc:
v_lshlrev_b32 v2, 4, v0
s_lshr_b32 {sT1}, s2, 3
s_and_b32 {sT0}, {sT1}, 7
s_mul_i32 {sT0}, {sT0}, {o.pfslice}
global_load_dwordx4 a[112:115], v2, s[88:89]
v_add_u32 v3, 0x1000, v2
s_add_u32 s88, s88, {sT0}
s_addc_u32 s89, s89, 0
global_load_dwordx4 a[116:119], v3, s[88:89]
v_add_u32 v3, 0x1000, v3
global_load_dwordx4 a[120:123], v3, s[88:89]
"""), ("pre", 0))
        c += mk(f"""
v_lshrrev_b32 v2, 6, v0
v_and_b32 {vL}, 63, v0
s_and_b32 {sT0}, s2, 7
v_readfirstlane_b32 {sW}, v2
s_lshr_b32 {sM}, {sT0}, 2
s_lshl_b32 {sM}, {sM}, 3
s_lshr_b32 {sT2}, {sT1}, 2
s_add_u32 {sM}, {sM}, {sT2}
v_lshrrev_b32 v5, 3, {vL}
v_lshrrev_b32 v3, 4, {vL}
v_xor_b32 v4, v3, {vL}
v_and_b32 v4, 7, v4
v_lshlrev_b32 v4, 4, v4
s_lshl_b32 {sT3}, {sM}, 7
s_lshl_b32 {sT2}, {sW}, 5
s_add_u32 {sT2}, {sT2}, {sT3}
v_add_u32 v6, {sT2}, v5
v_lshl_add_u32 {vX[0]}, v6, 10, v4
v_xor_b32 {vX[1]}, 64, {vX[0]}
v_add_u32 {vX[1]}, 0x2000, {vX[1]}
s_lshl_b32 {sT2}, {sW}, 2
s_add_u32 {sT2}, {sT2}, {sT3}
s_sub_u32 {sT2}, {sT2}, 16
v_lshrrev_b32 v6, 5, {vL}
v_add_u32 v6, {sT2}, v6
s_lshl_b32 {sXoff}, {sW}, 5
v_lshlrev_b32 v4, 2, {vL}
v_and_b32 v4, 0x7f, v4
v_xor_b32 v4, {sXoff}, v4
v_max_i32 v2, 0, v6
v_lshl_add_u32 {vH[0]}, v2, 10, v4
v_add_u32 v6, 2, v6
v_max_i32 v2, 0, v6
v_xor_b32 v4, 16, v4
v_lshl_add_u32 {vH[1]}, v2, 10, v4
s_lshl_b32 {sXoff}, {sW}, 12
s_add_u32 {sXoff}, {sXoff}, 2048
s_lshl_b32 {sHoff}, {sW}, 9
s_cmp_eq_u32 {sW}, 0
s_cselect_b32 s3, 0x10000, {sHoff}
s_cselect_b32 {sXc}, {0x80000000 if o.halo else 0}, 0
v_or_b32 {vH[0]}, {sXc}, {vH[0]}
s_lshl_b32 {sXc}, s2, 1
s_and_b32 {sXk}, s2, 4
s_add_u32 {sXc}, {sXc}, {sXk}
s_and_b32 {sXc}, {sXc}, {o.rotmask}
s_lshl_b32 s81, {sXc}, 1
s_lshl_b32 {sXc}, {sXc}, 7
s_mov_b32 s{bX+2}, {2048*1024}
s_mov_b32 s{bX+3}, 0x20000
s_waitcnt lgkmcnt(0)
s_mov_b32 s{bX}, s48
s_mov_b32 s{bX+1}, s49
""")
        c += self.pstamp(2)
        c += note(self.dma_x(0, 0) + self.dma_x(0, 1), ("x", 0))
        c += self.pstamp(3)
        c += mk(f"""
s_lshl_b32 {sWoff}, {sW}, 10
s_and_b32 {sN}, {sT0}, 3
s_lshl_b32 {sIdx}, {sN}, 1
s_lshl_b32 {sN}, {sN}, 2
s_and_b32 {sT2}, {sT1}, 3
s_add_u32 {sN}, {sN}, {sT2}
s_lshr_b32 {sTyp}, {sT2}, 1
s_and_b32 {sT2}, {sT2}, 1
s_add_u32 {sIdx}, {sIdx}, {sT2}
s_and_b32 {sT2}, {sW}, 1
s_lshl_b32 {sT3}, {sT2}, 2
v_and_b32 v4, 2, v5
v_or_b32 v4, {sT3}, v4
v_xor_b32 v4, v4, {vL}
v_and_b32 v4, 7, v4
v_lshlrev_b32 v4, 4, v4
s_lshl_b32 {sT3}, {sW}, 3
v_add_u32 v6, {sT3}, v5
s_movk_i32 s87, 3584
s_movk_i32 s86, 3072
s_lshl_b32 s95, {sIdx}, 7
s_lshl_b32 {sT3}, {sIdx}, 8
s_add_u32 {sT3}, {sT3}, 1024
s_add_u32 s49, s95, 1024
s_add_u32 s94, s95, 2048
s_add_u32 s54, {sT3}, 128
s_lshl_b32 s55, {sIdx}, 6
s_add_u32 s55, s55, 3072
s_cmp_eq_u32 {sTyp}, 1
s_cselect_b32 s86, s87, s86
s_cselect_b32 s48, {sT3}, s95
s_cselect_b32 s49, {sT3}, s49
s_cselect_b32 s94, s54, s94
s_cselect_b32 s55, s55, s95
s_cselect_b32 s95, s54, s95
s_cselect_b64 vcc, -1, 0
s_cselect_b32 s28, s56, s50
s_cselect_b32 s29, s57, s51
s_cselect_b32 s32, s58, s50
s_cselect_b32 s33, s59, s51
s_cselect_b32 s40, s58, s56
s_cselect_b32 s41, s59, s57
v_mad_u32_u24 v2, v6, s86, v4
v_mad_u32_u24 v3, v6, s87, v4
s_lshl_b32 s30, s86, 9
s_lshl_b32 {sIncA}, s86, 5
v_add_u32 {vWg[0]}, s48, v2
v_add_u32 {vWg[1]}, s49, v2
v_add_u32 {vWg[2]}, s94, v2
v_add_u32 {vWg[3]}, s95, v3
s_mov_b32 s31, 0x20000
s_mov_b32 s34, s30
s_mov_b32 s35, 0x20000
s_mov_b32 s36, s28
s_mov_b32 s37, s29
s_mov_b32 s38, s30
s_mov_b32 s39, 0x20000
s_mov_b32 s42, {512*3584}
s_mov_b32 s43, 0x20000
v_lshrrev_b32 v4, 4, {vL}
v_and_b32 v4, 2, v4
v_xor_b32 v4, v4, {vL}
v_and_b32 v4, 3, v4
v_lshlrev_b32 v4, 4, v4
s_lshl_b32 {sT2}, {sT2}, 4
v_lshrrev_b32 v6, 2, {vL}
v_add_u32 v6, {sT2}, v6
v_mad_u32_u24 v4, v6, s87, v4
s_lshl_b32 {sT2}, {sTyp}, 1
s_cmp_lt_u32 {sW}, {sT2}
s_cselect_b32 s44, s56, s58
s_cselect_b32 s45, s57, s59
s_mov_b32 s46, s42
s_mov_b32 s47, 0x20000
v_cndmask_b32 v4, v3, v4, vcc
s_mul_i32 {sKa}, s81, {sIncA}
s_mul_i32 {sKb}, s81, {32*3584}
v_add_u32 {vWg[4]}, s55, v4
""")
        c += note(self.dma_w(0), ("w", 0))
        c += self.pstamp(4)
        c += mk(f"""
v_lshrrev_b32 v2, 4, {vL}
v_bfe_u32 v3, {vL}, 2, 2
v_and_b32 v4, 3, {vL}
v_and_b32 v6, 15, {vL}
v_lshrrev_b32 v5, 1, v6
v_xor_b32 v5, v5, v2
v_lshlrev_b32 v5, 4, v5
v_lshl_add_u32 v5, v6, 7, v5
v_add_u32 v5, {XBASE}, v5
s_lshr_b32 {sT2}, {sW}, 1
s_and_b32 {sT2}, {sT2}, {sTyp}
s_lshl_b32 {sT2}, {sT2}, 13
v_add_u32 v{RA}, {sT2}, v5
v_xor_b32 v{RA+1}, 64, v{RA}
v_subrev_u32 v{RA+2}, {sT2}, v5
v_xor_b32 v{RA+3}, 64, v{RA+2}
v_and_b32 v6, 1, v2
v_lshrrev_b32 v5, 1, v3
v_lshl_or_b32 v5, v6, 1, v5
v_xor_b32 v5, {sW}, v5
v_lshlrev_b32 v5, 5, v5
v_lshl_add_u32 v5, v2, 10, v5
v_lshl_add_u32 v5, v3, 7, v5
v_lshl_add_u32 v{RT}, v4, 3, v5
v_add_u32 v{RT+1}, {3*WSLOT}, v{RT}
v_lshrrev_b32 v5, 1, v2
v_lshlrev_b32 v5, 10, v5
v_lshl_add_u32 v5, v6, 9, v5
v_lshl_add_u32 v5, v3, 6, v5
v_lshl_add_u32 v5, v4, 3, v5
v_xor_b32 v6, {sW}, v6
v_and_b32 v6, 1, v6
v_lshl_add_u32 v{RT+2}, v6, 5, v5
v_add_u32 v{RT+3}, {3*WSLOT}, v{RT+2}
v_mov_b32 v5, 0x3f803f80
v_lshlrev_b32 v6, 2, {vL}
v_add_u32 v6, {XBASE}, v6
{"" if not o.halo else f"ds_write_b32 v6, v5{chr(10)}ds_write_b32 v6, v5 offset:{XSLOT}{chr(10)}ds_write_b32 v6, v5 offset:{2*XSLOT}"}
s_cmp_eq_u32 {sW}, 1
s_cselect_b32 s54, s49, s48
s_cselect_b32 s88, s32, s28
s_cselect_b32 s89, s33, s29
s_cmp_eq_u32 {sW}, 2
s_cselect_b32 s54, s94, s54
s_cmp_eq_u32 {sW}, 3
s_cselect_b32 s54, s95, s54
s_cselect_b32 s88, s40, s88
s_cselect_b32 s89, s41, s89
s_cselect_b32 s90, s42, s30
s_cselect_b32 s86, s87, s86
s_mov_b32 s91, 0x20000
v_accvgpr_write_b32 a{ONES}, v5
v_accvgpr_write_b32 a{ONES+1}, v5
v_accvgpr_write_b32 a{ONES+2}, v5
v_accvgpr_write_b32 a{ONES+3}, v5
s_add_u32 s81, s81, {o.wfirst - 2}
v_lshrrev_b32 v5, 2, {vL}
v_add_u32 v44, s81, v5
s_and_b32 {sT2}, {sM}, 7
s_lshl_b32 {sT2}, {sT2}, 2
v_add_u32 v45, {sT2}, v4
v_lshrrev_b32 v46, 3, {vL}
v_lshlrev_b32 v46, 28, v46
s_lshl_b32 {sT2}, {sTyp}, 1
s_sub_u32 {sT2}, 3, {sT2}
v_xor_b32 v5, {sW}, {vL}
v_and_b32 v5, {sT2}, v5
v_lshl_or_b32 v47, v5, 26, v46
""")
        c += self.mksrd(bDBG, 64, 256)
        c += mk(f"""
s_or_b32 {sT2}, s2, {sW}
s_cmp_lg_u32 {sT2}, 0
s_cbranch_scc1 L_nononce
s_memrealtime s[94:95]
s_waitcnt lgkmcnt(0)
s_or_b32 s94, s94, 1
v_mov_b32 v2, s94
v_mov_b32 v3, s95
v_mov_b32 v4, 0
s_mov_b64 exec, 1
buffer_store_dwordx2 v[2:3], v4, {sDBG}, 0 offen sc1
s_mov_b64 exec, -1
L_nononce:
""")
        c += self.pstamp(7)
        for n in range(o.protouch): c += note(self.wtouch(n + 1), ("wt", 0))
        c += note(self.dma_w(1), ("w", 1))
        c += self.pstamp(5)
        if o.proextra >= 1: c += note(self.dma_x(1, 0) + self.dma_x(1, 1), ("x", 1))
        if o.proextra >= 2: c += note(self.dma_w(2), ("w", 2))
        if o.walk:
            c += mk(f"""
s_mov_b64 exec, 0
s_cmp_eq_u32 {sW}, 3
s_cbranch_scc1 H_p_0
s_lshl_b32 {sT2}, {sTyp}, 2
s_add_u32 {sT2}, {sT2}, {sW}
s_cmp_eq_u32 {sT2}, 0
s_cbranch_scc1 H_a0_0
s_cmp_eq_u32 {sT2}, 1
s_cbranch_scc1 H_a1_0
s_cmp_eq_u32 {sT2}, 2
s_cbranch_scc1 H_a2_0
s_cmp_eq_u32 {sT2}, 4
s_cbranch_scc1 H_b0_0
s_cmp_eq_u32 {sT2}, 5
s_cbranch_scc1 H_b1_0
s_branch H_b2_0
L_wback:
s_mov_b64 exec, -1
""")
        c += self.pstamp(6)
        c += mk(f"s_cmp_eq_u32 {sTyp}, 1\ns_cbranch_scc1 L_tb")
        return c

    def deferred(self, ty):
        o = self.opt
        A = []
        A += self.mksrd(bWS, 66, WS_SIZE) + self.mksrd(bWO, 52, 512 * 1024) + self.mksrd(bWD, 60, 1792 * 1024) + self.mksrd(bOUT, 62, 2048 * 1024)
        A += mk(f"""
s_lshr_b32 {sT1}, s2, 3
s_and_b32 {sT2}, s2, 7
s_lshr_b32 {sR}, {sT2}, {o.csplit}
s_lshl_b32 {sR}, {sR}, {2 + o.csplit}
s_lshr_b32 s64, {sT1}, {3 - o.csplit}
s_add_u32 {sR}, {sR}, s64
s_and_b32 {sC}, {sT1}, {(8 >> o.csplit) - 1}
s_and_b32 {sT2}, {sT2}, {o.csplit}
s_lshl_b32 {sT2}, {sT2}, 2
s_add_u32 {sC}, {sC}, {sT2}
s_lshl_b32 {sT3}, {sW}, 11
s_mul_i32 s62, {sC}, {o.rotc}
s_mul_i32 s63, {sR}, {2 - o.csplit}
s_add_u32 s62, s62, s63
s_and_b32 s62, s62, 7
s_lshl_b32 s63, s62, 12
s_lshl_b32 s62, s62, 16
v_lshrrev_b32 v5, 2, {vL}
v_and_b32 v5, 4, v5
v_xor_b32 v5, v5, {vL}
v_and_b32 v5, 7, v5
v_lshlrev_b32 v5, 4, v5
v_lshrrev_b32 v6, 3, {vL}
v_lshl_add_u32 v5, v6, 10, v5
s_lshl_b32 {sT2}, {sC}, 7
v_add_u32 {vB2}, {sT2}, v5
s_and_b32 {sT1}, {sW}, 1
s_lshr_b32 {sT2}, {sW}, 1
s_lshl_b32 {sT2}, {sT2}, 14
s_lshl_b32 {sWB[0]}, {sT1}, 18
s_add_u32 {sWB[0]}, {sWB[0]}, {sT2}
s_mov_b32 {sWB[1]}, {sWB[0]}
s_lshl_b32 s64, {sT1}, 19
s_add_u32 s64, s64, {sT2}
s_add_u32 s56, s64, {512*1024}
s_lshl_b32 s64, {sT1}, 17
s_add_u32 s64, s64, {sT2}
s_add_u32 s57, s64, {1536*1024}
s_lshl_b32 {sT1}, {sM}, 7
s_sub_u32 {sT2}, {sT1}, 16
v_add_u32 v5, {sT2}, {vL}
v_max_i32 v{GA}, 0, v5
v_lshlrev_b32 v{GA}, 4, v{GA}
v_add_u32 v5, 64, v5
v_lshlrev_b32 v{GA+1}, 4, v5
s_add_u32 {sT1}, {sT1}, 112
v_and_b32 v5, 15, {vL}
v_add_u32 v5, {sT1}, v5
v_lshlrev_b32 v42, 4, v5
""")
        B = []
        if ty == 0:
            B += mk(f"""
v_lshlrev_b32 v{VST}, 4, {vL}
v_add_u32 v{VST+1}, {RBS}, v{VST}
v_add_u32 v{VST+2}, {2*RBS}, v{VST}
v_add_u32 v{VST+3}, {3*RBS}, v{VST}
s_mul_i32 {sT1}, {sM}, 576
s_lshl_b32 {sT2}, {sIdx}, 2
s_add_u32 {sT2}, {sT2}, {sW}
s_add_u32 {sU[1]}, {sT1}, {sT2}
s_add_u32 {sU[0]}, {sU[1]}, 32
s_lshl_b32 {sU[0]}, {sU[0]}, 10
s_lshl_b32 {sU[1]}, {sU[1]}, 10
v_lshrrev_b32 v4, 4, {vL}
v_and_b32 v6, 15, {vL}
v_lshlrev_b32 v4, 2, v4
v_sub_u32 v4, v6, v4
v_mov_b32 v3, 0xff800000
v_mov_b32 v6, 0x80000000
""")
            for r in range(4):
                B += mk(f"""
v_subrev_u32 v5, {r}, v4
v_and_b32 v5, 0x80000001, v5
v_cmp_eq_u32 vcc, 0, v5
v_cmp_eq_u32 {sEx}, v6, v5
v_cndmask_b32_e64 v{BIAS+4+r}, v3, 0, vcc
v_cndmask_b32_e64 v{BIAS+r}, v3, 0, {sEx}
""")
            B.append(mk(f"s_cmp_eq_u32 {sM}, 0\ns_cselect_b64 vcc, -1, 0"))
            for r in range(4): B += mk(f"v_cndmask_b32 v{BIAS+8+r}, v{BIAS+r}, v3, vcc")
        else:
            B += mk(f"""
s_lshr_b32 {sT1}, {sW}, 1
s_mul_i32 {sT2}, {sT1}, {2*RBS}
v_lshlrev_b32 v5, 4, {vL}
v_add_u32 v{VST}, {sT2}, v5
v_add_u32 v{VST+1}, {RBS}, v{VST}
v_subrev_u32 v{VST+2}, {sT2}, v5
v_add_u32 v{VST+2}, {2*RBS}, v{VST+2}
v_add_u32 v{VST+3}, {RBS}, v{VST+2}
s_mul_i32 {sT1}, {sM}, 576
s_lshl_b32 {sT2}, {sIdx}, 3
s_add_u32 {sT2}, {sT2}, {sW}
s_add_u32 {sT2}, {sT2}, {sT1}
s_add_u32 {sU[0]}, {sT2}, 64
s_add_u32 {sU[1]}, {sT2}, 68
s_lshl_b32 {sT2}, {sIdx}, 1
s_and_b32 s64, {sW}, 1
s_add_u32 {sT2}, {sT2}, s64
s_add_u32 {sT2}, {sT2}, {sT1}
s_add_u32 {sU[2]}, {sT2}, 128
s_lshl_b32 {sU[0]}, {sU[0]}, 10
s_lshl_b32 {sU[1]}, {sU[1]}, 10
s_lshl_b32 {sU[2]}, {sU[2]}, 10
""")
        return A, B

    def reads(self, ty, stage):
        st = stage & 1
        xb = ((stage // 2) % 3) * XSLOT; kh = stage & 1
        ws = stage % 5; rg = ws // 3; wb = (ws % 3) * WSLOT
        out = []
        for i in range(NA[ty]):
            if ty == 0: out.append(I(f"ds_read_b128 {A4(fA(st, i))}, v{RA+kh} offset:{xb + 2048*i}"))
            else: out.append(I(f"ds_read_b128 {A4(fA(st, i))}, v{RA+kh+(2 if i >= 4 else 0)} offset:{xb + 2048*(i+1)}"))
        def tr(j, reg, off, second):
            return [I(f"ds_read_b64_tr_b16 {A2(fB(ty, st, j))}, v{reg} offset:{wb+off}"),
                    I(f"ds_read_b64_tr_b16 {A2(fB(ty, st, j)+2)}, v{reg} offset:{wb+off+second}")]
        B = []
        for g in range(5 if ty == 0 else 4): B += tr(g, RT + rg, 4096 * g, 512)
        if ty == 1: B += tr(4, RT + 2 + rg, 16384, 256) + tr(5, RT + 2 + rg, 16384 + 2048, 256)
        return out + B

    def mfmas(self, ty, stage):
        st = stage & 1
        out = []
        Z = lambda d: "0" if stage == 0 else d
        def T(d, j, i): out.append(I(f"{M16} {V4(d)}, {A4(fB(ty, st, j))}, {A4(fA(st, i))}, {Z(V4(d))}"))
        def CS(k, flip=False):
            d = A4(CSACC + 4 * k); f = A4(fB(ty, st, k))
            if self.opt.nocs: return
            out.append(I(f"{M16} {d}, {A4(ONES)}, {f}, {Z(d)}" if flip else f"{M16} {d}, {f}, {A4(ONES)}, {Z(d)}"))
        if ty == 0:
            for i in range(8): T(aQ(i), 0, i + 1)
            CS(0)
            for i in range(9): T(aK(i), 1, i)
            if not self.opt.halo: CS(1)
            for i in range(9): out.append(I(f"{M16} {V4(aV(i))}, {A4(fA(st, i))}, {A4(fB(ty, st, 2))}, {Z(V4(aV(i)))}"))
            if not self.opt.halo: CS(2, True)
            for i in range(8): T(aG(i), 3, i + 1)
            CS(3)
            for i in range(8): T(aU(i), 4, i + 1)
            CS(4)
        else:
            for g in range(4):
                for i in range(8): T(bAcc(g, i), g, i)
                CS(g)
            for u in range(2):
                for i in range(4): T(bMix(u, i), 4 + u, i)
                CS(4 + u)
        return out

    TILES = [(2, 2*k) for k in range(16)] + [(3, 2*k) for k in range(4)] + [(1, 2*k) for k in range(8)] + [(0, 2*k) for k in range(8)]
    RSIZE = {0: 16, 1: 16, 2: 32, 3: 8}
    def b2off(self, r, k, blk):
        if not self.opt.rot: return f"s_add_u32 {sT0}, {sWB[r]}, {(16*k + 8*blk)*1024}"
        if blk: return f"s_add_u32 {sT0}, {sT0}, 8192"
        return f"s_add_u32 {sT0}, s62, {k*16384}\ns_and_b32 {sT0}, {sT0}, {self.RSIZE[r]*16384 - 1}\ns_add_u32 {sT0}, {sT0}, {sWB[r]}"
    def b2_dma(self, s):
        def free_at(q):
            a = q * 2048
            if a < XBASE: return [s_ for s_ in range(11, 16) if s_ % 5 == a // WSLOT][0]
            return {2: 11, 0: 13, 1: 15}[(a - XBASE) // XSLOT]
        out = []
        for i in sorted(range(19), key=lambda u: u):
            if max(free_at(4 * self.slot(i) + w) for w in range(4)) != s: continue
            r, k = self.TILES[i]; srd = sWO if r == 0 else sWD
            for blk in range(2):
                out += mk(self.b2off(r, k, blk) + "\n"
                          f"s_add_u32 m0, {sT3}, {self.slot(i)*8192 + blk*1024}\nbuffer_load_dwordx4 {vB2}, {srd}, {sT0} offen lds")
        return out

    PFG = {"h2": (sWD, 512, 4), "h3": (sWD, 1536, 1), "h1": (sWD, 0, 2), "o": (sWO, 0, 2), "A": (sWD, 0, 1), "B": (sWD, 256, 1), "C": (sWO, 0, 1)}
    def l2pf(self, grp, k, seq):
        srd, row0, n = self.PFG[grp]; cs = self.opt.csplit
        thin = grp in "ABC"; one = thin and cs == 0
        L = []
        if seq == 0:
            L += mk(f"""
s_lshr_b32 s91, s2, 3
s_lshl_b32 s91, s91, 2
s_add_u32 s91, s91, {sW}
s_lshl_b32 s91, s91, {10 if one else 11}
v_lshrrev_b32 v3, {4 if (cs == 0 and not one) else 3}, {vL}
v_lshlrev_b32 v3, 28, v3
""")
            if cs == 0: L += mk(f"v_lshl_or_b32 v2, {vL}, 7, v3")
            else: L += mk(f"""
s_and_b32 s65, s2, 1
s_lshl_b32 s65, s65, 9
s_add_u32 s91, s91, s65
v_and_b32 v2, 3, {vL}
v_lshl_or_b32 v3, v2, 7, v3
v_bfe_u32 v2, {vL}, 2, 1
v_lshl_or_b32 v2, v2, 10, v3
""")
            L += mk(f"v_add_u32 v2, s91, v2\ns_lshr_b32 s91, s2, {cs}")
        if thin:
            return L + mk(f"""
s_and_b32 s65, s91, {(8 >> cs) - 1}
s_mul_i32 s65, s65, {((64 if grp == "C" else 224) << cs) * 1024}
s_add_u32 s65, s65, {(row0 >> (1 - cs)) * 1024}
buffer_load_dword a{216 + seq % 12}, v2, {srd}, s65 offen
""")
        return L + mk(f"""
s_add_u32 s65, s91, {k}
s_and_b32 s65, s65, {(n - 1) & self.opt.pfrot}
s_lshl_b32 s65, s65, 18
s_add_u32 s65, s65, {row0 * 1024}
buffer_load_dword a{216 + seq % 12}, v2, {srd}, s65 offen
""")

    def utouch(self, ty, n, per):
        units = [(0, j) for j in range(4)] + [(1, j) for j in range(4)] + ([(2, j) for j in range(2)] if ty else [])
        L = []
        if n == 0:
            L += mk(f"v_lshrrev_b32 v51, 3, {vL}\nv_lshlrev_b32 v51, 28, v51\nv_mul_u32_u24 v50, 112, {vL}\nv_add_u32 v50, v50, v51")
        for k, (u, j) in enumerate(units[n * per:(n + 1) * per]):
            L += mk(f"v_add_u32 v51, v50, v{VST+j}\nbuffer_load_dword a{216 + (n * per + k) % 10}, v51, {sWS}, {sU[u]} offen{self.opt.utfl}")
        return L
    def flagaddr(self, dst, off):
        return mk(f"""
s_lshl_b32 {dst}, {sM}, 2
s_lshr_b32 {sT1}, {sN}, 2
s_add_u32 {dst}, {dst}, {sT1}
s_lshl_b32 {dst}, {dst}, 5
s_and_b32 {sT1}, {sN}, 3
s_lshl_b32 {sT1}, {sT1}, 2
s_add_u32 {dst}, {dst}, {sT1}
s_add_u32 {dst}, {dst}, {sW}
s_lshl_b32 {dst}, {dst}, 3
s_add_u32 {dst}, {dst}, {WS_FLAG + off}
""")
    def flagstore(self, so, r):
        return mk(f"""
v_mov_b32 v{r}, {sNonL}
v_mov_b32 v{r+1}, {sNonH}
v_lshlrev_b32 v{r+2}, 31, {vL}
v_lshl_or_b32 v{r+2}, {vL}, 25, v{r+2}
buffer_store_dwordx2 {V2(r)}, v{r+2}, {sWS}, {so} offen sc1
""")

    def stats_load(self):
        return mk(f"""
s_lshl_b32 {sT2}, {sM}, 7
s_lshl_b32 {sT1}, {sN}, 3
s_add_u32 {sT1}, {sT1}, {sT2}
s_lshl_b32 {sT2}, {sW}, 1
s_add_u32 {sT1}, {sT1}, {sT2}
s_lshl_b32 {sT1}, {sT1}, 10
v_lshlrev_b32 v{SX+16}, 4, {vL}
buffer_load_dwordx4 v[{SX}:{SX+3}], v{SX+16}, {sX}, {sT1} offen
buffer_load_dwordx4 v[{SX+4}:{SX+7}], v{SX+16}, {sX}, {sT1} offen offset:1024
""")

    def stats_compute(self):
        def row(x, e, t):
            L = []
            for k in range(4):
                L.append(f"v_lshlrev_b32 v{e+2*k}, 16, v{x+k}")
                L.append(f"v_and_b32 v{e+2*k+1}, 0xffff0000, v{x+k}")
            L += [f"v_add_f32 v{x}, v{e}, v{e+1}", f"v_add_f32 v{x+1}, v{e+2}, v{e+3}", f"v_add_f32 v{x+2}, v{e+4}, v{e+5}", f"v_add_f32 v{x+3}, v{e+6}, v{e+7}",
                  f"v_add_f32 v{x}, v{x}, v{x+1}", f"v_add_f32 v{x+2}, v{x+2}, v{x+3}", f"v_add_f32 v{x}, v{x}, v{x+2}"]
            def red(r):
                R = [f"v_add_f32_dpp v{r}, v{r}, v{r} row_ror:{sh} row_mask:0xf bank_mask:0xf" for sh in (8, 4, 2, 1)]
                for p in ("16", "32"):
                    R += [f"v_mov_b32 v{r+1}, v{r}", f"v_permlane{p}_swap_b32 v{r}, v{r+1}", f"v_add_f32 v{r}, v{r}, v{r+1}"]
                return R
            L += red(x)
            L.append(f"v_mul_f32 v{t+1}, 0x3b000000, v{x}")
            for k in range(8): L.append(f"v_sub_f32 v{e+k}, v{e+k}, v{t+1}")
            L += [f"v_mul_f32 v{x}, v{e}, v{e}", f"v_mul_f32 v{x+1}, v{e+1}, v{e+1}"]
            for k in range(2, 8): L.append(f"v_fmac_f32 v{x+(k&1)}, v{e+k}, v{e+k}")
            L.append(f"v_add_f32 v{x}, v{x}, v{x+1}")
            L += red(x)
            L += [f"v_mov_b32 v{x+1}, 0x3727c5ac", f"v_fmac_f32 v{x+1}, 0x3b000000, v{x}", f"v_rsq_f32 v{t}, v{x+1}"]
            return L
        a = row(SX, SX + 8, SX + 24); b = row(SX + 4, SX + 16, SX + 26)
        out = []
        for p, q in zip(a, b): out += [I(p), I(q)]
        return out

    def publish(self, ty):
        L = mk(f"""
v_readfirstlane_b32 {sNonL}, v{NON}
v_readfirstlane_b32 {sNonH}, v{NON+1}
v_cmp_eq_u32 vcc, 1, {vL}
s_lshl_b32 {sT1}, {sM}, 7
s_lshl_b32 {sT2}, {sN}, 3
s_cmp_eq_u32 {sNonL}, 0
s_cbranch_scc1 L_slow_nonce{ty}
L_back_nonce{ty}:
v_cndmask_b32 v{SX}, v{SX+24}, v{SX+26}, vcc
v_cndmask_b32 v{SX+1}, v{SX+25}, v{SX+27}, vcc
v_mov_b32 v{SX+2}, {sNonL}
v_mov_b32 v{SX+3}, {sNonH}
s_add_u32 {sT1}, {sT1}, {sT2}
s_lshl_b32 {sT2}, {sW}, 1
s_add_u32 {sT1}, {sT1}, {sT2}
s_lshl_b32 {sT1}, {sT1}, 4
s_add_u32 {sT1}, {sT1}, {WS_STAT}
v_lshlrev_b32 v{SX+4}, 4, {vL}
v_cmp_lt_u32 vcc, 1, {vL}
v_mov_b32 v{SX+5}, 0x80000000
v_cndmask_b32 v{SX+4}, v{SX+4}, v{SX+5}, vcc
buffer_store_dwordx4 v[{SX}:{SX+3}], v{SX+4}, {sWS}, {sT1} offen sc1
""")
        return L[:5] + [L[5:8]] + L[8:]

    def gather_load(self):
        return mk(f"""
s_mov_b32 {sT1}, {WS_STAT}
buffer_load_dwordx4 {V4(GAT)}, v{GA}, {sWS}, {sT1} offen sc1
buffer_load_dwordx4 {V4(GAT+4)}, v{GA+1}, {sWS}, {sT1} offen sc1
buffer_load_dwordx4 {V4(GAT+8)}, v42, {sWS}, {sT1} offen sc1
""")
    def gather_cmp(self):
        return mk(f"""
v_cmp_ne_u64 vcc, {sNon}, {V2(GAT+2)}
v_cmp_ne_u64 {sEx}, {sNon}, {V2(GAT+6)}
v_cmp_ne_u64 s[92:93], {sNon}, {V2(GAT+10)}
s_or_b64 vcc, vcc, {sEx}
s_or_b64 vcc, vcc, s[92:93]
""")

    ST = 60
    def stats_stage(self, ty):
        ST = self.ST
        L = [self.gather_cmp() + mk(f"s_cbranch_vccnz L_slow_gat{ty}\nL_back_gat{ty}:")]
        L += mk(f"""
s_mul_i32 {sT1}, {sW}, 1152
s_add_u32 {sT1}, {sT1}, {STATL}
v_lshl_add_u32 v4, {vL}, 2, {sT1}
v_and_b32 v5, 15, {vL}
v_lshl_add_u32 v5, v5, 2, {sT1}
ds_write2_b32 v4, v{GAT}, v{GAT+1} offset0:0 offset1:144
ds_write2_b32 v4, v{GAT+4}, v{GAT+5} offset0:64 offset1:208
v_add_u32 v6, 512, v5
ds_write2_b32 v6, v{GAT+8}, v{GAT+9} offset0:0 offset1:144
""")
        if ty == 0:
            L += mk("v_add_u32 v4, 256, v5")
            for i in range(9):
                if i < 4: L += mk(f"ds_read2_b32 {V2(ST+2*i)}, v5 offset0:{16*i} offset1:{144+16*i}")
                else: L += mk(f"ds_read2_b32 {V2(ST+2*i)}, v4 offset0:{16*i-64} offset1:{80+16*i}")
            L += mk(f"v_lshrrev_b32 v6, 4, {vL}\nv_lshl_add_u32 v43, v6, 4, {sT1}")
        else:
            L += mk(f"""
s_lshr_b32 {sT2}, {sW}, 1
s_lshl_b32 {sT2}, {sT2}, 8
v_add_u32 v6, {sT2}, v5
v_subrev_u32 v5, {sT2}, v5
v_add_u32 v5, 256, v5
""")
            for i in range(8):
                L += mk(f"ds_read2_b32 {V2(ST+2*i)}, v{6 if i < 4 else 5} offset0:{16+16*(i%4)} offset1:{160+16*(i%4)}")
        return L

    def type_code(self, ty):
        o = self.opt
        c = mk("L_tb:") if ty else []
        vm = list(self.vm0)
        def waitfor(tags):
            for t in tags: assert vm.count(t) >= {"w": 5, "x": 4}.get(t[0], 1) and all(q[1] != t for q in dq), (t, ty)
            idx = max([k for k, t in enumerate(vm) if t in tags], default=-1)
            return len(vm) - 1 - idx
        def note(L, tag):
            for i in flatten(L):
                if i.kind == "vmem": vm.append(tag)
            return L
        need = lambda s: [("w", s), ("x", s // 2)]
        dq = []
        c += mk(f"s_waitcnt vmcnt({waitfor(need(0))}) lgkmcnt(0)\ns_barrier")
        defA, defB = self.deferred(ty)
        c += self.stamp(1)
        c += self.reads(ty, 0)
        stats = self.stats_compute()
        dq = self.dma_queue(ty)
        pfq = [(g, k) for g in o.pford.split(",") for k in range(self.PFG[g][2])]; pfn = 0

        third = -(-len(stats) // 6) * 2
        SL = o.statstep; SC = SL + o.statlag
        SN, SP, SG, SS = 1, SC + 3, 11, 14
        for s in range(16):
            tags = need(s + 1) if s < 15 else []
            if s == SC: tags = tags + [("sl", 0)]
            if s == SP: tags = tags + [("non", 0)]
            if s == SS: tags = tags + [("gat", 0)]
            if s == 13: tags = tags + [("b2", 11)]
            if s == 14: tags = tags + [("b2", 12)]
            if s == 15: tags = tags + [("b2", 13)]
            c += mk((f"s_waitcnt vmcnt({waitfor(tags)}) lgkmcnt(0)" if tags else "s_waitcnt lgkmcnt(0)") + "\ns_barrier")
            if o.stamps and s in (1, 5, 11): c += self.stamp({1: 2, 5: 3, 11: 4}[s])
            rd = self.reads(ty, s + 1) if s < 15 else []
            other = []
            if s == SN:
                other += note(mk(f"v_mov_b32 v{NON}, 0\nbuffer_load_dwordx2 {V2(NON)}, v{NON}, {sDBG}, 0 offen sc1"), ("non", 0))
            if s == SG: other += note(self.gather_load(), ("gat", 0))
            if s == SL: other += note(self.stats_load(), ("sl", 0))
            if s < o.wtouch and o.tfirst: other += note(self.wtouch(s % 3), ("wt", 0))
            k = 0
            while dq and dq[0][0] <= s and k < (o.quota0 if s == 0 else o.quota):
                _, tag, atom = dq.pop(0); other += note(atom, tag); k += 1
            if s < o.wtouch and not o.tfirst: other += note(self.wtouch(s % 3), ("wt", 0))
            if s == 0: other += defA[:33]
            if s == 1: other += defA[33:]
            if s == max(o.wtouch, 2): other += defB
            if s > 10:
                assert not dq or s <= 11
                other += note(self.b2_dma(s), ("b2", s))
            if not o.nopf:
                for _ in range(int(o.pfsched[s])):
                    if not pfq: break
                    g, k = pfq.pop(0); other += note(self.l2pf(g, k, pfn), ("pf", 0)); pfn += 1
            if o.ut0 and o.ut0 <= s < min(11, o.ut0 + (10 + o.utper - 1) // o.utper): other += note(self.utouch(ty, s - o.ut0, o.utper), ("ut", 0))
            if SC <= s <= SC + 2: other += stats[(s - SC) * third: (s - SC + 1) * third]
            if s == SP: other += note(self.publish(ty), ("pub", 0))
            if s == SS: other += self.stats_stage(ty)
            if s == 15 and ty == 0: other += self.selectors()
            if s == 12: other += self.traddr(list(range(8, 14)))
            if s >= 13: rd = rd + flatten(self.passthru(list(range(8, 14)), {13: range(0, 8), 14: range(8, 12), 15: range(12, 20)}[s]))
            if s in (14, 15): other += note(flatten(self.round2(self.R2_14 if s == 14 else self.R2_15)), ("b2", 20))
            mm = self.mfmas(ty, s)
            if o.nomfma: mm = [I("s_nop 0") for _ in mm]
            if o.noreads: rd = []
            no = len([i for i in flatten(other) if not i.is_label])
            room = 2 * (len(mm) - len(rd))
            ost = len(rd) if no <= room else max(0, len(rd) - (no - room))
            wv = weave(mm, rd, other, per_gap=2, oth_start=(ost if o.late else 0))
            if o.align == 3:
                for i in wv: i.padok = False
            c += wv
        c += self.stamp(5)
        if o.probe >= 0:
            g, k = self.TILES[o.probe]
            c += mk(f"""
s_waitcnt vmcnt(0)
v_readfirstlane_b32 s64, {vB2}
v_and_b32 v4, 15, {vL}
v_lshrrev_b32 v5, 4, {vL}
v_lshlrev_b32 v5, 5, v5
v_add_u32 v4, v4, v5
v_lshlrev_b32 v4, 10, v4
v_add_u32 v4, s64, v4
s_add_u32 s65, {sWB[g]}, {16*k*1024}
""") + self.stamp(2, True) + mk(f"buffer_load_dword v5, v4, {sWO if g == 0 else sWD}, s65 offen\ns_waitcnt vmcnt(0)") + self.stamp(3, True)
        c += self.epi_a() if ty == 0 else self.epi_b()
        if ty == 0: c += mk("s_branch L_join")
        c = cap_vm(flatten(c), len(self.vm0), *((1000, 48) if "c" in o.ko else (60, 48)))
        slow = mk(f"""
L_slow_nonce{ty}:
s_mov_b32 {sCnt}, 0
L_sn{ty}:
v_mov_b32 v{NON}, 0
buffer_load_dwordx2 {V2(NON)}, v{NON}, {sDBG}, 0 offen sc1
s_waitcnt vmcnt(0)
v_readfirstlane_b32 {sNonL}, v{NON}
v_readfirstlane_b32 {sNonH}, v{NON+1}
s_add_u32 {sCnt}, {sCnt}, 1
s_cmp_gt_u32 {sCnt}, 20000
s_cbranch_scc1 L_back_nonce{ty}
s_cmp_eq_u32 {sNonL}, 0
s_cbranch_scc1 L_sn{ty}
s_branch L_back_nonce{ty}
L_slow_gat{ty}:
s_mov_b32 {sCnt}, 0
L_sg{ty}:
""") + self.gather_load() + mk("s_waitcnt vmcnt(0)") + self.gather_cmp() + mk(f"""
s_add_u32 {sCnt}, {sCnt}, 1
s_cmp_gt_u32 {sCnt}, 20000
s_cbranch_scc1 L_back_gat{ty}
s_cbranch_vccnz L_sg{ty}
s_branch L_back_gat{ty}
""")
        return c, slow

    def stg(self, u, blk): return 56 + 8 * (u - 29) + 4 * blk
    SL1 = [3, 4, 17, 18, 5, 6, 7, 8, 9, 13, 10, 11, 12, 0, 1, 2, 14, 15, 16]
    def slot(self, u): return self.SL1[u] if u < 19 else self.SL1[[0, 1, 4, 5, 6, 2, 3, 7, 8, 9][u - 19]] if u < 29 else self.SL1[10 + u - 29]
    def frag(self, i): return 112 + 8 * i if i < 14 else 8 * (i - 14)
    def round2(self, us):
        L = []
        for u in us:
            g, k = self.TILES[u]; srd = sWO if g == 0 else sWD
            for blk in range(2):
                t = self.b2off(g, k, blk).replace(sT0, "s61")
                if u < 29: L.append(mk(t + f"\ns_add_u32 m0, {sT3}, {self.slot(u)*8192 + blk*1024}\nbuffer_load_dwordx4 {vB2}, {srd}, s61 offen lds"))
                else: L.append(mk(t + f"\nbuffer_load_dwordx4 {A4(self.stg(u, blk))}, {vB2}, {srd}, s61 offen"))
        return L
    R2_14 = [19, 20, 24, 25]; R2_15 = [21, 22]; R2_E = [23, 26, 27, 28]
    TR = {0: [42, 58, 59, 16], 1: [88, 89, 90, 91]}
    def traddr(self, R):
        L = mk(f"""
s_and_b32 {sT1}, {sW}, 1
s_lshl_b32 {sT1}, {sT1}, 6
v_lshrrev_b32 v4, 5, {vL}
v_lshlrev_b32 v4, 10, v4
v_bfe_u32 v6, {vL}, 2, 2
v_lshl_add_u32 v4, v6, 7, v4
v_lshrrev_b32 v6, 1, v6
v_lshl_add_u32 v4, v6, 6, v4
v_bfe_u32 v6, {vL}, 4, 1
v_lshl_add_u32 v4, v6, 5, v4
v_and_b32 v6, 1, {vL}
v_lshl_add_u32 v4, v6, 4, v4
v_bfe_u32 v6, {vL}, 1, 1
v_lshl_add_u32 v4, v6, 3, v4
v_xor_b32 v4, {sT1}, v4
s_lshl_b32 {sT1}, {sT1}, 5
v_add_u32 v{R[0]}, {sT1}, v4
v_xor_b32 v{R[1]}, 64, v{R[0]}
""")
        for k in range(2, len(R)): L += mk(f"v_add_u32 v{R[k]}, {0x10000 * (k // 2)}, v{R[k & 1]}")
        return L
    def passthru(self, R, tiles):
        L = []
        for i in tiles:
            sg = 2 * self.slot(i // 2) + (i & 1)
            L += [[I(f"ds_read_b64_tr_b16 {A2(self.frag(i) + 4*cb + 2*e)}, v{R[2*(sg//16)+cb]} offset:{(sg%16)*4096+e*512}")] for cb in range(2) for e in range(2)]
        return L
    def sprinkle(self, code, items, start, stop):
        out = []; n = len(items); k = 0
        for idx, ins in enumerate(code):
            out.append(ins)
            while k < n and idx >= start and (idx - start + 1) * n >= (k + 1) * (stop - start):
                out += items[k]; k += 1
        for it in items[k:]: out += it
        return out
    NEG = "op_sel:[0,1,0] op_sel_hi:[1,1,1] neg_lo:[0,1,0] neg_hi:[0,1,0]"
    def gu(self, cs, g, u, stp, dst):
        NEG = self.NEG
        L = [f"v_pk_fma_f32 {V2(g+2*h)}, {V2(cs+2*h)}, {V2(stp)}, {V2(g+2*h)} {NEG}" for h in range(2)]
        L += [f"v_pk_fma_f32 {V2(u+2*h)}, {V2(cs+4+2*h)}, {V2(stp)}, {V2(u+2*h)} {NEG}" for h in range(2)]
        L += [f"v_pk_mul_f32 {V2(g+2*h)}, {V2(g+2*h)}, {V2(u+2*h)}" for h in range(2)]
        L += [f"v_cvt_pk_bf16_f32 v{dst+h}, v{g+2*h}, v{g+2*h+1}" for h in range(2)]
        return L
    def gu_unit(self, cs, g0, u0, g1, u1, st0, st1, vo, so):
        c = []
        for x, y in zip(self.gu(cs, g0, u0, st0, u0), self.gu(cs, g1, u1, st1, u0 + 2)): c += mk(x + "\n" + y)
        return c + self.unit_store(u0, vo, so)
    def unit_store(self, r, vo, so):
        if "n" in self.opt.ko: return []
        return mk(f"v_permlane16_swap_b32 v{r}, v{r+2}\nv_permlane16_swap_b32 v{r+1}, v{r+3}\nbuffer_store_dwordx4 {V4(r)}, v{vo}, {sWS}, {so} offen" + ("" if "p" in self.opt.ko else " sc1"))
    def csread(self, dst, k, n=4):
        return [I(f"v_accvgpr_read_b32 v{dst+r}, a{CSACC+4*k+r}") for r in range(n)]

    def epi_b(self):
        ST = self.ST; o = self.opt
        c = []
        for k in range(6): c += self.csread(8 + 4 * k if k < 2 else 36 + 4 * k, k)
        U = []
        for P in range(2):
            cs = 8 if P == 0 else 44
            for j in range(4):
                U.append(self.gu_unit(cs, bAcc(2*P, 2*j), bAcc(2*P+1, 2*j), bAcc(2*P, 2*j+1), bAcc(2*P+1, 2*j+1), ST+4*j, ST+4*j+2, VST+j, sU[P]))
        for j in range(2):
            U.append(self.gu_unit(52, bMix(0, 2*j), bMix(1, 2*j), bMix(0, 2*j+1), bMix(1, 2*j+1), ST+4*j, ST+4*j+2, VST+j, sU[2]))
        st = self.round2(range(29, 36)) + self.round2(self.R2_E); nb = o.nstage_b
        for u in U: c += u
        c += self.stamp(6)
        su = self.flagaddr(sT2, 0) + self.polladdr() + self.p2setup()
        c += self.sprinkle(su, st[:nb], 0, len(su))
        c += mk(f"s_waitcnt vmcnt({nb + 2}) lgkmcnt(0)") + self.flagstore(sT2, 8) + self.stamp(7)
        c += mk(f"s_mov_b32 {sT2}, 0x8000000\ns_barrier")
        k = len(st) - o.pollahead
        for it in st[nb:k]: c += it
        c += self.poll_issue(0)
        for it in st[k:]: c += it
        c += mk(f"s_waitcnt vmcnt({o.pollahead})")
        return c

    SEL = 54
    def selectors(self):
        S = self.SEL
        L = mk(f"""
v_and_b32 v4, 15, {vL}
v_lshrrev_b32 v5, 4, {vL}
v_lshlrev_b32 v5, 2, v5
v_sub_u32 v4, v4, v5
v_and_b32 v5, 1, {vL}
v_sub_u32 v4, v4, v5
v_lshlrev_b32 v5, 4, v5
v_mov_b32 v6, 0x0c0c0c0c
""")
        for jj, pat in ((0, 0x0c0c0100), (1, 0x0c0c0302)):
            L += mk(f"v_mov_b32 v{S+jj}, {pat:#x}\nv_alignbit_b32 v{S+2+jj}, v{S+jj}, v{S+jj}, v5")
            L += mk(f"v_cmp_le_i32 vcc, {2*jj}, v4\nv_nop\nv_cndmask_b32 v{S+jj}, v{S+2+jj}, v6, vcc\nv_cndmask_b32 v{S+2+jj}, v6, v{S+2+jj}, vcc")
        return L

    def epi_a(self):
        o = self.opt
        ST = self.ST; NEG = self.NEG; SEL = self.SEL
        def inter(LL):
            out = []
            for step in range(max(len(l) for l in LL)):
                for l in LL:
                    if step < len(l): out += mk(l[step])
            return out
        c = []
        c += self.csread(8, 3) + self.csread(12, 4) + self.csread(44, 0)
        if not o.halo: c += self.csread(48, 1) + self.csread(52, 2, 1)
        vs = lambda i: 192 + 8 * (i % 4) if i < 8 else 78
        def vsread(i): return mk(f"ds_read_b128 {V4(vs(i))}, v43 offset:{64*i}\nds_read_b128 {V4(vs(i)+4)}, v43 offset:{576+64*i}")
        c += vsread(8)
        hst = []
        for j in range(4):
            gu = self.gu_unit(8, aG(2*j), aU(2*j), aG(2*j+1), aU(2*j+1), ST+2+4*j, ST+4+4*j, VST+j, sU[0])
            hst.append([gu.pop()])
            c += gu + vsread(j)
        c += self.stamp(6)
        c += mk("s_waitcnt lgkmcnt(0)\ns_barrier")
        if o.epistamps: c += self.stamp(2, True)
        head = c; c = []
        st = self.round2(self.R2_E) + self.round2(range(29, 36))
        if o.halo:
            c += [I(f"v_mov_b32_dpp v{48+r}, v{aK(0)+r} row_newbcast:0 row_mask:0xf bank_mask:0xf") for r in range(4)]
            c += mk(f"v_mov_b32 v52, v{aV(0)}\nv_mov_b32 v53, v{aV(0)}\ns_nop 0\nv_permlane16_swap_b32 v52, v53\nv_mov_b32 v53, v52\ns_nop 1\nv_permlane32_swap_b32 v52, v53")
        kp = lambda i: 8 + 2 * i if i < 4 else 18 + 2 * (i - 4) if i < 8 else 86
        def kfix(i):
            k = aK(i); stp = ST + 2 * i
            return [f"v_pk_fma_f32 {V2(k)}, {V2(48)}, {V2(stp)}, {V2(k)} {NEG}",
                    f"v_pk_fma_f32 {V2(k+2)}, {V2(50)}, {V2(stp)}, {V2(k+2)} {NEG}",
                    f"v_pk_mul_f32 {V2(k)}, {V2(k)}, {V2(stp)} op_sel_hi:[1,0]",
                    f"v_pk_mul_f32 {V2(k+2)}, {V2(k+2)}, {V2(stp)} op_sel_hi:[1,0]",
                    f"v_cvt_pk_bf16_f32 v{kp(i)}, v{k}, v{k+1}",
                    f"v_cvt_pk_bf16_f32 v{kp(i)+1}, v{k+2}, v{k+3}"]
        qp = lambda i: 120 + 2 * i
        def qfix(i):
            q = aQ(i); stp = ST + 2 * (i + 1)
            return [f"v_pk_fma_f32 {V2(q)}, {V2(44)}, {V2(stp)}, {V2(q)} {NEG}",
                    f"v_pk_fma_f32 {V2(q+2)}, {V2(46)}, {V2(stp)}, {V2(q+2)} {NEG}",
                    f"v_cvt_pk_bf16_f32 v{qp(i)}, v{q}, v{q+1}",
                    f"v_cvt_pk_bf16_f32 v{qp(i)+1}, v{q+2}, v{q+3}"]
        NEGV = "op_sel_hi:[1,0,1] neg_lo:[0,1,0] neg_hi:[0,1,0]"
        vp = lambda i: 136 + 2 * i
        def vfix(i):
            v = aV(i); s_ = vs(i)
            return [f"v_pk_fma_f32 {V2(v)}, {V2(s_+4)}, {V2(52)}, {V2(v)} {NEGV}",
                    f"v_pk_fma_f32 {V2(v+2)}, {V2(s_+6)}, {V2(52)}, {V2(v+2)} {NEGV}",
                    f"v_pk_mul_f32 {V2(v)}, {V2(v)}, {V2(s_)}",
                    f"v_pk_mul_f32 {V2(v+2)}, {V2(v+2)}, {V2(s_+2)}",
                    f"v_cvt_pk_bf16_f32 v{vp(i)}, v{v}, v{v+1}",
                    f"v_cvt_pk_bf16_f32 v{vp(i)+1}, v{v+2}, v{v+3}"]
        c += inter([kfix(i) for i in range(9)])
        c += mk("s_waitcnt lgkmcnt(0)")
        c += inter([vfix(i) for i in (0, 1, 2, 3, 8)])
        for i in range(4, 8): c += vsread(i)
        c += inter([qfix(i) for i in range(8)])
        c += mk("s_waitcnt lgkmcnt(0)")
        c += inter([vfix(i) for i in range(4, 8)])
        st = st[:o.hpos] + hst + st[o.hpos:]; n1 = o.nfirst_a
        head += self.sprinkle(c, st[:n1], 0, len(c))
        if o.epistamps: head += self.stamp(3, True) + self.stamp(4, True)
        c = []
        MK = "v_mfma_f32_16x16x16_bf16"
        sp = lambda i: 88 + 8 * i if i < 4 else 156 + 8 * (i - 4)
        sch = f2h(0.25 * 1.4426950408889634)
        def smf(i):
            bp = BIAS + 8 if i == 0 else BIAS
            return [f"{MK} {V4(sp(i))}, {V2(kp(i))}, {V2(qp(i))}, {V4(bp)}", f"{MK} {V4(sp(i)+4)}, {V2(kp(i+1))}, {V2(qp(i))}, {V4(BIAS+4)}"]
        def merge(i):
            s_ = sp(i)
            return [f"v_max3_f32 v{s_}, v{s_}, v{s_+1}, v{s_+4}", f"v_max3_f32 v{s_+2}, v{s_+2}, v{s_+3}, v{s_+6}",
                    f"v_max_f32 v{s_}, v{s_}, v{s_+5}", f"v_max_f32 v{s_+1}, v{s_+2}, v{s_+7}",
                    f"v_mul_f32 v{s_+4}, {sch}, v{ST+2*(i+1)}", f"v_max_f32 v{s_+2}, v{s_}, v{s_+1}"]
        for i in range(8):
            a = smf(i); b = merge(i - 3) if i >= 3 else []
            c += mk(a[0]) + mk("\n".join(b[:3])) + mk(a[1]) + mk("\n".join(b[3:]))
        c += inter([merge(i) for i in (5, 6, 7)])
        def cross(A, B, C, D):
            a, b, cc, d = (sp(x) + 2 for x in (A, B, C, D))
            return [f"v_permlane32_swap_b32 v{a}, v{b}", f"v_permlane32_swap_b32 v{cc}, v{d}",
                    f"v_max_f32 v{a}, v{a}, v{b}", f"v_max_f32 v{cc}, v{cc}, v{d}", "s_nop 0",
                    f"v_permlane16_swap_b32 v{a}, v{cc}", f"v_max_f32 v{a}, v{a}, v{cc}", f"v_mov_b32 v{cc}, v{a}", "s_nop 0",
                    f"v_permlane16_swap_b32 v{a}, v{cc}", f"v_mov_b32 v{b}, v{a}", f"v_mov_b32 v{d}, v{cc}",
                    f"v_permlane32_swap_b32 v{a}, v{b}", f"v_permlane32_swap_b32 v{cc}, v{d}"]
        c += [x for x in inter([cross(0, 1, 2, 3), cross(4, 5, 6, 7)]) if x.op != "s_nop"]
        O = lambda i: 192 + 4 * i
        oq = lambda i: 120 + 4 * (i // 2) + 2 * (i % 2)
        def expo(i):
            s_ = sp(i)
            return [f"v_mul_f32_e64 v{s_+5}, -v{s_+2}, v{s_+4}",
                    f"v_fma_f32 v{s_}, v{s_}, v{s_+4}, v{s_+5}", f"v_fma_f32 v{s_+1}, v{s_+1}, v{s_+4}, v{s_+5}",
                    f"v_exp_f32 v{s_}, v{s_}", f"v_exp_f32 v{s_+1}, v{s_+1}",
                    f"v_cvt_pk_bf16_f32 v{s_+2}, v{s_}, v{s_+1}"] + [f"v_perm_b32 v{s_+4+k}, 0, v{s_+2}, v{SEL+k}" for k in range(4)]
        def pv(i): return [f"{M16} {V4(sp(i))}, {A4(ONES)}, {V4(sp(i)+4)}, 0", f"{M16} {V4(O(i))}, {V4(vp(i))}, {V4(sp(i)+4)}, 0"]
        def fin(i):
            d = oq(i)
            return [f"v_rcp_f32 v{sp(i)}, v{sp(i)}"] + [f"v_mul_f32 v{O(i)+r}, v{O(i)+r}, v{sp(i)}" for r in range(4)] + \
                   [f"v_cvt_pk_bf16_f32 v{d}, v{O(i)}, v{O(i)+1}", f"v_cvt_pk_bf16_f32 v{d+1}, v{O(i)+2}, v{O(i)+3}"]
        E = [inter([expo(2 * p), expo(2 * p + 1)]) for p in range(4)]
        F = [inter([fin(2 * p), fin(2 * p + 1)]) for p in range(4)]
        P = [mk("\n".join(pv(2 * p) + pv(2 * p + 1))) for p in range(4)]
        def mix(valu, mf, first=2, every=3):
            out = []; mf = list(mf)
            for k, x in enumerate(valu):
                if mf and k >= first and (k - first) % every == 0: out.append(mf.pop(0))
                out.append(x)
            return out + mf
        def swp(r): return mk(f"v_permlane16_swap_b32 v{r}, v{r+2}\nv_permlane16_swap_b32 v{r+1}, v{r+3}")
        c += E[0] + mix(E[1], P[0]) + mix(E[2], P[1]) + F[0] + swp(120)
        c += mix(E[3], P[2]) + mix(F[1], P[3]) + swp(124) + F[2] + swp(128) + F[3] + swp(132)
        na = min(n1 + o.nstage_a, len(st) - o.pollahead)
        c = head + self.sprinkle(c, st[n1:na], 0, len(c))
        c += self.stamp(7)
        c += [I(f"buffer_store_dwordx4 {V4(120+4*j)}, v{VST+j}, {sWS}, {sU[1]} offen sc1") for j in range(4)] if o.ofirst else []
        su = self.polladdr() + self.p2setup() + self.flagaddr(sT2, 128)
        k = len(st) - o.pollahead
        vst = [I(f"v_mov_b32 v{8+j}, v{VST+j}") for j in range(4)]
        c += vst + self.sprinkle(su, st[na:k], 0, len(su))
        c += self.poll_issue(0)
        for it in st[k:]: c += it
        if not o.ofirst: c += [I(f"buffer_store_dwordx4 {V4(120+4*j)}, v{8+j}, {sWS}, {sU[1]} offen sc1") for j in range(4)]
        c += mk(f"s_waitcnt vmcnt({o.pollahead + (0 if o.ofirst else 4)})")
        return c

    POLL = 58
    def polladdr(self):
        return mk(f"""
s_lshr_b32 s81, {sR}, 1
s_lshl_b32 s81, s81, 1
s_and_b32 {sT1}, {sW}, 1
s_add_u32 s81, s81, {sT1}
s_lshl_b32 s81, s81, 9
s_add_u32 s81, s81, {WS_FLAG}
v_and_b32 v16, 15, {vL}
v_lshlrev_b32 v16, 3, v16
v_bfe_u32 v{self.POLL}, {vL}, 4, 1
v_lshl_add_u32 v16, v{self.POLL}, 8, v16
""")
    def poll_issue(self, off, reg=None):
        return mk(f"buffer_load_dwordx2 {V2(reg or self.POLL)}, v16, {sWS}, s81 offen offset:{off} sc1")
    PT = 18; PW = 24; PX = 27; PY = 29; VXO = 34; XR = 36
    def p2setup(self):
        PT, PW, PX, PY, VXO, XR = self.PT, self.PW, self.PX, self.PY, self.VXO, self.XR
        c = mk(f"""
s_lshl_b32 {sT0}, {sR}, 1
s_lshr_b32 {sT1}, {sW}, 1
s_add_u32 {sT0}, {sT0}, {sT1}
s_lshl_b32 s59, {sT0}, 5
s_mul_i32 {sT0}, {sT0}, {RBS}
s_and_b32 {sT1}, {sW}, 1
s_lshl_b32 {sB[0]}, {sT1}, 14
s_add_u32 {sB[0]}, {sB[0]}, {sT0}
s_add_u32 {sB[1]}, {sB[0]}, {32*1024}
s_lshl_b32 {sB[2]}, {sT1}, 15
s_add_u32 {sB[2]}, {sB[2]}, {sT0}
s_add_u32 {sB[2]}, {sB[2]}, {64*1024}
s_lshl_b32 {sB[3]}, {sT1}, 13
s_add_u32 {sB[3]}, {sB[3]}, {sT0}
s_add_u32 {sB[3]}, {sB[3]}, {128*1024}
v_lshlrev_b32 v2, 4, {vL}
v_lshrrev_b32 v4, 2, {vL}
v_add_u32 v6, s59, v4
v_and_b32 v5, 3, {vL}
v_lshlrev_b32 v3, 4, v5
v_lshl_add_u32 v6, v6, 10, v3
s_lshl_b32 {sT0}, {sC}, 7
s_lshl_b32 {sT1}, {sT1}, 6
s_add_u32 {sT0}, {sT0}, {sT1}
v_add_u32 v{VXO}, {sT0}, v6
v_add_u32 v{VXO+1}, 0x4000, v{VXO}
buffer_load_dwordx4 {V4(XR)}, v{VXO}, {sX}, 0 offen
buffer_load_dwordx4 {V4(XR+4)}, v{VXO+1}, {sX}, 0 offen
v_and_b32 v6, 31, {vL}
v_add_u32 v3, s59, v6
v_lshlrev_b32 v33, 4, v3
v_add_u32 v{PW}, {sT3}, v2
v_add_u32 v{PW+1}, 0x10000, v{PW}
v_add_u32 v{PW+2}, 0x20000, v{PW}
v_xor_b32 v{PX}, 0x800, v{PW}
v_lshrrev_b32 v3, 5, {vL}
v_bfe_u32 v{PY}, {vL}, 1, 2
v_xor_b32 v3, v3, v{PY}
v_lshlrev_b32 v3, 4, v3
v_lshl_add_u32 v3, v6, 6, v3
s_add_u32 {sT0}, {sT3}, {7*8192}
v_add_u32 v{PY}, {sT0}, v3
v_xor_b32 v{PY+1}, 32, v{PY}
v_bfe_u32 v3, {vL}, 3, 2
v_xor_b32 v3, v3, v5
v_lshlrev_b32 v3, 4, v3
v_lshl_add_u32 v3, v4, 6, v3
v_add_u32 v{PY+2}, {sT0}, v3
""")
        c += self.traddr([PT + k for k in range(6)])
        return c

    def phase2(self):
        o = self.opt
        BF = [112, 144]; SACC = 176; DACC = 64; ABUF = 144; DEPTH = o.depth
        PT, PW, PX, PY, VXO, XR, POLL = self.PT, self.PW, self.PX, self.PY, self.VXO, self.XR, self.POLL
        TILES = self.TILES
        c = mk("L_join:")
        c += self.stamp(8)
        if o.p1only:
            return c
        def bread(t):
            out = []
            if t < 5: return out
            for h in range(4):
                sg = 2 * self.slot((4 * t + h) // 2) + (h & 1)
                for cb in range(2):
                    for e in range(2):
                        out.append(I(f"ds_read_b64_tr_b16 {A2(BF[t&1]+8*h+4*cb+2*e)}, v{PT+2*(sg//16)+cb} offset:{(sg%16)*4096+e*512}"))
            return out
        c += mk(f"""
v_cmp_ne_u64 vcc, {sNon}, {V2(POLL)}
s_nop 0
s_and_b32 vcc_lo, vcc_lo, 0xff00ff00
s_cbranch_scc1 L_slow_e
L_go:
""")
        PR = [POLL, 60, 62, 64]
        pe = mk(f"L_slow_e:\ns_mov_b32 {sCnt}, 0")
        NP = o.npoll
        for k in range(NP - 1): pe += self.poll_issue(0, PR[k]) + mk("s_sleep 4")
        pe += mk("L_se:")
        for k in range(NP):
            pe += self.poll_issue(0, PR[(k + NP - 1) % NP]) + mk(f"s_waitcnt vmcnt({NP - 1})\nv_cmp_ne_u64 vcc, {sNon}, {V2(PR[k])}\ns_nop 1\ns_and_b32 vcc_lo, vcc_lo, 0xff00ff00\ns_cbranch_scc0 L_se_done")
        pe += mk(f"""
s_add_u32 {sCnt}, {sCnt}, 1
s_cmp_gt_u32 {sCnt}, 10000
s_cbranch_scc0 L_se
L_se_done:
s_branch L_go
""")
        self.slow2 = pe + mk(f"""
L_slow_o:
s_mov_b32 {sCnt}, 0
L_so:
""") + self.poll_issue(128) + mk(f"""
s_add_u32 {sCnt}, {sCnt}, 1
s_waitcnt vmcnt(0)
v_cmp_ne_u64 vcc, {sNon}, {V2(POLL)}
s_and_b32 vcc_lo, vcc_lo, 0xff00ff
s_cbranch_scc0 L_back_o
s_cmp_gt_u32 {sCnt}, 20000
s_cbranch_scc0 L_so
s_branch L_back_o
""")
        c += self.stamp(9) + self.stamp(10)
        vm = []
        def aload(t):
            r, k = TILES[2 * t]; b = ABUF + 16 * (t % DEPTH)
            vm.extend([("a", t)] * 4)
            t0 = f"s_add_u32 {sT0}, {sB[r]}, {k*1024}" if not o.rot else f"s_add_u32 {sT0}, s63, {k*1024}\ns_and_b32 {sT0}, {sT0}, {self.RSIZE[r]*1024 - 1}\ns_add_u32 {sT0}, {sT0}, {sB[r]}"
            return mk(t0) + [I(f"buffer_load_dwordx4 {V4(b+4*h)}, v2, {sWS}, {sT0} offen offset:{1024*h} sc1") for h in range(4)]
        def young(tag): return len(vm) - 1 - max(k for k, t in enumerate(vm) if t == tag)
        for t in range(o.burst): c += aload(t)
        c += mk(f"s_mov_b32 {sT1}, {WS_STAT}\nbuffer_load_dword v{XR+8}, v33, {sWS}, {sT1} offen sc1"); vm.append(("rs", 0))
        c += mk(f"s_waitcnt vmcnt({len(vm)})")
        c += self.flagstore(sT2, 12); vm.append(("fl", 0))
        c += mk("s_barrier")
        c += bread(0)
        M32 = "v_mfma_f32_32x32x16_bf16"
        issued = o.burst; nwr = 0
        TP = 10 - 2 * o.burst
        xo = [24576, 25600, 32768, 33792]
        RX = ABUF + 16 * (12 % DEPTH)
        TM = ABUF + 16 * (13 % DEPTH)
        dval = mk(f"v_mul_f32 v{XR+8}, v{XR+8}, v{XR+8}")
        el = range(16)
        dval += [I(f"v_add_f32 v{DACC+e}, v{DACC+e}, v{RX+e}") for e in el]
        dval += [I(f"v_mul_f32 v{DACC+e}, v{XR+8}, v{DACC+e}") for e in el]
        dval += [I(f"v_mul_f32 v{TM+e}, 0xbfb8aa3b, v{DACC+e}") for e in el]
        dval += [I(f"v_exp_f32 v{TM+e}, v{TM+e}") for e in el]
        dval += [I(f"v_add_f32 v{TM+e}, 1.0, v{TM+e}") for e in el]
        dval += [I(f"v_rcp_f32 v{TM+e}, v{TM+e}") for e in el]
        dval += [I(f"v_mul_f32 v{DACC+e}, v{DACC+e}, v{TM+e}") for e in el]
        for k in range(8):
            dval += mk(f"v_lshlrev_b32 v{46+2*k}, 16, v{XR+k}\nv_and_b32 v{47+2*k}, 0xffff0000, v{XR+k}")
        BARS = [9, 13, 15]
        for t in range(18):
            b = ABUF + 16 * (t % DEPTH)
            bar = t in BARS
            c += mk(f"s_waitcnt vmcnt({young(('a', t))}) lgkmcnt({0 if (bar or t == 16) else nwr})" + ("\ns_barrier" if bar else ""))
            if o.p2stamps and t in (0, 4, 9, 14, 16, 17): c += self.stamp({0: 2, 4: 3, 9: 4, 14: 5, 16: 6, 17: 7}[t], True)
            mm = []
            for h in range(4):
                for cb in range(2):
                    k = 16 * cb
                    d = f"v[{96+k}:{96+k+15}]" if t >= 14 else f"v[{DACC+k}:{DACC+k+15}]"
                    cc = "0" if (t in (0, 14) and h == 0) else d
                    mm.append(I(f"{M32} {d}, {A4((self.frag(4*t+h) if t < 5 else BF[t&1]+8*h)+4*cb)}, {V4(b+4*h)}, {cc}"))
            lds = bread(t + 1) if t < 17 else []
            wr = []
            if True:
                for k in {9: range(0, 4), 10: range(4, 8), 11: range(8, 11), 12: range(11, 14)}.get(t, []):
                    u = 29 + k // 2; blk = k & 1; sg = self.slot(u)
                    wr.append(I(f"ds_write_b128 v{PW+sg//8}, {A4(self.stg(u, blk))} offset:{(sg%8)*8192+blk*1024}"))
            if t == 14:
                wr += [I(f"ds_write_b128 v{PW}, {V4(DACC+16+4*p)} offset:{xo[p]}") for p in range(4)]
            if t == 15:
                lds = [I(f"ds_read_b128 {V4(RX+4*p)}, v{PX} offset:{xo[p]}") for p in range(4)] + lds
            if t >= 16:
                n = o.dshadow // 2
                wr = dval[:n]; dval = dval[n:]
            ld = []
            if False:
                ld += self.flagstore(sT2, 12); vm.append(("fl", 0))
            if t == TP: ld += self.poll_issue(128); vm.append(("po", 0))
            if issued < 18 and issued - DEPTH < t:
                if issued == 10:
                    ld.append(mk(f"s_waitcnt vmcnt({young(('po', 0))})\nv_cmp_ne_u64 vcc, {sNon}, {V2(POLL)}\ns_nop 0\ns_and_b32 vcc_lo, vcc_lo, 0xff00ff\ns_cbranch_scc1 L_slow_o\nL_back_o:"))
                ld += aload(issued); issued += 1
            seq = []
            while ld or wr:
                if ld: seq.append(ld.pop(0))
                if wr: seq.append(wr.pop(0))
            if "m" in o.p2: mm = [I("s_nop 0") for _ in mm]
            if "w" in o.p2: seq = [x for x in seq if isinstance(x, list) or not x.op.startswith("ds_write")]
            wv = weave(mm, lds, seq, per_gap=(6 if t >= 16 else o.p2gap), lds_per_gap=o.p2lds, oth_start=(2 if t == 14 else 0))
            dsl = [x for x in wv if x.kind == "ds"]
            last = max([k for k, x in enumerate(dsl) if x.op.startswith("ds_read")], default=-1)
            nwr = len(dsl) - 1 - last
            if o.align == 3:
                for i in wv: i.padok = False
            c += wv
        c += self.stamp(11)
        lead = min(12, len(dval))
        c += dval[:lead]; dval = dval[lead:]
        per = -(-len(dval) // 8)
        for p in range(4):
            c += mk(f"ds_write_b128 v{PW}, {V4(112+4*p)} offset:{16384+xo[p]}") + dval[:per]; dval = dval[per:]
        SV = 96
        c += mk("s_waitcnt lgkmcnt(0)\ns_barrier")
        c += [I(f"ds_read_b128 {V4(RX+4*p)}, v{PX} offset:{16384+xo[p]}") for p in range(4)]
        c += dval
        c += mk("s_waitcnt lgkmcnt(0)")
        c += [I(f"v_pk_add_f32 {V2(SV+2*e)}, {V2(SV+2*e)}, {V2(RX+2*e)}") for e in range(8)]
        c += [I(f"v_pk_mul_f32 {V2(SV+2*e)}, {V2(SV+2*e)}, {V2(DACC+2*e)}") for e in range(8)]
        c += [I(f"v_cvt_pk_bf16_f32 v{8+e}, v{SV+2*e}, v{SV+2*e+1}") for e in range(8)]
        c += mk(f"""
ds_write_b128 v{PY}, {V4(8)}
ds_write_b128 v{PY+1}, {V4(12)}
ds_read_b128 {V4(112)}, v{PY+2}
ds_read_b128 {V4(116)}, v{PY+2} offset:1024
""")
        for hh in range(2):
            c += mk(f"s_waitcnt lgkmcnt({1-hh})")
            for k in range(4):
                c += mk(f"v_lshlrev_b32 v{SV+8*hh+2*k}, 16, v{112+4*hh+k}\nv_and_b32 v{SV+8*hh+2*k+1}, 0xffff0000, v{112+4*hh+k}")
            for k in range(4): c += mk(f"v_pk_add_f32 {V2(SV+8*hh+2*k)}, {V2(SV+8*hh+2*k)}, {V2(46+8*hh+2*k)}")
            for k in range(4): c += mk(f"v_cvt_pk_bf16_f32 v{120+4*hh+k}, v{SV+8*hh+2*k}, v{SV+8*hh+2*k+1}")
            c += mk(f"buffer_store_dwordx4 {V4(120+4*hh)}, v{VXO+hh}, {sOUT}, 0 offen {o.outfl}")
        return c

    def finish(self):
        c = []
        if self.opt.amp:
            k, mult = self.opt.amp
            c += self.stamp(12)
            c += mk(f"""
s_waitcnt vmcnt(0)
s_cmp_lg_u32 s2, 77
s_cbranch_scc1 L_end
v_readlane_b32 s96, v7, {k}
s_sub_u32 s96, s96, s98
s_mul_i32 s96, s96, {mult}
s_min_u32 s96, s96, 100000
s_memrealtime s[100:101]
s_waitcnt lgkmcnt(0)
s_add_u32 s96, s96, s100
L_amp:
s_memrealtime s[100:101]
s_waitcnt lgkmcnt(0)
s_sub_u32 s97, s96, s100
s_cmp_gt_i32 s97, 0
s_cbranch_scc1 L_amp
L_end:
s_endpgm
""")
            return c
        if self.opt.stamps:
            c += self.stamp(12)
            c += mk(f"""
s_waitcnt vmcnt(0)
s_memrealtime s[96:97]
s_waitcnt lgkmcnt(0)
v_writelane_b32 v7, s96, 13
v_writelane_b32 v7, s98, 0
v_writelane_b32 v7, {sTyp}, 14
s_add_u32 s{bWS}, s66, {STAMP}
s_addc_u32 s{bWS+1}, s67, 0
s_mov_b32 s{bWS+2}, 0x100000
s_lshl_b32 {sT0}, s2, 2
s_add_u32 {sT0}, {sT0}, {sW}
s_lshl_b32 {sT0}, {sT0}, 7
v_lshlrev_b32 v4, 2, {vL}
s_mov_b64 exec, 0xffffffff
buffer_store_dword v7, v4, {sWS}, {sT0} offen
""")
        c += mk("L_end:\ns_endpgm")
        return c

    def build(self):
        pro = self.prologue()
        tys = [self.type_code(t) for t in range(2)]
        p2 = self.phase2()
        fin = self.finish()
        if self.opt.walk:
            def stubs(code, names, skip):
                code = flatten(code); n = len(code)
                pos = list(range(skip, n - 8, self.opt.walk))
                per = -(-len(pos) // len(names)); ins = {}
                for k, p in enumerate(pos):
                    q, r = divmod(k, per)
                    last = r == per - 1 or k == len(pos) - 1
                    ins[p] = mk(f"H_{names[q]}_{r}:\ns_cbranch_execz " + ("L_wback" if last else f"H_{names[q]}_{r+1}"))
                out = []
                for k, i in enumerate(code):
                    if k in ins: out += ins[k]
                    out.append(i)
                return out
            tys = [(stubs(tys[0][0], ["a0", "a1", "a2"], self.opt.wskip), tys[0][1]), (stubs(tys[1][0], ["b0", "b1", "b2"], self.opt.wskip), tys[1][1])]
            p2 = stubs(p2, ["p"], 1)
        tot = 0
        for t in range(2):
            tot += fix_hazards(pro + tys[t][0] + p2 + fin, self.opt.verbose)
        for t in range(2):
            fix_hazards(tys[t][1], self.opt.verbose)
            e, mx = check_waits(pro + tys[t][0] + p2 + fin, f"t{t}")
            print(f"type {t}: wait errors {e}, max vm outstanding {mx}", file=sys.stderr)
        print(f"inserted nop states: {tot}", file=sys.stderr)
        slow2 = getattr(self, "slow2", [])
        fix_hazards(slow2)
        code = pro + tys[0][0] + tys[1][0] + p2 + fin + tys[0][1] + tys[1][1] + slow2
        L = KN + "_kernel"
        if self.opt.align:
            wrap = lambda t: f'.amdgcn_target "amdgcn-amd-amdhsa--gfx950"\n.text\n.p2align 8\n{t}L_codeend:\n'
            print("align (promoted, padded):", align8(code, wrap, self.opt.align > 1), file=sys.stderr)
        hdr = open("cdna_kernels/" + KN + ".s.ref").read().split("; Override launch")[0] if self.opt.final else ""
        out = hdr + f"; @launch grid=(256,1,1) block=(256,1,1) lds={LDS_BYTES}\n"
        out += f'.amdgcn_target "amdgcn-amd-amdhsa--gfx950"\n.text\n.globl {L}\n.p2align 8\n.type {L},@function\n{L}:\n'
        out += text(code)
        out += "s_endpgm\n.p2align 6\nL_codeend:\n"
        out += f""".section .rodata,"a"
.p2align 6
.amdhsa_kernel {L}
  .amdhsa_next_free_vgpr 512
  .amdhsa_next_free_sgpr 102
  .amdhsa_accum_offset 256
  .amdhsa_group_segment_fixed_size 0
  .amdhsa_kernarg_size 80
  .amdhsa_user_sgpr_count 2
  .amdhsa_user_sgpr_kernarg_segment_ptr 1
  .amdhsa_system_sgpr_workgroup_id_x 1
  .amdhsa_float_denorm_mode_32 3
.end_amdhsa_kernel
"""
        return out

if __name__ == "__main__":
    ap = argparse.ArgumentParser()
    ap.add_argument("-o", default="k.s")
    for f in ("stamps", "p1only", "verbose", "final", "nomfma", "noreads", "nocs", "nopf", "epistamps", "prostamps", "p2stamps"): ap.add_argument("--" + f, action="store_true")
    ap.add_argument("--p2", default="")
    ap.add_argument("--p2gap", type=int, default=4)
    ap.add_argument("--burst", type=int, default=3)
    ap.add_argument("--ramp", type=int, default=2)
    ap.add_argument("--nstage_b", type=int, default=0)
    ap.add_argument("--depth", type=int, default=7)
    ap.add_argument("--pf0", type=int, default=2)
    ap.add_argument("--tlb", type=int, default=0)
    ap.add_argument("--kgroups", type=int, default=4)
    ap.add_argument("--quota", type=int, default=10)
    ap.add_argument("--ko", default="")
    ap.add_argument("--walk", type=int, default=0)
    ap.add_argument("--wskip", type=int, default=120)
    ap.add_argument("--hearly", type=int, default=1)
    ap.add_argument("--hpos", type=int, default=0)
    ap.add_argument("--nfirst_a", type=int, default=10)
    ap.add_argument("--bsplit", type=int, default=4)
    ap.add_argument("--bpt", type=int, default=64)
    ap.add_argument("--nstage_a", type=int, default=12)
    ap.add_argument("--pollahead", type=int, default=4)
    ap.add_argument("--ofirst", type=int, default=1)
    ap.add_argument("--olate", type=int, default=0)
    ap.add_argument("--npoll", type=int, default=1)
    ap.add_argument("--rotc", type=int, default=0)
    ap.add_argument("--ut0", type=int, default=0)
    ap.add_argument("--utper", type=int, default=2)
    ap.add_argument("--utfl", default="")
    ap.add_argument("--rot", type=int, default=0)
    ap.add_argument("--probe", type=int, default=-1)
    ap.add_argument("--halo", type=int, default=1)
    ap.add_argument("--outfl", default="sc1")
    ap.add_argument("--protouch", type=int, default=2)
    ap.add_argument("--tfirst", type=int, default=1)
    ap.add_argument("--ntx", type=int, default=0)
    ap.add_argument("--ntw", type=int, default=0)
    ap.add_argument("--ntt", type=int, default=0)
    ap.add_argument("--late", type=int, default=0)
    ap.add_argument("--pford", default="h2,h3,h1,o")
    ap.add_argument("--hflag", type=float, default=0.5)
    ap.add_argument("--csplit", type=int, default=1)
    ap.add_argument("--quota0", type=int, default=11)
    ap.add_argument("--wtouch", type=int, default=2)
    ap.add_argument("--wfirst", type=int, default=1)
    ap.add_argument("--statlag", type=int, default=3)
    ap.add_argument("--rotmask", type=int, default=6)
    ap.add_argument("--pfsched", default="0001111111110000")
    ap.add_argument("--statstep", type=int, default=1)
    ap.add_argument("--pfrot", type=int, default=7)
    ap.add_argument("--amp", type=lambda x: tuple(int(v) for v in x.split(",")), default=None)
    ap.add_argument("--wsched", default="033333333333300000")
    ap.add_argument("--bars", default="1,3,5,7,9,11,13,15")
    ap.add_argument("--align", type=int, default=0)
    ap.add_argument("--proextra", type=int, default=1)
    ap.add_argument("--dshadow", type=int, default=60)
    ap.add_argument("--pollpos", type=int, default=30)
    ap.add_argument("--stsched", type=lambda x: [int(ch) for ch in x], default=[int(ch) for ch in "0000000000033334"])
    ap.add_argument("--p2lds", type=int, default=4)
    ap.add_argument("--pfslice", type=int, default=4096)
    opt = ap.parse_args()
    import subprocess, re, os
    for _ in range(2):
        open(opt.o, "w").write(G(opt).build())
        subprocess.check_call(["clang", "-x", "assembler", "-target", "amdgcn-amd-amdhsa", "-mcpu=gfx950", "-c", opt.o, "-o", opt.o + ".o"])
        t = subprocess.check_output(["llvm-objdump", "-t", opt.o + ".o"], text=True)
        sym = {m.group(2): int(m.group(1), 16) for m in re.finditer(r"^([0-9a-f]{16}) .* (L_\w+)$", t, re.M)}
        n = sym["L_codeend"] - sym["L_pc"]
        opt.pfslice = (n - 12288) // 7 // 16 * 16
        assert 0 < opt.pfslice <= 8192
        opt.verbose = False
    os.remove(opt.o + ".o")
    print("code bytes", sym["L_codeend"], "pfslice", opt.pfslice, {k: v for k, v in sym.items() if k in ("L_pc", "L_tb", "L_join", "L_go", "L_end")}, file=sys.stderr)
```

```python
import sys, argparse, struct
from fw import *
KN = "recurrent_scan__sliding_local_dilated__glu_gated_bilinear__prompt"

WSLOT = 20480
XBASE = 5 * WSLOT
XSLOT = 18432
MISC = XBASE + 3 * XSLOT
STATL = MISC
LDS_BYTES = 163840
RBS = 144 * 1024
WS_STAT = 0x900000
WS_FLAG = 0x910000
WS_SIZE = 0x920000
STAMP = 200 << 20
def S4(b): return f"s[{b}:{b+3}]"
bX, bWO, bWD, bOUT, bWS, bDBG = 4, 8, 12, 16, 20, 24
sX, sWO, sWD, sOUT, sWS, sDBG = map(S4, (bX, bWO, bWD, bOUT, bWS, bDBG))
bS = [28, 32, 36, 40, 44]; sS = [S4(b) for b in bS]
sW, sM, sN, sR, sC = "s68", "s69", "s70", "s71", "s72"
sKa, sKb, sIncA = "s73", "s74", "s75"
sWoff, sXoff, sHoff = "s76", "s77", "s78"
sIdx, sTyp = "s79", "s80"
sT0, sT1, sT2, sT3 = "s82", "s83", "s84", "s85"
sNon = "s[86:87]"; sNonL, sNonH = "s86", "s87"
sU = ["s88", "s89", "s90"]
sEx = "s[94:95]"
sB = ["s48", "s49", "s50", "s51"]
sWB = ["s52", "s53", "s56", "s57"]
sCnt = "s58"
sXc = "s93"; sXk = "s92"
vL = "v1"
vX = ["v8", "v9"]; vH = ["v10", "v11"]; vWg = ["v12", "v13", "v14", "v15", "v16"]; vB2 = "v17"
RA = 18
RT = 22
VST = 26
BIAS = 30
GAT = 76
NON = 56
GA = 58
SX = 60
V4 = lambda r: f"v[{r}:{r+3}]"
V2 = lambda r: f"v[{r}:{r+1}]"
A4 = lambda r: f"a[{r}:{r+3}]"
A2 = lambda r: f"a[{r}:{r+1}]"
CSACC = 228
ONES = 252
def f2h(x): return "0x%08x" % struct.unpack("<I", struct.pack("<f", x))[0]
aQ = lambda i: 88 + 4 * i
aK = lambda i: 120 + 4 * i
aV = lambda i: 156 + 4 * i
aG = lambda i: 192 + 4 * i
aU = lambda i: 224 + 4 * i
bAcc = lambda g, i: 96 + 32 * g + 4 * i
bMix = lambda u, i: 224 + 16 * u + 4 * i
NA = {0: 9, 1: 8}; NB = {0: 5, 1: 6}
fA = lambda st, i: 56 * st + 4 * i
def fB(ty, st, j): return 56 * st + 4 * NA[ty] + 4 * j
M16 = "v_mfma_f32_16x16x32_bf16"

class G:
    def __init__(self, opt): self.opt = opt; self.young = {}
    def pstamp(self, k):
        return self.stamp(k, True) if self.opt.prostamps else []
    def stamp(self, k, force=False):
        if not self.opt.stamps: return []
        if (self.opt.prostamps or self.opt.p2stamps) and 2 <= k <= 7 and not force: return []
        if self.opt.probe >= 0 and k in (2, 3) and not force: return []
        if self.opt.epistamps and k in (2, 3, 4) and not force: return []
        return mk(f"s_memrealtime s[96:97]\ns_memtime s[100:101]\ns_waitcnt lgkmcnt(0)\nv_writelane_b32 v7, s96, {k}\nv_writelane_b32 v7, s100, {16+k}")

    def scc_live(self, flat, k):
        for ins in flat[k:]:
            if ins.op.startswith(("s_cselect", "s_cbranch_scc", "s_addc")): return True
            if ins.kind == "salu" and not ins.op.startswith(("s_mov", "s_waitcnt", "s_nop", "s_movk")): return False
        return False
    def mksrd(self, b, p, size):
        return mk(f"s_mov_b32 s{b}, s{p}\ns_mov_b32 s{b+1}, s{p+1}\ns_mov_b32 s{b+2}, {size}\ns_mov_b32 s{b+3}, 0x20000")

    def dma_x(self, p, h, halo=True):
        base = XBASE + (p % 3) * XSLOT
        L = [mk(f"s_add_u32 {sXk}, {sXc}, {h*16384}\ns_add_u32 m0, {sXoff}, {base + 2048*h}\nbuffer_load_dwordx4 {vX[0]}, {sX}, {sXk} offen lds"),
             mk(f"s_add_u32 m0, {sXoff}, {base + 2048*h + 1024}\nbuffer_load_dwordx4 {vX[1]}, {sX}, {sXk} offen lds")]
        if halo:
            ho = "s3" if (self.opt.halo and h == 0) else sHoff
            L.append(mk(f"s_add_u32 m0, {ho}, {base + 256*h}\nbuffer_load_dword {vH[h]}, {sX}, {sXc} offen lds"))
        if h == 1: L[-1] += mk(f"s_add_u32 {sXc}, {sXc}, 128\ns_and_b32 {sXc}, {sXc}, 1023")
        if p < self.opt.ntx:
            for a in L:
                for i in a:
                    if i.kind == "vmem": i.text = i.text.replace(" lds", " nt lds")
        if "x" in self.opt.ko and p > 0:
            for a in L:
                for i in a:
                    if i.kind == "vmem": i.text = i.text.replace(sXk, "0").replace(sXc, "0")
        return L
    def dma_w(self, s):
        base = (s % 5) * WSLOT
        L = []
        for g in range(5):
            L.append(mk(f"s_add_u32 m0, {sWoff}, {base + 4096*g}\nbuffer_load_dwordx4 {vWg[g]}, {sS[g]}, {sKa if g < 3 else sKb} offen{' nt' if s < self.opt.ntw else ''} lds"))
        if "w" not in self.opt.ko: L[-1] += mk(f"s_add_u32 {sKa}, {sKa}, {sIncA}\ns_add_u32 {sKb}, {sKb}, {32*3584}")
        G = self.opt.kgroups
        if G > 1 and (s + 1) % (16 // G) == 0 and s < 15:
            L[-1].append(mk(f"s_cmp_eq_u32 {sKb}, {512*3584}\ns_cselect_b32 {sKa}, 0, {sKa}\ns_cselect_b32 {sKb}, 0, {sKb}"))
        return L
    def dma_queue(self, ty):
        Q = []
        for s in range(16):
            if s % 2 == 0 and ("x", s // 2) not in self.vm0:
                p = s // 2
                for h in range(2):
                    for a in self.dma_x(p, h, halo=(ty == 0)): Q.append((max(0, 2 * p - 5), ("x", p), a))
            if ("w", s) not in self.vm0:
                for a in self.dma_w(s): Q.append((max(0, s - 5), ("w", s), a))
        return Q

    def wtouch(self, n):
        return mk(f"""
v_add_u32 v44, 2, v44
v_and_b32 v44, 15, v44
v_lshl_add_u32 v48, v44, 5, v45
v_mad_u32_u24 v49, v48, s86, v46
v_mad_u32_u24 v48, v48, s87, v47
buffer_load_dword a{220 + 2 * n}, v49, s[88:91], s54 offen{' nt' if self.opt.ntt else ''}
buffer_load_dword a{221 + 2 * n}, v48, {sS[4]}, s55 offen{' nt' if self.opt.ntt else ''}
""")
    def prologue(self):
        o = self.opt
        vm = self.vm0 = []
        def note(L, tag):
            L = flatten(L)
            for i in L:
                if i.kind == "vmem": vm.append(tag)
            return L
        c = mk(f"""
s_load_dwordx16 s[48:63], s[0:1], 0
s_load_dwordx4 s[64:67], s[0:1], 64
s_cmp_ge_u32 s2, 256
s_cbranch_scc1 L_end
""")
        if o.stamps: c += mk("v_mov_b32 v7, 0\ns_memrealtime s[98:99]")
        c += note(mk(f"""
s_getpc_b64 s[88:89]
L_pc:
v_lshlrev_b32 v2, 4, v0
s_lshr_b32 {sT1}, s2, 3
s_and_b32 {sT0}, {sT1}, 7
s_mul_i32 {sT0}, {sT0}, {o.pfslice}
global_load_dwordx4 a[112:115], v2, s[88:89]
v_add_u32 v3, 0x1000, v2
s_add_u32 s88, s88, {sT0}
s_addc_u32 s89, s89, 0
global_load_dwordx4 a[116:119], v3, s[88:89]
v_add_u32 v3, 0x1000, v3
global_load_dwordx4 a[120:123], v3, s[88:89]
"""), ("pre", 0))
        c += mk(f"""
v_lshrrev_b32 v2, 6, v0
v_and_b32 {vL}, 63, v0
s_and_b32 {sT0}, s2, 7
v_readfirstlane_b32 {sW}, v2
s_lshr_b32 {sM}, {sT0}, 2
s_lshl_b32 {sM}, {sM}, 3
s_lshr_b32 {sT2}, {sT1}, 2
s_add_u32 {sM}, {sM}, {sT2}
v_lshrrev_b32 v5, 3, {vL}
v_lshrrev_b32 v3, 4, {vL}
v_xor_b32 v4, v3, {vL}
v_and_b32 v4, 7, v4
v_lshlrev_b32 v4, 4, v4
s_lshl_b32 {sT3}, {sM}, 7
s_lshl_b32 {sT2}, {sW}, 5
s_add_u32 {sT2}, {sT2}, {sT3}
v_add_u32 v6, {sT2}, v5
v_lshl_add_u32 {vX[0]}, v6, 10, v4
v_xor_b32 {vX[1]}, 64, {vX[0]}
v_add_u32 {vX[1]}, 0x2000, {vX[1]}
s_lshl_b32 {sT2}, {sW}, 2
s_add_u32 {sT2}, {sT2}, {sT3}
s_sub_u32 {sT2}, {sT2}, 16
v_lshrrev_b32 v6, 5, {vL}
v_add_u32 v6, {sT2}, v6
s_lshl_b32 {sXoff}, {sW}, 5
v_lshlrev_b32 v4, 2, {vL}
v_and_b32 v4, 0x7f, v4
v_xor_b32 v4, {sXoff}, v4
v_max_i32 v2, 0, v6
v_lshl_add_u32 {vH[0]}, v2, 10, v4
v_add_u32 v6, 2, v6
v_max_i32 v2, 0, v6
v_xor_b32 v4, 16, v4
v_lshl_add_u32 {vH[1]}, v2, 10, v4
s_lshl_b32 {sXoff}, {sW}, 12
s_add_u32 {sXoff}, {sXoff}, 2048
s_lshl_b32 {sHoff}, {sW}, 9
s_cmp_eq_u32 {sW}, 0
s_cselect_b32 s3, 0x10000, {sHoff}
s_cselect_b32 {sXc}, {0x80000000 if o.halo else 0}, 0
v_or_b32 {vH[0]}, {sXc}, {vH[0]}
s_lshl_b32 {sXc}, s2, 1
s_and_b32 {sXk}, s2, 4
s_add_u32 {sXc}, {sXc}, {sXk}
s_and_b32 {sXc}, {sXc}, {o.rotmask}
s_lshl_b32 s81, {sXc}, 1
s_lshl_b32 {sXc}, {sXc}, 7
s_and_b32 {sT2}, {sT1}, 3
s_lshl_b32 {sT2}, {sT2}, 2
s_add_u32 {sT2}, {sT2}, {sW}
s_mul_i32 {sT2}, {sT2}, 9
s_add_u32 {sT2}, {sT2}, {sT3}
s_sub_u32 {sT2}, {sT2}, 16
v_add_u32 v50, {sT2}, {vL}
v_max_i32 v50, 0, v50
v_cmp_le_u32 vcc, 9, {vL}
v_lshlrev_b32 v50, 10, v50
v_mov_b32 v6, 0x80000000
v_cndmask_b32 v50, v50, v6, vcc
s_mov_b32 s{bX+2}, {2048*1024}
s_mov_b32 s{bX+3}, 0x20000
s_waitcnt lgkmcnt(0)
s_mov_b32 s{bX}, s48
s_mov_b32 s{bX+1}, s49
""")
        c += self.pstamp(2)
        if o.xt0:
            c += note(mk(f"buffer_load_dword a227, v50, {sX}, {sXc} offen{' nt' if o.ntxt else ''}"), ("xt", 0))
            if o.xt0 > 1: c += note(mk(f"s_add_u32 {sXk}, {sXc}, 128\ns_and_b32 {sXk}, {sXk}, 1023\nbuffer_load_dword a226, v50, {sX}, {sXk} offen{' nt' if o.ntxt else ''}"), ("xt", 0))
        c += note(self.dma_x(0, 0) + self.dma_x(0, 1), ("x", 0))
        c += self.pstamp(3)
        c += mk(f"""
s_lshl_b32 {sWoff}, {sW}, 10
s_and_b32 {sN}, {sT0}, 3
s_lshl_b32 {sIdx}, {sN}, 1
s_lshl_b32 {sN}, {sN}, 2
s_and_b32 {sT2}, {sT1}, 3
s_add_u32 {sN}, {sN}, {sT2}
s_lshr_b32 {sTyp}, {sT2}, 1
s_and_b32 {sT2}, {sT2}, 1
s_add_u32 {sIdx}, {sIdx}, {sT2}
s_and_b32 {sT2}, {sW}, 1
s_lshl_b32 {sT3}, {sT2}, 2
v_and_b32 v4, 2, v5
v_or_b32 v4, {sT3}, v4
v_xor_b32 v4, v4, {vL}
v_and_b32 v4, 7, v4
v_lshlrev_b32 v4, 4, v4
s_lshl_b32 {sT3}, {sW}, 3
v_add_u32 v6, {sT3}, v5
s_movk_i32 s87, 3584
s_movk_i32 s86, 3072
s_lshl_b32 s95, {sIdx}, 7
s_lshl_b32 {sT3}, {sIdx}, 8
s_add_u32 {sT3}, {sT3}, 1024
s_add_u32 s49, s95, 1024
s_add_u32 s94, s95, 2048
s_add_u32 s54, {sT3}, 128
s_lshl_b32 s55, {sIdx}, 6
s_add_u32 s55, s55, 3072
s_cmp_eq_u32 {sTyp}, 1
s_cselect_b32 s86, s87, s86
s_cselect_b32 s48, {sT3}, s95
s_cselect_b32 s49, {sT3}, s49
s_cselect_b32 s94, s54, s94
s_cselect_b32 s55, s55, s95
s_cselect_b32 s95, s54, s95
s_cselect_b64 vcc, -1, 0
s_cselect_b32 s28, s56, s50
s_cselect_b32 s29, s57, s51
s_cselect_b32 s32, s58, s50
s_cselect_b32 s33, s59, s51
s_cselect_b32 s40, s58, s56
s_cselect_b32 s41, s59, s57
v_mad_u32_u24 v2, v6, s86, v4
v_mad_u32_u24 v3, v6, s87, v4
s_lshl_b32 s30, s86, 9
s_lshl_b32 {sIncA}, s86, 5
v_add_u32 {vWg[0]}, s48, v2
v_add_u32 {vWg[1]}, s49, v2
v_add_u32 {vWg[2]}, s94, v2
v_add_u32 {vWg[3]}, s95, v3
s_mov_b32 s31, 0x20000
s_mov_b32 s34, s30
s_mov_b32 s35, 0x20000
s_mov_b32 s36, s28
s_mov_b32 s37, s29
s_mov_b32 s38, s30
s_mov_b32 s39, 0x20000
s_mov_b32 s42, {512*3584}
s_mov_b32 s43, 0x20000
v_lshrrev_b32 v4, 4, {vL}
v_and_b32 v4, 2, v4
v_xor_b32 v4, v4, {vL}
v_and_b32 v4, 3, v4
v_lshlrev_b32 v4, 4, v4
s_lshl_b32 {sT2}, {sT2}, 4
v_lshrrev_b32 v6, 2, {vL}
v_add_u32 v6, {sT2}, v6
v_mad_u32_u24 v4, v6, s87, v4
s_lshl_b32 {sT2}, {sTyp}, 1
s_cmp_lt_u32 {sW}, {sT2}
s_cselect_b32 s44, s56, s58
s_cselect_b32 s45, s57, s59
s_mov_b32 s46, s42
s_mov_b32 s47, 0x20000
v_cndmask_b32 v4, v3, v4, vcc
s_mul_i32 {sKa}, s81, {sIncA}
s_mul_i32 {sKb}, s81, {32*3584}
v_add_u32 {vWg[4]}, s55, v4
""")
        c += note(self.dma_w(0), ("w", 0))
        c += self.pstamp(4)
        c += mk(f"""
v_lshrrev_b32 v2, 4, {vL}
v_bfe_u32 v3, {vL}, 2, 2
v_and_b32 v4, 3, {vL}
v_and_b32 v6, 15, {vL}
v_lshrrev_b32 v5, 1, v6
v_xor_b32 v5, v5, v2
v_lshlrev_b32 v5, 4, v5
v_lshl_add_u32 v5, v6, 7, v5
v_add_u32 v5, {XBASE}, v5
s_lshr_b32 {sT2}, {sW}, 1
s_and_b32 {sT2}, {sT2}, {sTyp}
s_lshl_b32 {sT2}, {sT2}, 13
v_add_u32 v{RA}, {sT2}, v5
v_xor_b32 v{RA+1}, 64, v{RA}
v_subrev_u32 v{RA+2}, {sT2}, v5
v_xor_b32 v{RA+3}, 64, v{RA+2}
v_and_b32 v6, 1, v2
v_lshrrev_b32 v5, 1, v3
v_lshl_or_b32 v5, v6, 1, v5
v_xor_b32 v5, {sW}, v5
v_lshlrev_b32 v5, 5, v5
v_lshl_add_u32 v5, v2, 10, v5
v_lshl_add_u32 v5, v3, 7, v5
v_lshl_add_u32 v{RT}, v4, 3, v5
v_add_u32 v{RT+1}, {3*WSLOT}, v{RT}
v_lshrrev_b32 v5, 1, v2
v_lshlrev_b32 v5, 10, v5
v_lshl_add_u32 v5, v6, 9, v5
v_lshl_add_u32 v5, v3, 6, v5
v_lshl_add_u32 v5, v4, 3, v5
v_xor_b32 v6, {sW}, v6
v_and_b32 v6, 1, v6
v_lshl_add_u32 v{RT+2}, v6, 5, v5
v_add_u32 v{RT+3}, {3*WSLOT}, v{RT+2}
v_mov_b32 v5, 0x3f803f80
v_lshlrev_b32 v6, 2, {vL}
v_add_u32 v6, {XBASE}, v6
{"" if not o.halo else f"ds_write_b32 v6, v5{chr(10)}ds_write_b32 v6, v5 offset:{XSLOT}{chr(10)}ds_write_b32 v6, v5 offset:{2*XSLOT}"}
s_cmp_eq_u32 {sW}, 1
s_cselect_b32 s54, s49, s48
s_cselect_b32 s88, s32, s28
s_cselect_b32 s89, s33, s29
s_cmp_eq_u32 {sW}, 2
s_cselect_b32 s54, s94, s54
s_cmp_eq_u32 {sW}, 3
s_cselect_b32 s54, s95, s54
s_cselect_b32 s88, s40, s88
s_cselect_b32 s89, s41, s89
s_cselect_b32 s90, s42, s30
s_cselect_b32 s86, s87, s86
s_mov_b32 s91, 0x20000
v_accvgpr_write_b32 a{ONES}, v5
v_accvgpr_write_b32 a{ONES+1}, v5
v_accvgpr_write_b32 a{ONES+2}, v5
v_accvgpr_write_b32 a{ONES+3}, v5
s_add_u32 s81, s81, {o.wfirst - 2}
v_lshrrev_b32 v5, 2, {vL}
v_add_u32 v44, s81, v5
s_and_b32 {sT2}, {sM}, 7
s_lshl_b32 {sT2}, {sT2}, 2
v_add_u32 v45, {sT2}, v4
v_lshrrev_b32 v46, 3, {vL}
v_lshlrev_b32 v46, 28, v46
s_lshl_b32 {sT2}, {sTyp}, 1
s_sub_u32 {sT2}, 3, {sT2}
v_xor_b32 v5, {sW}, {vL}
v_and_b32 v5, {sT2}, v5
v_lshl_or_b32 v47, v5, 26, v46
""")
        c += self.mksrd(bDBG, 64, 256)
        c += mk(f"""
s_or_b32 {sT2}, s2, {sW}
s_cmp_lg_u32 {sT2}, 0
s_cbranch_scc1 L_nononce
s_memrealtime s[94:95]
s_waitcnt lgkmcnt(0)
s_or_b32 s94, s94, 1
v_mov_b32 v2, s94
v_mov_b32 v3, s95
v_mov_b32 v4, 0
s_mov_b64 exec, 1
buffer_store_dwordx2 v[2:3], v4, {sDBG}, 0 offen sc1
s_mov_b64 exec, -1
L_nononce:
""")
        c += self.pstamp(7)
        xt = mk(f"buffer_load_dword a226, v50, {sX}, {sXc} offen{' nt' if o.ntxt else ''}")
        for ch in o.pord:
            if ch == "t": c += note(self.wtouch(1 + vm.count(("wt", 0)) // 2 % 2), ("wt", 0))
            if ch == "x": c += note(xt, ("xt", 0))
            if ch == "1": c += note(self.dma_w(1), ("w", 1))
            if ch == "X": c += note(self.dma_x(1, 0) + self.dma_x(1, 1), ("x", 1))
            if ch == "2": c += note(self.dma_w(2), ("w", 2))
        c += self.pstamp(5)
        if o.walk:
            c += mk(f"""
s_mov_b64 exec, 0
s_cmp_eq_u32 {sW}, 3
s_cbranch_scc1 H_p_0
s_lshl_b32 {sT2}, {sTyp}, 2
s_add_u32 {sT2}, {sT2}, {sW}
s_cmp_eq_u32 {sT2}, 0
s_cbranch_scc1 H_a0_0
s_cmp_eq_u32 {sT2}, 1
s_cbranch_scc1 H_a1_0
s_cmp_eq_u32 {sT2}, 2
s_cbranch_scc1 H_a2_0
s_cmp_eq_u32 {sT2}, 4
s_cbranch_scc1 H_b0_0
s_cmp_eq_u32 {sT2}, 5
s_cbranch_scc1 H_b1_0
s_branch H_b2_0
L_wback:
s_mov_b64 exec, -1
""")
        c += mk(f"s_add_u32 s81, {sXc}, {128 * (o.xfirst - 3)}")
        c += self.pstamp(6)
        c += mk(f"s_cmp_eq_u32 {sTyp}, 1\ns_cbranch_scc1 L_tb")
        return c

    def deferred(self, ty):
        o = self.opt
        A = []
        A += self.mksrd(bWO, 52, 512 * 1024) + self.mksrd(bWD, 60, 1792 * 1024) + self.mksrd(bWS, 66, WS_SIZE) + self.mksrd(bOUT, 62, 2048 * 1024)
        A += mk(f"""
s_lshr_b32 {sT1}, s2, 3
s_and_b32 {sT2}, s2, 7
s_lshr_b32 {sR}, {sT2}, {o.csplit}
s_lshl_b32 {sR}, {sR}, {2 + o.csplit}
s_lshr_b32 s64, {sT1}, {3 - o.csplit}
s_add_u32 {sR}, {sR}, s64
s_and_b32 {sC}, {sT1}, {(8 >> o.csplit) - 1}
s_and_b32 {sT2}, {sT2}, {o.csplit}
s_lshl_b32 {sT2}, {sT2}, 2
s_add_u32 {sC}, {sC}, {sT2}
s_lshl_b32 {sT3}, {sW}, 11
s_mul_i32 s62, {sC}, {o.rotc}
s_mul_i32 s63, {sR}, {2 - o.csplit}
s_add_u32 s62, s62, s63
s_and_b32 s62, s62, 7
s_lshl_b32 s63, s62, 12
s_lshl_b32 s62, s62, 16
v_lshrrev_b32 v5, 2, {vL}
v_and_b32 v5, 4, v5
v_xor_b32 v5, v5, {vL}
v_and_b32 v5, 7, v5
v_lshlrev_b32 v5, 4, v5
v_lshrrev_b32 v6, 3, {vL}
v_lshl_add_u32 v5, v6, 10, v5
s_lshl_b32 {sT2}, {sC}, 7
v_add_u32 {vB2}, {sT2}, v5
s_and_b32 {sT1}, {sW}, 1
s_lshr_b32 {sT2}, {sW}, 1
s_lshl_b32 {sT2}, {sT2}, 14
s_lshl_b32 {sWB[0]}, {sT1}, 18
s_add_u32 {sWB[0]}, {sWB[0]}, {sT2}
s_mov_b32 {sWB[1]}, {sWB[0]}
s_lshl_b32 s64, {sT1}, 19
s_add_u32 s64, s64, {sT2}
s_add_u32 s56, s64, {512*1024}
s_lshl_b32 s64, {sT1}, 17
s_add_u32 s64, s64, {sT2}
s_add_u32 s57, s64, {1536*1024}
s_lshl_b32 {sT1}, {sM}, 7
s_sub_u32 {sT2}, {sT1}, 16
v_add_u32 v5, {sT2}, {vL}
v_max_i32 v{GA}, 0, v5
v_lshlrev_b32 v{GA}, 4, v{GA}
v_add_u32 v5, 64, v5
v_lshlrev_b32 v{GA+1}, 4, v5
s_add_u32 {sT1}, {sT1}, 112
v_and_b32 v5, 15, {vL}
v_add_u32 v5, {sT1}, v5
v_lshlrev_b32 v42, 4, v5
""")
        B = []
        if ty == 0:
            B += mk(f"""
v_lshlrev_b32 v{VST}, 4, {vL}
v_add_u32 v{VST+1}, {RBS}, v{VST}
v_add_u32 v{VST+2}, {2*RBS}, v{VST}
v_add_u32 v{VST+3}, {3*RBS}, v{VST}
s_mul_i32 {sT1}, {sM}, 576
s_lshl_b32 {sT2}, {sIdx}, 2
s_add_u32 {sT2}, {sT2}, {sW}
s_add_u32 {sU[1]}, {sT1}, {sT2}
s_add_u32 {sU[0]}, {sU[1]}, 32
s_lshl_b32 {sU[0]}, {sU[0]}, 10
s_lshl_b32 {sU[1]}, {sU[1]}, 10
v_lshrrev_b32 v4, 4, {vL}
v_and_b32 v6, 15, {vL}
v_lshlrev_b32 v4, 2, v4
v_sub_u32 v4, v6, v4
v_mov_b32 v3, 0xff800000
v_mov_b32 v6, 0x80000000
""")
            for r in range(4):
                B += mk(f"""
v_subrev_u32 v5, {r}, v4
v_and_b32 v5, 0x80000001, v5
v_cmp_eq_u32 vcc, 0, v5
v_cmp_eq_u32 {sEx}, v6, v5
v_cndmask_b32_e64 v{BIAS+4+r}, v3, 0, vcc
v_cndmask_b32_e64 v{BIAS+r}, v3, 0, {sEx}
""")
            B.append(mk(f"s_cmp_eq_u32 {sM}, 0\ns_cselect_b64 vcc, -1, 0"))
            for r in range(4): B += mk(f"v_cndmask_b32 v{BIAS+8+r}, v{BIAS+r}, v3, vcc")
        else:
            B += mk(f"""
s_lshr_b32 {sT1}, {sW}, 1
s_mul_i32 {sT2}, {sT1}, {2*RBS}
v_lshlrev_b32 v5, 4, {vL}
v_add_u32 v{VST}, {sT2}, v5
v_add_u32 v{VST+1}, {RBS}, v{VST}
v_subrev_u32 v{VST+2}, {sT2}, v5
v_add_u32 v{VST+2}, {2*RBS}, v{VST+2}
v_add_u32 v{VST+3}, {RBS}, v{VST+2}
s_mul_i32 {sT1}, {sM}, 576
s_lshl_b32 {sT2}, {sIdx}, 3
s_add_u32 {sT2}, {sT2}, {sW}
s_add_u32 {sT2}, {sT2}, {sT1}
s_add_u32 {sU[0]}, {sT2}, 64
s_add_u32 {sU[1]}, {sT2}, 68
s_lshl_b32 {sT2}, {sIdx}, 1
s_and_b32 s64, {sW}, 1
s_add_u32 {sT2}, {sT2}, s64
s_add_u32 {sT2}, {sT2}, {sT1}
s_add_u32 {sU[2]}, {sT2}, 128
s_lshl_b32 {sU[0]}, {sU[0]}, 10
s_lshl_b32 {sU[1]}, {sU[1]}, 10
s_lshl_b32 {sU[2]}, {sU[2]}, 10
""")
        return A, B

    def reads(self, ty, stage):
        st = stage & 1
        xb = ((stage // 2) % 3) * XSLOT; kh = stage & 1
        ws = stage % 5; rg = ws // 3; wb = (ws % 3) * WSLOT
        out = []
        for i in range(NA[ty]):
            if ty == 0: out.append(I(f"ds_read_b128 {A4(fA(st, i))}, v{RA+kh} offset:{xb + 2048*i}"))
            else: out.append(I(f"ds_read_b128 {A4(fA(st, i))}, v{RA+kh+(2 if i >= 4 else 0)} offset:{xb + 2048*(i+1)}"))
        def tr(j, reg, off, second):
            return [I(f"ds_read_b64_tr_b16 {A2(fB(ty, st, j))}, v{reg} offset:{wb+off}"),
                    I(f"ds_read_b64_tr_b16 {A2(fB(ty, st, j)+2)}, v{reg} offset:{wb+off+second}")]
        B = []
        for g in range(5 if ty == 0 else 4): B += tr(g, RT + rg, 4096 * g, 512)
        if ty == 1: B += tr(4, RT + 2 + rg, 16384, 256) + tr(5, RT + 2 + rg, 16384 + 2048, 256)
        return out + B

    def mfmas(self, ty, stage):
        st = stage & 1
        out = []
        Z = lambda d: "0" if stage == 0 else d
        def T(d, j, i): out.append(I(f"{M16} {V4(d)}, {A4(fB(ty, st, j))}, {A4(fA(st, i))}, {Z(V4(d))}"))
        def CS(k, flip=False):
            d = A4(CSACC + 4 * k); f = A4(fB(ty, st, k))
            if self.opt.nocs: return
            out.append(I(f"{M16} {d}, {A4(ONES)}, {f}, {Z(d)}" if flip else f"{M16} {d}, {f}, {A4(ONES)}, {Z(d)}"))
        if ty == 0:
            for i in range(8): T(aQ(i), 0, i + 1)
            CS(0)
            for i in range(9): T(aK(i), 1, i)
            if not self.opt.halo: CS(1)
            for i in range(9): out.append(I(f"{M16} {V4(aV(i))}, {A4(fA(st, i))}, {A4(fB(ty, st, 2))}, {Z(V4(aV(i)))}"))
            if not self.opt.halo: CS(2, True)
            for i in range(8): T(aG(i), 3, i + 1)
            CS(3)
            for i in range(8): T(aU(i), 4, i + 1)
            CS(4)
        else:
            for g in range(4):
                for i in range(8): T(bAcc(g, i), g, i)
                CS(g)
            for u in range(2):
                for i in range(4): T(bMix(u, i), 4 + u, i)
                CS(4 + u)
        return out

    TILES = [(2, 2*k) for k in range(16)] + [(3, 2*k) for k in range(4)] + [(1, 2*k) for k in range(8)] + [(0, 2*k) for k in range(8)]
    RSIZE = {0: 16, 1: 16, 2: 32, 3: 8}
    def b2off(self, r, k, blk):
        if not self.opt.rot: return f"s_add_u32 {sT0}, {sWB[r]}, {(16*k + 8*blk)*1024}"
        if blk: return f"s_add_u32 {sT0}, {sT0}, 8192"
        return f"s_add_u32 {sT0}, s62, {k*16384}\ns_and_b32 {sT0}, {sT0}, {self.RSIZE[r]*16384 - 1}\ns_add_u32 {sT0}, {sT0}, {sWB[r]}"
    def b2_dma(self, s):
        def free_at(q):
            a = q * 2048
            if a < XBASE: return [s_ for s_ in range(11, 16) if s_ % 5 == a // WSLOT][0]
            return {2: 11, 0: 13, 1: 15}[(a - XBASE) // XSLOT]
        out = []
        for i in sorted(range(19), key=lambda u: u):
            if max(free_at(4 * self.slot(i) + w) for w in range(4)) != s: continue
            r, k = self.TILES[i]; srd = sWO if r == 0 else sWD
            for blk in range(2):
                out += mk(self.b2off(r, k, blk) + "\n"
                          f"s_add_u32 m0, {sT3}, {self.slot(i)*8192 + blk*1024}\nbuffer_load_dwordx4 {vB2}, {srd}, {sT0} offen lds")
        return out

    PFG = {"h2": (sWD, 512, 4), "h3": (sWD, 1536, 1), "h1": (sWD, 0, 2), "o": (sWO, 0, 2), "A": (sWD, 0, 1), "B": (sWD, 256, 1), "C": (sWO, 0, 1)}
    def l2pf(self, grp, k, seq):
        srd, row0, n = self.PFG[grp]; cs = self.opt.csplit
        thin = grp in "ABC"; one = thin and cs == 0
        L = []
        if seq == 0 and self.opt.pfa:
            L += mk(f"""
s_lshr_b32 s91, s2, 5
s_lshl_b32 s91, s91, 1
s_bfe_u32 s65, s2, 0x10003
s_add_u32 s91, s91, s65
s_lshl_b32 s91, s91, 2
s_add_u32 s91, s91, {sW}
s_lshl_b32 s91, s91, 12
v_lshrrev_b32 v3, 4, {vL}
v_lshlrev_b32 v3, 28, v3
s_and_b32 s65, s2, 1
s_lshl_b32 s65, s65, 9
s_add_u32 s91, s91, s65
v_and_b32 v2, 3, {vL}
v_lshl_or_b32 v3, v2, 7, v3
v_bfe_u32 v2, {vL}, 2, 2
v_lshl_or_b32 v2, v2, 10, v3
v_add_u32 v2, s91, v2
s_lshr_b32 s91, s2, 1
""")
        elif seq == 0:
            L += mk(f"""
s_lshr_b32 s91, s2, 3
s_lshl_b32 s91, s91, 2
s_add_u32 s91, s91, {sW}
s_lshl_b32 s91, s91, {10 if one else 11}
v_lshrrev_b32 v3, {4 if (cs == 0 and not one) else 3}, {vL}
v_lshlrev_b32 v3, 28, v3
""")
            if cs == 0: L += mk(f"v_lshl_or_b32 v2, {vL}, 7, v3")
            else: L += mk(f"""
s_and_b32 s65, s2, 1
s_lshl_b32 s65, s65, 9
s_add_u32 s91, s91, s65
v_and_b32 v2, 3, {vL}
v_lshl_or_b32 v3, v2, 7, v3
v_bfe_u32 v2, {vL}, 2, 1
v_lshl_or_b32 v2, v2, 10, v3
""")
            L += mk(f"v_add_u32 v2, s91, v2\ns_lshr_b32 s91, s2, {cs}")
        if thin:
            return L + mk(f"""
s_and_b32 s65, s91, {(8 >> cs) - 1}
s_mul_i32 s65, s65, {((64 if grp == "C" else 224) << cs) * 1024}
s_add_u32 s65, s65, {(row0 >> (1 - cs)) * 1024}
buffer_load_dword a{216 + seq % 12}, v2, {srd}, s65 offen
""")
        return L + mk(f"""
s_add_u32 s65, s91, {k}
s_and_b32 s65, s65, {(n - 1) & self.opt.pfrot}
s_lshl_b32 s65, s65, 18
s_add_u32 s65, s65, {row0 * 1024}
buffer_load_dword a{216 + seq % 12}, v2, {srd}, s65 offen
""")

    def utouch(self, ty, n, per):
        units = [(0, j) for j in range(4)] + [(1, j) for j in range(4)] + ([(2, j) for j in range(2)] if ty else [])
        L = []
        if n == 0:
            L += mk(f"v_lshrrev_b32 v51, 3, {vL}\nv_lshlrev_b32 v51, 28, v51\nv_mul_u32_u24 v50, 112, {vL}\nv_add_u32 v50, v50, v51")
        for k, (u, j) in enumerate(units[n * per:(n + 1) * per]):
            L += mk(f"v_add_u32 v51, v50, v{VST+j}\nbuffer_load_dword a{216 + (n * per + k) % 10}, v51, {sWS}, {sU[u]} offen{self.opt.utfl}")
        return L
    def flagaddr(self, dst, off):
        return mk(f"""
s_lshl_b32 {dst}, {sM}, 2
s_lshr_b32 {sT1}, {sN}, 2
s_add_u32 {dst}, {dst}, {sT1}
s_lshl_b32 {dst}, {dst}, 5
s_and_b32 {sT1}, {sN}, 3
s_lshl_b32 {sT1}, {sT1}, 2
s_add_u32 {dst}, {dst}, {sT1}
s_add_u32 {dst}, {dst}, {sW}
s_lshl_b32 {dst}, {dst}, 3
s_add_u32 {dst}, {dst}, {WS_FLAG + off}
""")
    def flagstore(self, so, r):
        return mk(f"""
v_mov_b32 v{r}, {sNonL}
v_mov_b32 v{r+1}, {sNonH}
v_lshlrev_b32 v{r+2}, 31, {vL}
v_lshl_or_b32 v{r+2}, {vL}, 25, v{r+2}
buffer_store_dwordx2 {V2(r)}, v{r+2}, {sWS}, {so} offen sc1
""")

    def stats_load(self):
        return mk(f"""
s_lshl_b32 {sT2}, {sM}, 7
s_lshl_b32 {sT1}, {sN}, 3
s_add_u32 {sT1}, {sT1}, {sT2}
s_lshl_b32 {sT2}, {sW}, 1
s_add_u32 {sT1}, {sT1}, {sT2}
s_lshl_b32 {sT1}, {sT1}, 10
v_lshlrev_b32 v{SX+16}, 4, {vL}
buffer_load_dwordx4 v[{SX}:{SX+3}], v{SX+16}, {sX}, {sT1} offen
buffer_load_dwordx4 v[{SX+4}:{SX+7}], v{SX+16}, {sX}, {sT1} offen offset:1024
""")

    def stats_compute(self):
        def row(x, e, t):
            L = []
            for k in range(4):
                L.append(f"v_lshlrev_b32 v{e+2*k}, 16, v{x+k}")
                L.append(f"v_and_b32 v{e+2*k+1}, 0xffff0000, v{x+k}")
            L += [f"v_add_f32 v{x}, v{e}, v{e+1}", f"v_add_f32 v{x+1}, v{e+2}, v{e+3}", f"v_add_f32 v{x+2}, v{e+4}, v{e+5}", f"v_add_f32 v{x+3}, v{e+6}, v{e+7}",
                  f"v_add_f32 v{x}, v{x}, v{x+1}", f"v_add_f32 v{x+2}, v{x+2}, v{x+3}", f"v_add_f32 v{x}, v{x}, v{x+2}"]
            def red(r):
                R = [f"v_add_f32_dpp v{r}, v{r}, v{r} row_ror:{sh} row_mask:0xf bank_mask:0xf" for sh in (8, 4, 2, 1)]
                for p in ("16", "32"):
                    R += [f"v_mov_b32 v{r+1}, v{r}", f"v_permlane{p}_swap_b32 v{r}, v{r+1}", f"v_add_f32 v{r}, v{r}, v{r+1}"]
                return R
            L += red(x)
            L.append(f"v_mul_f32 v{t+1}, 0x3b000000, v{x}")
            for k in range(8): L.append(f"v_sub_f32 v{e+k}, v{e+k}, v{t+1}")
            L += [f"v_mul_f32 v{x}, v{e}, v{e}", f"v_mul_f32 v{x+1}, v{e+1}, v{e+1}"]
            for k in range(2, 8): L.append(f"v_fmac_f32 v{x+(k&1)}, v{e+k}, v{e+k}")
            L.append(f"v_add_f32 v{x}, v{x}, v{x+1}")
            L += red(x)
            L += [f"v_mov_b32 v{x+1}, 0x3727c5ac", f"v_fmac_f32 v{x+1}, 0x3b000000, v{x}", f"v_rsq_f32 v{t}, v{x+1}"]
            return L
        a = row(SX, SX + 8, SX + 24); b = row(SX + 4, SX + 16, SX + 26)
        out = []
        for p, q in zip(a, b): out += [I(p), I(q)]
        return out

    def publish(self, ty):
        L = mk(f"""
v_readfirstlane_b32 {sNonL}, v{NON}
v_readfirstlane_b32 {sNonH}, v{NON+1}
v_cmp_eq_u32 vcc, 1, {vL}
s_lshl_b32 {sT1}, {sM}, 7
s_lshl_b32 {sT2}, {sN}, 3
s_cmp_eq_u32 {sNonL}, 0
s_cbranch_scc1 L_slow_nonce{ty}
L_back_nonce{ty}:
v_cndmask_b32 v{SX}, v{SX+24}, v{SX+26}, vcc
v_cndmask_b32 v{SX+1}, v{SX+25}, v{SX+27}, vcc
v_mov_b32 v{SX+2}, {sNonL}
v_mov_b32 v{SX+3}, {sNonH}
s_add_u32 {sT1}, {sT1}, {sT2}
s_lshl_b32 {sT2}, {sW}, 1
s_add_u32 {sT1}, {sT1}, {sT2}
s_lshl_b32 {sT1}, {sT1}, 4
s_add_u32 {sT1}, {sT1}, {WS_STAT}
v_lshlrev_b32 v{SX+4}, 4, {vL}
v_cmp_lt_u32 vcc, 1, {vL}
v_mov_b32 v{SX+5}, 0x80000000
v_cndmask_b32 v{SX+4}, v{SX+4}, v{SX+5}, vcc
buffer_store_dwordx4 v[{SX}:{SX+3}], v{SX+4}, {sWS}, {sT1} offen sc1
""")
        return L[:5] + [L[5:8]] + L[8:]

    def gather_load(self):
        return mk(f"""
s_mov_b32 {sT1}, {WS_STAT}
buffer_load_dwordx4 {V4(GAT)}, v{GA}, {sWS}, {sT1} offen sc1
buffer_load_dwordx4 {V4(GAT+4)}, v{GA+1}, {sWS}, {sT1} offen sc1
buffer_load_dwordx4 {V4(GAT+8)}, v42, {sWS}, {sT1} offen sc1
""")
    def gather_cmp(self):
        return mk(f"""
v_cmp_ne_u64 vcc, {sNon}, {V2(GAT+2)}
v_cmp_ne_u64 {sEx}, {sNon}, {V2(GAT+6)}
v_cmp_ne_u64 s[92:93], {sNon}, {V2(GAT+10)}
s_or_b64 vcc, vcc, {sEx}
s_or_b64 vcc, vcc, s[92:93]
""")

    ST = 60
    def stats_stage(self, ty):
        ST = self.ST
        L = [self.gather_cmp() + mk(f"s_cbranch_vccnz L_slow_gat{ty}\nL_back_gat{ty}:")]
        L += mk(f"""
s_mul_i32 {sT1}, {sW}, 1152
s_add_u32 {sT1}, {sT1}, {STATL}
v_lshl_add_u32 v44, {vL}, 2, {sT1}
v_and_b32 v45, 15, {vL}
v_lshl_add_u32 v45, v45, 2, {sT1}
v_add_u32 v46, 512, v45
""")
        W = mk(f"""
ds_write2_b32 v44, v{GAT}, v{GAT+1} offset0:0 offset1:144
ds_write2_b32 v44, v{GAT+4}, v{GAT+5} offset0:64 offset1:208
ds_write2_b32 v46, v{GAT+8}, v{GAT+9} offset0:0 offset1:144
""")
        if ty == 0:
            L += mk(f"v_add_u32 v47, 256, v45\nv_lshrrev_b32 v43, 4, {vL}\nv_lshl_add_u32 v43, v43, 4, {sT1}")
            for i in range(9):
                if i < 4: W += mk(f"ds_read2_b32 {V2(ST+2*i)}, v45 offset0:{16*i} offset1:{144+16*i}")
                else: W += mk(f"ds_read2_b32 {V2(ST+2*i)}, v47 offset0:{16*i-64} offset1:{80+16*i}")
        else:
            L += mk(f"""
s_lshr_b32 {sT2}, {sW}, 1
s_lshl_b32 {sT2}, {sT2}, 8
v_add_u32 v47, {sT2}, v45
v_subrev_u32 v48, {sT2}, v45
v_add_u32 v48, 256, v48
""")
            for i in range(8):
                W += mk(f"ds_read2_b32 {V2(ST+2*i)}, v{47 if i < 4 else 48} offset0:{16+16*(i%4)} offset1:{160+16*(i%4)}")
        return L + W

    def type_code(self, ty):
        o = self.opt
        c = mk("L_tb:") if ty else []
        vm = list(self.vm0)
        def waitfor(tags):
            for t in tags: assert vm.count(t) >= {"w": 5, "x": 4}.get(t[0], 1) and all(q[1] != t for q in dq), (t, ty)
            idx = max([k for k, t in enumerate(vm) if t in tags], default=-1)
            return len(vm) - 1 - idx
        def note(L, tag):
            for i in flatten(L):
                if i.kind == "vmem": vm.append(tag)
            return L
        need = lambda s: [("w", s), ("x", s // 2)]
        dq = []
        c += mk(f"s_waitcnt vmcnt({waitfor(need(0))}) lgkmcnt(0)\ns_barrier")
        defA, defB = self.deferred(ty)
        c += self.stamp(1)
        c += self.reads(ty, 0)
        stats = self.stats_compute()
        dq = self.dma_queue(ty)
        pfq = [(g, k) for g in o.pford.split(",") for k in range(self.PFG[g][2])]; pfn = 0

        third = -(-len(stats) // 6) * 2
        SL = o.statstep; SC = o.sc
        cuts = [0] + o.cuts + [len(stats)]
        SN, SP, SG, SS = 1, SC + len(cuts) - 1, o.sg, o.ss
        for s in range(16):
            tags = need(s + 1) if s < 15 else []
            if s == SC: tags = tags + [("sl", 0)]
            if s == SP: tags = tags + [("non", 0)]
            if s == SS: tags = tags + [("gat", 0)]
            if s == 13: tags = tags + [("b2", 11)]
            if s == 14: tags = tags + [("b2", 12)]
            if s == 15: tags = tags + [("b2", 13)]
            c += mk((f"s_waitcnt vmcnt({waitfor(tags)}) lgkmcnt(0)" if tags else "s_waitcnt lgkmcnt(0)") + "\ns_barrier")
            if o.stamps and s in o.stst: c += self.stamp(2 + o.stst.index(s))
            rd = self.reads(ty, s + 1) if s < 15 else []
            other = []
            if s == SN:
                other += note(mk(f"v_mov_b32 v{NON}, 0\nbuffer_load_dwordx2 {V2(NON)}, v{NON}, {sDBG}, 0 offen sc1"), ("non", 0))
            if s == SG: other += note(self.gather_load(), ("gat", 0))
            if s == SL: other += note(self.stats_load(), ("sl", 0))
            if s < o.wtouch and o.tfirst: other += note(self.wtouch(s % 3), ("wt", 0))
            for _ in range(int(o.xsched[s])):
                other += note(mk(f"s_add_u32 s81, s81, 128\ns_and_b32 s81, s81, 1023\nbuffer_load_dword a{226 + (s & 1)}, v50, {sX}, s81 offen"), ("xt", 0))
            k = 0
            while dq and dq[0][0] <= s and k < (o.quota0 if s == 0 else o.quota):
                _, tag, atom = dq.pop(0); other += note(atom, tag); k += 1
            if s < o.wtouch and not o.tfirst: other += note(self.wtouch(s % 3), ("wt", 0))
            nb1 = 11 if ty == 0 else len(defB)
            blocks = {0: defA[:16], 1: defA[16:33], 7: defA[33:], 8: defB[:nb1], 9: defB[nb1:]}
            late = blocks.get(s, [])
            if s > 10:
                assert not dq or s <= 11
                other += note(self.b2_dma(s), ("b2", s))
            if not o.nopf and not (o.pfa and ty == 1):
                for _ in range(int(o.pfsched[s])):
                    if not pfq: break
                    g, k = pfq.pop(0); other += note(self.l2pf(g, k, pfn), ("pf", 0)); pfn += 1
            if o.ut0 and o.ut0 <= s < min(11, o.ut0 + (10 + o.utper - 1) // o.utper): other += note(self.utouch(ty, s - o.ut0, o.utper), ("ut", 0))
            if SC <= s < SP: other += stats[cuts[s - SC]: cuts[s - SC + 1]]
            if s == SP: other += note(self.publish(ty), ("pub", 0))
            if s == SS:
                ss = self.stats_stage(ty)
                if "r" in o.ko: ss = [x for x in ss if isinstance(x, list) or not x.op.startswith("ds_read")]
                if "e" in o.ko: ss = [x for x in ss if isinstance(x, list) or not x.op.startswith("ds_write")]
                if "g" in o.ko: ss = [[ss[0][-1]]] + ss[1:]
                ssd = [x for x in ss if not isinstance(x, list) and x.kind == "ds"]
                ssv = [x for x in ss if isinstance(x, list) or x.kind != "ds"]
                other = ssv + other; rd = rd + ssd
            if s == 10 and ty == 0: other += self.selectors()
            other += late
            if s == 11: other += self.traddr([2, 3, 4, 5, 6, 49])
            if s >= 13: rd = rd + flatten(self.passthru([2, 3, 4, 5, 6, 49], {13: range(0, 6), 14: range(6, 12), 15: range(12, 20)}[s]))
            if s in (14, 15): other += note(flatten(self.round2(self.R2_14 if s == 14 else self.R2_15)), ("b2", 20))
            if ty == 1 and s == 12 and o.bearly:
                for k, it in enumerate(self.round2(range(29, 36))[:o.bearly]):
                    it[-1] = I(it[-1].text.replace(A4(56 + 4 * k), V4(self.BE[k])))
                    other += note(it, ("b2", 21))
            mm = self.mfmas(ty, s)
            if o.nomfma: mm = [I("s_nop 0") for _ in mm]
            if o.noreads: rd = []
            no = len([i for i in flatten(other) if not i.is_label])
            room = 2 * (len(mm) - len(rd))
            ost = len(rd) if no <= room else max(0, len(rd) - (no - room))
            wv = weave(mm, rd, other, per_gap=2, oth_start=(ost if o.late else 0))
            if o.align == 3:
                for i in wv: i.padok = False
            c += wv
        c += self.stamp(5)
        if o.probe >= 0:
            g, k = self.TILES[o.probe]
            c += mk(f"""
s_waitcnt vmcnt(0)
v_readfirstlane_b32 s64, {vB2}
v_and_b32 v4, 15, {vL}
v_lshrrev_b32 v5, 4, {vL}
v_lshlrev_b32 v5, 5, v5
v_add_u32 v4, v4, v5
v_lshlrev_b32 v4, 10, v4
v_add_u32 v4, s64, v4
s_add_u32 s65, {sWB[g]}, {16*k*1024}
""") + self.stamp(2, True) + mk(f"buffer_load_dword v5, v4, {sWO if g == 0 else sWD}, s65 offen\ns_waitcnt vmcnt(0)") + self.stamp(3, True)
        c += mk("s_waitcnt lgkmcnt(0)")
        c += self.epi_a() if ty == 0 else self.epi_b()
        if ty == 0: c += mk("s_branch L_join")
        c = cap_vm(flatten(c), len(self.vm0), *((1000, 48) if "c" in o.ko else (60, 48)))
        slow = mk(f"""
L_slow_nonce{ty}:
s_mov_b32 {sCnt}, 0
L_sn{ty}:
v_mov_b32 v{NON}, 0
buffer_load_dwordx2 {V2(NON)}, v{NON}, {sDBG}, 0 offen sc1
s_waitcnt vmcnt(0)
v_readfirstlane_b32 {sNonL}, v{NON}
v_readfirstlane_b32 {sNonH}, v{NON+1}
s_add_u32 {sCnt}, {sCnt}, 1
s_cmp_gt_u32 {sCnt}, 20000
s_cbranch_scc1 L_back_nonce{ty}
s_cmp_eq_u32 {sNonL}, 0
s_cbranch_scc1 L_sn{ty}
s_branch L_back_nonce{ty}
L_slow_gat{ty}:
s_mov_b32 {sCnt}, 0
L_sg{ty}:
""") + self.gather_load() + mk("s_waitcnt vmcnt(0)") + self.gather_cmp() + mk(f"""
s_add_u32 {sCnt}, {sCnt}, 1
s_cmp_gt_u32 {sCnt}, 20000
s_cbranch_scc1 L_back_gat{ty}
s_cbranch_vccnz L_sg{ty}
s_branch L_back_gat{ty}
""")
        return c, slow

    def stg(self, u, blk): return 56 + 8 * (u - 29) + 4 * blk
    SL1 = [3, 4, 17, 18, 5, 6, 7, 8, 9, 13, 10, 11, 12, 0, 1, 2, 14, 15, 16]
    def slot(self, u): return self.SL1[u] if u < 19 else self.SL1[[0, 1, 4, 5, 6, 2, 3, 7, 8, 9][u - 19]] if u < 29 else self.SL1[10 + u - 29]
    def frag(self, i): return 112 + 8 * i if i < 14 else 8 * (i - 14)
    def round2(self, us):
        L = []
        for u in us:
            g, k = self.TILES[u]; srd = sWO if g == 0 else sWD
            for blk in range(2):
                t = self.b2off(g, k, blk).replace(sT0, "s61")
                if u < 29: L.append(mk(t + f"\ns_add_u32 m0, {sT3}, {self.slot(u)*8192 + blk*1024}\nbuffer_load_dwordx4 {vB2}, {srd}, s61 offen lds"))
                else: L.append(mk(t + f"\nbuffer_load_dwordx4 {A4(self.stg(u, blk))}, {vB2}, {srd}, s61 offen"))
        return L
    BE = [30, 34, 38, 88, 92]
    R2_14 = [19, 20, 24]; R2_15 = [25, 21, 22]; R2_E = [23, 26, 27, 28]
    TR = {0: [42, 58, 59, 16], 1: [88, 89, 90, 91]}
    def traddr(self, R):
        L = mk(f"""
s_and_b32 {sT1}, {sW}, 1
s_lshl_b32 {sT1}, {sT1}, 6
v_lshrrev_b32 v4, 5, {vL}
v_lshlrev_b32 v4, 10, v4
v_bfe_u32 v6, {vL}, 2, 2
v_lshl_add_u32 v4, v6, 7, v4
v_lshrrev_b32 v6, 1, v6
v_lshl_add_u32 v4, v6, 6, v4
v_bfe_u32 v6, {vL}, 4, 1
v_lshl_add_u32 v4, v6, 5, v4
v_and_b32 v6, 1, {vL}
v_lshl_add_u32 v4, v6, 4, v4
v_bfe_u32 v6, {vL}, 1, 1
v_lshl_add_u32 v4, v6, 3, v4
v_xor_b32 v4, {sT1}, v4
s_lshl_b32 {sT1}, {sT1}, 5
v_add_u32 v{R[0]}, {sT1}, v4
v_xor_b32 v{R[1]}, 64, v{R[0]}
""")
        for k in range(2, len(R)): L += mk(f"v_add_u32 v{R[k]}, {0x10000 * (k // 2)}, v{R[k & 1]}")
        return L
    def passthru(self, R, tiles):
        L = []
        for i in tiles:
            sg = 2 * self.slot(i // 2) + (i & 1)
            L += [[I(f"ds_read_b64_tr_b16 {A2(self.frag(i) + 4*cb + 2*e)}, v{R[2*(sg//16)+cb]} offset:{(sg%16)*4096+e*512}")] for cb in range(2) for e in range(2)]
        return L
    def sprinkle(self, code, items, start, stop):
        out = []; n = len(items); k = 0
        for idx, ins in enumerate(code):
            out.append(ins)
            while k < n and idx >= start and (idx - start + 1) * n >= (k + 1) * (stop - start):
                out += items[k]; k += 1
        for it in items[k:]: out += it
        return out
    NEG = "op_sel:[0,1,0] op_sel_hi:[1,1,1] neg_lo:[0,1,0] neg_hi:[0,1,0]"
    def gu(self, cs, g, u, stp, dst):
        NEG = self.NEG
        L = [f"v_pk_fma_f32 {V2(g+2*h)}, {V2(cs+2*h)}, {V2(stp)}, {V2(g+2*h)} {NEG}" for h in range(2)]
        L += [f"v_pk_fma_f32 {V2(u+2*h)}, {V2(cs+4+2*h)}, {V2(stp)}, {V2(u+2*h)} {NEG}" for h in range(2)]
        L += [f"v_pk_mul_f32 {V2(g+2*h)}, {V2(g+2*h)}, {V2(u+2*h)}" for h in range(2)]
        L += [f"v_cvt_pk_bf16_f32 v{dst+h}, v{g+2*h}, v{g+2*h+1}" for h in range(2)]
        return L
    def gu_unit(self, cs, g0, u0, g1, u1, st0, st1, vo, so):
        c = []
        for x, y in zip(self.gu(cs, g0, u0, st0, u0), self.gu(cs, g1, u1, st1, u0 + 2)): c += mk(x + "\n" + y)
        return c + self.unit_store(u0, vo, so)
    def unit_store(self, r, vo, so):
        if "n" in self.opt.ko: return []
        return mk(f"v_permlane16_swap_b32 v{r}, v{r+2}\nv_permlane16_swap_b32 v{r+1}, v{r+3}\nbuffer_store_dwordx4 {V4(r)}, v{vo}, {sWS}, {so} offen" + ("" if "p" in self.opt.ko else " sc1"))
    def csread(self, dst, k, n=4):
        return [I(f"v_accvgpr_read_b32 v{dst+r}, a{CSACC+4*k+r}") for r in range(n)]

    def epi_b(self):
        ST = self.ST; o = self.opt
        c = []
        for k in range(6): c += self.csread(8 + 4 * k if k < 2 else 36 + 4 * k, k)
        U = []
        for P in range(2):
            cs = 8 if P == 0 else 44
            for j in range(4):
                U.append(self.gu_unit(cs, bAcc(2*P, 2*j), bAcc(2*P+1, 2*j), bAcc(2*P, 2*j+1), bAcc(2*P+1, 2*j+1), ST+4*j, ST+4*j+2, VST+j, sU[P]))
        for j in range(2):
            U.append(self.gu_unit(52, bMix(0, 2*j), bMix(1, 2*j), bMix(0, 2*j+1), bMix(1, 2*j+1), ST+4*j, ST+4*j+2, VST+j, sU[2]))
        st = self.round2(range(29, 36))[o.bearly:] + self.round2(self.R2_E); nb = o.nstage_b
        assert o.bearly % 2 == 0 or not o.rot
        for u in U: c += u
        c += self.stamp(6)
        mv = [I(f"v_accvgpr_write_b32 a{56+4*k+r}, v{self.BE[k]+r}") for k in range(o.bearly) for r in range(4)]
        su = mk("s_waitcnt vmcnt(40)" if mv else "") + mv + self.flagaddr(sT2, 0) + self.polladdr() + self.p2setup()
        c += self.sprinkle(su, st[:nb], 0, len(su))
        c += mk(f"s_waitcnt vmcnt({nb + 2}) lgkmcnt(0)") + self.flagstore(sT2, 8) + self.stamp(7)
        c += mk(f"s_mov_b32 {sT2}, 0x8000000\ns_barrier")
        k = len(st) - o.pollahead
        for it in st[nb:k]: c += it
        c += self.poll_issue(0)
        for it in st[k:]: c += it
        c += mk(f"s_waitcnt vmcnt({o.pollahead})")
        return c

    SEL = 54
    def selectors(self):
        S = self.SEL
        L = mk(f"""
v_and_b32 v4, 15, {vL}
v_lshrrev_b32 v5, 4, {vL}
v_lshlrev_b32 v5, 2, v5
v_sub_u32 v4, v4, v5
v_and_b32 v5, 1, {vL}
v_sub_u32 v4, v4, v5
v_lshlrev_b32 v5, 4, v5
v_mov_b32 v6, 0x0c0c0c0c
""")
        for jj, pat in ((0, 0x0c0c0100), (1, 0x0c0c0302)):
            L += mk(f"v_mov_b32 v{S+jj}, {pat:#x}\nv_alignbit_b32 v{S+2+jj}, v{S+jj}, v{S+jj}, v5")
            L += mk(f"v_cmp_le_i32 vcc, {2*jj}, v4\nv_nop\nv_cndmask_b32 v{S+jj}, v{S+2+jj}, v6, vcc\nv_cndmask_b32 v{S+2+jj}, v6, v{S+2+jj}, vcc")
        return L

    def epi_a(self):
        o = self.opt
        ST = self.ST; NEG = self.NEG; SEL = self.SEL
        def inter(LL):
            out = []
            for step in range(max(len(l) for l in LL)):
                for l in LL:
                    if step < len(l): out += mk(l[step])
            return out
        c = []
        c += self.csread(8, 3) + self.csread(12, 4) + self.csread(44, 0)
        if not o.halo: c += self.csread(48, 1) + self.csread(52, 2, 1)
        vs = lambda i: 192 + 8 * (i % 4) if i < 8 else 78
        def vsread(i): return mk(f"ds_read_b128 {V4(vs(i))}, v43 offset:{64*i}\nds_read_b128 {V4(vs(i)+4)}, v43 offset:{576+64*i}")
        c += vsread(8)
        hst = []
        for j in range(4):
            gu = self.gu_unit(8, aG(2*j), aU(2*j), aG(2*j+1), aU(2*j+1), ST+2+4*j, ST+4+4*j, VST+j, sU[0])
            hst.append([gu.pop()])
            c += gu + vsread(j)
        c += self.stamp(6)
        c += mk("s_waitcnt lgkmcnt(0)\ns_barrier")
        if o.epistamps: c += self.stamp(2, True)
        head = c; c = []
        st = self.round2(self.R2_E) + self.round2(range(29, 36))
        if o.halo:
            c += [I(f"v_mov_b32_dpp v{48+r}, v{aK(0)+r} row_newbcast:0 row_mask:0xf bank_mask:0xf") for r in range(4)]
            c += mk(f"v_mov_b32 v52, v{aV(0)}\nv_mov_b32 v53, v{aV(0)}\ns_nop 0\nv_permlane16_swap_b32 v52, v53\nv_mov_b32 v53, v52\ns_nop 1\nv_permlane32_swap_b32 v52, v53")
        kp = lambda i: 8 + 2 * i if i < 4 else 18 + 2 * (i - 4) if i < 8 else 86
        def kfix(i):
            k = aK(i); stp = ST + 2 * i
            return [f"v_pk_fma_f32 {V2(k)}, {V2(48)}, {V2(stp)}, {V2(k)} {NEG}",
                    f"v_pk_fma_f32 {V2(k+2)}, {V2(50)}, {V2(stp)}, {V2(k+2)} {NEG}",
                    f"v_pk_mul_f32 {V2(k)}, {V2(k)}, {V2(stp)} op_sel_hi:[1,0]",
                    f"v_pk_mul_f32 {V2(k+2)}, {V2(k+2)}, {V2(stp)} op_sel_hi:[1,0]",
                    f"v_cvt_pk_bf16_f32 v{kp(i)}, v{k}, v{k+1}",
                    f"v_cvt_pk_bf16_f32 v{kp(i)+1}, v{k+2}, v{k+3}"]
        qp = lambda i: 120 + 2 * i
        def qfix(i):
            q = aQ(i); stp = ST + 2 * (i + 1)
            return [f"v_pk_fma_f32 {V2(q)}, {V2(44)}, {V2(stp)}, {V2(q)} {NEG}",
                    f"v_pk_fma_f32 {V2(q+2)}, {V2(46)}, {V2(stp)}, {V2(q+2)} {NEG}",
                    f"v_cvt_pk_bf16_f32 v{qp(i)}, v{q}, v{q+1}",
                    f"v_cvt_pk_bf16_f32 v{qp(i)+1}, v{q+2}, v{q+3}"]
        NEGV = "op_sel_hi:[1,0,1] neg_lo:[0,1,0] neg_hi:[0,1,0]"
        vp = lambda i: 136 + 2 * i
        def vfix(i):
            v = aV(i); s_ = vs(i)
            return [f"v_pk_fma_f32 {V2(v)}, {V2(s_+4)}, {V2(52)}, {V2(v)} {NEGV}",
                    f"v_pk_fma_f32 {V2(v+2)}, {V2(s_+6)}, {V2(52)}, {V2(v+2)} {NEGV}",
                    f"v_pk_mul_f32 {V2(v)}, {V2(v)}, {V2(s_)}",
                    f"v_pk_mul_f32 {V2(v+2)}, {V2(v+2)}, {V2(s_+2)}",
                    f"v_cvt_pk_bf16_f32 v{vp(i)}, v{v}, v{v+1}",
                    f"v_cvt_pk_bf16_f32 v{vp(i)+1}, v{v+2}, v{v+3}"]
        c += inter([kfix(i) for i in range(9)])
        c += mk("s_waitcnt lgkmcnt(0)")
        c += inter([vfix(i) for i in (0, 1, 2, 3, 8)])
        for i in range(4, 8): c += vsread(i)
        c += inter([qfix(i) for i in range(8)])
        c += mk("s_waitcnt lgkmcnt(0)")
        c += inter([vfix(i) for i in range(4, 8)])
        st = st[:o.hpos] + hst + st[o.hpos:]; n1 = o.nfirst_a
        head += self.sprinkle(c, st[:n1], 0, len(c))
        if o.epistamps: head += self.stamp(3, True) + self.stamp(4, True)
        c = []
        MK = "v_mfma_f32_16x16x16_bf16"
        sp = lambda i: 88 + 8 * i if i < 4 else 156 + 8 * (i - 4)
        sch = f2h(0.25 * 1.4426950408889634)
        def smf(i):
            bp = BIAS + 8 if i == 0 else BIAS
            return [f"{MK} {V4(sp(i))}, {V2(kp(i))}, {V2(qp(i))}, {V4(bp)}", f"{MK} {V4(sp(i)+4)}, {V2(kp(i+1))}, {V2(qp(i))}, {V4(BIAS+4)}"]
        def merge(i):
            s_ = sp(i)
            return [f"v_max3_f32 v{s_}, v{s_}, v{s_+1}, v{s_+4}", f"v_max3_f32 v{s_+2}, v{s_+2}, v{s_+3}, v{s_+6}",
                    f"v_max_f32 v{s_}, v{s_}, v{s_+5}", f"v_max_f32 v{s_+1}, v{s_+2}, v{s_+7}",
                    f"v_mul_f32 v{s_+4}, {sch}, v{ST+2*(i+1)}", f"v_max_f32 v{s_+2}, v{s_}, v{s_+1}"]
        for i in range(8):
            a = smf(i); b = merge(i - 3) if i >= 3 else []
            c += mk(a[0]) + mk("\n".join(b[:3])) + mk(a[1]) + mk("\n".join(b[3:]))
        c += inter([merge(i) for i in (5, 6, 7)])
        def cross(A, B, C, D):
            a, b, cc, d = (sp(x) + 2 for x in (A, B, C, D))
            return [f"v_permlane32_swap_b32 v{a}, v{b}", f"v_permlane32_swap_b32 v{cc}, v{d}",
                    f"v_max_f32 v{a}, v{a}, v{b}", f"v_max_f32 v{cc}, v{cc}, v{d}", "s_nop 0",
                    f"v_permlane16_swap_b32 v{a}, v{cc}", f"v_max_f32 v{a}, v{a}, v{cc}", f"v_mov_b32 v{cc}, v{a}", "s_nop 0",
                    f"v_permlane16_swap_b32 v{a}, v{cc}", f"v_mov_b32 v{b}, v{a}", f"v_mov_b32 v{d}, v{cc}",
                    f"v_permlane32_swap_b32 v{a}, v{b}", f"v_permlane32_swap_b32 v{cc}, v{d}"]
        c += [x for x in inter([cross(0, 1, 2, 3), cross(4, 5, 6, 7)]) if x.op != "s_nop"]
        O = lambda i: 192 + 4 * i
        oq = lambda i: 120 + 4 * (i // 2) + 2 * (i % 2)
        def expo(i):
            s_ = sp(i)
            return [f"v_mul_f32_e64 v{s_+5}, -v{s_+2}, v{s_+4}",
                    f"v_fma_f32 v{s_}, v{s_}, v{s_+4}, v{s_+5}", f"v_fma_f32 v{s_+1}, v{s_+1}, v{s_+4}, v{s_+5}",
                    f"v_exp_f32 v{s_}, v{s_}", f"v_exp_f32 v{s_+1}, v{s_+1}",
                    f"v_cvt_pk_bf16_f32 v{s_+2}, v{s_}, v{s_+1}"] + [f"v_perm_b32 v{s_+4+k}, 0, v{s_+2}, v{SEL+k}" for k in range(4)]
        def pv(i): return [f"{M16} {V4(sp(i))}, {A4(ONES)}, {V4(sp(i)+4)}, 0", f"{M16} {V4(O(i))}, {V4(vp(i))}, {V4(sp(i)+4)}, 0"]
        def fin(i):
            d = oq(i)
            return [f"v_rcp_f32 v{sp(i)}, v{sp(i)}"] + [f"v_mul_f32 v{O(i)+r}, v{O(i)+r}, v{sp(i)}" for r in range(4)] + \
                   [f"v_cvt_pk_bf16_f32 v{d}, v{O(i)}, v{O(i)+1}", f"v_cvt_pk_bf16_f32 v{d+1}, v{O(i)+2}, v{O(i)+3}"]
        E = [inter([expo(2 * p), expo(2 * p + 1)]) for p in range(4)]
        F = [inter([fin(2 * p), fin(2 * p + 1)]) for p in range(4)]
        P = [mk("\n".join(pv(2 * p) + pv(2 * p + 1))) for p in range(4)]
        def mix(valu, mf, first=2, every=3):
            out = []; mf = list(mf)
            for k, x in enumerate(valu):
                if mf and k >= first and (k - first) % every == 0: out.append(mf.pop(0))
                out.append(x)
            return out + mf
        def swp(r): return mk(f"v_permlane16_swap_b32 v{r}, v{r+2}\nv_permlane16_swap_b32 v{r+1}, v{r+3}")
        c += E[0] + mix(E[1], P[0]) + mix(E[2], P[1]) + F[0] + swp(120)
        c += mix(E[3], P[2]) + mix(F[1], P[3]) + swp(124) + F[2] + swp(128) + F[3] + swp(132)
        na = min(n1 + o.nstage_a, len(st) - o.pollahead)
        c = head + self.sprinkle(c, st[n1:na], 0, len(c))
        c += self.stamp(7)
        c += [I(f"buffer_store_dwordx4 {V4(120+4*j)}, v{VST+j}, {sWS}, {sU[1]} offen sc1") for j in range(4)] if o.ofirst else []
        su = self.polladdr() + self.p2setup() + self.flagaddr(sT2, 0 if o.hflag2 else 128)
        k = len(st) - o.pollahead
        vst = [I(f"v_mov_b32 v{8+j}, v{VST+j}") for j in range(4)]
        c += vst + self.sprinkle(su, st[na:k], 0, len(su))
        c += self.poll_issue(0)
        for it in st[k:]: c += it
        if not o.ofirst: c += [I(f"buffer_store_dwordx4 {V4(120+4*j)}, v{8+j}, {sWS}, {sU[1]} offen sc1") for j in range(4)]
        c += mk(f"s_waitcnt vmcnt({o.pollahead + (0 if o.ofirst else 4)})")
        if o.hflag2: c += self.flagstore(sT2, 12) + mk(f"s_add_u32 {sT2}, {sT2}, 128")
        return c

    POLL = 58
    def polladdr(self):
        return mk(f"""
s_lshr_b32 s81, {sR}, 1
s_lshl_b32 s81, s81, 1
s_and_b32 {sT1}, {sW}, 1
s_add_u32 s81, s81, {sT1}
s_lshl_b32 s81, s81, 9
s_add_u32 s81, s81, {WS_FLAG}
v_and_b32 v16, 15, {vL}
v_lshlrev_b32 v16, 3, v16
v_bfe_u32 v{self.POLL}, {vL}, 4, 1
v_lshl_add_u32 v16, v{self.POLL}, 8, v16
""")
    def poll_issue(self, off, reg=None):
        return mk(f"buffer_load_dwordx2 {V2(reg or self.POLL)}, v16, {sWS}, s81 offen offset:{off} sc1")
    PT = 18; PW = 24; PX = 27; PY = 29; VXO = 34; XR = 36
    def p2setup(self):
        PT, PW, PX, PY, VXO, XR = self.PT, self.PW, self.PX, self.PY, self.VXO, self.XR
        c = mk(f"""
s_lshl_b32 {sT0}, {sR}, 1
s_lshr_b32 {sT1}, {sW}, 1
s_add_u32 {sT0}, {sT0}, {sT1}
s_lshl_b32 s59, {sT0}, 5
s_mul_i32 {sT0}, {sT0}, {RBS}
s_and_b32 {sT1}, {sW}, 1
s_lshl_b32 {sB[0]}, {sT1}, 14
s_add_u32 {sB[0]}, {sB[0]}, {sT0}
s_add_u32 {sB[1]}, {sB[0]}, {32*1024}
s_lshl_b32 {sB[2]}, {sT1}, 15
s_add_u32 {sB[2]}, {sB[2]}, {sT0}
s_add_u32 {sB[2]}, {sB[2]}, {64*1024}
s_lshl_b32 {sB[3]}, {sT1}, 13
s_add_u32 {sB[3]}, {sB[3]}, {sT0}
s_add_u32 {sB[3]}, {sB[3]}, {128*1024}
v_lshlrev_b32 v2, 4, {vL}
v_lshrrev_b32 v4, 2, {vL}
v_add_u32 v6, s59, v4
v_and_b32 v5, 3, {vL}
v_lshlrev_b32 v3, 4, v5
v_lshl_add_u32 v6, v6, 10, v3
s_lshl_b32 {sT0}, {sC}, 7
s_lshl_b32 {sT1}, {sT1}, 6
s_add_u32 {sT0}, {sT0}, {sT1}
v_add_u32 v{VXO}, {sT0}, v6
v_add_u32 v{VXO+1}, 0x4000, v{VXO}
buffer_load_dwordx4 {V4(XR)}, v{VXO}, {sX}, 0 offen
buffer_load_dwordx4 {V4(XR+4)}, v{VXO+1}, {sX}, 0 offen
v_and_b32 v6, 31, {vL}
v_add_u32 v3, s59, v6
v_lshlrev_b32 v33, 4, v3
v_add_u32 v{PW}, {sT3}, v2
v_add_u32 v{PW+1}, 0x10000, v{PW}
v_add_u32 v{PW+2}, 0x20000, v{PW}
v_xor_b32 v{PX}, 0x800, v{PW}
v_lshrrev_b32 v3, 5, {vL}
v_bfe_u32 v{PY}, {vL}, 1, 2
v_xor_b32 v3, v3, v{PY}
v_lshlrev_b32 v3, 4, v3
v_lshl_add_u32 v3, v6, 6, v3
s_add_u32 {sT0}, {sT3}, {7*8192}
v_add_u32 v{PY}, {sT0}, v3
v_xor_b32 v{PY+1}, 32, v{PY}
v_bfe_u32 v3, {vL}, 3, 2
v_xor_b32 v3, v3, v5
v_lshlrev_b32 v3, 4, v3
v_lshl_add_u32 v3, v4, 6, v3
v_add_u32 v{PY+2}, {sT0}, v3
""")
        c += self.traddr([PT + k for k in range(6)])
        return c

    def phase2(self):
        o = self.opt
        BF = [112, 144]; SACC = 176; DACC = 64; ABUF = 144; DEPTH = o.depth
        PT, PW, PX, PY, VXO, XR, POLL = self.PT, self.PW, self.PX, self.PY, self.VXO, self.XR, self.POLL
        TILES = self.TILES
        c = mk("L_join:")
        c += self.stamp(8)
        if o.p1only:
            return c
        def bread(t):
            out = []
            if t < 5: return out
            for h in range(4):
                sg = 2 * self.slot((4 * t + h) // 2) + (h & 1)
                for cb in range(2):
                    for e in range(2):
                        out.append(I(f"ds_read_b64_tr_b16 {A2(BF[t&1]+8*h+4*cb+2*e)}, v{PT+2*(sg//16)+cb} offset:{(sg%16)*4096+e*512}"))
            return out
        c += mk(f"""
v_cmp_ne_u64 vcc, {sNon}, {V2(POLL)}
s_nop 0
s_and_b32 vcc_lo, vcc_lo, 0xff00ff00
s_cbranch_scc1 L_slow_e
L_go:
""")
        PR = [POLL, 62, 64, 66]
        pe = mk(f"L_slow_e:\ns_mov_b32 {sCnt}, 0")
        NP = o.npoll
        for k in range(NP - 1): pe += self.poll_issue(0, PR[k]) + mk("s_sleep 4")
        if NP == 1 and o.psleep: pe += mk(f"s_branch L_se\nL_se2:\ns_sleep {o.psleep}")
        pe += mk("L_se:")
        for k in range(NP):
            pe += self.poll_issue(0, PR[(k + NP - 1) % NP]) + mk(f"s_waitcnt vmcnt({NP - 1})\nv_cmp_ne_u64 vcc, {sNon}, {V2(PR[k])}\ns_nop 1\ns_and_b32 vcc_lo, vcc_lo, 0xff00ff00\ns_cbranch_scc0 L_se_done")
        pe += mk(f"""
s_add_u32 {sCnt}, {sCnt}, 1
s_cmp_gt_u32 {sCnt}, 10000
s_cbranch_scc0 {"L_se2" if NP == 1 and o.psleep else "L_se"}
L_se_done:
s_branch L_go
""")
        for z in range(2 if o.hflag2 else 1):
            pe += mk(f"L_slow_o{z}:\ns_mov_b32 {sCnt}, 0\nL_so{z}:") + self.poll_issue(128 * z if o.hflag2 else 128) + mk(f"""
s_add_u32 {sCnt}, {sCnt}, 1
s_waitcnt vmcnt(0)
v_cmp_ne_u64 vcc, {sNon}, {V2(POLL)}
s_and_b32 vcc_lo, vcc_lo, 0xff00ff
s_cbranch_scc0 L_back_o{z}
s_cmp_gt_u32 {sCnt}, 20000
s_cbranch_scc0 L_so{z}
s_branch L_back_o{z}
""")
        self.slow2 = pe
        c += self.stamp(9) + self.stamp(10)
        vm = []
        def aload(t):
            r, k = TILES[2 * t]; b = ABUF + 16 * (t % DEPTH)
            vm.extend([("a", t)] * 4)
            t0 = f"s_add_u32 {sT0}, {sB[r]}, {k*1024}" if not o.rot else f"s_add_u32 {sT0}, s63, {k*1024}\ns_and_b32 {sT0}, {sT0}, {self.RSIZE[r]*1024 - 1}\ns_add_u32 {sT0}, {sT0}, {sB[r]}"
            return mk(t0) + [I(f"buffer_load_dwordx4 {V4(b+4*h)}, v2, {sWS}, {sT0} offen offset:{1024*h} sc1") for h in range(4)]
        def young(tag): return len(vm) - 1 - max(k for k, t in enumerate(vm) if t == tag)
        for t in range(o.burst): c += aload(t)
        c += mk(f"s_mov_b32 {sT1}, {WS_STAT}\nbuffer_load_dword v{XR+8}, v33, {sWS}, {sT1} offen sc1"); vm.append(("rs", 0))
        c += mk(f"s_waitcnt vmcnt({len(vm)})")
        c += self.flagstore(sT2, 12); vm.append(("fl", 0))
        c += mk("s_barrier")
        c += bread(0)
        M32 = "v_mfma_f32_32x32x16_bf16"
        issued = o.burst; nwr = 0
        TP = 10 - o.burst - o.plead; TP2 = 14 - o.burst - o.plead
        xo = [24576, 25600, 32768, 33792]
        RX = ABUF + 16 * (12 % DEPTH)
        TM = ABUF + 16 * (13 % DEPTH)
        el = range(16)
        xun = []
        for k in range(8):
            xun += mk(f"v_lshlrev_b32 v{46+2*k}, 16, v{XR+k}\nv_and_b32 v{47+2*k}, 0xffff0000, v{XR+k}")
        pre_d = mk(f"v_mul_f32 v{XR+8}, v{XR+8}, v{XR+8}\nv_mul_f32 v{XR+9}, 0xbfb8aa3b, v{XR+8}\nv_mov_b32 v62, 1.0")
        def stage(k, e, pk):
            D, R, T = DACC + e, RX + e, TM + e
            if not pk:
                return [f"v_add_f32 v{D}, v{D}, v{R}", f"v_mul_f32 v{T}, v{XR+9}, v{D}", f"v_exp_f32 v{T}, v{T}", f"v_mul_f32 v{D}, v{XR+8}, v{D}",
                        f"v_add_f32 v{T}, 1.0, v{T}", f"v_rcp_f32 v{T}, v{T}", f"v_mul_f32 v{D}, v{D}, v{T}"][k]
            return [f"v_pk_add_f32 {V2(D)}, {V2(D)}, {V2(R)}", f"v_pk_mul_f32 {V2(T)}, {V2(D)}, {V2(XR+8)} op_sel:[0,1] op_sel_hi:[1,1]", None,
                    f"v_pk_mul_f32 {V2(D)}, {V2(D)}, {V2(XR+8)} op_sel_hi:[1,0]", f"v_pk_add_f32 {V2(T)}, {V2(T)}, {V2(62)} op_sel_hi:[1,0]", None,
                    f"v_pk_mul_f32 {V2(D)}, {V2(D)}, {V2(T)}"][k]
        todo = [(k, e) for k in range(7) for e in el]
        def take(n):
            out = [I(stage(k, e, False)) for k, e in todo[:n]]; del todo[:n]
            return out
        def rest_packed():
            out = []
            while todo:
                k, e = todo.pop(0)
                if e % 2 == 0 and todo and todo[0] == (k, e + 1) and stage(k, e, True): todo.pop(0); out.append(I(stage(k, e, True)))
                else: out.append(I(stage(k, e, False)))
            return out
        BARS = [9, 13, 15]
        for t in range(18):
            b = ABUF + 16 * (t % DEPTH)
            bar = t in BARS
            c += mk(f"s_waitcnt vmcnt({young(('a', t))}) lgkmcnt({0 if (bar or t == 16) else nwr})" + ("\ns_barrier" if bar else ""))
            if o.p2stamps and t in (0, 4, 9, 14, 16, 17): c += self.stamp({0: 2, 4: 3, 9: 4, 14: 5, 16: 6, 17: 7}[t], True)
            mm = []
            for h in range(4):
                for cb in range(2):
                    k = 16 * cb
                    d = f"v[{96+k}:{96+k+15}]" if t >= 14 else f"v[{DACC+k}:{DACC+k+15}]"
                    cc = "0" if (t in (0, 14) and h == 0) else d
                    mm.append(I(f"{M32} {d}, {A4((self.frag(4*t+h) if t < 5 else BF[t&1]+8*h)+4*cb)}, {V4(b+4*h)}, {cc}"))
            lds = bread(t + 1) if t < 17 else []
            wr = []
            if True:
                for k in {9: range(0, 4), 10: range(4, 8), 11: range(8, 11), 12: range(11, 14)}.get(t, []):
                    u = 29 + k // 2; blk = k & 1; sg = self.slot(u)
                    wr.append(I(f"ds_write_b128 v{PW+sg//8}, {A4(self.stg(u, blk))} offset:{(sg%8)*8192+blk*1024}"))
            if t == 14:
                wr += [I(f"ds_write_b128 v{PW}, {V4(DACC+16+4*p)} offset:{xo[p]}") for p in range(4)]
            if t == 15:
                lds = [I(f"ds_read_b128 {V4(RX+4*p)}, v{PX} offset:{xo[p]}") for p in range(4)] + lds
            if t == 14: wr += pre_d
            if t == 15: wr += xun
            if t >= 16: wr = take(o.dsh[t - 16])
            ld = []
            if False:
                ld += self.flagstore(sT2, 12); vm.append(("fl", 0))
            if t == TP: ld += self.poll_issue(0 if o.hflag2 else 128); vm.append(("po", 0))
            if t == TP2 and o.hflag2: ld += self.poll_issue(128, 60); vm.append(("po", 1))
            if issued < 18 and issued - DEPTH < t:
                if issued in ((10, 14) if o.hflag2 else (10,)):
                    z = int(issued == 14)
                    ld.append(mk(f"s_waitcnt vmcnt({young(('po', z))})\nv_cmp_ne_u64 vcc, {sNon}, {V2(60 if z else POLL)}\ns_nop 0\ns_and_b32 vcc_lo, vcc_lo, 0xff00ff\ns_cbranch_scc1 L_slow_o{z}\nL_back_o{z}:"))
                ld += aload(issued); issued += 1
            seq = []
            while ld or wr:
                if ld: seq.append(ld.pop(0))
                if wr: seq.append(wr.pop(0))
            if "m" in o.p2: mm = [I("s_nop 0") for _ in mm]
            if "w" in o.p2: seq = [x for x in seq if isinstance(x, list) or not x.op.startswith("ds_write")]
            wv = weave(mm, lds, seq, per_gap=(6 if t >= 16 else o.p2gap), lds_per_gap=o.p2lds, oth_start=(2 if t == 14 else 0))
            dsl = [x for x in wv if x.kind == "ds"]
            last = max([k for k, x in enumerate(dsl) if x.op.startswith("ds_read")], default=-1)
            nwr = len(dsl) - 1 - last
            if o.align == 3:
                for i in wv: i.padok = False
            c += wv
        c += self.stamp(11)
        dval = rest_packed()
        lead = min(8, len(dval))
        c += dval[:lead]; dval = dval[lead:]
        per = -(-len(dval) // 8)
        for p in range(4):
            c += mk(f"ds_write_b128 v{PW}, {V4(112+4*p)} offset:{16384+xo[p]}") + dval[:per]; dval = dval[per:]
        SV = 96
        c += mk("s_waitcnt lgkmcnt(0)\ns_barrier")
        c += [I(f"ds_read_b128 {V4(RX+4*p)}, v{PX} offset:{16384+xo[p]}") for p in range(4)]
        c += dval
        c += mk("s_waitcnt lgkmcnt(0)")
        c += [I(f"v_pk_add_f32 {V2(SV+2*e)}, {V2(SV+2*e)}, {V2(RX+2*e)}") for e in range(8)]
        c += [I(f"v_pk_mul_f32 {V2(SV+2*e)}, {V2(SV+2*e)}, {V2(DACC+2*e)}") for e in range(8)]
        c += [I(f"v_cvt_pk_bf16_f32 v{8+e}, v{SV+2*e}, v{SV+2*e+1}") for e in range(8)]
        c += mk(f"""
ds_write_b128 v{PY}, {V4(8)}
ds_write_b128 v{PY+1}, {V4(12)}
ds_read_b128 {V4(112)}, v{PY+2}
ds_read_b128 {V4(116)}, v{PY+2} offset:1024
""")
        for hh in range(2):
            c += mk(f"s_waitcnt lgkmcnt({1-hh})")
            for k in range(4):
                c += mk(f"v_lshlrev_b32 v{SV+8*hh+2*k}, 16, v{112+4*hh+k}\nv_and_b32 v{SV+8*hh+2*k+1}, 0xffff0000, v{112+4*hh+k}")
            for k in range(4): c += mk(f"v_pk_add_f32 {V2(SV+8*hh+2*k)}, {V2(SV+8*hh+2*k)}, {V2(46+8*hh+2*k)}")
            for k in range(4): c += mk(f"v_cvt_pk_bf16_f32 v{120+4*hh+k}, v{SV+8*hh+2*k}, v{SV+8*hh+2*k+1}")
            c += mk(f"buffer_store_dwordx4 {V4(120+4*hh)}, v{VXO+hh}, {sOUT}, 0 offen {o.outfl}")
        return c

    def finish(self):
        c = []
        if self.opt.amp:
            k, mult = self.opt.amp
            c += self.stamp(12)
            c += mk(f"""
s_waitcnt vmcnt(0)
s_cmp_lg_u32 s2, 77
s_cbranch_scc1 L_end
v_readlane_b32 s96, v7, {k}
s_sub_u32 s96, s96, s98
s_mul_i32 s96, s96, {mult}
s_min_u32 s96, s96, 100000
s_memrealtime s[100:101]
s_waitcnt lgkmcnt(0)
s_add_u32 s96, s96, s100
L_amp:
s_memrealtime s[100:101]
s_waitcnt lgkmcnt(0)
s_sub_u32 s97, s96, s100
s_cmp_gt_i32 s97, 0
s_cbranch_scc1 L_amp
L_end:
s_endpgm
""")
            return c
        if self.opt.stamps:
            c += self.stamp(12)
            c += mk(f"""
s_waitcnt vmcnt(0)
s_memrealtime s[96:97]
s_waitcnt lgkmcnt(0)
v_writelane_b32 v7, s96, 13
v_writelane_b32 v7, s98, 0
v_writelane_b32 v7, {sTyp}, 14
s_add_u32 s{bWS}, s66, {STAMP}
s_addc_u32 s{bWS+1}, s67, 0
s_mov_b32 s{bWS+2}, 0x100000
s_lshl_b32 {sT0}, s2, 2
s_add_u32 {sT0}, {sT0}, {sW}
s_lshl_b32 {sT0}, {sT0}, 7
v_lshlrev_b32 v4, 2, {vL}
s_mov_b64 exec, 0xffffffff
buffer_store_dword v7, v4, {sWS}, {sT0} offen
""")
        c += mk("L_end:\ns_endpgm")
        return c

    def build(self):
        pro = self.prologue()
        tys = [self.type_code(t) for t in range(2)]
        p2 = self.phase2()
        fin = self.finish()
        if self.opt.walk:
            def stubs(code, names, skip):
                code = flatten(code); n = len(code)
                pos = list(range(skip, n - 8, self.opt.walk))
                per = -(-len(pos) // len(names)); ins = {}
                for k, p in enumerate(pos):
                    q, r = divmod(k, per)
                    last = r == per - 1 or k == len(pos) - 1
                    ins[p] = mk(f"H_{names[q]}_{r}:\ns_cbranch_execz " + ("L_wback" if last else f"H_{names[q]}_{r+1}"))
                out = []
                for k, i in enumerate(code):
                    if k in ins: out += ins[k]
                    out.append(i)
                return out
            tys = [(stubs(tys[0][0], ["a0", "a1", "a2"], self.opt.wskip), tys[0][1]), (stubs(tys[1][0], ["b0", "b1", "b2"], self.opt.wskip), tys[1][1])]
            p2 = stubs(p2, ["p"], 1)
        tot = 0
        for t in range(2):
            tot += fix_hazards(pro + tys[t][0] + p2 + fin, self.opt.verbose)
        for t in range(2):
            fix_hazards(tys[t][1], self.opt.verbose)
            e, mx = check_waits(pro + tys[t][0] + p2 + fin, f"t{t}")
            print(f"type {t}: wait errors {e}, max vm outstanding {mx}", file=sys.stderr)
        print(f"inserted nop states: {tot}", file=sys.stderr)
        slow2 = getattr(self, "slow2", [])
        fix_hazards(slow2)
        code = pro + tys[0][0] + tys[1][0] + p2 + fin + tys[0][1] + tys[1][1] + slow2
        L = KN + "_kernel"
        if self.opt.align:
            wrap = lambda t: f'.amdgcn_target "amdgcn-amd-amdhsa--gfx950"\n.text\n.p2align 8\n{t}L_codeend:\n'
            print("align (promoted, padded):", align8(code, wrap, self.opt.align > 1), file=sys.stderr)
        hdr = open("cdna_kernels/" + KN + ".s.ref").read().split("; Override launch")[0] if self.opt.final else ""
        out = hdr + f"; @launch grid=(256,1,1) block=(256,1,1) lds={LDS_BYTES}\n"
        out += f'.amdgcn_target "amdgcn-amd-amdhsa--gfx950"\n.text\n.globl {L}\n.p2align 8\n.type {L},@function\n{L}:\n'
        out += text(code)
        out += "s_endpgm\n.p2align 6\nL_codeend:\n"
        out += f""".section .rodata,"a"
.p2align 6
.amdhsa_kernel {L}
  .amdhsa_next_free_vgpr 512
  .amdhsa_next_free_sgpr 102
  .amdhsa_accum_offset 256
  .amdhsa_group_segment_fixed_size 0
  .amdhsa_kernarg_size 80
  .amdhsa_user_sgpr_count 2
  .amdhsa_user_sgpr_kernarg_segment_ptr 1
  .amdhsa_system_sgpr_workgroup_id_x 1
  .amdhsa_float_denorm_mode_32 3
.end_amdhsa_kernel
"""
        return out

if __name__ == "__main__":
    ap = argparse.ArgumentParser()
    ap.add_argument("-o", default="k.s")
    for f in ("stamps", "p1only", "verbose", "final", "nomfma", "noreads", "nocs", "nopf", "epistamps", "prostamps", "p2stamps"): ap.add_argument("--" + f, action="store_true")
    ap.add_argument("--p2", default="")
    ap.add_argument("--p2gap", type=int, default=4)
    ap.add_argument("--burst", type=int, default=3)
    ap.add_argument("--ramp", type=int, default=2)
    ap.add_argument("--nstage_b", type=int, default=0)
    ap.add_argument("--depth", type=int, default=7)
    ap.add_argument("--pf0", type=int, default=2)
    ap.add_argument("--tlb", type=int, default=0)
    ap.add_argument("--kgroups", type=int, default=4)
    ap.add_argument("--quota", type=int, default=10)
    ap.add_argument("--ko", default="")
    ap.add_argument("--sg", type=int, default=10)
    ap.add_argument("--ss", type=int, default=12)
    ap.add_argument("--sc", type=int, default=2)
    ap.add_argument("--cuts", type=lambda x: [int(v) for v in x.split(",")], default=[36, 56, 86])
    ap.add_argument("--xsched", default="0000000000000000")
    ap.add_argument("--xfirst", type=int, default=3)
    ap.add_argument("--plead", type=int, default=3)
    ap.add_argument("--pfa", type=int, default=0)
    ap.add_argument("--bearly", type=int, default=0)
    ap.add_argument("--stst", type=lambda x: [int(v) for v in x.split(",")], default=[1, 5, 11])
    ap.add_argument("--ntxt", type=int, default=0)
    ap.add_argument("--xt0", type=int, default=0)
    ap.add_argument("--hflag2", type=int, default=0)
    ap.add_argument("--psleep", type=int, default=0)
    ap.add_argument("--dsh", type=lambda x: [int(v) for v in x.split(",")], default=[28, 40])
    ap.add_argument("--latefrom", type=float, default=0.1)
    ap.add_argument("--pord", default="tt1X")
    ap.add_argument("--walk", type=int, default=0)
    ap.add_argument("--wskip", type=int, default=120)
    ap.add_argument("--hearly", type=int, default=1)
    ap.add_argument("--hpos", type=int, default=0)
    ap.add_argument("--nfirst_a", type=int, default=10)
    ap.add_argument("--bsplit", type=int, default=4)
    ap.add_argument("--bpt", type=int, default=64)
    ap.add_argument("--nstage_a", type=int, default=12)
    ap.add_argument("--pollahead", type=int, default=4)
    ap.add_argument("--ofirst", type=int, default=0)
    ap.add_argument("--olate", type=int, default=0)
    ap.add_argument("--npoll", type=int, default=2)
    ap.add_argument("--rotc", type=int, default=0)
    ap.add_argument("--ut0", type=int, default=0)
    ap.add_argument("--utper", type=int, default=2)
    ap.add_argument("--utfl", default="")
    ap.add_argument("--rot", type=int, default=0)
    ap.add_argument("--probe", type=int, default=-1)
    ap.add_argument("--halo", type=int, default=1)
    ap.add_argument("--outfl", default="sc1")
    ap.add_argument("--protouch", type=int, default=2)
    ap.add_argument("--tfirst", type=int, default=1)
    ap.add_argument("--ntx", type=int, default=0)
    ap.add_argument("--ntw", type=int, default=0)
    ap.add_argument("--ntt", type=int, default=0)
    ap.add_argument("--late", type=int, default=0)
    ap.add_argument("--pford", default="h2,h3,h1,o")
    ap.add_argument("--hflag", type=float, default=0.5)
    ap.add_argument("--csplit", type=int, default=1)
    ap.add_argument("--quota0", type=int, default=11)
    ap.add_argument("--wtouch", type=int, default=2)
    ap.add_argument("--wfirst", type=int, default=1)
    ap.add_argument("--statlag", type=int, default=3)
    ap.add_argument("--rotmask", type=int, default=6)
    ap.add_argument("--pfsched", default="0011111111100000")
    ap.add_argument("--statstep", type=int, default=0)
    ap.add_argument("--pfrot", type=int, default=7)
    ap.add_argument("--amp", type=lambda x: tuple(int(v) for v in x.split(",")), default=None)
    ap.add_argument("--wsched", default="033333333333300000")
    ap.add_argument("--bars", default="1,3,5,7,9,11,13,15")
    ap.add_argument("--align", type=int, default=0)
    ap.add_argument("--proextra", type=int, default=1)
    ap.add_argument("--dshadow", type=int, default=60)
    ap.add_argument("--pollpos", type=int, default=20)
    ap.add_argument("--stsched", type=lambda x: [int(ch) for ch in x], default=[int(ch) for ch in "0000000000033334"])
    ap.add_argument("--p2lds", type=int, default=4)
    ap.add_argument("--pfslice", type=int, default=4096)
    opt = ap.parse_args()
    import subprocess, re, os
    for _ in range(2):
        open(opt.o, "w").write(G(opt).build())
        subprocess.check_call(["clang", "-x", "assembler", "-target", "amdgcn-amd-amdhsa", "-mcpu=gfx950", "-c", opt.o, "-o", opt.o + ".o"])
        t = subprocess.check_output(["llvm-objdump", "-t", opt.o + ".o"], text=True)
        sym = {m.group(2): int(m.group(1), 16) for m in re.finditer(r"^([0-9a-f]{16}) .* (L_\w+)$", t, re.M)}
        n = sym["L_codeend"] - sym["L_pc"]
        opt.pfslice = (n - 12288) // 7 // 16 * 16
        assert 0 < opt.pfslice <= 8192
        opt.verbose = False
    os.remove(opt.o + ".o")
    print("code bytes", sym["L_codeend"], "pfslice", opt.pfslice, {k: v for k, v in sym.items() if k in ("L_pc", "L_tb", "L_join", "L_go", "L_end")}, file=sys.stderr)
```

```python
import sys, argparse, struct
from fw import *
KN = "recurrent_scan__sliding_local_dilated__glu_gated_bilinear__prompt"

WSLOT = 20480
XBASE = 5 * WSLOT
XSLOT = 18432
MISC = XBASE + 3 * XSLOT
STATL = MISC
LDS_BYTES = 163840
RBS = 144 * 1024
WS_STAT = 0x900000
WS_FLAG = 0x910000
WS_SIZE = 0x920000
STAMP = 200 << 20
def S4(b): return f"s[{b}:{b+3}]"
bX, bWO, bWD, bOUT, bWS, bDBG = 4, 8, 12, 16, 20, 24
sX, sWO, sWD, sOUT, sWS, sDBG = map(S4, (bX, bWO, bWD, bOUT, bWS, bDBG))
bS = [28, 32, 36, 40, 44]; sS = [S4(b) for b in bS]
sW, sM, sN, sR, sC = "s68", "s69", "s70", "s71", "s72"
sKa, sKb, sIncA = "s73", "s74", "s75"
sWoff, sXoff, sHoff = "s76", "s77", "s78"
sIdx, sTyp = "s79", "s80"
sT0, sT1, sT2, sT3 = "s82", "s83", "s84", "s85"
sNon = "s[86:87]"; sNonL, sNonH = "s86", "s87"
sU = ["s88", "s89", "s90"]
sEx = "s[94:95]"
sB = ["s48", "s49", "s50", "s51"]
sWB = ["s52", "s53", "s56", "s57"]
sCnt = "s58"
sXc = "s93"; sXk = "s92"
vL = "v1"
vX = ["v8", "v9"]; vH = ["v10", "v11"]; vWg = ["v12", "v13", "v14", "v15", "v16"]; vB2 = "v17"
RA = 18
RT = 22
VST = 26
BIAS = 30
GAT = 76
NON = 56
GA = 58
SX = 60
V4 = lambda r: f"v[{r}:{r+3}]"
V2 = lambda r: f"v[{r}:{r+1}]"
A4 = lambda r: f"a[{r}:{r+3}]"
A2 = lambda r: f"a[{r}:{r+1}]"
CSACC = 228
ONES = 252
def f2h(x): return "0x%08x" % struct.unpack("<I", struct.pack("<f", x))[0]
aQ = lambda i: 88 + 4 * i
aK = lambda i: 120 + 4 * i
aV = lambda i: 156 + 4 * i
aG = lambda i: 192 + 4 * i
aU = lambda i: 224 + 4 * i
bAcc = lambda g, i: 96 + 32 * g + 4 * i
bMix = lambda u, i: 224 + 16 * u + 4 * i
NA = {0: 9, 1: 8}; NB = {0: 5, 1: 6}
fA = lambda st, i: 56 * st + 4 * i
def fB(ty, st, j): return 56 * st + 4 * NA[ty] + 4 * j
M16 = "v_mfma_f32_16x16x32_bf16"

class G:
    def __init__(self, opt): self.opt = opt; self.young = {}
    def pstamp(self, k):
        return self.stamp(k, True) if self.opt.prostamps else []
    def stamp(self, k, force=False):
        if not self.opt.stamps: return []
        if (self.opt.prostamps or self.opt.p2stamps) and 2 <= k <= 7 and not force: return []
        if self.opt.probe >= 0 and k in (2, 3) and not force: return []
        if self.opt.epistamps and k in (2, 3, 4) and not force: return []
        return mk(f"s_memrealtime s[96:97]\ns_memtime s[100:101]\ns_waitcnt lgkmcnt(0)\nv_writelane_b32 v7, s96, {k}\nv_writelane_b32 v7, s100, {16+k}")

    def scc_live(self, flat, k):
        for ins in flat[k:]:
            if ins.op.startswith(("s_cselect", "s_cbranch_scc", "s_addc")): return True
            if ins.kind == "salu" and not ins.op.startswith(("s_mov", "s_waitcnt", "s_nop", "s_movk")): return False
        return False
    def mksrd(self, b, p, size):
        return mk(f"s_mov_b32 s{b}, s{p}\ns_mov_b32 s{b+1}, s{p+1}\ns_mov_b32 s{b+2}, {size}\ns_mov_b32 s{b+3}, 0x20000")

    def dma_x(self, p, h, halo=True):
        base = XBASE + (p % 3) * XSLOT
        L = [mk(f"s_add_u32 {sXk}, {sXc}, {h*16384}\ns_add_u32 m0, {sXoff}, {base + 2048*h}\nbuffer_load_dwordx4 {vX[0]}, {sX}, {sXk} offen lds"),
             mk(f"s_add_u32 m0, {sXoff}, {base + 2048*h + 1024}\nbuffer_load_dwordx4 {vX[1]}, {sX}, {sXk} offen lds")]
        if halo:
            ho = "s3" if (self.opt.halo and h == 0) else sHoff
            L.append(mk(f"s_add_u32 m0, {ho}, {base + 256*h}\nbuffer_load_dword {vH[h]}, {sX}, {sXc} offen lds"))
        if h == 1: L[-1] += mk(f"s_add_u32 {sXc}, {sXc}, 128\ns_and_b32 {sXc}, {sXc}, 1023")
        if p < self.opt.ntx:
            for a in L:
                for i in a:
                    if i.kind == "vmem": i.text = i.text.replace(" lds", " nt lds")
        if "x" in self.opt.ko and p > 0:
            for a in L:
                for i in a:
                    if i.kind == "vmem": i.text = i.text.replace(sXk, "0").replace(sXc, "0")
        return L
    def dma_w(self, s):
        base = (s % 5) * WSLOT
        L = []
        for g in range(5):
            L.append(mk(f"s_add_u32 m0, {sWoff}, {base + 4096*g}\nbuffer_load_dwordx4 {vWg[g]}, {sS[g]}, {sKa if g < 3 else sKb} offen{' nt' if s < self.opt.ntw else ''} lds"))
        if "w" not in self.opt.ko: L[-1] += mk(f"s_add_u32 {sKa}, {sKa}, {sIncA}\ns_add_u32 {sKb}, {sKb}, {32*3584}")
        G = self.opt.kgroups
        if G > 1 and (s + 1) % (16 // G) == 0 and s < 15:
            L[-1].append(mk(f"s_cmp_eq_u32 {sKb}, {512*3584}\ns_cselect_b32 {sKa}, 0, {sKa}\ns_cselect_b32 {sKb}, 0, {sKb}"))
        return L
    def dma_queue(self, ty):
        Q = []
        for s in range(16):
            if s % 2 == 0 and ("x", s // 2) not in self.vm0:
                p = s // 2
                for h in range(2):
                    for a in self.dma_x(p, h, halo=(ty == 0)): Q.append((max(0, 2 * p - 5), ("x", p), a))
            if ("w", s) not in self.vm0:
                for a in self.dma_w(s): Q.append((max(0, s - 5), ("w", s), a))
        return Q

    def wtouch(self, n):
        return mk(f"""
v_add_u32 v44, 2, v44
v_and_b32 v44, 15, v44
v_lshl_add_u32 v48, v44, 5, v45
v_mad_u32_u24 v49, v48, s86, v46
v_mad_u32_u24 v48, v48, s87, v47
buffer_load_dword a{220 + 2 * n}, v49, s[88:91], s54 offen{' nt' if self.opt.ntt else ''}
buffer_load_dword a{221 + 2 * n}, v48, {sS[4]}, s55 offen{' nt' if self.opt.ntt else ''}
""")
    def prologue(self):
        o = self.opt
        vm = self.vm0 = []
        def note(L, tag):
            L = flatten(L)
            for i in L:
                if i.kind == "vmem": vm.append(tag)
            return L
        c = mk(f"""
s_load_dwordx16 s[48:63], s[0:1], 0
s_load_dwordx4 s[64:67], s[0:1], 64
s_cmp_ge_u32 s2, 256
s_cbranch_scc1 L_end
""")
        if o.stamps: c += mk("v_mov_b32 v7, 0\ns_memrealtime s[98:99]")
        c += note(mk(f"""
s_getpc_b64 s[88:89]
L_pc:
v_lshlrev_b32 v2, 4, v0
s_lshr_b32 {sT1}, s2, 3
s_and_b32 {sT0}, {sT1}, 7
s_mul_i32 {sT0}, {sT0}, {o.pfslice}
global_load_dwordx4 a[112:115], v2, s[88:89]
v_add_u32 v3, 0x1000, v2
s_add_u32 s88, s88, {sT0}
s_addc_u32 s89, s89, 0
global_load_dwordx4 a[116:119], v3, s[88:89]
v_add_u32 v3, 0x1000, v3
global_load_dwordx4 a[120:123], v3, s[88:89]
"""), ("pre", 0))
        c += mk(f"""
v_lshrrev_b32 v2, 6, v0
v_and_b32 {vL}, 63, v0
s_and_b32 {sT0}, s2, 7
v_readfirstlane_b32 {sW}, v2
s_lshr_b32 {sM}, {sT0}, 2
s_lshl_b32 {sM}, {sM}, 3
s_lshr_b32 {sT2}, {sT1}, 2
s_add_u32 {sM}, {sM}, {sT2}
v_lshrrev_b32 v5, 3, {vL}
v_lshrrev_b32 v3, 4, {vL}
v_xor_b32 v4, v3, {vL}
v_and_b32 v4, 7, v4
v_lshlrev_b32 v4, 4, v4
s_lshl_b32 {sT3}, {sM}, 7
s_lshl_b32 {sT2}, {sW}, 5
s_add_u32 {sT2}, {sT2}, {sT3}
v_add_u32 v6, {sT2}, v5
v_lshl_add_u32 {vX[0]}, v6, 10, v4
v_xor_b32 {vX[1]}, 64, {vX[0]}
v_add_u32 {vX[1]}, 0x2000, {vX[1]}
s_lshl_b32 {sT2}, {sW}, 2
s_add_u32 {sT2}, {sT2}, {sT3}
s_sub_u32 {sT2}, {sT2}, 16
v_lshrrev_b32 v6, 5, {vL}
v_add_u32 v6, {sT2}, v6
s_lshl_b32 {sXoff}, {sW}, 5
v_lshlrev_b32 v4, 2, {vL}
v_and_b32 v4, 0x7f, v4
v_xor_b32 v4, {sXoff}, v4
v_max_i32 v2, 0, v6
v_lshl_add_u32 {vH[0]}, v2, 10, v4
v_add_u32 v6, 2, v6
v_max_i32 v2, 0, v6
v_xor_b32 v4, 16, v4
v_lshl_add_u32 {vH[1]}, v2, 10, v4
s_lshl_b32 {sXoff}, {sW}, 12
s_add_u32 {sXoff}, {sXoff}, 2048
s_lshl_b32 {sHoff}, {sW}, 9
s_cmp_eq_u32 {sW}, 0
s_cselect_b32 s3, 0x10000, {sHoff}
s_cselect_b32 {sXc}, {0x80000000 if o.halo else 0}, 0
v_or_b32 {vH[0]}, {sXc}, {vH[0]}
s_lshl_b32 {sXc}, s2, 1
s_and_b32 {sXk}, s2, 4
s_add_u32 {sXc}, {sXc}, {sXk}
s_and_b32 {sXc}, {sXc}, {o.rotmask}
s_lshl_b32 s81, {sXc}, 1
s_lshl_b32 {sXc}, {sXc}, 7
s_and_b32 {sT2}, {sT1}, 3
s_lshl_b32 {sT2}, {sT2}, 2
s_add_u32 {sT2}, {sT2}, {sW}
s_mul_i32 {sT2}, {sT2}, 9
s_add_u32 {sT2}, {sT2}, {sT3}
s_sub_u32 {sT2}, {sT2}, 16
v_add_u32 v50, {sT2}, {vL}
v_max_i32 v50, 0, v50
v_cmp_le_u32 vcc, 9, {vL}
v_lshlrev_b32 v50, 10, v50
v_mov_b32 v6, 0x80000000
v_cndmask_b32 v50, v50, v6, vcc
s_mov_b32 s{bX+2}, {2048*1024}
s_mov_b32 s{bX+3}, 0x20000
s_waitcnt lgkmcnt(0)
s_mov_b32 s{bX}, s48
s_mov_b32 s{bX+1}, s49
""")
        c += self.pstamp(2)
        if o.xt0:
            c += note(mk(f"buffer_load_dword a227, v50, {sX}, {sXc} offen{' nt' if o.ntxt else ''}"), ("xt", 0))
            if o.xt0 > 1: c += note(mk(f"s_add_u32 {sXk}, {sXc}, 128\ns_and_b32 {sXk}, {sXk}, 1023\nbuffer_load_dword a226, v50, {sX}, {sXk} offen{' nt' if o.ntxt else ''}"), ("xt", 0))
        c += note(self.dma_x(0, 0) + self.dma_x(0, 1), ("x", 0))
        c += self.pstamp(3)
        c += mk(f"""
s_lshl_b32 {sWoff}, {sW}, 10
s_and_b32 {sN}, {sT0}, 3
s_lshl_b32 {sIdx}, {sN}, 1
s_lshl_b32 {sN}, {sN}, 2
s_and_b32 {sT2}, {sT1}, 3
s_add_u32 {sN}, {sN}, {sT2}
s_lshr_b32 {sTyp}, {sT2}, 1
s_and_b32 {sT2}, {sT2}, 1
s_add_u32 {sIdx}, {sIdx}, {sT2}
s_and_b32 {sT2}, {sW}, 1
s_lshl_b32 {sT3}, {sT2}, 2
v_and_b32 v4, 2, v5
v_or_b32 v4, {sT3}, v4
v_xor_b32 v4, v4, {vL}
v_and_b32 v4, 7, v4
v_lshlrev_b32 v4, 4, v4
s_lshl_b32 {sT3}, {sW}, 3
v_add_u32 v6, {sT3}, v5
s_movk_i32 s87, 3584
s_movk_i32 s86, 3072
s_lshl_b32 s95, {sIdx}, 7
s_lshl_b32 {sT3}, {sIdx}, 8
s_add_u32 {sT3}, {sT3}, 1024
s_add_u32 s49, s95, 1024
s_add_u32 s94, s95, 2048
s_add_u32 s54, {sT3}, 128
s_lshl_b32 s55, {sIdx}, 6
s_add_u32 s55, s55, 3072
s_cmp_eq_u32 {sTyp}, 1
s_cselect_b32 s86, s87, s86
s_cselect_b32 s48, {sT3}, s95
s_cselect_b32 s49, {sT3}, s49
s_cselect_b32 s94, s54, s94
s_cselect_b32 s55, s55, s95
s_cselect_b32 s95, s54, s95
s_cselect_b64 vcc, -1, 0
s_cselect_b32 s28, s56, s50
s_cselect_b32 s29, s57, s51
s_cselect_b32 s32, s58, s50
s_cselect_b32 s33, s59, s51
s_cselect_b32 s40, s58, s56
s_cselect_b32 s41, s59, s57
v_mad_u32_u24 v2, v6, s86, v4
v_mad_u32_u24 v3, v6, s87, v4
s_lshl_b32 s30, s86, 9
s_lshl_b32 {sIncA}, s86, 5
v_add_u32 {vWg[0]}, s48, v2
v_add_u32 {vWg[1]}, s49, v2
v_add_u32 {vWg[2]}, s94, v2
v_add_u32 {vWg[3]}, s95, v3
s_mov_b32 s31, 0x20000
s_mov_b32 s34, s30
s_mov_b32 s35, 0x20000
s_mov_b32 s36, s28
s_mov_b32 s37, s29
s_mov_b32 s38, s30
s_mov_b32 s39, 0x20000
s_mov_b32 s42, {512*3584}
s_mov_b32 s43, 0x20000
v_lshrrev_b32 v4, 4, {vL}
v_and_b32 v4, 2, v4
v_xor_b32 v4, v4, {vL}
v_and_b32 v4, 3, v4
v_lshlrev_b32 v4, 4, v4
s_lshl_b32 {sT2}, {sT2}, 4
v_lshrrev_b32 v6, 2, {vL}
v_add_u32 v6, {sT2}, v6
v_mad_u32_u24 v4, v6, s87, v4
s_lshl_b32 {sT2}, {sTyp}, 1
s_cmp_lt_u32 {sW}, {sT2}
s_cselect_b32 s44, s56, s58
s_cselect_b32 s45, s57, s59
s_mov_b32 s46, s42
s_mov_b32 s47, 0x20000
v_cndmask_b32 v4, v3, v4, vcc
s_mul_i32 {sKa}, s81, {sIncA}
s_mul_i32 {sKb}, s81, {32*3584}
v_add_u32 {vWg[4]}, s55, v4
""")
        c += note(self.dma_w(0), ("w", 0))
        c += self.pstamp(4)
        c += mk(f"""
v_lshrrev_b32 v2, 4, {vL}
v_bfe_u32 v3, {vL}, 2, 2
v_and_b32 v4, 3, {vL}
v_and_b32 v6, 15, {vL}
v_lshrrev_b32 v5, 1, v6
v_xor_b32 v5, v5, v2
v_lshlrev_b32 v5, 4, v5
v_lshl_add_u32 v5, v6, 7, v5
v_add_u32 v5, {XBASE}, v5
s_lshr_b32 {sT2}, {sW}, 1
s_and_b32 {sT2}, {sT2}, {sTyp}
s_lshl_b32 {sT2}, {sT2}, 13
v_add_u32 v{RA}, {sT2}, v5
v_xor_b32 v{RA+1}, 64, v{RA}
v_subrev_u32 v{RA+2}, {sT2}, v5
v_xor_b32 v{RA+3}, 64, v{RA+2}
v_and_b32 v6, 1, v2
v_lshrrev_b32 v5, 1, v3
v_lshl_or_b32 v5, v6, 1, v5
v_xor_b32 v5, {sW}, v5
v_lshlrev_b32 v5, 5, v5
v_lshl_add_u32 v5, v2, 10, v5
v_lshl_add_u32 v5, v3, 7, v5
v_lshl_add_u32 v{RT}, v4, 3, v5
v_add_u32 v{RT+1}, {3*WSLOT}, v{RT}
v_lshrrev_b32 v5, 1, v2
v_lshlrev_b32 v5, 10, v5
v_lshl_add_u32 v5, v6, 9, v5
v_lshl_add_u32 v5, v3, 6, v5
v_lshl_add_u32 v5, v4, 3, v5
v_xor_b32 v6, {sW}, v6
v_and_b32 v6, 1, v6
v_lshl_add_u32 v{RT+2}, v6, 5, v5
v_add_u32 v{RT+3}, {3*WSLOT}, v{RT+2}
v_mov_b32 v5, 0x3f803f80
v_lshlrev_b32 v6, 2, {vL}
v_add_u32 v6, {XBASE}, v6
{"" if not o.halo else f"ds_write_b32 v6, v5{chr(10)}ds_write_b32 v6, v5 offset:{XSLOT}{chr(10)}ds_write_b32 v6, v5 offset:{2*XSLOT}"}
s_cmp_eq_u32 {sW}, 1
s_cselect_b32 s54, s49, s48
s_cselect_b32 s88, s32, s28
s_cselect_b32 s89, s33, s29
s_cmp_eq_u32 {sW}, 2
s_cselect_b32 s54, s94, s54
s_cmp_eq_u32 {sW}, 3
s_cselect_b32 s54, s95, s54
s_cselect_b32 s88, s40, s88
s_cselect_b32 s89, s41, s89
s_cselect_b32 s90, s42, s30
s_cselect_b32 s86, s87, s86
s_mov_b32 s91, 0x20000
v_accvgpr_write_b32 a{ONES}, v5
v_accvgpr_write_b32 a{ONES+1}, v5
v_accvgpr_write_b32 a{ONES+2}, v5
v_accvgpr_write_b32 a{ONES+3}, v5
s_add_u32 s81, s81, {o.wfirst - 2}
v_lshrrev_b32 v5, 2, {vL}
v_add_u32 v44, s81, v5
s_and_b32 {sT2}, {sM}, 7
s_lshl_b32 {sT2}, {sT2}, 2
v_add_u32 v45, {sT2}, v4
v_lshrrev_b32 v46, 3, {vL}
v_lshlrev_b32 v46, 28, v46
s_lshl_b32 {sT2}, {sTyp}, 1
s_sub_u32 {sT2}, 3, {sT2}
v_xor_b32 v5, {sW}, {vL}
v_and_b32 v5, {sT2}, v5
v_lshl_or_b32 v47, v5, 26, v46
""")
        c += self.mksrd(bDBG, 64, 256)
        c += mk(f"""
s_or_b32 {sT2}, s2, {sW}
s_cmp_lg_u32 {sT2}, 0
s_cbranch_scc1 L_nononce
s_memrealtime s[94:95]
s_waitcnt lgkmcnt(0)
s_or_b32 s94, s94, 1
v_mov_b32 v2, s94
v_mov_b32 v3, s95
v_mov_b32 v4, 0
s_mov_b64 exec, 1
buffer_store_dwordx2 v[2:3], v4, {sDBG}, 0 offen sc1
s_mov_b64 exec, -1
L_nononce:
""")
        c += self.pstamp(7)
        xt = mk(f"buffer_load_dword a226, v50, {sX}, {sXc} offen{' nt' if o.ntxt else ''}")
        for ch in o.pord:
            if ch == "t": c += note(self.wtouch(1 + vm.count(("wt", 0)) // 2 % 2), ("wt", 0))
            if ch == "x": c += note(xt, ("xt", 0))
            if ch == "1": c += note(self.dma_w(1), ("w", 1))
            if ch == "X": c += note(self.dma_x(1, 0) + self.dma_x(1, 1), ("x", 1))
            if ch == "2": c += note(self.dma_w(2), ("w", 2))
        c += self.pstamp(5)
        if o.walk:
            c += mk(f"""
s_mov_b64 exec, 0
s_cmp_eq_u32 {sW}, 3
s_cbranch_scc1 H_p_0
s_lshl_b32 {sT2}, {sTyp}, 2
s_add_u32 {sT2}, {sT2}, {sW}
s_cmp_eq_u32 {sT2}, 0
s_cbranch_scc1 H_a0_0
s_cmp_eq_u32 {sT2}, 1
s_cbranch_scc1 H_a1_0
s_cmp_eq_u32 {sT2}, 2
s_cbranch_scc1 H_a2_0
s_cmp_eq_u32 {sT2}, 4
s_cbranch_scc1 H_b0_0
s_cmp_eq_u32 {sT2}, 5
s_cbranch_scc1 H_b1_0
s_branch H_b2_0
L_wback:
s_mov_b64 exec, -1
""")
        c += mk(f"s_add_u32 s81, {sXc}, {128 * (o.xfirst - 3)}")
        c += self.pstamp(6)
        c += mk(f"s_cmp_eq_u32 {sTyp}, 1\ns_cbranch_scc1 L_tb")
        return c

    def deferred(self, ty):
        o = self.opt
        A = []
        A += self.mksrd(bWO, 52, 512 * 1024) + self.mksrd(bWD, 60, 1792 * 1024) + self.mksrd(bWS, 66, WS_SIZE) + self.mksrd(bOUT, 62, 2048 * 1024)
        A += mk(f"""
s_lshr_b32 {sT1}, s2, 3
s_and_b32 {sT2}, s2, 7
s_lshr_b32 {sR}, {sT2}, {o.csplit}
s_lshl_b32 {sR}, {sR}, {2 + o.csplit}
s_lshr_b32 s64, {sT1}, {3 - o.csplit}
s_add_u32 {sR}, {sR}, s64
s_and_b32 {sC}, {sT1}, {(8 >> o.csplit) - 1}
s_and_b32 {sT2}, {sT2}, {o.csplit}
s_lshl_b32 {sT2}, {sT2}, 2
s_add_u32 {sC}, {sC}, {sT2}
s_lshl_b32 {sT3}, {sW}, 11
s_mul_i32 s62, {sC}, {o.rotc}
s_mul_i32 s63, {sR}, {2 - o.csplit}
s_add_u32 s62, s62, s63
s_and_b32 s62, s62, 7
s_lshl_b32 s63, s62, 12
s_lshl_b32 s62, s62, 16
v_lshrrev_b32 v5, 2, {vL}
v_and_b32 v5, 4, v5
v_xor_b32 v5, v5, {vL}
v_and_b32 v5, 7, v5
v_lshlrev_b32 v5, 4, v5
v_lshrrev_b32 v6, 3, {vL}
v_lshl_add_u32 v5, v6, 10, v5
s_lshl_b32 {sT2}, {sC}, 7
v_add_u32 {vB2}, {sT2}, v5
s_and_b32 {sT1}, {sW}, 1
s_lshr_b32 {sT2}, {sW}, 1
s_lshl_b32 {sT2}, {sT2}, 14
s_lshl_b32 {sWB[0]}, {sT1}, 18
s_add_u32 {sWB[0]}, {sWB[0]}, {sT2}
s_mov_b32 {sWB[1]}, {sWB[0]}
s_lshl_b32 s64, {sT1}, 19
s_add_u32 s64, s64, {sT2}
s_add_u32 s56, s64, {512*1024}
s_lshl_b32 s64, {sT1}, 17
s_add_u32 s64, s64, {sT2}
s_add_u32 s57, s64, {1536*1024}
s_lshl_b32 {sT1}, {sM}, 7
s_sub_u32 {sT2}, {sT1}, 16
v_add_u32 v5, {sT2}, {vL}
v_max_i32 v{GA}, 0, v5
v_lshlrev_b32 v{GA}, 4, v{GA}
v_add_u32 v5, 64, v5
v_lshlrev_b32 v{GA+1}, 4, v5
s_add_u32 {sT1}, {sT1}, 112
v_and_b32 v5, 15, {vL}
v_add_u32 v5, {sT1}, v5
v_lshlrev_b32 v42, 4, v5
""")
        B = []
        if ty == 0:
            B += mk(f"""
v_lshlrev_b32 v{VST}, 4, {vL}
v_add_u32 v{VST+1}, {RBS}, v{VST}
v_add_u32 v{VST+2}, {2*RBS}, v{VST}
v_add_u32 v{VST+3}, {3*RBS}, v{VST}
s_mul_i32 {sT1}, {sM}, 576
s_lshl_b32 {sT2}, {sIdx}, 2
s_add_u32 {sT2}, {sT2}, {sW}
s_add_u32 {sU[1]}, {sT1}, {sT2}
s_add_u32 {sU[0]}, {sU[1]}, 32
s_lshl_b32 {sU[0]}, {sU[0]}, 10
s_lshl_b32 {sU[1]}, {sU[1]}, 10
v_lshrrev_b32 v4, 4, {vL}
v_and_b32 v6, 15, {vL}
v_lshlrev_b32 v4, 2, v4
v_sub_u32 v4, v6, v4
v_mov_b32 v3, 0xff800000
v_mov_b32 v6, 0x80000000
""")
            for r in range(4):
                B += mk(f"""
v_subrev_u32 v5, {r}, v4
v_and_b32 v5, 0x80000001, v5
v_cmp_eq_u32 vcc, 0, v5
v_cmp_eq_u32 {sEx}, v6, v5
v_cndmask_b32_e64 v{BIAS+4+r}, v3, 0, vcc
v_cndmask_b32_e64 v{BIAS+r}, v3, 0, {sEx}
""")
            B.append(mk(f"s_cmp_eq_u32 {sM}, 0\ns_cselect_b64 vcc, -1, 0"))
            for r in range(4): B += mk(f"v_cndmask_b32 v{BIAS+8+r}, v{BIAS+r}, v3, vcc")
        else:
            B += mk(f"""
s_lshr_b32 {sT1}, {sW}, 1
s_mul_i32 {sT2}, {sT1}, {2*RBS}
v_lshlrev_b32 v5, 4, {vL}
v_add_u32 v{VST}, {sT2}, v5
v_add_u32 v{VST+1}, {RBS}, v{VST}
v_subrev_u32 v{VST+2}, {sT2}, v5
v_add_u32 v{VST+2}, {2*RBS}, v{VST+2}
v_add_u32 v{VST+3}, {RBS}, v{VST+2}
s_mul_i32 {sT1}, {sM}, 576
s_lshl_b32 {sT2}, {sIdx}, 3
s_add_u32 {sT2}, {sT2}, {sW}
s_add_u32 {sT2}, {sT2}, {sT1}
s_add_u32 {sU[0]}, {sT2}, 64
s_add_u32 {sU[1]}, {sT2}, 68
s_lshl_b32 {sT2}, {sIdx}, 1
s_and_b32 s64, {sW}, 1
s_add_u32 {sT2}, {sT2}, s64
s_add_u32 {sT2}, {sT2}, {sT1}
s_add_u32 {sU[2]}, {sT2}, 128
s_lshl_b32 {sU[0]}, {sU[0]}, 10
s_lshl_b32 {sU[1]}, {sU[1]}, 10
s_lshl_b32 {sU[2]}, {sU[2]}, 10
""")
        return A, B

    def reads(self, ty, stage):
        st = stage & 1
        xb = ((stage // 2) % 3) * XSLOT; kh = stage & 1
        ws = stage % 5; rg = ws // 3; wb = (ws % 3) * WSLOT
        out = []
        for i in range(NA[ty]):
            if ty == 0: out.append(I(f"ds_read_b128 {A4(fA(st, i))}, v{RA+kh} offset:{xb + 2048*i}"))
            else: out.append(I(f"ds_read_b128 {A4(fA(st, i))}, v{RA+kh+(2 if i >= 4 else 0)} offset:{xb + 2048*(i+1)}"))
        def tr(j, reg, off, second):
            return [I(f"ds_read_b64_tr_b16 {A2(fB(ty, st, j))}, v{reg} offset:{wb+off}"),
                    I(f"ds_read_b64_tr_b16 {A2(fB(ty, st, j)+2)}, v{reg} offset:{wb+off+second}")]
        B = []
        for g in range(5 if ty == 0 else 4): B += tr(g, RT + rg, 4096 * g, 512)
        if ty == 1: B += tr(4, RT + 2 + rg, 16384, 256) + tr(5, RT + 2 + rg, 16384 + 2048, 256)
        return out + B

    def mfmas(self, ty, stage):
        st = stage & 1
        out = []
        Z = lambda d: "0" if stage == 0 else d
        def T(d, j, i): out.append(I(f"{M16} {V4(d)}, {A4(fB(ty, st, j))}, {A4(fA(st, i))}, {Z(V4(d))}"))
        def CS(k, flip=False):
            d = A4(CSACC + 4 * k); f = A4(fB(ty, st, k))
            if self.opt.nocs: return
            out.append(I(f"{M16} {d}, {A4(ONES)}, {f}, {Z(d)}" if flip else f"{M16} {d}, {f}, {A4(ONES)}, {Z(d)}"))
        if ty == 0:
            for i in range(8): T(aQ(i), 0, i + 1)
            CS(0)
            for i in range(9): T(aK(i), 1, i)
            if not self.opt.halo: CS(1)
            for i in range(9): out.append(I(f"{M16} {V4(aV(i))}, {A4(fA(st, i))}, {A4(fB(ty, st, 2))}, {Z(V4(aV(i)))}"))
            if not self.opt.halo: CS(2, True)
            for i in range(8): T(aG(i), 3, i + 1)
            CS(3)
            for i in range(8): T(aU(i), 4, i + 1)
            CS(4)
        else:
            for g in range(4):
                for i in range(8): T(bAcc(g, i), g, i)
                CS(g)
            for u in range(2):
                for i in range(4): T(bMix(u, i), 4 + u, i)
                CS(4 + u)
        return out

    TILES = [(2, 2*k) for k in range(16)] + [(3, 2*k) for k in range(4)] + [(1, 2*k) for k in range(8)] + [(0, 2*k) for k in range(8)]
    RSIZE = {0: 16, 1: 16, 2: 32, 3: 8}
    def b2off(self, r, k, blk):
        if not self.opt.rot: return f"s_add_u32 {sT0}, {sWB[r]}, {(16*k + 8*blk)*1024}"
        if blk: return f"s_add_u32 {sT0}, {sT0}, 8192"
        return f"s_add_u32 {sT0}, s62, {k*16384}\ns_and_b32 {sT0}, {sT0}, {self.RSIZE[r]*16384 - 1}\ns_add_u32 {sT0}, {sT0}, {sWB[r]}"
    def b2_dma(self, s):
        def free_at(q):
            a = q * 2048
            if a < XBASE: return [s_ for s_ in range(11, 16) if s_ % 5 == a // WSLOT][0]
            return {2: 11, 0: 13, 1: 15}[(a - XBASE) // XSLOT]
        out = []
        for i in sorted(range(19), key=lambda u: u):
            if max(free_at(4 * self.slot(i) + w) for w in range(4)) != s: continue
            r, k = self.TILES[i]; srd = sWO if r == 0 else sWD
            for blk in range(2):
                out += mk(self.b2off(r, k, blk) + "\n"
                          f"s_add_u32 m0, {sT3}, {self.slot(i)*8192 + blk*1024}\nbuffer_load_dwordx4 {vB2}, {srd}, {sT0} offen lds")
        return out

    PFG = {"h2": (sWD, 512, 4), "h3": (sWD, 1536, 1), "h1": (sWD, 0, 2), "o": (sWO, 0, 2), "A": (sWD, 0, 1), "B": (sWD, 256, 1), "C": (sWO, 0, 1)}
    def l2pf(self, grp, k, seq):
        srd, row0, n = self.PFG[grp]; cs = self.opt.csplit
        thin = grp in "ABC"; one = thin and cs == 0
        L = []
        if seq == 0 and self.opt.pfa:
            L += mk(f"""
s_lshr_b32 s91, s2, 5
s_lshl_b32 s91, s91, 1
s_bfe_u32 s65, s2, 0x10003
s_add_u32 s91, s91, s65
s_lshl_b32 s91, s91, 2
s_add_u32 s91, s91, {sW}
s_lshl_b32 s91, s91, 12
v_lshrrev_b32 v3, 4, {vL}
v_lshlrev_b32 v3, 28, v3
s_and_b32 s65, s2, 1
s_lshl_b32 s65, s65, 9
s_add_u32 s91, s91, s65
v_and_b32 v2, 3, {vL}
v_lshl_or_b32 v3, v2, 7, v3
v_bfe_u32 v2, {vL}, 2, 2
v_lshl_or_b32 v2, v2, 10, v3
v_add_u32 v2, s91, v2
s_lshr_b32 s91, s2, 1
""")
        elif seq == 0:
            L += mk(f"""
s_lshr_b32 s91, s2, 3
s_lshl_b32 s91, s91, 2
s_add_u32 s91, s91, {sW}
s_lshl_b32 s91, s91, {10 if one else 11}
v_lshrrev_b32 v3, {4 if (cs == 0 and not one) else 3}, {vL}
v_lshlrev_b32 v3, 28, v3
""")
            if cs == 0: L += mk(f"v_lshl_or_b32 v2, {vL}, 7, v3")
            else: L += mk(f"""
s_and_b32 s65, s2, 1
s_lshl_b32 s65, s65, 9
s_add_u32 s91, s91, s65
v_and_b32 v2, 3, {vL}
v_lshl_or_b32 v3, v2, 7, v3
v_bfe_u32 v2, {vL}, 2, 1
v_lshl_or_b32 v2, v2, 10, v3
""")
            L += mk(f"v_add_u32 v2, s91, v2\ns_lshr_b32 s91, s2, {cs}")
        if thin:
            return L + mk(f"""
s_and_b32 s65, s91, {(8 >> cs) - 1}
s_mul_i32 s65, s65, {((64 if grp == "C" else 224) << cs) * 1024}
s_add_u32 s65, s65, {(row0 >> (1 - cs)) * 1024}
buffer_load_dword a{216 + seq % 12}, v2, {srd}, s65 offen
""")
        return L + mk(f"""
s_add_u32 s65, s91, {k}
s_and_b32 s65, s65, {(n - 1) & self.opt.pfrot}
s_lshl_b32 s65, s65, 18
s_add_u32 s65, s65, {row0 * 1024}
buffer_load_dword a{216 + seq % 12}, v2, {srd}, s65 offen
""")

    def utouch(self, ty, n, per):
        units = [(0, j) for j in range(4)] + [(1, j) for j in range(4)] + ([(2, j) for j in range(2)] if ty else [])
        L = []
        if n == 0:
            L += mk(f"v_lshrrev_b32 v51, 3, {vL}\nv_lshlrev_b32 v51, 28, v51\nv_mul_u32_u24 v50, 112, {vL}\nv_add_u32 v50, v50, v51")
        for k, (u, j) in enumerate(units[n * per:(n + 1) * per]):
            L += mk(f"v_add_u32 v51, v50, v{VST+j}\nbuffer_load_dword a{216 + (n * per + k) % 10}, v51, {sWS}, {sU[u]} offen{self.opt.utfl}")
        return L
    def flagaddr(self, dst, off):
        return mk(f"""
s_lshl_b32 {dst}, {sM}, 2
s_lshr_b32 {sT1}, {sN}, 2
s_add_u32 {dst}, {dst}, {sT1}
s_lshl_b32 {dst}, {dst}, 5
s_and_b32 {sT1}, {sN}, 3
s_lshl_b32 {sT1}, {sT1}, 2
s_add_u32 {dst}, {dst}, {sT1}
s_add_u32 {dst}, {dst}, {sW}
s_lshl_b32 {dst}, {dst}, 3
s_add_u32 {dst}, {dst}, {WS_FLAG + off}
""")
    def flagstore(self, so, r):
        return mk(f"""
v_mov_b32 v{r}, {sNonL}
v_mov_b32 v{r+1}, {sNonH}
v_lshlrev_b32 v{r+2}, 31, {vL}
v_lshl_or_b32 v{r+2}, {vL}, 25, v{r+2}
buffer_store_dwordx2 {V2(r)}, v{r+2}, {sWS}, {so} offen sc1
""")

    def stats_load(self):
        return mk(f"""
s_lshl_b32 {sT2}, {sM}, 7
s_lshl_b32 {sT1}, {sN}, 3
s_add_u32 {sT1}, {sT1}, {sT2}
s_lshl_b32 {sT2}, {sW}, 1
s_add_u32 {sT1}, {sT1}, {sT2}
s_lshl_b32 {sT1}, {sT1}, 10
v_lshlrev_b32 v{SX+16}, 4, {vL}
buffer_load_dwordx4 v[{SX}:{SX+3}], v{SX+16}, {sX}, {sT1} offen
buffer_load_dwordx4 v[{SX+4}:{SX+7}], v{SX+16}, {sX}, {sT1} offen offset:1024
""")

    def stats_compute(self):
        def row(x, e, t):
            L = []
            for k in range(4):
                L.append(f"v_lshlrev_b32 v{e+2*k}, 16, v{x+k}")
                L.append(f"v_and_b32 v{e+2*k+1}, 0xffff0000, v{x+k}")
            L += [f"v_add_f32 v{x}, v{e}, v{e+1}", f"v_add_f32 v{x+1}, v{e+2}, v{e+3}", f"v_add_f32 v{x+2}, v{e+4}, v{e+5}", f"v_add_f32 v{x+3}, v{e+6}, v{e+7}",
                  f"v_add_f32 v{x}, v{x}, v{x+1}", f"v_add_f32 v{x+2}, v{x+2}, v{x+3}", f"v_add_f32 v{x}, v{x}, v{x+2}"]
            def red(r):
                R = [f"v_add_f32_dpp v{r}, v{r}, v{r} row_ror:{sh} row_mask:0xf bank_mask:0xf" for sh in (8, 4, 2, 1)]
                for p in ("16", "32"):
                    R += [f"v_mov_b32 v{r+1}, v{r}", f"v_permlane{p}_swap_b32 v{r}, v{r+1}", f"v_add_f32 v{r}, v{r}, v{r+1}"]
                return R
            L += red(x)
            L.append(f"v_mul_f32 v{t+1}, 0x3b000000, v{x}")
            for k in range(8): L.append(f"v_sub_f32 v{e+k}, v{e+k}, v{t+1}")
            L += [f"v_mul_f32 v{x}, v{e}, v{e}", f"v_mul_f32 v{x+1}, v{e+1}, v{e+1}"]
            for k in range(2, 8): L.append(f"v_fmac_f32 v{x+(k&1)}, v{e+k}, v{e+k}")
            L.append(f"v_add_f32 v{x}, v{x}, v{x+1}")
            L += red(x)
            L += [f"v_mov_b32 v{x+1}, 0x3727c5ac", f"v_fmac_f32 v{x+1}, 0x3b000000, v{x}", f"v_rsq_f32 v{t}, v{x+1}"]
            return L
        a = row(SX, SX + 8, SX + 24); b = row(SX + 4, SX + 16, SX + 26)
        out = []
        for p, q in zip(a, b): out += [I(p), I(q)]
        return out

    def publish(self, ty):
        L = mk(f"""
v_readfirstlane_b32 {sNonL}, v{NON}
v_readfirstlane_b32 {sNonH}, v{NON+1}
v_cmp_eq_u32 vcc, 1, {vL}
s_lshl_b32 {sT1}, {sM}, 7
s_lshl_b32 {sT2}, {sN}, 3
s_cmp_eq_u32 {sNonL}, 0
s_cbranch_scc1 L_slow_nonce{ty}
L_back_nonce{ty}:
v_cndmask_b32 v{SX}, v{SX+24}, v{SX+26}, vcc
v_cndmask_b32 v{SX+1}, v{SX+25}, v{SX+27}, vcc
v_mov_b32 v{SX+2}, {sNonL}
v_mov_b32 v{SX+3}, {sNonH}
s_add_u32 {sT1}, {sT1}, {sT2}
s_lshl_b32 {sT2}, {sW}, 1
s_add_u32 {sT1}, {sT1}, {sT2}
s_lshl_b32 {sT1}, {sT1}, 4
s_add_u32 {sT1}, {sT1}, {WS_STAT}
v_lshlrev_b32 v{SX+4}, 4, {vL}
v_cmp_lt_u32 vcc, 1, {vL}
v_mov_b32 v{SX+5}, 0x80000000
v_cndmask_b32 v{SX+4}, v{SX+4}, v{SX+5}, vcc
buffer_store_dwordx4 v[{SX}:{SX+3}], v{SX+4}, {sWS}, {sT1} offen sc1
""")
        return L[:5] + [L[5:8]] + L[8:]

    def gather_load(self):
        return mk(f"""
s_mov_b32 {sT1}, {WS_STAT}
buffer_load_dwordx4 {V4(GAT)}, v{GA}, {sWS}, {sT1} offen sc1
buffer_load_dwordx4 {V4(GAT+4)}, v{GA+1}, {sWS}, {sT1} offen sc1
buffer_load_dwordx4 {V4(GAT+8)}, v42, {sWS}, {sT1} offen sc1
""")
    def gather_cmp(self):
        return mk(f"""
v_cmp_ne_u64 vcc, {sNon}, {V2(GAT+2)}
v_cmp_ne_u64 {sEx}, {sNon}, {V2(GAT+6)}
v_cmp_ne_u64 s[92:93], {sNon}, {V2(GAT+10)}
s_or_b64 vcc, vcc, {sEx}
s_or_b64 vcc, vcc, s[92:93]
""")

    ST = 60
    def stats_stage(self, ty):
        ST = self.ST
        L = [self.gather_cmp() + mk(f"s_cbranch_vccnz L_slow_gat{ty}\nL_back_gat{ty}:")]
        L += mk(f"""
s_mul_i32 {sT1}, {sW}, 1152
s_add_u32 {sT1}, {sT1}, {STATL}
v_lshl_add_u32 v44, {vL}, 2, {sT1}
v_and_b32 v45, 15, {vL}
v_lshl_add_u32 v45, v45, 2, {sT1}
v_add_u32 v46, 512, v45
""")
        W = mk(f"""
ds_write2_b32 v44, v{GAT}, v{GAT+1} offset0:0 offset1:144
ds_write2_b32 v44, v{GAT+4}, v{GAT+5} offset0:64 offset1:208
ds_write2_b32 v46, v{GAT+8}, v{GAT+9} offset0:0 offset1:144
""")
        if ty == 0:
            L += mk(f"v_add_u32 v47, 256, v45\nv_lshrrev_b32 v43, 4, {vL}\nv_lshl_add_u32 v43, v43, 4, {sT1}")
            for i in range(9):
                if i < 4: W += mk(f"ds_read2_b32 {V2(ST+2*i)}, v45 offset0:{16*i} offset1:{144+16*i}")
                else: W += mk(f"ds_read2_b32 {V2(ST+2*i)}, v47 offset0:{16*i-64} offset1:{80+16*i}")
        else:
            L += mk(f"""
s_lshr_b32 {sT2}, {sW}, 1
s_lshl_b32 {sT2}, {sT2}, 8
v_add_u32 v47, {sT2}, v45
v_subrev_u32 v48, {sT2}, v45
v_add_u32 v48, 256, v48
""")
            for i in range(8):
                W += mk(f"ds_read2_b32 {V2(ST+2*i)}, v{47 if i < 4 else 48} offset0:{16+16*(i%4)} offset1:{160+16*(i%4)}")
        return L + W

    def type_code(self, ty):
        o = self.opt
        c = mk("L_tb:") if ty else []
        vm = list(self.vm0)
        def waitfor(tags):
            for t in tags: assert vm.count(t) >= {"w": 5, "x": 4}.get(t[0], 1) and all(q[1] != t for q in dq), (t, ty)
            idx = max([k for k, t in enumerate(vm) if t in tags], default=-1)
            return len(vm) - 1 - idx
        def note(L, tag):
            for i in flatten(L):
                if i.kind == "vmem": vm.append(tag)
            return L
        need = lambda s: [("w", s), ("x", s // 2)]
        dq = []
        c += mk(f"s_waitcnt vmcnt({waitfor(need(0))}) lgkmcnt(0)\ns_barrier")
        defA, defB = self.deferred(ty)
        c += self.stamp(1)
        c += self.reads(ty, 0)
        stats = self.stats_compute()
        dq = self.dma_queue(ty)
        pfq = [(g, k) for g in o.pford.split(",") for k in range(self.PFG[g][2])]; pfn = 0

        third = -(-len(stats) // 6) * 2
        SL = o.statstep; SC = o.sc
        cuts = [0] + o.cuts + [len(stats)]
        SN, SP, SG, SS = 1, SC + len(cuts) - 1, o.sg, o.ss
        for s in range(16):
            tags = need(s + 1) if s < 15 else []
            if s == SC: tags = tags + [("sl", 0)]
            if s == SP: tags = tags + [("non", 0)]
            if s == SS: tags = tags + [("gat", 0)]
            if s == 13: tags = tags + [("b2", 11)]
            if s == 14: tags = tags + [("b2", 12)]
            if s == 15: tags = tags + [("b2", 13)]
            c += mk((f"s_waitcnt vmcnt({waitfor(tags)}) lgkmcnt(0)" if tags else "s_waitcnt lgkmcnt(0)") + "\ns_barrier")
            if o.stamps and s in o.stst: c += self.stamp(2 + o.stst.index(s))
            rd = self.reads(ty, s + 1) if s < 15 else []
            other = []
            if s == SN:
                other += note(mk(f"v_mov_b32 v{NON}, 0\nbuffer_load_dwordx2 {V2(NON)}, v{NON}, {sDBG}, 0 offen sc1"), ("non", 0))
            if s == SG: other += note(self.gather_load(), ("gat", 0))
            if s == SL: other += note(self.stats_load(), ("sl", 0))
            if s < o.wtouch and o.tfirst: other += note(self.wtouch(s % 3), ("wt", 0))
            for _ in range(int(o.xsched[s])):
                other += note(mk(f"s_add_u32 s81, s81, 128\ns_and_b32 s81, s81, 1023\nbuffer_load_dword a{226 + (s & 1)}, v50, {sX}, s81 offen"), ("xt", 0))
            k = 0
            while dq and dq[0][0] <= s and k < (o.quota0 if s == 0 else o.qs[s] - (ty if o.qb else 0) if o.qs else o.quota):
                _, tag, atom = dq.pop(0); other += note(atom, tag); k += 1
            if s < o.wtouch and not o.tfirst: other += note(self.wtouch(s % 3), ("wt", 0))
            nb1 = 11 if ty == 0 else len(defB)
            blocks = {0: defA[:16], 1: defA[16:33], 7: defA[33:], 8: defB[:nb1], 9: defB[nb1:]}
            late = blocks.get(s, [])
            if s > 10:
                assert not dq or s <= 13
                other += note(self.b2_dma(s), ("b2", s))
            if not o.nopf and not (o.pfa and ty == 1):
                for _ in range(int(o.pfsched[s])):
                    if not pfq: break
                    g, k = pfq.pop(0); other += note(self.l2pf(g, k, pfn), ("pf", 0)); pfn += 1
            if o.ut0 and o.ut0 <= s < min(11, o.ut0 + (10 + o.utper - 1) // o.utper): other += note(self.utouch(ty, s - o.ut0, o.utper), ("ut", 0))
            if SC <= s < SP: other += stats[cuts[s - SC]: cuts[s - SC + 1]]
            if s == SP: other += note(self.publish(ty), ("pub", 0))
            if s == SS:
                ss = self.stats_stage(ty)
                if "r" in o.ko: ss = [x for x in ss if isinstance(x, list) or not x.op.startswith("ds_read")]
                if "e" in o.ko: ss = [x for x in ss if isinstance(x, list) or not x.op.startswith("ds_write")]
                if "g" in o.ko: ss = [[ss[0][-1]]] + ss[1:]
                ssd = [x for x in ss if not isinstance(x, list) and x.kind == "ds"]
                ssv = [x for x in ss if isinstance(x, list) or x.kind != "ds"]
                other = ssv + other; rd = rd + ssd
            if s == 10 and ty == 0: other += self.selectors()
            other += late
            if s == 11: other += self.traddr([2, 3, 4, 5, 6, 49])
            if s >= 13: rd = rd + flatten(self.passthru([2, 3, 4, 5, 6, 49], {13: range(0, 6), 14: range(6, 12), 15: range(12, 20)}[s]))
            if s in (14, 15): other += note(flatten(self.round2(self.R2_14 if s == 14 else self.R2_15)), ("b2", 20))
            if ty == 1 and s == 12 and o.bearly:
                for k, it in enumerate(self.round2(range(29, 36))[:o.bearly]):
                    it[-1] = I(it[-1].text.replace(A4(56 + 4 * k), V4(self.BE[k])))
                    other += note(it, ("b2", 21))
            mm = self.mfmas(ty, s)
            if o.nomfma: mm = [I("s_nop 0") for _ in mm]
            if o.noreads: rd = []
            no = len([i for i in flatten(other) if not i.is_label])
            room = 2 * (len(mm) - len(rd))
            ost = len(rd) if no <= room else max(0, len(rd) - (no - room))
            wv = weave(mm, rd, other, per_gap=2, oth_start=(ost if o.late else 0))
            if o.align == 3:
                for i in wv: i.padok = False
            c += wv
        c += self.stamp(5)
        if o.probe >= 0:
            g, k = self.TILES[o.probe]
            c += mk(f"""
s_waitcnt vmcnt(0)
v_readfirstlane_b32 s64, {vB2}
v_and_b32 v4, 15, {vL}
v_lshrrev_b32 v5, 4, {vL}
v_lshlrev_b32 v5, 5, v5
v_add_u32 v4, v4, v5
v_lshlrev_b32 v4, 10, v4
v_add_u32 v4, s64, v4
s_add_u32 s65, {sWB[g]}, {16*k*1024}
""") + self.stamp(2, True) + mk(f"buffer_load_dword v5, v4, {sWO if g == 0 else sWD}, s65 offen\ns_waitcnt vmcnt(0)") + self.stamp(3, True)
        c += mk("s_waitcnt lgkmcnt(0)")
        c += self.epi_a() if ty == 0 else self.epi_b()
        if ty == 0: c += mk("s_branch L_join")
        c = cap_vm(flatten(c), len(self.vm0), *((1000, 48) if "c" in o.ko else (60, 48)))
        slow = mk(f"""
L_slow_nonce{ty}:
s_mov_b32 {sCnt}, 0
L_sn{ty}:
v_mov_b32 v{NON}, 0
buffer_load_dwordx2 {V2(NON)}, v{NON}, {sDBG}, 0 offen sc1
s_waitcnt vmcnt(0)
v_readfirstlane_b32 {sNonL}, v{NON}
v_readfirstlane_b32 {sNonH}, v{NON+1}
s_add_u32 {sCnt}, {sCnt}, 1
s_cmp_gt_u32 {sCnt}, 20000
s_cbranch_scc1 L_back_nonce{ty}
s_cmp_eq_u32 {sNonL}, 0
s_cbranch_scc1 L_sn{ty}
s_branch L_back_nonce{ty}
L_slow_gat{ty}:
s_mov_b32 {sCnt}, 0
L_sg{ty}:
""") + self.gather_load() + mk("s_waitcnt vmcnt(0)") + self.gather_cmp() + mk(f"""
s_add_u32 {sCnt}, {sCnt}, 1
s_cmp_gt_u32 {sCnt}, 20000
s_cbranch_scc1 L_back_gat{ty}
s_cbranch_vccnz L_sg{ty}
s_branch L_back_gat{ty}
""")
        return c, slow

    def stg(self, u, blk): return 56 + 8 * (u - 29) + 4 * blk
    SL1 = [3, 4, 17, 18, 5, 6, 7, 8, 9, 13, 10, 11, 12, 0, 1, 2, 14, 15, 16]
    def slot(self, u): return self.SL1[u] if u < 19 else self.SL1[[0, 1, 4, 5, 6, 2, 3, 7, 8, 9][u - 19]] if u < 29 else self.SL1[10 + u - 29]
    def frag(self, i): return 112 + 8 * i if i < 14 else 8 * (i - 14)
    def round2(self, us):
        L = []
        for u in us:
            g, k = self.TILES[u]; srd = sWO if g == 0 else sWD
            for blk in range(2):
                t = self.b2off(g, k, blk).replace(sT0, "s61")
                if u < 29: L.append(mk(t + f"\ns_add_u32 m0, {sT3}, {self.slot(u)*8192 + blk*1024}\nbuffer_load_dwordx4 {vB2}, {srd}, s61 offen lds"))
                else: L.append(mk(t + f"\nbuffer_load_dwordx4 {A4(self.stg(u, blk))}, {vB2}, {srd}, s61 offen"))
        return L
    BE = [30, 34, 38, 88, 92]
    R2_14 = [19, 20, 24]; R2_15 = [25, 21, 22]; R2_E = [23, 26, 27, 28]
    TR = {0: [42, 58, 59, 16], 1: [88, 89, 90, 91]}
    def traddr(self, R):
        L = mk(f"""
s_and_b32 {sT1}, {sW}, 1
s_lshl_b32 {sT1}, {sT1}, 6
v_lshrrev_b32 v4, 5, {vL}
v_lshlrev_b32 v4, 10, v4
v_bfe_u32 v6, {vL}, 2, 2
v_lshl_add_u32 v4, v6, 7, v4
v_lshrrev_b32 v6, 1, v6
v_lshl_add_u32 v4, v6, 6, v4
v_bfe_u32 v6, {vL}, 4, 1
v_lshl_add_u32 v4, v6, 5, v4
v_and_b32 v6, 1, {vL}
v_lshl_add_u32 v4, v6, 4, v4
v_bfe_u32 v6, {vL}, 1, 1
v_lshl_add_u32 v4, v6, 3, v4
v_xor_b32 v4, {sT1}, v4
s_lshl_b32 {sT1}, {sT1}, 5
v_add_u32 v{R[0]}, {sT1}, v4
v_xor_b32 v{R[1]}, 64, v{R[0]}
""")
        for k in range(2, len(R)): L += mk(f"v_add_u32 v{R[k]}, {0x10000 * (k // 2)}, v{R[k & 1]}")
        return L
    def passthru(self, R, tiles):
        L = []
        for i in tiles:
            sg = 2 * self.slot(i // 2) + (i & 1)
            L += [[I(f"ds_read_b64_tr_b16 {A2(self.frag(i) + 4*cb + 2*e)}, v{R[2*(sg//16)+cb]} offset:{(sg%16)*4096+e*512}")] for cb in range(2) for e in range(2)]
        return L
    def sprinkle(self, code, items, start, stop):
        out = []; n = len(items); k = 0
        for idx, ins in enumerate(code):
            out.append(ins)
            while k < n and idx >= start and (idx - start + 1) * n >= (k + 1) * (stop - start):
                out += items[k]; k += 1
        for it in items[k:]: out += it
        return out
    NEG = "op_sel:[0,1,0] op_sel_hi:[1,1,1] neg_lo:[0,1,0] neg_hi:[0,1,0]"
    def gu(self, cs, g, u, stp, dst):
        NEG = self.NEG
        L = [f"v_pk_fma_f32 {V2(g+2*h)}, {V2(cs+2*h)}, {V2(stp)}, {V2(g+2*h)} {NEG}" for h in range(2)]
        L += [f"v_pk_fma_f32 {V2(u+2*h)}, {V2(cs+4+2*h)}, {V2(stp)}, {V2(u+2*h)} {NEG}" for h in range(2)]
        L += [f"v_pk_mul_f32 {V2(g+2*h)}, {V2(g+2*h)}, {V2(u+2*h)}" for h in range(2)]
        L += [f"v_cvt_pk_bf16_f32 v{dst+h}, v{g+2*h}, v{g+2*h+1}" for h in range(2)]
        return L
    def gu_unit(self, cs, g0, u0, g1, u1, st0, st1, vo, so):
        c = []
        for x, y in zip(self.gu(cs, g0, u0, st0, u0), self.gu(cs, g1, u1, st1, u0 + 2)): c += mk(x + "\n" + y)
        return c + self.unit_store(u0, vo, so)
    def unit_store(self, r, vo, so):
        if "n" in self.opt.ko: return []
        return mk(f"v_permlane16_swap_b32 v{r}, v{r+2}\nv_permlane16_swap_b32 v{r+1}, v{r+3}\nbuffer_store_dwordx4 {V4(r)}, v{vo}, {sWS}, {so} offen" + ("" if "p" in self.opt.ko else " sc1"))
    def csread(self, dst, k, n=4):
        return [I(f"v_accvgpr_read_b32 v{dst+r}, a{CSACC+4*k+r}") for r in range(n)]

    def epi_b(self):
        ST = self.ST; o = self.opt
        c = []
        for k in range(6): c += self.csread(8 + 4 * k if k < 2 else 36 + 4 * k, k)
        U = []
        for P in range(2):
            cs = 8 if P == 0 else 44
            for j in range(4):
                U.append(self.gu_unit(cs, bAcc(2*P, 2*j), bAcc(2*P+1, 2*j), bAcc(2*P, 2*j+1), bAcc(2*P+1, 2*j+1), ST+4*j, ST+4*j+2, VST+j, sU[P]))
        for j in range(2):
            U.append(self.gu_unit(52, bMix(0, 2*j), bMix(1, 2*j), bMix(0, 2*j+1), bMix(1, 2*j+1), ST+4*j, ST+4*j+2, VST+j, sU[2]))
        st = self.round2(range(29, 36))[o.bearly:] + self.round2(self.R2_E); nb = o.nstage_b
        assert o.bearly % 2 == 0 or not o.rot
        for u in U: c += u
        c += self.stamp(6)
        mv = [I(f"v_accvgpr_write_b32 a{56+4*k+r}, v{self.BE[k]+r}") for k in range(o.bearly) for r in range(4)]
        su = mk("s_waitcnt vmcnt(40)" if mv else "") + mv + self.flagaddr(sT2, 0) + self.polladdr() + self.p2setup()
        c += self.sprinkle(su, st[:nb], 0, len(su))
        c += mk(f"s_waitcnt vmcnt({nb + 2}) lgkmcnt(0)") + self.flagstore(sT2, 8) + self.stamp(7)
        c += mk(f"s_mov_b32 {sT2}, 0x8000000\ns_barrier")
        k = len(st) - o.pollahead
        for it in st[nb:k]: c += it
        c += self.poll_issue(0)
        for it in st[k:]: c += it
        c += mk(f"s_waitcnt vmcnt({o.pollahead})")
        return c

    SEL = 54
    def selectors(self):
        S = self.SEL
        L = mk(f"""
v_and_b32 v4, 15, {vL}
v_lshrrev_b32 v5, 4, {vL}
v_lshlrev_b32 v5, 2, v5
v_sub_u32 v4, v4, v5
v_and_b32 v5, 1, {vL}
v_sub_u32 v4, v4, v5
v_lshlrev_b32 v5, 4, v5
v_mov_b32 v6, 0x0c0c0c0c
""")
        for jj, pat in ((0, 0x0c0c0100), (1, 0x0c0c0302)):
            L += mk(f"v_mov_b32 v{S+jj}, {pat:#x}\nv_alignbit_b32 v{S+2+jj}, v{S+jj}, v{S+jj}, v5")
            L += mk(f"v_cmp_le_i32 vcc, {2*jj}, v4\nv_nop\nv_cndmask_b32 v{S+jj}, v{S+2+jj}, v6, vcc\nv_cndmask_b32 v{S+2+jj}, v6, v{S+2+jj}, vcc")
        return L

    def epi_a(self):
        o = self.opt
        ST = self.ST; NEG = self.NEG; SEL = self.SEL
        def inter(LL):
            out = []
            for step in range(max(len(l) for l in LL)):
                for l in LL:
                    if step < len(l): out += mk(l[step])
            return out
        c = []
        c += self.csread(8, 3) + self.csread(12, 4) + self.csread(44, 0)
        if not o.halo: c += self.csread(48, 1) + self.csread(52, 2, 1)
        vs = lambda i: 192 + 8 * (i % 4) if i < 8 else 78
        def vsread(i): return mk(f"ds_read_b128 {V4(vs(i))}, v43 offset:{64*i}\nds_read_b128 {V4(vs(i)+4)}, v43 offset:{576+64*i}")
        c += vsread(8)
        hst = []
        for j in range(4):
            gu = self.gu_unit(8, aG(2*j), aU(2*j), aG(2*j+1), aU(2*j+1), ST+2+4*j, ST+4+4*j, VST+j, sU[0])
            hst.append([gu.pop()])
            c += gu + vsread(j)
        c += self.stamp(6)
        c += mk("s_waitcnt lgkmcnt(0)\ns_barrier")
        if o.epistamps: c += self.stamp(2, True)
        head = c; c = []
        st = self.round2(self.R2_E) + self.round2(range(29, 36))
        if o.halo:
            c += [I(f"v_mov_b32_dpp v{48+r}, v{aK(0)+r} row_newbcast:0 row_mask:0xf bank_mask:0xf") for r in range(4)]
            c += mk(f"v_mov_b32 v52, v{aV(0)}\nv_mov_b32 v53, v{aV(0)}\ns_nop 0\nv_permlane16_swap_b32 v52, v53\nv_mov_b32 v53, v52\ns_nop 1\nv_permlane32_swap_b32 v52, v53")
        kp = lambda i: 8 + 2 * i if i < 4 else 18 + 2 * (i - 4) if i < 8 else 86
        def kfix(i):
            k = aK(i); stp = ST + 2 * i
            return [f"v_pk_fma_f32 {V2(k)}, {V2(48)}, {V2(stp)}, {V2(k)} {NEG}",
                    f"v_pk_fma_f32 {V2(k+2)}, {V2(50)}, {V2(stp)}, {V2(k+2)} {NEG}",
                    f"v_pk_mul_f32 {V2(k)}, {V2(k)}, {V2(stp)} op_sel_hi:[1,0]",
                    f"v_pk_mul_f32 {V2(k+2)}, {V2(k+2)}, {V2(stp)} op_sel_hi:[1,0]",
                    f"v_cvt_pk_bf16_f32 v{kp(i)}, v{k}, v{k+1}",
                    f"v_cvt_pk_bf16_f32 v{kp(i)+1}, v{k+2}, v{k+3}"]
        qp = lambda i: 120 + 2 * i
        def qfix(i):
            q = aQ(i); stp = ST + 2 * (i + 1)
            return [f"v_pk_fma_f32 {V2(q)}, {V2(44)}, {V2(stp)}, {V2(q)} {NEG}",
                    f"v_pk_fma_f32 {V2(q+2)}, {V2(46)}, {V2(stp)}, {V2(q+2)} {NEG}",
                    f"v_cvt_pk_bf16_f32 v{qp(i)}, v{q}, v{q+1}",
                    f"v_cvt_pk_bf16_f32 v{qp(i)+1}, v{q+2}, v{q+3}"]
        NEGV = "op_sel_hi:[1,0,1] neg_lo:[0,1,0] neg_hi:[0,1,0]"
        vp = lambda i: 136 + 2 * i
        def vfix(i):
            v = aV(i); s_ = vs(i)
            return [f"v_pk_fma_f32 {V2(v)}, {V2(s_+4)}, {V2(52)}, {V2(v)} {NEGV}",
                    f"v_pk_fma_f32 {V2(v+2)}, {V2(s_+6)}, {V2(52)}, {V2(v+2)} {NEGV}",
                    f"v_pk_mul_f32 {V2(v)}, {V2(v)}, {V2(s_)}",
                    f"v_pk_mul_f32 {V2(v+2)}, {V2(v+2)}, {V2(s_+2)}",
                    f"v_cvt_pk_bf16_f32 v{vp(i)}, v{v}, v{v+1}",
                    f"v_cvt_pk_bf16_f32 v{vp(i)+1}, v{v+2}, v{v+3}"]
        c += inter([kfix(i) for i in range(9)])
        c += mk("s_waitcnt lgkmcnt(0)")
        c += inter([vfix(i) for i in (0, 1, 2, 3, 8)])
        for i in range(4, 8): c += vsread(i)
        c += inter([qfix(i) for i in range(8)])
        c += mk("s_waitcnt lgkmcnt(0)")
        c += inter([vfix(i) for i in range(4, 8)])
        st = st[:o.hpos] + hst + st[o.hpos:]; n1 = o.nfirst_a
        head += self.sprinkle(c, st[:n1], 0, len(c))
        if o.epistamps: head += self.stamp(3, True) + self.stamp(4, True)
        c = []
        MK = "v_mfma_f32_16x16x16_bf16"
        sp = lambda i: 88 + 8 * i if i < 4 else 156 + 8 * (i - 4)
        sch = f2h(0.25 * 1.4426950408889634)
        def smf(i):
            bp = BIAS + 8 if i == 0 else BIAS
            return [f"{MK} {V4(sp(i))}, {V2(kp(i))}, {V2(qp(i))}, {V4(bp)}", f"{MK} {V4(sp(i)+4)}, {V2(kp(i+1))}, {V2(qp(i))}, {V4(BIAS+4)}"]
        def merge(i):
            s_ = sp(i)
            return [f"v_max3_f32 v{s_}, v{s_}, v{s_+1}, v{s_+4}", f"v_max3_f32 v{s_+2}, v{s_+2}, v{s_+3}, v{s_+6}",
                    f"v_max_f32 v{s_}, v{s_}, v{s_+5}", f"v_max_f32 v{s_+1}, v{s_+2}, v{s_+7}",
                    f"v_mul_f32 v{s_+4}, {sch}, v{ST+2*(i+1)}", f"v_max_f32 v{s_+2}, v{s_}, v{s_+1}"]
        for i in range(8):
            a = smf(i); b = merge(i - 3) if i >= 3 else []
            c += mk(a[0]) + mk("\n".join(b[:3])) + mk(a[1]) + mk("\n".join(b[3:]))
        c += inter([merge(i) for i in (5, 6, 7)])
        def cross(A, B, C, D):
            a, b, cc, d = (sp(x) + 2 for x in (A, B, C, D))
            return [f"v_permlane32_swap_b32 v{a}, v{b}", f"v_permlane32_swap_b32 v{cc}, v{d}",
                    f"v_max_f32 v{a}, v{a}, v{b}", f"v_max_f32 v{cc}, v{cc}, v{d}", "s_nop 0",
                    f"v_permlane16_swap_b32 v{a}, v{cc}", f"v_max_f32 v{a}, v{a}, v{cc}", f"v_mov_b32 v{cc}, v{a}", "s_nop 0",
                    f"v_permlane16_swap_b32 v{a}, v{cc}", f"v_mov_b32 v{b}, v{a}", f"v_mov_b32 v{d}, v{cc}",
                    f"v_permlane32_swap_b32 v{a}, v{b}", f"v_permlane32_swap_b32 v{cc}, v{d}"]
        c += [x for x in inter([cross(0, 1, 2, 3), cross(4, 5, 6, 7)]) if x.op != "s_nop"]
        O = lambda i: 192 + 4 * i
        oq = lambda i: 120 + 4 * (i // 2) + 2 * (i % 2)
        def expo(i):
            s_ = sp(i)
            return [f"v_mul_f32_e64 v{s_+5}, -v{s_+2}, v{s_+4}",
                    f"v_fma_f32 v{s_}, v{s_}, v{s_+4}, v{s_+5}", f"v_fma_f32 v{s_+1}, v{s_+1}, v{s_+4}, v{s_+5}",
                    f"v_exp_f32 v{s_}, v{s_}", f"v_exp_f32 v{s_+1}, v{s_+1}",
                    f"v_cvt_pk_bf16_f32 v{s_+2}, v{s_}, v{s_+1}"] + [f"v_perm_b32 v{s_+4+k}, 0, v{s_+2}, v{SEL+k}" for k in range(4)]
        def pv(i): return [f"{M16} {V4(sp(i))}, {A4(ONES)}, {V4(sp(i)+4)}, 0", f"{M16} {V4(O(i))}, {V4(vp(i))}, {V4(sp(i)+4)}, 0"]
        def fin(i):
            d = oq(i)
            return [f"v_rcp_f32 v{sp(i)}, v{sp(i)}"] + [f"v_mul_f32 v{O(i)+r}, v{O(i)+r}, v{sp(i)}" for r in range(4)] + \
                   [f"v_cvt_pk_bf16_f32 v{d}, v{O(i)}, v{O(i)+1}", f"v_cvt_pk_bf16_f32 v{d+1}, v{O(i)+2}, v{O(i)+3}"]
        E = [inter([expo(2 * p), expo(2 * p + 1)]) for p in range(4)]
        F = [inter([fin(2 * p), fin(2 * p + 1)]) for p in range(4)]
        P = [mk("\n".join(pv(2 * p) + pv(2 * p + 1))) for p in range(4)]
        def mix(valu, mf, first=2, every=3):
            out = []; mf = list(mf)
            for k, x in enumerate(valu):
                if mf and k >= first and (k - first) % every == 0: out.append(mf.pop(0))
                out.append(x)
            return out + mf
        def swp(r): return mk(f"v_permlane16_swap_b32 v{r}, v{r+2}\nv_permlane16_swap_b32 v{r+1}, v{r+3}")
        c += E[0] + mix(E[1], P[0]) + mix(E[2], P[1]) + F[0] + swp(120)
        c += mix(E[3], P[2]) + mix(F[1], P[3]) + swp(124) + F[2] + swp(128) + F[3] + swp(132)
        na = min(n1 + o.nstage_a, len(st) - o.pollahead)
        c = head + self.sprinkle(c, st[n1:na], 0, len(c))
        c += self.stamp(7)
        c += [I(f"buffer_store_dwordx4 {V4(120+4*j)}, v{VST+j}, {sWS}, {sU[1]} offen sc1") for j in range(4)] if o.ofirst else []
        su = self.polladdr() + self.p2setup() + self.flagaddr(sT2, 0 if o.hflag2 else 128)
        k = len(st) - o.pollahead
        vst = [I(f"v_mov_b32 v{8+j}, v{VST+j}") for j in range(4)]
        c += vst + self.sprinkle(su, st[na:k], 0, len(su))
        c += self.poll_issue(0)
        for it in st[k:]: c += it
        if not o.ofirst: c += [I(f"buffer_store_dwordx4 {V4(120+4*j)}, v{8+j}, {sWS}, {sU[1]} offen sc1") for j in range(4)]
        c += mk(f"s_waitcnt vmcnt({o.pollahead + (0 if o.ofirst else 4)})")
        if o.hflag2: c += self.flagstore(sT2, 12) + mk(f"s_add_u32 {sT2}, {sT2}, 128")
        return c

    POLL = 58
    def polladdr(self):
        return mk(f"""
s_lshr_b32 s81, {sR}, 1
s_lshl_b32 s81, s81, 1
s_and_b32 {sT1}, {sW}, 1
s_add_u32 s81, s81, {sT1}
s_lshl_b32 s81, s81, 9
s_add_u32 s81, s81, {WS_FLAG}
v_and_b32 v16, 15, {vL}
v_lshlrev_b32 v16, 3, v16
v_bfe_u32 v{self.POLL}, {vL}, 4, 1
v_lshl_add_u32 v16, v{self.POLL}, 8, v16
""")
    def poll_issue(self, off, reg=None):
        return mk(f"buffer_load_dwordx2 {V2(reg or self.POLL)}, v16, {sWS}, s81 offen offset:{off} sc1")
    PT = 18; PW = 24; PX = 27; PY = 29; VXO = 34; XR = 36
    def p2setup(self):
        PT, PW, PX, PY, VXO, XR = self.PT, self.PW, self.PX, self.PY, self.VXO, self.XR
        c = mk(f"""
s_lshl_b32 {sT0}, {sR}, 1
s_lshr_b32 {sT1}, {sW}, 1
s_add_u32 {sT0}, {sT0}, {sT1}
s_lshl_b32 s59, {sT0}, 5
s_mul_i32 {sT0}, {sT0}, {RBS}
s_and_b32 {sT1}, {sW}, 1
s_lshl_b32 {sB[0]}, {sT1}, 14
s_add_u32 {sB[0]}, {sB[0]}, {sT0}
s_add_u32 {sB[1]}, {sB[0]}, {32*1024}
s_lshl_b32 {sB[2]}, {sT1}, 15
s_add_u32 {sB[2]}, {sB[2]}, {sT0}
s_add_u32 {sB[2]}, {sB[2]}, {64*1024}
s_lshl_b32 {sB[3]}, {sT1}, 13
s_add_u32 {sB[3]}, {sB[3]}, {sT0}
s_add_u32 {sB[3]}, {sB[3]}, {128*1024}
v_lshlrev_b32 v2, 4, {vL}
v_lshrrev_b32 v4, 2, {vL}
v_add_u32 v6, s59, v4
v_and_b32 v5, 3, {vL}
v_lshlrev_b32 v3, 4, v5
v_lshl_add_u32 v6, v6, 10, v3
s_lshl_b32 {sT0}, {sC}, 7
s_lshl_b32 {sT1}, {sT1}, 6
s_add_u32 {sT0}, {sT0}, {sT1}
v_add_u32 v{VXO}, {sT0}, v6
v_add_u32 v{VXO+1}, 0x4000, v{VXO}
buffer_load_dwordx4 {V4(XR)}, v{VXO}, {sX}, 0 offen
buffer_load_dwordx4 {V4(XR+4)}, v{VXO+1}, {sX}, 0 offen
v_and_b32 v6, 31, {vL}
v_add_u32 v3, s59, v6
v_lshlrev_b32 v33, 4, v3
v_add_u32 v{PW}, {sT3}, v2
v_add_u32 v{PW+1}, 0x10000, v{PW}
v_add_u32 v{PW+2}, 0x20000, v{PW}
v_xor_b32 v{PX}, 0x800, v{PW}
v_lshrrev_b32 v3, 5, {vL}
v_bfe_u32 v{PY}, {vL}, 1, 2
v_xor_b32 v3, v3, v{PY}
v_lshlrev_b32 v3, 4, v3
v_lshl_add_u32 v3, v6, 6, v3
s_add_u32 {sT0}, {sT3}, {7*8192}
v_add_u32 v{PY}, {sT0}, v3
v_xor_b32 v{PY+1}, 32, v{PY}
v_bfe_u32 v3, {vL}, 3, 2
v_xor_b32 v3, v3, v5
v_lshlrev_b32 v3, 4, v3
v_lshl_add_u32 v3, v4, 6, v3
v_add_u32 v{PY+2}, {sT0}, v3
""")
        c += self.traddr([PT + k for k in range(6)])
        return c

    def phase2(self):
        o = self.opt
        BF = [112, 144]; SACC = 176; DACC = 64; ABUF = 144; DEPTH = o.depth
        PT, PW, PX, PY, VXO, XR, POLL = self.PT, self.PW, self.PX, self.PY, self.VXO, self.XR, self.POLL
        TILES = self.TILES
        c = mk("L_join:")
        c += self.stamp(8)
        if o.p1only:
            return c
        def bread(t):
            out = []
            if t < 5: return out
            for h in range(4):
                sg = 2 * self.slot((4 * t + h) // 2) + (h & 1)
                for cb in range(2):
                    for e in range(2):
                        out.append(I(f"ds_read_b64_tr_b16 {A2(BF[t&1]+8*h+4*cb+2*e)}, v{PT+2*(sg//16)+cb} offset:{(sg%16)*4096+e*512}"))
            return out
        c += mk(f"""
v_cmp_ne_u64 vcc, {sNon}, {V2(POLL)}
s_nop 0
s_and_b32 vcc_lo, vcc_lo, 0xff00ff00
s_cbranch_scc1 L_slow_e
L_go:
""")
        PR = [POLL, 62, 64, 66]
        pe = mk(f"L_slow_e:\ns_mov_b32 {sCnt}, 0")
        NP = o.npoll
        for k in range(NP - 1): pe += self.poll_issue(0, PR[k]) + mk("s_sleep 4")
        if NP == 1 and o.psleep: pe += mk(f"s_branch L_se\nL_se2:\ns_sleep {o.psleep}")
        pe += mk("L_se:")
        for k in range(NP):
            pe += self.poll_issue(0, PR[(k + NP - 1) % NP]) + mk(f"s_waitcnt vmcnt({NP - 1})\nv_cmp_ne_u64 vcc, {sNon}, {V2(PR[k])}\ns_nop 1\ns_and_b32 vcc_lo, vcc_lo, 0xff00ff00\ns_cbranch_scc0 L_se_done")
        pe += mk(f"""
s_add_u32 {sCnt}, {sCnt}, 1
s_cmp_gt_u32 {sCnt}, 10000
s_cbranch_scc0 {"L_se2" if NP == 1 and o.psleep else "L_se"}
L_se_done:
s_branch L_go
""")
        for z in range(2 if o.hflag2 else 1):
            pe += mk(f"L_slow_o{z}:\ns_mov_b32 {sCnt}, 0\nL_so{z}:") + self.poll_issue(128 * z if o.hflag2 else 128) + mk(f"""
s_add_u32 {sCnt}, {sCnt}, 1
s_waitcnt vmcnt(0)
v_cmp_ne_u64 vcc, {sNon}, {V2(POLL)}
s_and_b32 vcc_lo, vcc_lo, 0xff00ff
s_cbranch_scc0 L_back_o{z}
s_cmp_gt_u32 {sCnt}, 20000
s_cbranch_scc0 L_so{z}
s_branch L_back_o{z}
""")
        self.slow2 = pe
        c += self.stamp(9) + self.stamp(10)
        vm = []
        def aload(t):
            r, k = TILES[2 * t]; b = ABUF + 16 * (t % DEPTH)
            vm.extend([("a", t)] * 4)
            t0 = f"s_add_u32 {sT0}, {sB[r]}, {k*1024}" if not o.rot else f"s_add_u32 {sT0}, s63, {k*1024}\ns_and_b32 {sT0}, {sT0}, {self.RSIZE[r]*1024 - 1}\ns_add_u32 {sT0}, {sT0}, {sB[r]}"
            return mk(t0) + [I(f"buffer_load_dwordx4 {V4(b+4*h)}, v2, {sWS}, {sT0} offen offset:{1024*h} sc1") for h in range(4)]
        def young(tag): return len(vm) - 1 - max(k for k, t in enumerate(vm) if t == tag)
        for t in range(o.burst): c += aload(t)
        c += mk(f"s_mov_b32 {sT1}, {WS_STAT}\nbuffer_load_dword v{XR+8}, v33, {sWS}, {sT1} offen sc1"); vm.append(("rs", 0))
        c += mk(f"s_waitcnt vmcnt({len(vm)})")
        c += self.flagstore(sT2, 12); vm.append(("fl", 0))
        c += mk("s_barrier")
        c += bread(0)
        M32 = "v_mfma_f32_32x32x16_bf16"
        issued = o.burst; nwr = 0
        TP = 10 - o.burst - o.plead; TP2 = 14 - o.burst - o.plead
        xo = [24576, 25600, 32768, 33792]
        RX = ABUF + 16 * (12 % DEPTH)
        TM = ABUF + 16 * (13 % DEPTH)
        el = range(16)
        xun = []
        for k in range(8):
            xun += mk(f"v_lshlrev_b32 v{46+2*k}, 16, v{XR+k}\nv_and_b32 v{47+2*k}, 0xffff0000, v{XR+k}")
        pre_d = mk(f"v_mul_f32 v{XR+8}, v{XR+8}, v{XR+8}\nv_mul_f32 v{XR+9}, 0xbfb8aa3b, v{XR+8}\nv_mov_b32 v62, 1.0")
        def stage(k, e, pk):
            D, R, T = DACC + e, RX + e, TM + e
            if not pk:
                return [f"v_add_f32 v{D}, v{D}, v{R}", f"v_mul_f32 v{T}, v{XR+9}, v{D}", f"v_exp_f32 v{T}, v{T}", f"v_mul_f32 v{D}, v{XR+8}, v{D}",
                        f"v_add_f32 v{T}, 1.0, v{T}", f"v_rcp_f32 v{T}, v{T}", f"v_mul_f32 v{D}, v{D}, v{T}"][k]
            return [f"v_pk_add_f32 {V2(D)}, {V2(D)}, {V2(R)}", f"v_pk_mul_f32 {V2(T)}, {V2(D)}, {V2(XR+8)} op_sel:[0,1] op_sel_hi:[1,1]", None,
                    f"v_pk_mul_f32 {V2(D)}, {V2(D)}, {V2(XR+8)} op_sel_hi:[1,0]", f"v_pk_add_f32 {V2(T)}, {V2(T)}, {V2(62)} op_sel_hi:[1,0]", None,
                    f"v_pk_mul_f32 {V2(D)}, {V2(D)}, {V2(T)}"][k]
        todo = [(k, e) for k in range(7) for e in el]
        def take(n):
            out = [I(stage(k, e, False)) for k, e in todo[:n]]; del todo[:n]
            return out
        def rest_packed():
            out = []
            while todo:
                k, e = todo.pop(0)
                if e % 2 == 0 and todo and todo[0] == (k, e + 1) and stage(k, e, True): todo.pop(0); out.append(I(stage(k, e, True)))
                else: out.append(I(stage(k, e, False)))
            return out
        BARS = [9, 13, 15]
        for t in range(18):
            b = ABUF + 16 * (t % DEPTH)
            bar = t in BARS
            c += mk(f"s_waitcnt vmcnt({young(('a', t))}) lgkmcnt({0 if (bar or t == 16) else nwr})" + ("\ns_barrier" if bar else ""))
            if o.p2stamps and t in (0, 4, 9, 14, 16, 17): c += self.stamp({0: 2, 4: 3, 9: 4, 14: 5, 16: 6, 17: 7}[t], True)
            mm = []
            for h in range(4):
                for cb in range(2):
                    k = 16 * cb
                    d = f"v[{96+k}:{96+k+15}]" if t >= 14 else f"v[{DACC+k}:{DACC+k+15}]"
                    cc = "0" if (t in (0, 14) and h == 0) else d
                    mm.append(I(f"{M32} {d}, {A4((self.frag(4*t+h) if t < 5 else BF[t&1]+8*h)+4*cb)}, {V4(b+4*h)}, {cc}"))
            lds = bread(t + 1) if t < 17 else []
            wr = []
            if True:
                for k in {9: range(0, 4), 10: range(4, 8), 11: range(8, 11), 12: range(11, 14)}.get(t, []):
                    u = 29 + k // 2; blk = k & 1; sg = self.slot(u)
                    wr.append(I(f"ds_write_b128 v{PW+sg//8}, {A4(self.stg(u, blk))} offset:{(sg%8)*8192+blk*1024}"))
            if t == 14:
                wr += [I(f"ds_write_b128 v{PW}, {V4(DACC+16+4*p)} offset:{xo[p]}") for p in range(4)]
            if t == 15:
                lds = [I(f"ds_read_b128 {V4(RX+4*p)}, v{PX} offset:{xo[p]}") for p in range(4)] + lds
            if t == 14: wr += pre_d
            if t == 15: wr += xun
            if t >= 16: wr = take(o.dsh[t - 16])
            ld = []
            if False:
                ld += self.flagstore(sT2, 12); vm.append(("fl", 0))
            if t == TP: ld += self.poll_issue(0 if o.hflag2 else 128); vm.append(("po", 0))
            if t == TP2 and o.hflag2: ld += self.poll_issue(128, 60); vm.append(("po", 1))
            if issued < 18 and issued - DEPTH < t:
                if issued in ((10, 14) if o.hflag2 else (10,)):
                    z = int(issued == 14)
                    ld.append(mk(f"s_waitcnt vmcnt({young(('po', z))})\nv_cmp_ne_u64 vcc, {sNon}, {V2(60 if z else POLL)}\ns_nop 0\ns_and_b32 vcc_lo, vcc_lo, 0xff00ff\ns_cbranch_scc1 L_slow_o{z}\nL_back_o{z}:"))
                ld += aload(issued); issued += 1
            seq = []
            while ld or wr:
                if ld: seq.append(ld.pop(0))
                if wr: seq.append(wr.pop(0))
            if "m" in o.p2: mm = [I("s_nop 0") for _ in mm]
            if "w" in o.p2: seq = [x for x in seq if isinstance(x, list) or not x.op.startswith("ds_write")]
            wv = weave(mm, lds, seq, per_gap=(6 if t >= 16 else o.p2gap), lds_per_gap=o.p2lds, oth_start=(2 if t == 14 else 0))
            dsl = [x for x in wv if x.kind == "ds"]
            last = max([k for k, x in enumerate(dsl) if x.op.startswith("ds_read")], default=-1)
            nwr = len(dsl) - 1 - last
            if o.align == 3:
                for i in wv: i.padok = False
            c += wv
        c += self.stamp(11)
        dval = rest_packed()
        lead = min(8, len(dval))
        c += dval[:lead]; dval = dval[lead:]
        per = -(-len(dval) // 8)
        for p in range(4):
            c += mk(f"ds_write_b128 v{PW}, {V4(112+4*p)} offset:{16384+xo[p]}") + dval[:per]; dval = dval[per:]
        SV = 96
        c += mk("s_waitcnt lgkmcnt(0)\ns_barrier")
        c += [I(f"ds_read_b128 {V4(RX+4*p)}, v{PX} offset:{16384+xo[p]}") for p in range(4)]
        c += dval
        c += mk("s_waitcnt lgkmcnt(0)")
        c += [I(f"v_pk_add_f32 {V2(SV+2*e)}, {V2(SV+2*e)}, {V2(RX+2*e)}") for e in range(8)]
        c += [I(f"v_pk_mul_f32 {V2(SV+2*e)}, {V2(SV+2*e)}, {V2(DACC+2*e)}") for e in range(8)]
        c += [I(f"v_cvt_pk_bf16_f32 v{8+e}, v{SV+2*e}, v{SV+2*e+1}") for e in range(8)]
        c += mk(f"""
ds_write_b128 v{PY}, {V4(8)}
ds_write_b128 v{PY+1}, {V4(12)}
ds_read_b128 {V4(112)}, v{PY+2}
ds_read_b128 {V4(116)}, v{PY+2} offset:1024
""")
        for hh in range(2):
            c += mk(f"s_waitcnt lgkmcnt({1-hh})")
            for k in range(4):
                c += mk(f"v_lshlrev_b32 v{SV+8*hh+2*k}, 16, v{112+4*hh+k}\nv_and_b32 v{SV+8*hh+2*k+1}, 0xffff0000, v{112+4*hh+k}")
            for k in range(4): c += mk(f"v_pk_add_f32 {V2(SV+8*hh+2*k)}, {V2(SV+8*hh+2*k)}, {V2(46+8*hh+2*k)}")
            for k in range(4): c += mk(f"v_cvt_pk_bf16_f32 v{120+4*hh+k}, v{SV+8*hh+2*k}, v{SV+8*hh+2*k+1}")
            c += mk(f"buffer_store_dwordx4 {V4(120+4*hh)}, v{VXO+hh}, {sOUT}, 0 offen {o.outfl}")
        return c

    def finish(self):
        c = []
        if self.opt.amp:
            k, mult = self.opt.amp
            c += self.stamp(12)
            c += mk(f"""
s_waitcnt vmcnt(0)
s_cmp_lg_u32 s2, 77
s_cbranch_scc1 L_end
v_readlane_b32 s96, v7, {k}
s_sub_u32 s96, s96, s98
s_mul_i32 s96, s96, {mult}
s_min_u32 s96, s96, 100000
s_memrealtime s[100:101]
s_waitcnt lgkmcnt(0)
s_add_u32 s96, s96, s100
L_amp:
s_memrealtime s[100:101]
s_waitcnt lgkmcnt(0)
s_sub_u32 s97, s96, s100
s_cmp_gt_i32 s97, 0
s_cbranch_scc1 L_amp
L_end:
s_endpgm
""")
            return c
        if self.opt.stamps:
            c += self.stamp(12)
            c += mk(f"""
s_waitcnt vmcnt(0)
s_memrealtime s[96:97]
s_waitcnt lgkmcnt(0)
v_writelane_b32 v7, s96, 13
v_writelane_b32 v7, s98, 0
v_writelane_b32 v7, {sTyp}, 14
s_add_u32 s{bWS}, s66, {STAMP}
s_addc_u32 s{bWS+1}, s67, 0
s_mov_b32 s{bWS+2}, 0x100000
s_lshl_b32 {sT0}, s2, 2
s_add_u32 {sT0}, {sT0}, {sW}
s_lshl_b32 {sT0}, {sT0}, 7
v_lshlrev_b32 v4, 2, {vL}
s_mov_b64 exec, 0xffffffff
buffer_store_dword v7, v4, {sWS}, {sT0} offen
""")
        c += mk("L_end:\ns_endpgm")
        return c

    def build(self):
        pro = self.prologue()
        tys = [self.type_code(t) for t in range(2)]
        p2 = self.phase2()
        fin = self.finish()
        if self.opt.walk:
            def stubs(code, names, skip):
                code = flatten(code); n = len(code)
                pos = list(range(skip, n - 8, self.opt.walk))
                per = -(-len(pos) // len(names)); ins = {}
                for k, p in enumerate(pos):
                    q, r = divmod(k, per)
                    last = r == per - 1 or k == len(pos) - 1
                    ins[p] = mk(f"H_{names[q]}_{r}:\ns_cbranch_execz " + ("L_wback" if last else f"H_{names[q]}_{r+1}"))
                out = []
                for k, i in enumerate(code):
                    if k in ins: out += ins[k]
                    out.append(i)
                return out
            tys = [(stubs(tys[0][0], ["a0", "a1", "a2"], self.opt.wskip), tys[0][1]), (stubs(tys[1][0], ["b0", "b1", "b2"], self.opt.wskip), tys[1][1])]
            p2 = stubs(p2, ["p"], 1)
        tot = 0
        for t in range(2):
            tot += fix_hazards(pro + tys[t][0] + p2 + fin, self.opt.verbose)
        for t in range(2):
            fix_hazards(tys[t][1], self.opt.verbose)
            e, mx = check_waits(pro + tys[t][0] + p2 + fin, f"t{t}")
            print(f"type {t}: wait errors {e}, max vm outstanding {mx}", file=sys.stderr)
        print(f"inserted nop states: {tot}", file=sys.stderr)
        slow2 = getattr(self, "slow2", [])
        fix_hazards(slow2)
        code = pro + tys[0][0] + tys[1][0] + p2 + fin + tys[0][1] + tys[1][1] + slow2
        L = KN + "_kernel"
        if self.opt.align:
            wrap = lambda t: f'.amdgcn_target "amdgcn-amd-amdhsa--gfx950"\n.text\n.p2align 8\n{t}L_codeend:\n'
            print("align (promoted, padded):", align8(code, wrap, self.opt.align > 1), file=sys.stderr)
        hdr = open("cdna_kernels/" + KN + ".s.ref").read().split("; Override launch")[0] if self.opt.final else ""
        out = hdr + f"; @launch grid=(256,1,1) block=(256,1,1) lds={LDS_BYTES}\n"
        out += f'.amdgcn_target "amdgcn-amd-amdhsa--gfx950"\n.text\n.globl {L}\n.p2align 8\n.type {L},@function\n{L}:\n'
        out += text(code)
        out += "s_endpgm\n.p2align 6\nL_codeend:\n"
        out += f""".section .rodata,"a"
.p2align 6
.amdhsa_kernel {L}
  .amdhsa_next_free_vgpr 512
  .amdhsa_next_free_sgpr 102
  .amdhsa_accum_offset 256
  .amdhsa_group_segment_fixed_size 0
  .amdhsa_kernarg_size 80
  .amdhsa_user_sgpr_count 2
  .amdhsa_user_sgpr_kernarg_segment_ptr 1
  .amdhsa_system_sgpr_workgroup_id_x 1
  .amdhsa_float_denorm_mode_32 3
.end_amdhsa_kernel
"""
        return out

if __name__ == "__main__":
    ap = argparse.ArgumentParser()
    ap.add_argument("-o", default="k.s")
    for f in ("stamps", "p1only", "verbose", "final", "nomfma", "noreads", "nocs", "nopf", "epistamps", "prostamps", "p2stamps"): ap.add_argument("--" + f, action="store_true")
    ap.add_argument("--p2", default="")
    ap.add_argument("--p2gap", type=int, default=4)
    ap.add_argument("--burst", type=int, default=3)
    ap.add_argument("--ramp", type=int, default=2)
    ap.add_argument("--nstage_b", type=int, default=0)
    ap.add_argument("--depth", type=int, default=7)
    ap.add_argument("--pf0", type=int, default=2)
    ap.add_argument("--tlb", type=int, default=0)
    ap.add_argument("--kgroups", type=int, default=4)
    ap.add_argument("--quota", type=int, default=10)
    ap.add_argument("--ko", default="")
    ap.add_argument("--qs", type=lambda x: [int(ch, 16) for ch in x], default=[int(ch, 16) for ch in "0999999988880000"])
    ap.add_argument("--qb", type=int, default=1)
    ap.add_argument("--sg", type=int, default=10)
    ap.add_argument("--ss", type=int, default=12)
    ap.add_argument("--sc", type=int, default=2)
    ap.add_argument("--cuts", type=lambda x: [int(v) for v in x.split(",")], default=[36, 56, 86])
    ap.add_argument("--xsched", default="0000000000000000")
    ap.add_argument("--xfirst", type=int, default=3)
    ap.add_argument("--plead", type=int, default=2)
    ap.add_argument("--pfa", type=int, default=0)
    ap.add_argument("--bearly", type=int, default=4)
    ap.add_argument("--stst", type=lambda x: [int(v) for v in x.split(",")], default=[1, 5, 11])
    ap.add_argument("--ntxt", type=int, default=0)
    ap.add_argument("--xt0", type=int, default=0)
    ap.add_argument("--hflag2", type=int, default=0)
    ap.add_argument("--psleep", type=int, default=0)
    ap.add_argument("--dsh", type=lambda x: [int(v) for v in x.split(",")], default=[28, 40])
    ap.add_argument("--latefrom", type=float, default=0.1)
    ap.add_argument("--pord", default="tt1X")
    ap.add_argument("--walk", type=int, default=0)
    ap.add_argument("--wskip", type=int, default=120)
    ap.add_argument("--hearly", type=int, default=1)
    ap.add_argument("--hpos", type=int, default=0)
    ap.add_argument("--nfirst_a", type=int, default=10)
    ap.add_argument("--bsplit", type=int, default=4)
    ap.add_argument("--bpt", type=int, default=64)
    ap.add_argument("--nstage_a", type=int, default=12)
    ap.add_argument("--pollahead", type=int, default=4)
    ap.add_argument("--ofirst", type=int, default=0)
    ap.add_argument("--olate", type=int, default=0)
    ap.add_argument("--npoll", type=int, default=2)
    ap.add_argument("--rotc", type=int, default=0)
    ap.add_argument("--ut0", type=int, default=0)
    ap.add_argument("--utper", type=int, default=2)
    ap.add_argument("--utfl", default="")
    ap.add_argument("--rot", type=int, default=0)
    ap.add_argument("--probe", type=int, default=-1)
    ap.add_argument("--halo", type=int, default=1)
    ap.add_argument("--outfl", default="sc1")
    ap.add_argument("--protouch", type=int, default=2)
    ap.add_argument("--tfirst", type=int, default=1)
    ap.add_argument("--ntx", type=int, default=0)
    ap.add_argument("--ntw", type=int, default=0)
    ap.add_argument("--ntt", type=int, default=0)
    ap.add_argument("--late", type=int, default=0)
    ap.add_argument("--pford", default="h2,h3,h1,o")
    ap.add_argument("--hflag", type=float, default=0.5)
    ap.add_argument("--csplit", type=int, default=1)
    ap.add_argument("--quota0", type=int, default=11)
    ap.add_argument("--wtouch", type=int, default=2)
    ap.add_argument("--wfirst", type=int, default=1)
    ap.add_argument("--statlag", type=int, default=3)
    ap.add_argument("--rotmask", type=int, default=6)
    ap.add_argument("--pfsched", default="0011111111100000")
    ap.add_argument("--statstep", type=int, default=0)
    ap.add_argument("--pfrot", type=int, default=7)
    ap.add_argument("--amp", type=lambda x: tuple(int(v) for v in x.split(",")), default=None)
    ap.add_argument("--wsched", default="033333333333300000")
    ap.add_argument("--bars", default="1,3,5,7,9,11,13,15")
    ap.add_argument("--align", type=int, default=0)
    ap.add_argument("--proextra", type=int, default=1)
    ap.add_argument("--dshadow", type=int, default=60)
    ap.add_argument("--pollpos", type=int, default=20)
    ap.add_argument("--stsched", type=lambda x: [int(ch) for ch in x], default=[int(ch) for ch in "0000000000033334"])
    ap.add_argument("--p2lds", type=int, default=4)
    ap.add_argument("--pfslice", type=int, default=4096)
    opt = ap.parse_args()
    import subprocess, re, os
    for _ in range(2):
        open(opt.o, "w").write(G(opt).build())
        subprocess.check_call(["clang", "-x", "assembler", "-target", "amdgcn-amd-amdhsa", "-mcpu=gfx950", "-c", opt.o, "-o", opt.o + ".o"])
        t = subprocess.check_output(["llvm-objdump", "-t", opt.o + ".o"], text=True)
        sym = {m.group(2): int(m.group(1), 16) for m in re.finditer(r"^([0-9a-f]{16}) .* (L_\w+)$", t, re.M)}
        n = sym["L_codeend"] - sym["L_pc"]
        opt.pfslice = (n - 12288) // 7 // 16 * 16
        assert 0 < opt.pfslice <= 8192
        opt.verbose = False
    os.remove(opt.o + ".o")
    print("code bytes", sym["L_codeend"], "pfslice", opt.pfslice, {k: v for k, v in sym.items() if k in ("L_pc", "L_tb", "L_join", "L_go", "L_end")}, file=sys.stderr)
```

```python
import sys, argparse, struct
from fw import *
KN = "recurrent_scan__sliding_local_dilated__glu_gated_bilinear__prompt"

WSLOT = 20480
XBASE = 5 * WSLOT
XSLOT = 18432
MISC = XBASE + 3 * XSLOT
STATL = MISC
LDS_BYTES = 163840
RBS = 144 * 1024
WS_STAT = 0x900000
WS_FLAG = 0x910000
WS_SIZE = 0x920000
STAMP = 200 << 20
def S4(b): return f"s[{b}:{b+3}]"
bX, bWO, bWD, bOUT, bWS, bDBG = 4, 8, 12, 16, 20, 24
sX, sWO, sWD, sOUT, sWS, sDBG = map(S4, (bX, bWO, bWD, bOUT, bWS, bDBG))
bS = [28, 32, 36, 40, 44]; sS = [S4(b) for b in bS]
sW, sM, sN, sR, sC = "s68", "s69", "s70", "s71", "s72"
sKa, sKb, sIncA = "s73", "s74", "s75"
sWoff, sXoff, sHoff = "s76", "s77", "s78"
sIdx, sTyp = "s79", "s80"
sT0, sT1, sT2, sT3 = "s82", "s83", "s84", "s85"
sNon = "s[86:87]"; sNonL, sNonH = "s86", "s87"
sU = ["s88", "s89", "s90"]
sEx = "s[94:95]"
sB = ["s48", "s49", "s50", "s51"]
sWB = ["s52", "s53", "s56", "s57"]
sCnt = "s58"
sXc = "s93"; sXk = "s92"
vL = "v1"
vX = ["v8", "v9"]; vH = ["v10", "v11"]; vWg = ["v12", "v13", "v14", "v15", "v16"]; vB2 = "v17"
RA = 18
RT = 22
VST = 26
BIAS = 30
GAT = 76
NON = 56
GA = 58
SX = 60
V4 = lambda r: f"v[{r}:{r+3}]"
V2 = lambda r: f"v[{r}:{r+1}]"
A4 = lambda r: f"a[{r}:{r+3}]"
A2 = lambda r: f"a[{r}:{r+1}]"
CSACC = 228
ONES = 252
def f2h(x): return "0x%08x" % struct.unpack("<I", struct.pack("<f", x))[0]
aQ = lambda i: 88 + 4 * i
aK = lambda i: 120 + 4 * i
aV = lambda i: 156 + 4 * i
aG = lambda i: 192 + 4 * i
aU = lambda i: 224 + 4 * i
bAcc = lambda g, i: 96 + 32 * g + 4 * i
bMix = lambda u, i: 224 + 16 * u + 4 * i
NA = {0: 9, 1: 8}; NB = {0: 5, 1: 6}
fA = lambda st, i: 56 * st + 4 * i
def fB(ty, st, j): return 56 * st + 4 * NA[ty] + 4 * j
M16 = "v_mfma_f32_16x16x32_bf16"

class G:
    def __init__(self, opt): self.opt = opt; self.young = {}
    def pstamp(self, k):
        return self.stamp(k, True) if self.opt.prostamps else []
    def stamp(self, k, force=False):
        if not self.opt.stamps: return []
        if (self.opt.prostamps or self.opt.p2stamps) and 2 <= k <= 7 and not force: return []
        if self.opt.probe >= 0 and k in (2, 3) and not force: return []
        if self.opt.epistamps and k in (2, 3, 4) and not force: return []
        return mk(f"s_memrealtime s[96:97]\ns_memtime s[100:101]\ns_waitcnt lgkmcnt(0)\nv_writelane_b32 v7, s96, {k}\nv_writelane_b32 v7, s100, {16+k}")

    def scc_live(self, flat, k):
        for ins in flat[k:]:
            if ins.op.startswith(("s_cselect", "s_cbranch_scc", "s_addc")): return True
            if ins.kind == "salu" and not ins.op.startswith(("s_mov", "s_waitcnt", "s_nop", "s_movk")): return False
        return False
    def mksrd(self, b, p, size):
        return mk(f"s_mov_b32 s{b}, s{p}\ns_mov_b32 s{b+1}, s{p+1}\ns_mov_b32 s{b+2}, {size}\ns_mov_b32 s{b+3}, 0x20000")

    def dma_x(self, p, h, halo=True):
        base = XBASE + (p % 3) * XSLOT
        L = [mk(f"s_add_u32 {sXk}, {sXc}, {h*16384}\ns_add_u32 m0, {sXoff}, {base + 2048*h}\nbuffer_load_dwordx4 {vX[0]}, {sX}, {sXk} offen lds"),
             mk(f"s_add_u32 m0, {sXoff}, {base + 2048*h + 1024}\nbuffer_load_dwordx4 {vX[1]}, {sX}, {sXk} offen lds")]
        if halo:
            ho = "s3" if (self.opt.halo and h == 0) else sHoff
            L.append(mk(f"s_add_u32 m0, {ho}, {base + 256*h}\nbuffer_load_dword {vH[h]}, {sX}, {sXc} offen lds"))
        if h == 1: L[-1] += mk(f"s_add_u32 {sXc}, {sXc}, 128\ns_and_b32 {sXc}, {sXc}, 1023")
        if p < self.opt.ntx:
            for a in L:
                for i in a:
                    if i.kind == "vmem": i.text = i.text.replace(" lds", " nt lds")
        if "x" in self.opt.ko and p > 0:
            for a in L:
                for i in a:
                    if i.kind == "vmem": i.text = i.text.replace(sXk, "0").replace(sXc, "0")
        return L
    def dma_w(self, s):
        base = (s % 5) * WSLOT
        L = []
        for g in range(5):
            L.append(mk(f"s_add_u32 m0, {sWoff}, {base + 4096*g}\nbuffer_load_dwordx4 {vWg[g]}, {sS[g]}, {sKa if g < 3 else sKb} offen{' nt' if s < self.opt.ntw else ''} lds"))
        if "w" not in self.opt.ko: L[-1] += mk(f"s_add_u32 {sKa}, {sKa}, {sIncA}\ns_add_u32 {sKb}, {sKb}, {32*3584}")
        G = self.opt.kgroups
        if G > 1 and (s + 1) % (16 // G) == 0 and s < 15:
            L[-1].append(mk(f"s_cmp_eq_u32 {sKb}, {512*3584}\ns_cselect_b32 {sKa}, 0, {sKa}\ns_cselect_b32 {sKb}, 0, {sKb}"))
        return L
    def dma_queue(self, ty):
        Q = []
        for s in range(16):
            if s % 2 == 0 and ("x", s // 2) not in self.vm0:
                p = s // 2
                for h in range(2):
                    for a in self.dma_x(p, h, halo=(ty == 0)): Q.append((max(0, 2 * p - 5), ("x", p), a))
            if ("w", s) not in self.vm0:
                for a in self.dma_w(s): Q.append((max(0, s - 5), ("w", s), a))
        return Q

    def wtouch(self, n):
        return mk(f"""
v_add_u32 v44, 2, v44
v_and_b32 v44, 15, v44
v_lshl_add_u32 v48, v44, 5, v45
v_mad_u32_u24 v49, v48, s86, v46
v_mad_u32_u24 v48, v48, s87, v47
buffer_load_dword a{220 + 2 * n}, v49, s[88:91], s54 offen{' nt' if self.opt.ntt else ''}
buffer_load_dword a{221 + 2 * n}, v48, {sS[4]}, s55 offen{' nt' if self.opt.ntt else ''}
""")
    def prologue(self):
        o = self.opt
        vm = self.vm0 = []
        def note(L, tag):
            L = flatten(L)
            for i in L:
                if i.kind == "vmem": vm.append(tag)
            return L
        c = mk(f"""
s_load_dwordx16 s[48:63], s[0:1], 0
s_load_dwordx4 s[64:67], s[0:1], 64
s_cmp_ge_u32 s2, 256
s_cbranch_scc1 L_end
""")
        if o.stamps: c += mk("v_mov_b32 v7, 0\ns_memrealtime s[98:99]")
        c += note(mk(f"""
s_getpc_b64 s[88:89]
L_pc:
v_lshlrev_b32 v2, 4, v0
s_lshr_b32 {sT1}, s2, 3
s_and_b32 {sT0}, {sT1}, 7
s_mul_i32 {sT0}, {sT0}, {o.pfslice}
global_load_dwordx4 a[112:115], v2, s[88:89]
v_add_u32 v3, 0x1000, v2
s_add_u32 s88, s88, {sT0}
s_addc_u32 s89, s89, 0
global_load_dwordx4 a[116:119], v3, s[88:89]
v_add_u32 v3, 0x1000, v3
global_load_dwordx4 a[120:123], v3, s[88:89]
"""), ("pre", 0))
        c += mk(f"""
v_lshrrev_b32 v2, 6, v0
v_and_b32 {vL}, 63, v0
s_and_b32 {sT0}, s2, 7
v_readfirstlane_b32 {sW}, v2
s_lshr_b32 {sM}, {sT0}, 2
s_lshl_b32 {sM}, {sM}, 3
s_lshr_b32 {sT2}, {sT1}, 2
s_add_u32 {sM}, {sM}, {sT2}
v_lshrrev_b32 v5, 3, {vL}
v_lshrrev_b32 v3, 4, {vL}
v_xor_b32 v4, v3, {vL}
v_and_b32 v4, 7, v4
v_lshlrev_b32 v4, 4, v4
s_lshl_b32 {sT3}, {sM}, 7
s_lshl_b32 {sT2}, {sW}, 5
s_add_u32 {sT2}, {sT2}, {sT3}
v_add_u32 v6, {sT2}, v5
v_lshl_add_u32 {vX[0]}, v6, 10, v4
v_xor_b32 {vX[1]}, 64, {vX[0]}
v_add_u32 {vX[1]}, 0x2000, {vX[1]}
s_lshl_b32 {sT2}, {sW}, 2
s_add_u32 {sT2}, {sT2}, {sT3}
s_sub_u32 {sT2}, {sT2}, 16
v_lshrrev_b32 v6, 5, {vL}
v_add_u32 v6, {sT2}, v6
s_lshl_b32 {sXoff}, {sW}, 5
v_lshlrev_b32 v4, 2, {vL}
v_and_b32 v4, 0x7f, v4
v_xor_b32 v4, {sXoff}, v4
v_max_i32 v2, 0, v6
v_lshl_add_u32 {vH[0]}, v2, 10, v4
v_add_u32 v6, 2, v6
v_max_i32 v2, 0, v6
v_xor_b32 v4, 16, v4
v_lshl_add_u32 {vH[1]}, v2, 10, v4
s_lshl_b32 {sXoff}, {sW}, 12
s_add_u32 {sXoff}, {sXoff}, 2048
s_lshl_b32 {sHoff}, {sW}, 9
s_cmp_eq_u32 {sW}, 0
s_cselect_b32 s3, 0x10000, {sHoff}
s_cselect_b32 {sXc}, {0x80000000 if o.halo else 0}, 0
v_or_b32 {vH[0]}, {sXc}, {vH[0]}
s_lshl_b32 {sXc}, s2, 1
s_and_b32 {sXk}, s2, 4
s_add_u32 {sXc}, {sXc}, {sXk}
s_and_b32 {sXc}, {sXc}, {o.rotmask}
s_lshl_b32 s81, {sXc}, 1
s_lshl_b32 {sXc}, {sXc}, 7
s_and_b32 {sT2}, {sT1}, 3
s_lshl_b32 {sT2}, {sT2}, 2
s_add_u32 {sT2}, {sT2}, {sW}
s_mul_i32 {sT2}, {sT2}, 9
s_add_u32 {sT2}, {sT2}, {sT3}
s_sub_u32 {sT2}, {sT2}, 16
v_add_u32 v50, {sT2}, {vL}
v_max_i32 v50, 0, v50
v_cmp_le_u32 vcc, 9, {vL}
v_lshlrev_b32 v50, 10, v50
v_mov_b32 v6, 0x80000000
v_cndmask_b32 v50, v50, v6, vcc
s_mov_b32 s{bX+2}, {2048*1024}
s_mov_b32 s{bX+3}, 0x20000
s_waitcnt lgkmcnt(0)
s_mov_b32 s{bX}, s48
s_mov_b32 s{bX+1}, s49
""")
        c += self.pstamp(2)
        if o.xt0:
            c += note(mk(f"buffer_load_dword a227, v50, {sX}, {sXc} offen{' nt' if o.ntxt else ''}"), ("xt", 0))
            if o.xt0 > 1: c += note(mk(f"s_add_u32 {sXk}, {sXc}, 128\ns_and_b32 {sXk}, {sXk}, 1023\nbuffer_load_dword a226, v50, {sX}, {sXk} offen{' nt' if o.ntxt else ''}"), ("xt", 0))
        c += note(self.dma_x(0, 0) + self.dma_x(0, 1), ("x", 0))
        c += self.pstamp(3)
        c += mk(f"""
s_lshl_b32 {sWoff}, {sW}, 10
s_and_b32 {sN}, {sT0}, 3
s_lshl_b32 {sIdx}, {sN}, 1
s_lshl_b32 {sN}, {sN}, 2
s_and_b32 {sT2}, {sT1}, 3
s_add_u32 {sN}, {sN}, {sT2}
s_lshr_b32 {sTyp}, {sT2}, 1
s_and_b32 {sT2}, {sT2}, 1
s_add_u32 {sIdx}, {sIdx}, {sT2}
s_and_b32 {sT2}, {sW}, 1
s_lshl_b32 {sT3}, {sT2}, 2
v_and_b32 v4, 2, v5
v_or_b32 v4, {sT3}, v4
v_xor_b32 v4, v4, {vL}
v_and_b32 v4, 7, v4
v_lshlrev_b32 v4, 4, v4
s_lshl_b32 {sT3}, {sW}, 3
v_add_u32 v6, {sT3}, v5
s_movk_i32 s87, 3584
s_movk_i32 s86, 3072
s_lshl_b32 s95, {sIdx}, 7
s_lshl_b32 {sT3}, {sIdx}, 8
s_add_u32 {sT3}, {sT3}, 1024
s_add_u32 s49, s95, 1024
s_add_u32 s94, s95, 2048
s_add_u32 s54, {sT3}, 128
s_lshl_b32 s55, {sIdx}, 6
s_add_u32 s55, s55, 3072
s_cmp_eq_u32 {sTyp}, 1
s_cselect_b32 s86, s87, s86
s_cselect_b32 s48, {sT3}, s95
s_cselect_b32 s49, {sT3}, s49
s_cselect_b32 s94, s54, s94
s_cselect_b32 s55, s55, s95
s_cselect_b32 s95, s54, s95
s_cselect_b64 vcc, -1, 0
s_cselect_b32 s28, s56, s50
s_cselect_b32 s29, s57, s51
s_cselect_b32 s32, s58, s50
s_cselect_b32 s33, s59, s51
s_cselect_b32 s40, s58, s56
s_cselect_b32 s41, s59, s57
v_mad_u32_u24 v2, v6, s86, v4
v_mad_u32_u24 v3, v6, s87, v4
s_lshl_b32 s30, s86, 9
s_lshl_b32 {sIncA}, s86, 5
v_add_u32 {vWg[0]}, s48, v2
v_add_u32 {vWg[1]}, s49, v2
v_add_u32 {vWg[2]}, s94, v2
v_add_u32 {vWg[3]}, s95, v3
s_mov_b32 s31, 0x20000
s_mov_b32 s34, s30
s_mov_b32 s35, 0x20000
s_mov_b32 s36, s28
s_mov_b32 s37, s29
s_mov_b32 s38, s30
s_mov_b32 s39, 0x20000
s_mov_b32 s42, {512*3584}
s_mov_b32 s43, 0x20000
v_lshrrev_b32 v4, 4, {vL}
v_and_b32 v4, 2, v4
v_xor_b32 v4, v4, {vL}
v_and_b32 v4, 3, v4
v_lshlrev_b32 v4, 4, v4
s_lshl_b32 {sT2}, {sT2}, 4
v_lshrrev_b32 v6, 2, {vL}
v_add_u32 v6, {sT2}, v6
v_mad_u32_u24 v4, v6, s87, v4
s_lshl_b32 {sT2}, {sTyp}, 1
s_cmp_lt_u32 {sW}, {sT2}
s_cselect_b32 s44, s56, s58
s_cselect_b32 s45, s57, s59
s_mov_b32 s46, s42
s_mov_b32 s47, 0x20000
v_cndmask_b32 v4, v3, v4, vcc
s_mul_i32 {sKa}, s81, {sIncA}
s_mul_i32 {sKb}, s81, {32*3584}
v_add_u32 {vWg[4]}, s55, v4
""")
        c += note(self.dma_w(0), ("w", 0))
        c += self.pstamp(4)
        c += mk(f"""
v_lshrrev_b32 v2, 4, {vL}
v_bfe_u32 v3, {vL}, 2, 2
v_and_b32 v4, 3, {vL}
v_and_b32 v6, 15, {vL}
v_lshrrev_b32 v5, 1, v6
v_xor_b32 v5, v5, v2
v_lshlrev_b32 v5, 4, v5
v_lshl_add_u32 v5, v6, 7, v5
v_add_u32 v5, {XBASE}, v5
s_lshr_b32 {sT2}, {sW}, 1
s_and_b32 {sT2}, {sT2}, {sTyp}
s_lshl_b32 {sT2}, {sT2}, 13
v_add_u32 v{RA}, {sT2}, v5
v_xor_b32 v{RA+1}, 64, v{RA}
v_subrev_u32 v{RA+2}, {sT2}, v5
v_xor_b32 v{RA+3}, 64, v{RA+2}
v_and_b32 v6, 1, v2
v_lshrrev_b32 v5, 1, v3
v_lshl_or_b32 v5, v6, 1, v5
v_xor_b32 v5, {sW}, v5
v_lshlrev_b32 v5, 5, v5
v_lshl_add_u32 v5, v2, 10, v5
v_lshl_add_u32 v5, v3, 7, v5
v_lshl_add_u32 v{RT}, v4, 3, v5
v_add_u32 v{RT+1}, {3*WSLOT}, v{RT}
v_lshrrev_b32 v5, 1, v2
v_lshlrev_b32 v5, 10, v5
v_lshl_add_u32 v5, v6, 9, v5
v_lshl_add_u32 v5, v3, 6, v5
v_lshl_add_u32 v5, v4, 3, v5
v_xor_b32 v6, {sW}, v6
v_and_b32 v6, 1, v6
v_lshl_add_u32 v{RT+2}, v6, 5, v5
v_add_u32 v{RT+3}, {3*WSLOT}, v{RT+2}
v_mov_b32 v5, 0x3f803f80
v_lshlrev_b32 v6, 2, {vL}
v_add_u32 v6, {XBASE}, v6
{"" if not o.halo else f"ds_write_b32 v6, v5{chr(10)}ds_write_b32 v6, v5 offset:{XSLOT}{chr(10)}ds_write_b32 v6, v5 offset:{2*XSLOT}"}
s_cmp_eq_u32 {sW}, 1
s_cselect_b32 s54, s49, s48
s_cselect_b32 s88, s32, s28
s_cselect_b32 s89, s33, s29
s_cmp_eq_u32 {sW}, 2
s_cselect_b32 s54, s94, s54
s_cmp_eq_u32 {sW}, 3
s_cselect_b32 s54, s95, s54
s_cselect_b32 s88, s40, s88
s_cselect_b32 s89, s41, s89
s_cselect_b32 s90, s42, s30
s_cselect_b32 s86, s87, s86
s_mov_b32 s91, 0x20000
v_accvgpr_write_b32 a{ONES}, v5
v_accvgpr_write_b32 a{ONES+1}, v5
v_accvgpr_write_b32 a{ONES+2}, v5
v_accvgpr_write_b32 a{ONES+3}, v5
s_add_u32 s81, s81, {o.wfirst - 2}
v_lshrrev_b32 v5, 2, {vL}
v_add_u32 v44, s81, v5
s_and_b32 {sT2}, {sM}, 7
s_lshl_b32 {sT2}, {sT2}, 2
v_add_u32 v45, {sT2}, v4
v_lshrrev_b32 v46, 3, {vL}
v_lshlrev_b32 v46, 28, v46
s_lshl_b32 {sT2}, {sTyp}, 1
s_sub_u32 {sT2}, 3, {sT2}
v_xor_b32 v5, {sW}, {vL}
v_and_b32 v5, {sT2}, v5
v_lshl_or_b32 v47, v5, 26, v46
""")
        c += self.mksrd(bDBG, 64, 256)
        c += mk(f"""
s_or_b32 {sT2}, s2, {sW}
s_cmp_lg_u32 {sT2}, 0
s_cbranch_scc1 L_nononce
s_memrealtime s[94:95]
s_waitcnt lgkmcnt(0)
s_or_b32 s94, s94, 1
v_mov_b32 v2, s94
v_mov_b32 v3, s95
v_mov_b32 v4, 0
s_mov_b64 exec, 1
buffer_store_dwordx2 v[2:3], v4, {sDBG}, 0 offen sc1
s_mov_b64 exec, -1
L_nononce:
""")
        c += self.pstamp(7)
        xt = mk(f"buffer_load_dword a226, v50, {sX}, {sXc} offen{' nt' if o.ntxt else ''}")
        for ch in o.pord:
            if ch == "t": c += note(self.wtouch(1 + vm.count(("wt", 0)) // 2 % 2), ("wt", 0))
            if ch == "x": c += note(xt, ("xt", 0))
            if ch == "1": c += note(self.dma_w(1), ("w", 1))
            if ch == "X": c += note(self.dma_x(1, 0) + self.dma_x(1, 1), ("x", 1))
            if ch == "2": c += note(self.dma_w(2), ("w", 2))
        c += self.pstamp(5)
        if o.walk:
            c += mk(f"""
; instruction-cache warm-up: hop along the s_cbranch_execz chains (no other instruction runs with EXEC = 0)
s_mov_b64 exec, 0
s_cmp_eq_u32 {sW}, 3
s_cbranch_scc1 H_p_0
s_lshl_b32 {sT2}, {sTyp}, 2
s_add_u32 {sT2}, {sT2}, {sW}
s_cmp_eq_u32 {sT2}, 0
s_cbranch_scc1 H_a0_0
s_cmp_eq_u32 {sT2}, 1
s_cbranch_scc1 H_a1_0
s_cmp_eq_u32 {sT2}, 2
s_cbranch_scc1 H_a2_0
s_cmp_eq_u32 {sT2}, 4
s_cbranch_scc1 H_b0_0
s_cmp_eq_u32 {sT2}, 5
s_cbranch_scc1 H_b1_0
s_branch H_b2_0
L_wback:
s_mov_b64 exec, -1
""")
        c += mk(f"s_add_u32 s81, {sXc}, {128 * (o.xfirst - 3)}")
        c += self.pstamp(6)
        c += mk(f"s_cmp_eq_u32 {sTyp}, 1\ns_cbranch_scc1 L_tb")
        return c

    def deferred(self, ty):
        o = self.opt
        A = []
        A += self.mksrd(bWO, 52, 512 * 1024) + self.mksrd(bWD, 60, 1792 * 1024) + self.mksrd(bWS, 66, WS_SIZE) + self.mksrd(bOUT, 62, 2048 * 1024)
        A += mk(f"""
s_lshr_b32 {sT1}, s2, 3
s_and_b32 {sT2}, s2, 7
s_lshr_b32 {sR}, {sT2}, {o.csplit}
s_lshl_b32 {sR}, {sR}, {2 + o.csplit}
s_lshr_b32 s64, {sT1}, {3 - o.csplit}
s_add_u32 {sR}, {sR}, s64
s_and_b32 {sC}, {sT1}, {(8 >> o.csplit) - 1}
s_and_b32 {sT2}, {sT2}, {o.csplit}
s_lshl_b32 {sT2}, {sT2}, 2
s_add_u32 {sC}, {sC}, {sT2}
s_lshl_b32 {sT3}, {sW}, 11
s_mul_i32 s62, {sC}, {o.rotc}
s_mul_i32 s63, {sR}, {2 - o.csplit}
s_add_u32 s62, s62, s63
s_and_b32 s62, s62, 7
s_lshl_b32 s63, s62, 12
s_lshl_b32 s62, s62, 16
v_lshrrev_b32 v5, 2, {vL}
v_and_b32 v5, 4, v5
v_xor_b32 v5, v5, {vL}
v_and_b32 v5, 7, v5
v_lshlrev_b32 v5, 4, v5
v_lshrrev_b32 v6, 3, {vL}
v_lshl_add_u32 v5, v6, 10, v5
s_lshl_b32 {sT2}, {sC}, 7
v_add_u32 {vB2}, {sT2}, v5
s_and_b32 {sT1}, {sW}, 1
s_lshr_b32 {sT2}, {sW}, 1
s_lshl_b32 {sT2}, {sT2}, 14
s_lshl_b32 {sWB[0]}, {sT1}, 18
s_add_u32 {sWB[0]}, {sWB[0]}, {sT2}
s_mov_b32 {sWB[1]}, {sWB[0]}
s_lshl_b32 s64, {sT1}, 19
s_add_u32 s64, s64, {sT2}
s_add_u32 s56, s64, {512*1024}
s_lshl_b32 s64, {sT1}, 17
s_add_u32 s64, s64, {sT2}
s_add_u32 s57, s64, {1536*1024}
s_lshl_b32 {sT1}, {sM}, 7
s_sub_u32 {sT2}, {sT1}, 16
v_add_u32 v5, {sT2}, {vL}
v_max_i32 v{GA}, 0, v5
v_lshlrev_b32 v{GA}, 4, v{GA}
v_add_u32 v5, 64, v5
v_lshlrev_b32 v{GA+1}, 4, v5
s_add_u32 {sT1}, {sT1}, 112
v_and_b32 v5, 15, {vL}
v_add_u32 v5, {sT1}, v5
v_lshlrev_b32 v42, 4, v5
""")
        B = []
        if ty == 0:
            B += mk(f"""
v_lshlrev_b32 v{VST}, 4, {vL}
v_add_u32 v{VST+1}, {RBS}, v{VST}
v_add_u32 v{VST+2}, {2*RBS}, v{VST}
v_add_u32 v{VST+3}, {3*RBS}, v{VST}
s_mul_i32 {sT1}, {sM}, 576
s_lshl_b32 {sT2}, {sIdx}, 2
s_add_u32 {sT2}, {sT2}, {sW}
s_add_u32 {sU[1]}, {sT1}, {sT2}
s_add_u32 {sU[0]}, {sU[1]}, 32
s_lshl_b32 {sU[0]}, {sU[0]}, 10
s_lshl_b32 {sU[1]}, {sU[1]}, 10
v_lshrrev_b32 v4, 4, {vL}
v_and_b32 v6, 15, {vL}
v_lshlrev_b32 v4, 2, v4
v_sub_u32 v4, v6, v4
v_mov_b32 v3, 0xff800000
v_mov_b32 v6, 0x80000000
""")
            for r in range(4):
                B += mk(f"""
v_subrev_u32 v5, {r}, v4
v_and_b32 v5, 0x80000001, v5
v_cmp_eq_u32 vcc, 0, v5
v_cmp_eq_u32 {sEx}, v6, v5
v_cndmask_b32_e64 v{BIAS+4+r}, v3, 0, vcc
v_cndmask_b32_e64 v{BIAS+r}, v3, 0, {sEx}
""")
            B.append(mk(f"s_cmp_eq_u32 {sM}, 0\ns_cselect_b64 vcc, -1, 0"))
            for r in range(4): B += mk(f"v_cndmask_b32 v{BIAS+8+r}, v{BIAS+r}, v3, vcc")
        else:
            B += mk(f"""
s_lshr_b32 {sT1}, {sW}, 1
s_mul_i32 {sT2}, {sT1}, {2*RBS}
v_lshlrev_b32 v5, 4, {vL}
v_add_u32 v{VST}, {sT2}, v5
v_add_u32 v{VST+1}, {RBS}, v{VST}
v_subrev_u32 v{VST+2}, {sT2}, v5
v_add_u32 v{VST+2}, {2*RBS}, v{VST+2}
v_add_u32 v{VST+3}, {RBS}, v{VST+2}
s_mul_i32 {sT1}, {sM}, 576
s_lshl_b32 {sT2}, {sIdx}, 3
s_add_u32 {sT2}, {sT2}, {sW}
s_add_u32 {sT2}, {sT2}, {sT1}
s_add_u32 {sU[0]}, {sT2}, 64
s_add_u32 {sU[1]}, {sT2}, 68
s_lshl_b32 {sT2}, {sIdx}, 1
s_and_b32 s64, {sW}, 1
s_add_u32 {sT2}, {sT2}, s64
s_add_u32 {sT2}, {sT2}, {sT1}
s_add_u32 {sU[2]}, {sT2}, 128
s_lshl_b32 {sU[0]}, {sU[0]}, 10
s_lshl_b32 {sU[1]}, {sU[1]}, 10
s_lshl_b32 {sU[2]}, {sU[2]}, 10
""")
        return A, B

    def reads(self, ty, stage):
        st = stage & 1
        xb = ((stage // 2) % 3) * XSLOT; kh = stage & 1
        ws = stage % 5; rg = ws // 3; wb = (ws % 3) * WSLOT
        out = []
        for i in range(NA[ty]):
            if ty == 0: out.append(I(f"ds_read_b128 {A4(fA(st, i))}, v{RA+kh} offset:{xb + 2048*i}"))
            else: out.append(I(f"ds_read_b128 {A4(fA(st, i))}, v{RA+kh+(2 if i >= 4 else 0)} offset:{xb + 2048*(i+1)}"))
        def tr(j, reg, off, second):
            return [I(f"ds_read_b64_tr_b16 {A2(fB(ty, st, j))}, v{reg} offset:{wb+off}"),
                    I(f"ds_read_b64_tr_b16 {A2(fB(ty, st, j)+2)}, v{reg} offset:{wb+off+second}")]
        B = []
        for g in range(5 if ty == 0 else 4): B += tr(g, RT + rg, 4096 * g, 512)
        if ty == 1: B += tr(4, RT + 2 + rg, 16384, 256) + tr(5, RT + 2 + rg, 16384 + 2048, 256)
        return out + B

    def mfmas(self, ty, stage):
        st = stage & 1
        out = []
        Z = lambda d: "0" if stage == 0 else d
        def T(d, j, i): out.append(I(f"{M16} {V4(d)}, {A4(fB(ty, st, j))}, {A4(fA(st, i))}, {Z(V4(d))}"))
        def CS(k, flip=False):
            d = A4(CSACC + 4 * k); f = A4(fB(ty, st, k))
            if self.opt.nocs: return
            out.append(I(f"{M16} {d}, {A4(ONES)}, {f}, {Z(d)}" if flip else f"{M16} {d}, {f}, {A4(ONES)}, {Z(d)}"))
        if ty == 0:
            for i in range(8): T(aQ(i), 0, i + 1)
            CS(0)
            for i in range(9): T(aK(i), 1, i)
            if not self.opt.halo: CS(1)
            for i in range(9): out.append(I(f"{M16} {V4(aV(i))}, {A4(fA(st, i))}, {A4(fB(ty, st, 2))}, {Z(V4(aV(i)))}"))
            if not self.opt.halo: CS(2, True)
            for i in range(8): T(aG(i), 3, i + 1)
            CS(3)
            for i in range(8): T(aU(i), 4, i + 1)
            CS(4)
        else:
            for g in range(4):
                for i in range(8): T(bAcc(g, i), g, i)
                CS(g)
            for u in range(2):
                for i in range(4): T(bMix(u, i), 4 + u, i)
                CS(4 + u)
        return out

    TILES = [(2, 2*k) for k in range(16)] + [(3, 2*k) for k in range(4)] + [(1, 2*k) for k in range(8)] + [(0, 2*k) for k in range(8)]
    RSIZE = {0: 16, 1: 16, 2: 32, 3: 8}
    def b2off(self, r, k, blk):
        if not self.opt.rot: return f"s_add_u32 {sT0}, {sWB[r]}, {(16*k + 8*blk)*1024}"
        if blk: return f"s_add_u32 {sT0}, {sT0}, 8192"
        return f"s_add_u32 {sT0}, s62, {k*16384}\ns_and_b32 {sT0}, {sT0}, {self.RSIZE[r]*16384 - 1}\ns_add_u32 {sT0}, {sT0}, {sWB[r]}"
    def b2_dma(self, s):
        def free_at(q):
            a = q * 2048
            if a < XBASE: return [s_ for s_ in range(11, 16) if s_ % 5 == a // WSLOT][0]
            return {2: 11, 0: 13, 1: 15}[(a - XBASE) // XSLOT]
        out = []
        for i in sorted(range(19), key=lambda u: u):
            if max(free_at(4 * self.slot(i) + w) for w in range(4)) != s: continue
            r, k = self.TILES[i]; srd = sWO if r == 0 else sWD
            for blk in range(2):
                out += mk(self.b2off(r, k, blk) + "\n"
                          f"s_add_u32 m0, {sT3}, {self.slot(i)*8192 + blk*1024}\nbuffer_load_dwordx4 {vB2}, {srd}, {sT0} offen lds")
        return out

    PFG = {"h2": (sWD, 512, 4), "h3": (sWD, 1536, 1), "h1": (sWD, 0, 2), "o": (sWO, 0, 2), "A": (sWD, 0, 1), "B": (sWD, 256, 1), "C": (sWO, 0, 1)}
    def l2pf(self, grp, k, seq):
        srd, row0, n = self.PFG[grp]; cs = self.opt.csplit
        thin = grp in "ABC"; one = thin and cs == 0
        L = []
        if seq == 0 and self.opt.pfa:
            L += mk(f"""
s_lshr_b32 s91, s2, 5
s_lshl_b32 s91, s91, 1
s_bfe_u32 s65, s2, 0x10003
s_add_u32 s91, s91, s65
s_lshl_b32 s91, s91, 2
s_add_u32 s91, s91, {sW}
s_lshl_b32 s91, s91, 12
v_lshrrev_b32 v3, 4, {vL}
v_lshlrev_b32 v3, 28, v3
s_and_b32 s65, s2, 1
s_lshl_b32 s65, s65, 9
s_add_u32 s91, s91, s65
v_and_b32 v2, 3, {vL}
v_lshl_or_b32 v3, v2, 7, v3
v_bfe_u32 v2, {vL}, 2, 2
v_lshl_or_b32 v2, v2, 10, v3
v_add_u32 v2, s91, v2
s_lshr_b32 s91, s2, 1
""")
        elif seq == 0:
            L += mk(f"""
s_lshr_b32 s91, s2, 3
s_lshl_b32 s91, s91, 2
s_add_u32 s91, s91, {sW}
s_lshl_b32 s91, s91, {10 if one else 11}
v_lshrrev_b32 v3, {4 if (cs == 0 and not one) else 3}, {vL}
v_lshlrev_b32 v3, 28, v3
""")
            if cs == 0: L += mk(f"v_lshl_or_b32 v2, {vL}, 7, v3")
            else: L += mk(f"""
s_and_b32 s65, s2, 1
s_lshl_b32 s65, s65, 9
s_add_u32 s91, s91, s65
v_and_b32 v2, 3, {vL}
v_lshl_or_b32 v3, v2, 7, v3
v_bfe_u32 v2, {vL}, 2, 1
v_lshl_or_b32 v2, v2, 10, v3
""")
            L += mk(f"v_add_u32 v2, s91, v2\ns_lshr_b32 s91, s2, {cs}")
        if thin:
            return L + mk(f"""
s_and_b32 s65, s91, {(8 >> cs) - 1}
s_mul_i32 s65, s65, {((64 if grp == "C" else 224) << cs) * 1024}
s_add_u32 s65, s65, {(row0 >> (1 - cs)) * 1024}
buffer_load_dword a{216 + seq % 12}, v2, {srd}, s65 offen
""")
        return L + mk(f"""
s_add_u32 s65, s91, {k}
s_and_b32 s65, s65, {(n - 1) & self.opt.pfrot}
s_lshl_b32 s65, s65, 18
s_add_u32 s65, s65, {row0 * 1024}
buffer_load_dword a{216 + seq % 12}, v2, {srd}, s65 offen
""")

    def utouch(self, ty, n, per):
        units = [(0, j) for j in range(4)] + [(1, j) for j in range(4)] + ([(2, j) for j in range(2)] if ty else [])
        L = []
        if n == 0:
            L += mk(f"v_lshrrev_b32 v51, 3, {vL}\nv_lshlrev_b32 v51, 28, v51\nv_mul_u32_u24 v50, 112, {vL}\nv_add_u32 v50, v50, v51")
        for k, (u, j) in enumerate(units[n * per:(n + 1) * per]):
            L += mk(f"v_add_u32 v51, v50, v{VST+j}\nbuffer_load_dword a{216 + (n * per + k) % 10}, v51, {sWS}, {sU[u]} offen{self.opt.utfl}")
        return L
    def flagaddr(self, dst, off):
        return mk(f"""
s_lshl_b32 {dst}, {sM}, 2
s_lshr_b32 {sT1}, {sN}, 2
s_add_u32 {dst}, {dst}, {sT1}
s_lshl_b32 {dst}, {dst}, 6
s_and_b32 {sT1}, {sN}, 3
s_lshl_b32 {sT1}, {sT1}, 2
s_add_u32 {dst}, {dst}, {sT1}
s_add_u32 {dst}, {dst}, {sW}
s_lshl_b32 {dst}, {dst}, 3
s_add_u32 {dst}, {dst}, {WS_FLAG + off}
""") + (mk(f"s_lshl_b32 {sT1}, {sW}, 27\ns_add_u32 {dst}, {dst}, {sT1}") if self.opt.wgflag else [])
    def flagstore(self, so, r):
        return mk(f"""
v_mov_b32 v{r}, {sNonL}
v_mov_b32 v{r+1}, {sNonH}
v_lshlrev_b32 v{r+2}, 31, {vL}
v_lshl_or_b32 v{r+2}, {vL}, 25, v{r+2}
buffer_store_dwordx2 {V2(r)}, v{r+2}, {sWS}, {so} offen sc1
""")

    def stats_load(self):
        return mk(f"""
s_lshl_b32 {sT2}, {sM}, 7
s_lshl_b32 {sT1}, {sN}, 3
s_add_u32 {sT1}, {sT1}, {sT2}
s_lshl_b32 {sT2}, {sW}, 1
s_add_u32 {sT1}, {sT1}, {sT2}
s_lshl_b32 {sT1}, {sT1}, 10
v_lshlrev_b32 v{SX+16}, 4, {vL}
buffer_load_dwordx4 v[{SX}:{SX+3}], v{SX+16}, {sX}, {sT1} offen
buffer_load_dwordx4 v[{SX+4}:{SX+7}], v{SX+16}, {sX}, {sT1} offen offset:1024
""")

    def stats_compute(self):
        def row(x, e, t):
            L = []
            for k in range(4):
                L.append(f"v_lshlrev_b32 v{e+2*k}, 16, v{x+k}")
                L.append(f"v_and_b32 v{e+2*k+1}, 0xffff0000, v{x+k}")
            L += [f"v_add_f32 v{x}, v{e}, v{e+1}", f"v_add_f32 v{x+1}, v{e+2}, v{e+3}", f"v_add_f32 v{x+2}, v{e+4}, v{e+5}", f"v_add_f32 v{x+3}, v{e+6}, v{e+7}",
                  f"v_add_f32 v{x}, v{x}, v{x+1}", f"v_add_f32 v{x+2}, v{x+2}, v{x+3}", f"v_add_f32 v{x}, v{x}, v{x+2}"]
            def red(r):
                R = [f"v_add_f32_dpp v{r}, v{r}, v{r} row_ror:{sh} row_mask:0xf bank_mask:0xf" for sh in (8, 4, 2, 1)]
                for p in ("16", "32"):
                    R += [f"v_mov_b32 v{r+1}, v{r}", f"v_permlane{p}_swap_b32 v{r}, v{r+1}", f"v_add_f32 v{r}, v{r}, v{r+1}"]
                return R
            L += red(x)
            L.append(f"v_mul_f32 v{t+1}, 0x3b000000, v{x}")
            for k in range(8): L.append(f"v_sub_f32 v{e+k}, v{e+k}, v{t+1}")
            L += [f"v_mul_f32 v{x}, v{e}, v{e}", f"v_mul_f32 v{x+1}, v{e+1}, v{e+1}"]
            for k in range(2, 8): L.append(f"v_fmac_f32 v{x+(k&1)}, v{e+k}, v{e+k}")
            L.append(f"v_add_f32 v{x}, v{x}, v{x+1}")
            L += red(x)
            L += [f"v_mov_b32 v{x+1}, 0x3727c5ac", f"v_fmac_f32 v{x+1}, 0x3b000000, v{x}", f"v_rsq_f32 v{t}, v{x+1}"]
            return L
        a = row(SX, SX + 8, SX + 24); b = row(SX + 4, SX + 16, SX + 26)
        out = []
        for p, q in zip(a, b): out += [I(p), I(q)]
        return out

    def publish(self, ty):
        L = mk(f"""
v_readfirstlane_b32 {sNonL}, v{NON}
v_readfirstlane_b32 {sNonH}, v{NON+1}
v_cmp_eq_u32 vcc, 1, {vL}
s_lshl_b32 {sT1}, {sM}, 7
s_lshl_b32 {sT2}, {sN}, 3
s_cmp_eq_u32 {sNonL}, 0
s_cbranch_scc1 L_slow_nonce{ty}
L_back_nonce{ty}:
v_cndmask_b32 v{SX}, v{SX+24}, v{SX+26}, vcc
v_cndmask_b32 v{SX+1}, v{SX+25}, v{SX+27}, vcc
v_mov_b32 v{SX+2}, {sNonL}
v_mov_b32 v{SX+3}, {sNonH}
s_add_u32 {sT1}, {sT1}, {sT2}
s_lshl_b32 {sT2}, {sW}, 1
s_add_u32 {sT1}, {sT1}, {sT2}
s_lshl_b32 {sT1}, {sT1}, 4
s_add_u32 {sT1}, {sT1}, {WS_STAT}
v_lshlrev_b32 v{SX+4}, 4, {vL}
v_cmp_lt_u32 vcc, 1, {vL}
v_mov_b32 v{SX+5}, 0x80000000
v_cndmask_b32 v{SX+4}, v{SX+4}, v{SX+5}, vcc
buffer_store_dwordx4 v[{SX}:{SX+3}], v{SX+4}, {sWS}, {sT1} offen sc1
""")
        return L[:5] + [L[5:8]] + L[8:]

    def gather_load(self):
        return mk(f"""
s_mov_b32 {sT1}, {WS_STAT}
buffer_load_dwordx4 {V4(GAT)}, v{GA}, {sWS}, {sT1} offen sc1
buffer_load_dwordx4 {V4(GAT+4)}, v{GA+1}, {sWS}, {sT1} offen sc1
buffer_load_dwordx4 {V4(GAT+8)}, v42, {sWS}, {sT1} offen sc1
""")
    def gather_cmp(self):
        return mk(f"""
v_cmp_ne_u64 vcc, {sNon}, {V2(GAT+2)}
v_cmp_ne_u64 {sEx}, {sNon}, {V2(GAT+6)}
v_cmp_ne_u64 s[92:93], {sNon}, {V2(GAT+10)}
s_or_b64 vcc, vcc, {sEx}
s_or_b64 vcc, vcc, s[92:93]
""")

    ST = 60
    def stats_stage(self, ty):
        ST = self.ST
        L = [self.gather_cmp() + mk(f"s_cbranch_vccnz L_slow_gat{ty}\nL_back_gat{ty}:")]
        L += mk(f"""
s_mul_i32 {sT1}, {sW}, 1152
s_add_u32 {sT1}, {sT1}, {STATL}
v_lshl_add_u32 v44, {vL}, 2, {sT1}
v_and_b32 v45, 15, {vL}
v_lshl_add_u32 v45, v45, 2, {sT1}
v_add_u32 v46, 512, v45
""")
        W = mk(f"""
ds_write2_b32 v44, v{GAT}, v{GAT+1} offset0:0 offset1:144
ds_write2_b32 v44, v{GAT+4}, v{GAT+5} offset0:64 offset1:208
ds_write2_b32 v46, v{GAT+8}, v{GAT+9} offset0:0 offset1:144
""")
        if ty == 0:
            L += mk(f"v_add_u32 v47, 256, v45\nv_lshrrev_b32 v43, 4, {vL}\nv_lshl_add_u32 v43, v43, 4, {sT1}")
            for i in range(9):
                if i < 4: W += mk(f"ds_read2_b32 {V2(ST+2*i)}, v45 offset0:{16*i} offset1:{144+16*i}")
                else: W += mk(f"ds_read2_b32 {V2(ST+2*i)}, v47 offset0:{16*i-64} offset1:{80+16*i}")
        else:
            L += mk(f"""
s_lshr_b32 {sT2}, {sW}, 1
s_lshl_b32 {sT2}, {sT2}, 8
v_add_u32 v47, {sT2}, v45
v_subrev_u32 v48, {sT2}, v45
v_add_u32 v48, 256, v48
""")
            for i in range(8):
                W += mk(f"ds_read2_b32 {V2(ST+2*i)}, v{47 if i < 4 else 48} offset0:{16+16*(i%4)} offset1:{160+16*(i%4)}")
        return L + W

    def type_code(self, ty):
        o = self.opt
        c = mk("L_tb:") if ty else []
        vm = list(self.vm0)
        def waitfor(tags):
            for t in tags: assert vm.count(t) >= {"w": 5, "x": 4}.get(t[0], 1) and all(q[1] != t for q in dq), (t, ty)
            idx = max([k for k, t in enumerate(vm) if t in tags], default=-1)
            return len(vm) - 1 - idx
        def note(L, tag):
            for i in flatten(L):
                if i.kind == "vmem": vm.append(tag)
            return L
        need = lambda s: [("w", s), ("x", s // 2)]
        dq = []
        c += mk(f"s_waitcnt vmcnt({waitfor(need(0))}) lgkmcnt(0)\ns_barrier")
        defA, defB = self.deferred(ty)
        c += self.stamp(1)
        c += self.reads(ty, 0)
        stats = self.stats_compute()
        dq = self.dma_queue(ty)
        pfq = [(g, k) for g in o.pford.split(",") for k in range(self.PFG[g][2])]; pfn = 0

        third = -(-len(stats) // 6) * 2
        SL = o.statstep; SC = o.sc
        cuts = [0] + o.cuts + [len(stats)]
        SN, SP, SG, SS = 1, SC + len(cuts) - 1, o.sg, o.ss
        for s in range(16):
            tags = need(s + 1) if s < 15 else []
            if s == SC: tags = tags + [("sl", 0)]
            if s == SP: tags = tags + [("non", 0)]
            if s == SS: tags = tags + [("gat", 0)]
            if s == 13: tags = tags + [("b2", 11)]
            if s == 14: tags = tags + [("b2", 12)]
            if s == 15: tags = tags + [("b2", 13)]
            c += mk((f"s_waitcnt vmcnt({waitfor(tags)}) lgkmcnt(0)" if tags else "s_waitcnt lgkmcnt(0)") + "\ns_barrier")
            if o.stamps and s in o.stst: c += self.stamp(2 + o.stst.index(s))
            rd = self.reads(ty, s + 1) if s < 15 else []
            other = []
            if s == SN:
                other += note(mk(f"v_mov_b32 v{NON}, 0\nbuffer_load_dwordx2 {V2(NON)}, v{NON}, {sDBG}, 0 offen sc1"), ("non", 0))
            if s == SG: other += note(self.gather_load(), ("gat", 0))
            if s == SL: other += note(self.stats_load(), ("sl", 0))
            if s < o.wtouch and o.tfirst: other += note(self.wtouch(s % 3), ("wt", 0))
            for _ in range(int(o.xsched[s])):
                other += note(mk(f"s_add_u32 s81, s81, 128\ns_and_b32 s81, s81, 1023\nbuffer_load_dword a{226 + (s & 1)}, v50, {sX}, s81 offen"), ("xt", 0))
            k = 0
            while dq and dq[0][0] <= s and k < (o.quota0 if s == 0 else o.qs[s] - (ty if o.qb else 0) if o.qs else o.quota):
                _, tag, atom = dq.pop(0); other += note(atom, tag); k += 1
            if s < o.wtouch and not o.tfirst: other += note(self.wtouch(s % 3), ("wt", 0))
            nb1 = 11 if ty == 0 else len(defB)
            blocks = {0: defA[:16], 1: defA[16:33], 7: defA[33:], 8: defB[:nb1], 9: defB[nb1:]}
            late = blocks.get(s, [])
            if s > 10:
                assert not dq or s <= 13
                d = self.b2_dma(s)
                if s == 15 and ty == 1 and o.bdefer:
                    self.defer_b = [d[k:k + 3] for k in range(len(d) - 3 * o.bdefer, len(d), 3)]; d = d[:len(d) - 3 * o.bdefer]
                other += note(d, ("b2", s))
            if not o.nopf and not (o.pfa and ty == 1):
                for _ in range(int(o.pfsched[s])):
                    if not pfq: break
                    g, k = pfq.pop(0); other += note(self.l2pf(g, k, pfn), ("pf", 0)); pfn += 1
            if o.ut0 and o.ut0 <= s < min(11, o.ut0 + (10 + o.utper - 1) // o.utper): other += note(self.utouch(ty, s - o.ut0, o.utper), ("ut", 0))
            if SC <= s < SP: other += stats[cuts[s - SC]: cuts[s - SC + 1]]
            if s == SP: other += note(self.publish(ty), ("pub", 0))
            if s == SS:
                ss = self.stats_stage(ty)
                if "r" in o.ko: ss = [x for x in ss if isinstance(x, list) or not x.op.startswith("ds_read")]
                if "e" in o.ko: ss = [x for x in ss if isinstance(x, list) or not x.op.startswith("ds_write")]
                if "g" in o.ko: ss = [[ss[0][-1]]] + ss[1:]
                ssd = [x for x in ss if not isinstance(x, list) and x.kind == "ds"]
                ssv = [x for x in ss if isinstance(x, list) or x.kind != "ds"]
                other = ssv + other; rd = rd + ssd
            if s == 10 and ty == 0: other += self.selectors()
            other += late
            if s == 11: other += self.traddr([2, 3, 4, 5, 6, 49])
            if s >= 13: rd = rd + flatten(self.passthru([2, 3, 4, 5, 6, 49], {13: range(0, 6), 14: range(6, 12), 15: range(12, 20)}[s]))
            if s in (14, 15): other += note(flatten(self.round2(self.R2_14 if s == 14 else self.R2_15)), ("b2", 20))
            if ty == 1 and s == 12 and o.bearly:
                for k, it in enumerate(self.round2(range(29, 36))[:o.bearly]):
                    it[-1] = I(it[-1].text.replace(A4(56 + 4 * k), V4(self.BE[k])))
                    other += note(it, ("b2", 21))
            mm = self.mfmas(ty, s)
            if o.nomfma: mm = [I("s_nop 0") for _ in mm]
            if o.noreads: rd = []
            no = len([i for i in flatten(other) if not i.is_label])
            room = 2 * (len(mm) - len(rd))
            ost = len(rd) if no <= room else max(0, len(rd) - (no - room))
            wv = weave(mm, rd, other, per_gap=2, oth_start=(ost if o.late else 0))
            if o.align == 3:
                for i in wv: i.padok = False
            c += wv
        c += self.stamp(5)
        if o.probe >= 0:
            g, k = self.TILES[o.probe]
            c += mk(f"""
s_waitcnt vmcnt(0)
v_readfirstlane_b32 s64, {vB2}
v_and_b32 v4, 15, {vL}
v_lshrrev_b32 v5, 4, {vL}
v_lshlrev_b32 v5, 5, v5
v_add_u32 v4, v4, v5
v_lshlrev_b32 v4, 10, v4
v_add_u32 v4, s64, v4
s_add_u32 s65, {sWB[g]}, {16*k*1024}
""") + self.stamp(2, True) + mk(f"buffer_load_dword v5, v4, {sWO if g == 0 else sWD}, s65 offen\ns_waitcnt vmcnt(0)") + self.stamp(3, True)
        c += mk("s_waitcnt lgkmcnt(0)")
        c += self.epi_a() if ty == 0 else self.epi_b()
        if ty == 0: c += mk("s_branch L_join")
        c = cap_vm(flatten(c), len(self.vm0), *((1000, 48) if "c" in o.ko else (60, 48)))
        slow = mk(f"""
L_slow_nonce{ty}:
s_mov_b32 {sCnt}, 0
L_sn{ty}:
v_mov_b32 v{NON}, 0
buffer_load_dwordx2 {V2(NON)}, v{NON}, {sDBG}, 0 offen sc1
s_waitcnt vmcnt(0)
v_readfirstlane_b32 {sNonL}, v{NON}
v_readfirstlane_b32 {sNonH}, v{NON+1}
s_add_u32 {sCnt}, {sCnt}, 1
s_cmp_gt_u32 {sCnt}, 20000
s_cbranch_scc1 L_back_nonce{ty}
s_cmp_eq_u32 {sNonL}, 0
s_cbranch_scc1 L_sn{ty}
s_branch L_back_nonce{ty}
L_slow_gat{ty}:
s_mov_b32 {sCnt}, 0
L_sg{ty}:
""") + self.gather_load() + mk("s_waitcnt vmcnt(0)") + self.gather_cmp() + mk(f"""
s_add_u32 {sCnt}, {sCnt}, 1
s_cmp_gt_u32 {sCnt}, 20000
s_cbranch_scc1 L_back_gat{ty}
s_cbranch_vccnz L_sg{ty}
s_branch L_back_gat{ty}
""")
        return c, slow

    def stg(self, u, blk): return 56 + 8 * (u - 29) + 4 * blk
    SL1 = [3, 4, 17, 18, 5, 6, 7, 8, 9, 13, 10, 11, 12, 0, 1, 2, 14, 15, 16]
    def slot(self, u): return self.SL1[u] if u < 19 else self.SL1[[0, 1, 4, 5, 6, 2, 3, 7, 8, 9][u - 19]] if u < 29 else self.SL1[10 + u - 29]
    def frag(self, i): return 112 + 8 * i if i < 14 else 8 * (i - 14)
    def round2(self, us):
        L = []
        for u in us:
            g, k = self.TILES[u]; srd = sWO if g == 0 else sWD
            for blk in range(2):
                t = self.b2off(g, k, blk).replace(sT0, "s61")
                if u < 29: L.append(mk(t + f"\ns_add_u32 m0, {sT3}, {self.slot(u)*8192 + blk*1024}\nbuffer_load_dwordx4 {vB2}, {srd}, s61 offen lds"))
                else: L.append(mk(t + f"\nbuffer_load_dwordx4 {A4(self.stg(u, blk))}, {vB2}, {srd}, s61 offen"))
        return L
    BE = [30, 34, 38, 88, 92]
    R2_14 = [19, 20, 24]; R2_15 = [25, 21, 22]; R2_E = [23, 26, 27, 28]
    TR = {0: [42, 58, 59, 16], 1: [88, 89, 90, 91]}
    def traddr(self, R):
        L = mk(f"""
s_and_b32 {sT1}, {sW}, 1
s_lshl_b32 {sT1}, {sT1}, 6
v_lshrrev_b32 v4, 5, {vL}
v_lshlrev_b32 v4, 10, v4
v_bfe_u32 v6, {vL}, 2, 2
v_lshl_add_u32 v4, v6, 7, v4
v_lshrrev_b32 v6, 1, v6
v_lshl_add_u32 v4, v6, 6, v4
v_bfe_u32 v6, {vL}, 4, 1
v_lshl_add_u32 v4, v6, 5, v4
v_and_b32 v6, 1, {vL}
v_lshl_add_u32 v4, v6, 4, v4
v_bfe_u32 v6, {vL}, 1, 1
v_lshl_add_u32 v4, v6, 3, v4
v_xor_b32 v4, {sT1}, v4
s_lshl_b32 {sT1}, {sT1}, 5
v_add_u32 v{R[0]}, {sT1}, v4
v_xor_b32 v{R[1]}, 64, v{R[0]}
""")
        for k in range(2, len(R)): L += mk(f"v_add_u32 v{R[k]}, {0x10000 * (k // 2)}, v{R[k & 1]}")
        return L
    def passthru(self, R, tiles):
        L = []
        for i in tiles:
            sg = 2 * self.slot(i // 2) + (i & 1)
            L += [[I(f"ds_read_b64_tr_b16 {A2(self.frag(i) + 4*cb + 2*e)}, v{R[2*(sg//16)+cb]} offset:{(sg%16)*4096+e*512}")] for cb in range(2) for e in range(2)]
        return L
    def sprinkle(self, code, items, start, stop):
        out = []; n = len(items); k = 0
        for idx, ins in enumerate(code):
            out.append(ins)
            while k < n and idx >= start and (idx - start + 1) * n >= (k + 1) * (stop - start):
                out += items[k]; k += 1
        for it in items[k:]: out += it
        return out
    NEG = "op_sel:[0,1,0] op_sel_hi:[1,1,1] neg_lo:[0,1,0] neg_hi:[0,1,0]"
    def gu(self, cs, g, u, stp, dst):
        NEG = self.NEG
        L = [f"v_pk_fma_f32 {V2(g+2*h)}, {V2(cs+2*h)}, {V2(stp)}, {V2(g+2*h)} {NEG}" for h in range(2)]
        L += [f"v_pk_fma_f32 {V2(u+2*h)}, {V2(cs+4+2*h)}, {V2(stp)}, {V2(u+2*h)} {NEG}" for h in range(2)]
        L += [f"v_pk_mul_f32 {V2(g+2*h)}, {V2(g+2*h)}, {V2(u+2*h)}" for h in range(2)]
        L += [f"v_cvt_pk_bf16_f32 v{dst+h}, v{g+2*h}, v{g+2*h+1}" for h in range(2)]
        return L
    def gu_unit(self, cs, g0, u0, g1, u1, st0, st1, vo, so):
        c = []
        for x, y in zip(self.gu(cs, g0, u0, st0, u0), self.gu(cs, g1, u1, st1, u0 + 2)): c += mk(x + "\n" + y)
        return c + self.unit_store(u0, vo, so)
    def unit_store(self, r, vo, so):
        if "n" in self.opt.ko: return []
        return mk(f"v_permlane16_swap_b32 v{r}, v{r+2}\nv_permlane16_swap_b32 v{r+1}, v{r+3}\nbuffer_store_dwordx4 {V4(r)}, v{vo}, {sWS}, {so} offen" + ("" if "p" in self.opt.ko else " sc1"))
    def csread(self, dst, k, n=4):
        return [I(f"v_accvgpr_read_b32 v{dst+r}, a{CSACC+4*k+r}") for r in range(n)]

    def epi_b(self):
        ST = self.ST; o = self.opt
        c = []
        for k in range(6): c += self.csread(8 + 4 * k if k < 2 else 36 + 4 * k, k)
        U = []
        for P in range(2):
            cs = 8 if P == 0 else 44
            for j in range(4):
                U.append(self.gu_unit(cs, bAcc(2*P, 2*j), bAcc(2*P+1, 2*j), bAcc(2*P, 2*j+1), bAcc(2*P+1, 2*j+1), ST+4*j, ST+4*j+2, VST+j, sU[P]))
        for j in range(2):
            U.append(self.gu_unit(52, bMix(0, 2*j), bMix(1, 2*j), bMix(0, 2*j+1), bMix(1, 2*j+1), ST+4*j, ST+4*j+2, VST+j, sU[2]))
        st = self.round2(range(29, 36))[o.bearly:] + getattr(self, "defer_b", []) + self.round2(self.R2_E); nb = o.nstage_b
        assert o.bearly % 2 == 0 or not o.rot
        ni = 0
        for j, u in enumerate(U):
            c += u
            if j >= o.bint0:
                for _ in range(o.bint):
                    if ni < 14 - o.bearly: c += st.pop(0); ni += 1
                    if j == len(U) - 1: nlast = o.bint
        tail_l = o.bint if (o.bint and len(U) - 1 >= o.bint0) else 0
        tail_l = len([1 for x in c[max(k for k, x in enumerate(c) if x.kind == "vmem" and x.data):] if x.kind == "vmem"]) - 1
        c += self.stamp(6)
        mv = [I(f"v_accvgpr_write_b32 a{56+4*k+r}, v{self.BE[k]+r}") for k in range(o.bearly) for r in range(4)]
        su = mk("s_waitcnt vmcnt(40)" if mv else "") + mv + self.flagaddr(sT2, 0) + self.polladdr() + self.p2setup()
        c += self.sprinkle(su, st[:nb], 0, len(su))
        if o.wgflag: c += mk(f"s_waitcnt vmcnt({nb + 2 + tail_l}) lgkmcnt(0)\ns_barrier") + self.flagstore(sT2, 8) + self.stamp(7) + mk(f"s_mov_b32 {sT2}, 0x8000000")
        else:
            c += mk(f"s_waitcnt vmcnt({nb + 2 + tail_l}) lgkmcnt(0)") + self.flagstore(sT2, 8) + self.stamp(7)
            c += mk(f"s_mov_b32 {sT2}, 0x8000000\ns_barrier")
        k = len(st) - o.pollahead
        for it in st[nb:k]: c += it
        c += self.poll_issue(0)
        for it in st[k:]: c += it
        c += mk(f"s_waitcnt vmcnt({o.pollahead})")
        return c

    SEL = 54
    def selectors(self):
        S = self.SEL
        L = mk(f"""
v_and_b32 v4, 15, {vL}
v_lshrrev_b32 v5, 4, {vL}
v_lshlrev_b32 v5, 2, v5
v_sub_u32 v4, v4, v5
v_and_b32 v5, 1, {vL}
v_sub_u32 v4, v4, v5
v_lshlrev_b32 v5, 4, v5
v_mov_b32 v6, 0x0c0c0c0c
""")
        for jj, pat in ((0, 0x0c0c0100), (1, 0x0c0c0302)):
            L += mk(f"v_mov_b32 v{S+jj}, {pat:#x}\nv_alignbit_b32 v{S+2+jj}, v{S+jj}, v{S+jj}, v5")
            L += mk(f"v_cmp_le_i32 vcc, {2*jj}, v4\nv_nop\nv_cndmask_b32 v{S+jj}, v{S+2+jj}, v6, vcc\nv_cndmask_b32 v{S+2+jj}, v6, v{S+2+jj}, vcc")
        return L

    def epi_a(self):
        o = self.opt
        ST = self.ST; NEG = self.NEG; SEL = self.SEL
        def inter(LL):
            out = []
            for step in range(max(len(l) for l in LL)):
                for l in LL:
                    if step < len(l): out += mk(l[step])
            return out
        c = []
        c += self.csread(8, 3) + self.csread(12, 4) + self.csread(44, 0)
        if not o.halo: c += self.csread(48, 1) + self.csread(52, 2, 1)
        vs = lambda i: 192 + 8 * (i % 4) if i < 8 else 78
        def vsread(i): return mk(f"ds_read_b128 {V4(vs(i))}, v43 offset:{64*i}\nds_read_b128 {V4(vs(i)+4)}, v43 offset:{576+64*i}")
        c += vsread(8)
        hst = []
        for j in range(4):
            gu = self.gu_unit(8, aG(2*j), aU(2*j), aG(2*j+1), aU(2*j+1), ST+2+4*j, ST+4+4*j, VST+j, sU[0])
            hst.append([gu.pop()])
            c += gu + vsread(j)
        c += self.stamp(6)
        c += mk("s_waitcnt lgkmcnt(0)\ns_barrier")
        if o.epistamps: c += self.stamp(2, True)
        head = c; c = []
        st = self.round2(self.R2_E) + self.round2(range(29, 36))
        if o.halo:
            c += [I(f"v_mov_b32_dpp v{48+r}, v{aK(0)+r} row_newbcast:0 row_mask:0xf bank_mask:0xf") for r in range(4)]
            c += mk(f"v_mov_b32 v52, v{aV(0)}\nv_mov_b32 v53, v{aV(0)}\ns_nop 0\nv_permlane16_swap_b32 v52, v53\nv_mov_b32 v53, v52\ns_nop 1\nv_permlane32_swap_b32 v52, v53")
        kp = lambda i: 8 + 2 * i if i < 4 else 18 + 2 * (i - 4) if i < 8 else 86
        def kfix(i):
            k = aK(i); stp = ST + 2 * i
            return [f"v_pk_fma_f32 {V2(k)}, {V2(48)}, {V2(stp)}, {V2(k)} {NEG}",
                    f"v_pk_fma_f32 {V2(k+2)}, {V2(50)}, {V2(stp)}, {V2(k+2)} {NEG}",
                    f"v_pk_mul_f32 {V2(k)}, {V2(k)}, {V2(stp)} op_sel_hi:[1,0]",
                    f"v_pk_mul_f32 {V2(k+2)}, {V2(k+2)}, {V2(stp)} op_sel_hi:[1,0]",
                    f"v_cvt_pk_bf16_f32 v{kp(i)}, v{k}, v{k+1}",
                    f"v_cvt_pk_bf16_f32 v{kp(i)+1}, v{k+2}, v{k+3}"]
        qp = lambda i: 120 + 2 * i
        def qfix(i):
            q = aQ(i); stp = ST + 2 * (i + 1)
            return [f"v_pk_fma_f32 {V2(q)}, {V2(44)}, {V2(stp)}, {V2(q)} {NEG}",
                    f"v_pk_fma_f32 {V2(q+2)}, {V2(46)}, {V2(stp)}, {V2(q+2)} {NEG}",
                    f"v_cvt_pk_bf16_f32 v{qp(i)}, v{q}, v{q+1}",
                    f"v_cvt_pk_bf16_f32 v{qp(i)+1}, v{q+2}, v{q+3}"]
        NEGV = "op_sel_hi:[1,0,1] neg_lo:[0,1,0] neg_hi:[0,1,0]"
        vp = lambda i: 136 + 2 * i
        def vfix(i):
            v = aV(i); s_ = vs(i)
            return [f"v_pk_fma_f32 {V2(v)}, {V2(s_+4)}, {V2(52)}, {V2(v)} {NEGV}",
                    f"v_pk_fma_f32 {V2(v+2)}, {V2(s_+6)}, {V2(52)}, {V2(v+2)} {NEGV}",
                    f"v_pk_mul_f32 {V2(v)}, {V2(v)}, {V2(s_)}",
                    f"v_pk_mul_f32 {V2(v+2)}, {V2(v+2)}, {V2(s_+2)}",
                    f"v_cvt_pk_bf16_f32 v{vp(i)}, v{v}, v{v+1}",
                    f"v_cvt_pk_bf16_f32 v{vp(i)+1}, v{v+2}, v{v+3}"]
        c += inter([kfix(i) for i in range(9)])
        c += mk("s_waitcnt lgkmcnt(0)")
        c += inter([vfix(i) for i in (0, 1, 2, 3, 8)])
        for i in range(4, 8): c += vsread(i)
        c += inter([qfix(i) for i in range(8)])
        c += mk("s_waitcnt lgkmcnt(0)")
        c += inter([vfix(i) for i in range(4, 8)])
        if o.aint:
            z = []
            for h in hst: z += [h] + st[:o.aint]; st = st[o.aint:]
            st = z + st
        else: st = st[:o.hpos] + hst + st[o.hpos:]
        n1 = o.nfirst_a
        head += self.sprinkle(c, st[:n1], 0, len(c))
        if o.epistamps: head += self.stamp(3, True) + self.stamp(4, True)
        c = []
        MK = "v_mfma_f32_16x16x16_bf16"
        sp = lambda i: 88 + 8 * i if i < 4 else 156 + 8 * (i - 4)
        sch = f2h(0.25 * 1.4426950408889634)
        def smf(i):
            bp = BIAS + 8 if i == 0 else BIAS
            return [f"{MK} {V4(sp(i))}, {V2(kp(i))}, {V2(qp(i))}, {V4(bp)}", f"{MK} {V4(sp(i)+4)}, {V2(kp(i+1))}, {V2(qp(i))}, {V4(BIAS+4)}"]
        def merge(i):
            s_ = sp(i)
            return [f"v_max3_f32 v{s_}, v{s_}, v{s_+1}, v{s_+4}", f"v_max3_f32 v{s_+2}, v{s_+2}, v{s_+3}, v{s_+6}",
                    f"v_max_f32 v{s_}, v{s_}, v{s_+5}", f"v_max_f32 v{s_+1}, v{s_+2}, v{s_+7}",
                    f"v_mul_f32 v{s_+4}, {sch}, v{ST+2*(i+1)}", f"v_max_f32 v{s_+2}, v{s_}, v{s_+1}"]
        for i in range(8):
            a = smf(i); b = merge(i - 3) if i >= 3 else []
            c += mk(a[0]) + mk("\n".join(b[:3])) + mk(a[1]) + mk("\n".join(b[3:]))
        c += inter([merge(i) for i in (5, 6, 7)])
        def cross(A, B, C, D):
            a, b, cc, d = (sp(x) + 2 for x in (A, B, C, D))
            return [f"v_permlane32_swap_b32 v{a}, v{b}", f"v_permlane32_swap_b32 v{cc}, v{d}",
                    f"v_max_f32 v{a}, v{a}, v{b}", f"v_max_f32 v{cc}, v{cc}, v{d}", "s_nop 0",
                    f"v_permlane16_swap_b32 v{a}, v{cc}", f"v_max_f32 v{a}, v{a}, v{cc}", f"v_mov_b32 v{cc}, v{a}", "s_nop 0",
                    f"v_permlane16_swap_b32 v{a}, v{cc}", f"v_mov_b32 v{b}, v{a}", f"v_mov_b32 v{d}, v{cc}",
                    f"v_permlane32_swap_b32 v{a}, v{b}", f"v_permlane32_swap_b32 v{cc}, v{d}"]
        c += [x for x in inter([cross(0, 1, 2, 3), cross(4, 5, 6, 7)]) if x.op != "s_nop"]
        O = lambda i: 192 + 4 * i
        oq = lambda i: 120 + 4 * (i // 2) + 2 * (i % 2)
        def expo(i):
            s_ = sp(i)
            return [f"v_mul_f32_e64 v{s_+5}, -v{s_+2}, v{s_+4}",
                    f"v_fma_f32 v{s_}, v{s_}, v{s_+4}, v{s_+5}", f"v_fma_f32 v{s_+1}, v{s_+1}, v{s_+4}, v{s_+5}",
                    f"v_exp_f32 v{s_}, v{s_}", f"v_exp_f32 v{s_+1}, v{s_+1}",
                    f"v_cvt_pk_bf16_f32 v{s_+2}, v{s_}, v{s_+1}"] + [f"v_perm_b32 v{s_+4+k}, 0, v{s_+2}, v{SEL+k}" for k in range(4)]
        def pv(i): return [f"{M16} {V4(sp(i))}, {A4(ONES)}, {V4(sp(i)+4)}, 0", f"{M16} {V4(O(i))}, {V4(vp(i))}, {V4(sp(i)+4)}, 0"]
        def fin(i):
            d = oq(i)
            return [f"v_rcp_f32 v{sp(i)}, v{sp(i)}"] + [f"v_mul_f32 v{O(i)+r}, v{O(i)+r}, v{sp(i)}" for r in range(4)] + \
                   [f"v_cvt_pk_bf16_f32 v{d}, v{O(i)}, v{O(i)+1}", f"v_cvt_pk_bf16_f32 v{d+1}, v{O(i)+2}, v{O(i)+3}"]
        E = [inter([expo(2 * p), expo(2 * p + 1)]) for p in range(4)]
        F = [inter([fin(2 * p), fin(2 * p + 1)]) for p in range(4)]
        P = [mk("\n".join(pv(2 * p) + pv(2 * p + 1))) for p in range(4)]
        def mix(valu, mf, first=2, every=3):
            out = []; mf = list(mf)
            for k, x in enumerate(valu):
                if mf and k >= first and (k - first) % every == 0: out.append(mf.pop(0))
                out.append(x)
            return out + mf
        def swp(r): return mk(f"v_permlane16_swap_b32 v{r}, v{r+2}\nv_permlane16_swap_b32 v{r+1}, v{r+3}")
        if o.anew:
            pre = c
            ost = lambda j: [I(f"buffer_store_dwordx4 {V4(120+4*j)}, v{8+j}, {sWS}, {sU[1]} offen sc1")] if j < o.oearly else []
            c = E[0] + mix(E[1], P[0]) + mix(E[2], P[1]) + F[0] + swp(120) + ost(0)
            c += mix(E[3], P[2]) + mix(F[1], P[3]) + swp(124) + ost(1) + F[2] + swp(128) + ost(2) + F[3] + swp(132)
            vst = [I(f"v_mov_b32 v{8+j}, v{VST+j}") for j in range(4)]
            su = vst + self.polladdr() + self.p2setup() + self.flagaddr(sT2, 0 if o.hflag2 == 1 else 128)
            k = len(st) - o.pollahead
            n2 = min(k, n1 + o.nstage_a)
            pre = self.sprinkle(pre, st[n1:n2], 0, len(pre))
            items = [[x] for x in su]
            c = self.sprinkle(c, items, 0, int(len(c) * 0.6))
            late = st[n2:k] + [self.poll_issue(0)] + st[k:]
            c = self.sprinkle(c, late, int(len(c) * o.latefrom), int(len(c) * o.lateto) - o.pollpos)
            nx = len([1 for x in c[[i for i, x in enumerate(c) if x.text == late[k - n2][0].text][0] + 1:] if x.kind == "vmem"])
            if o.hflag2 == 2:
                hp = head + pre
                ny = len([1 for x in hp[max(k for k, x in enumerate(hp) if x.kind == "vmem" and x.data) + 1:] if x.kind == "vmem"])
                pre = pre + self.flagaddr("s64", 256) + mk(f"s_waitcnt vmcnt({ny})" + ("\ns_barrier" if o.wgflag else "")) + self.flagstore("s64", 12)
            c = head + pre + c
            c += self.stamp(7)
            c += [I(f"buffer_store_dwordx4 {V4(120+4*j)}, v{8+j}, {sWS}, {sU[1]} offen sc1") for j in range(o.oearly, 4)]
            c += mk(f"s_waitcnt vmcnt({nx + 4 - o.oearly})")
            if o.hflag2 == 1: c += self.flagstore(sT2, 12) + mk(f"s_add_u32 {sT2}, {sT2}, 128")
            return c
        c += E[0] + mix(E[1], P[0]) + mix(E[2], P[1]) + F[0] + swp(120)
        c += mix(E[3], P[2]) + mix(F[1], P[3]) + swp(124) + F[2] + swp(128) + F[3] + swp(132)
        na = min(n1 + o.nstage_a, len(st) - o.pollahead)
        c = head + self.sprinkle(c, st[n1:na], 0, len(c))
        c += self.stamp(7)
        c += [I(f"buffer_store_dwordx4 {V4(120+4*j)}, v{VST+j}, {sWS}, {sU[1]} offen sc1") for j in range(4)] if o.ofirst else []
        su = self.polladdr() + self.p2setup() + self.flagaddr(sT2, 0 if o.hflag2 else 128)
        k = len(st) - o.pollahead
        vst = [I(f"v_mov_b32 v{8+j}, v{VST+j}") for j in range(4)]
        c += vst + self.sprinkle(su, st[na:k], 0, len(su))
        c += self.poll_issue(0)
        for it in st[k:]: c += it
        if not o.ofirst: c += [I(f"buffer_store_dwordx4 {V4(120+4*j)}, v{8+j}, {sWS}, {sU[1]} offen sc1") for j in range(4)]
        c += mk(f"s_waitcnt vmcnt({o.pollahead + (0 if o.ofirst else 4)})")
        if o.hflag2: c += self.flagstore(sT2, 12) + mk(f"s_add_u32 {sT2}, {sT2}, 128")
        return c

    POLL = 58
    def polladdr(self):
        return mk(f"""
s_lshr_b32 s81, {sR}, 1
s_lshl_b32 s81, s81, 1
s_and_b32 {sT1}, {sW}, 1
s_add_u32 s81, s81, {sT1}
s_lshl_b32 s81, s81, 10
s_add_u32 s81, s81, {WS_FLAG}
v_and_b32 v16, 15, {vL}
v_lshlrev_b32 v16, 3, v16
v_bfe_u32 v{self.POLL}, {vL}, 4, 1
v_lshl_add_u32 v16, v{self.POLL}, 9, v16
""")
    def poll_issue(self, off, reg=None):
        return mk(f"buffer_load_dwordx2 {V2(reg or self.POLL)}, v16, {sWS}, s81 offen offset:{off} sc1")
    PT = 18; PW = 24; PX = 27; PY = 29; VXO = 34; XR = 36
    def p2setup(self):
        PT, PW, PX, PY, VXO, XR = self.PT, self.PW, self.PX, self.PY, self.VXO, self.XR
        c = mk(f"""
s_lshl_b32 {sT0}, {sR}, 1
s_lshr_b32 {sT1}, {sW}, 1
s_add_u32 {sT0}, {sT0}, {sT1}
s_lshl_b32 s59, {sT0}, 5
s_mul_i32 {sT0}, {sT0}, {RBS}
s_and_b32 {sT1}, {sW}, 1
s_lshl_b32 {sB[0]}, {sT1}, 14
s_add_u32 {sB[0]}, {sB[0]}, {sT0}
s_add_u32 {sB[1]}, {sB[0]}, {32*1024}
s_lshl_b32 {sB[2]}, {sT1}, 15
s_add_u32 {sB[2]}, {sB[2]}, {sT0}
s_add_u32 {sB[2]}, {sB[2]}, {64*1024}
s_lshl_b32 {sB[3]}, {sT1}, 13
s_add_u32 {sB[3]}, {sB[3]}, {sT0}
s_add_u32 {sB[3]}, {sB[3]}, {128*1024}
v_lshlrev_b32 v2, 4, {vL}
v_lshrrev_b32 v4, 2, {vL}
v_add_u32 v6, s59, v4
v_and_b32 v5, 3, {vL}
v_lshlrev_b32 v3, 4, v5
v_lshl_add_u32 v6, v6, 10, v3
s_lshl_b32 {sT0}, {sC}, 7
s_lshl_b32 {sT1}, {sT1}, 6
s_add_u32 {sT0}, {sT0}, {sT1}
v_add_u32 v{VXO}, {sT0}, v6
v_add_u32 v{VXO+1}, 0x4000, v{VXO}
buffer_load_dwordx4 {V4(XR)}, v{VXO}, {sX}, 0 offen
buffer_load_dwordx4 {V4(XR+4)}, v{VXO+1}, {sX}, 0 offen
v_and_b32 v6, 31, {vL}
v_add_u32 v3, s59, v6
v_lshlrev_b32 v33, 4, v3
v_add_u32 v{PW}, {sT3}, v2
v_add_u32 v{PW+1}, 0x10000, v{PW}
v_add_u32 v{PW+2}, 0x20000, v{PW}
v_xor_b32 v{PX}, 0x800, v{PW}
; output transpose (private 2KB at 131072 + w*2048): write s*64 + ((2jj+hi)^((s>>1)&3))*16 ; read row*64 + (q^((row>>1)&3))*16
v_lshrrev_b32 v3, 5, {vL}
v_bfe_u32 v{PY}, {vL}, 1, 2
v_xor_b32 v3, v3, v{PY}
v_lshlrev_b32 v3, 4, v3
v_lshl_add_u32 v3, v6, 6, v3
s_add_u32 {sT0}, {sT3}, {7*8192}
v_add_u32 v{PY}, {sT0}, v3
v_xor_b32 v{PY+1}, 32, v{PY}
v_bfe_u32 v3, {vL}, 3, 2
v_xor_b32 v3, v3, v5
v_lshlrev_b32 v3, 4, v3
v_lshl_add_u32 v3, v4, 6, v3
v_add_u32 v{PY+2}, {sT0}, v3
""")
        c += self.traddr([PT + k for k in range(6)])
        return c

    def phase2(self):
        o = self.opt
        BF = [112, 144]; SACC = 176; DACC = 64; ABUF = 144; DEPTH = o.depth
        PT, PW, PX, PY, VXO, XR, POLL = self.PT, self.PW, self.PX, self.PY, self.VXO, self.XR, self.POLL
        TILES = self.TILES
        c = mk("L_join:")
        c += self.stamp(8)
        if o.p1only:
            return c
        def bread(t):
            out = []
            if t < 5: return out
            for h in range(4):
                sg = 2 * self.slot((4 * t + h) // 2) + (h & 1)
                for cb in range(2):
                    for e in range(2):
                        out.append(I(f"ds_read_b64_tr_b16 {A2(BF[t&1]+8*h+4*cb+2*e)}, v{PT+2*(sg//16)+cb} offset:{(sg%16)*4096+e*512}"))
            return out
        c += mk(f"""
v_cmp_ne_u64 vcc, {sNon}, {V2(POLL)}
s_nop 0
s_and_b32 vcc_lo, vcc_lo, {0x11001100 if o.wgflag else 0xff00ff00}
s_cbranch_scc1 L_slow_e
L_go:
""")
        PR = [POLL, 62, 64, 66]
        pe = mk(f"L_slow_e:\ns_mov_b32 {sCnt}, 0")
        NP = o.npoll
        for k in range(NP - 1): pe += self.poll_issue(0, PR[k]) + mk("s_sleep 4")
        if NP == 1 and o.psleep: pe += mk(f"s_branch L_se\nL_se2:\ns_sleep {o.psleep}")
        pe += mk("L_se:")
        for k in range(NP):
            pe += self.poll_issue(0, PR[(k + NP - 1) % NP]) + mk(f"s_waitcnt vmcnt({NP - 1})\nv_cmp_ne_u64 vcc, {sNon}, {V2(PR[k])}\ns_nop 1\ns_and_b32 vcc_lo, vcc_lo, {0x11001100 if o.wgflag else 0xff00ff00}\ns_cbranch_scc0 L_se_done")
        pe += mk(f"""
s_add_u32 {sCnt}, {sCnt}, 1
s_cmp_gt_u32 {sCnt}, 10000
s_cbranch_scc0 {"L_se2" if NP == 1 and o.psleep else "L_se"}
L_se_done:
s_branch L_go
""")
        for z in range(2 if o.hflag2 else 1):
            pe += mk(f"L_slow_o{z}:\ns_mov_b32 {sCnt}, 0\nL_so{z}:") + self.poll_issue(256 if (o.hflag2 and z == 0) else 128) + mk(f"""
s_add_u32 {sCnt}, {sCnt}, 1
s_waitcnt vmcnt(0)
v_cmp_ne_u64 vcc, {sNon}, {V2(POLL)}
s_and_b32 vcc_lo, vcc_lo, {0x110011 if o.wgflag else 0xff00ff}
s_cbranch_scc0 L_back_o{z}
s_cmp_gt_u32 {sCnt}, 20000
s_cbranch_scc0 L_so{z}
s_branch L_back_o{z}
""")
        self.slow2 = pe
        c += self.stamp(9) + self.stamp(10)
        vm = []
        def aload(t):
            r, k = TILES[2 * t]; b = ABUF + 16 * (t % DEPTH)
            vm.extend([("a", t)] * 4)
            t0 = f"s_add_u32 {sT0}, {sB[r]}, {k*1024}" if not o.rot else f"s_add_u32 {sT0}, s63, {k*1024}\ns_and_b32 {sT0}, {sT0}, {self.RSIZE[r]*1024 - 1}\ns_add_u32 {sT0}, {sT0}, {sB[r]}"
            return mk(t0) + [I(f"buffer_load_dwordx4 {V4(b+4*h)}, v2, {sWS}, {sT0} offen offset:{1024*h} sc1") for h in range(4)]
        def young(tag): return len(vm) - 1 - max(k for k, t in enumerate(vm) if t == tag)
        for t in range(o.burst): c += aload(t)
        c += mk(f"s_mov_b32 {sT1}, {WS_STAT}\nbuffer_load_dword v{XR+8}, v33, {sWS}, {sT1} offen sc1"); vm.append(("rs", 0))
        c += mk(f"s_waitcnt vmcnt({len(vm)})")
        c += (mk("s_barrier") if o.wgflag else []) + self.flagstore(sT2, 12); vm.append(("fl", 0))
        c += mk("" if o.wgflag else "s_barrier")
        c += bread(0)
        M32 = "v_mfma_f32_32x32x16_bf16"
        issued = o.burst; nwr = 0
        TP = 10 - o.burst - o.plead; TP2 = 14 - o.burst - o.plead
        xo = [24576, 25600, 32768, 33792]
        RX = ABUF + 16 * (12 % DEPTH)
        TM = ABUF + 16 * (13 % DEPTH)
        el = range(16)
        xun = []
        for k in range(8):
            xun += mk(f"v_lshlrev_b32 v{46+2*k}, 16, v{XR+k}\nv_and_b32 v{47+2*k}, 0xffff0000, v{XR+k}")
        pre_d = mk(f"v_mul_f32 v{XR+8}, v{XR+8}, v{XR+8}\nv_mul_f32 v{XR+9}, 0xbfb8aa3b, v{XR+8}\nv_mov_b32 v62, 1.0")
        def stage(k, e, pk):
            D, R, T = DACC + e, RX + e, TM + e
            if not pk:
                return [f"v_add_f32 v{D}, v{D}, v{R}", f"v_mul_f32 v{T}, v{XR+9}, v{D}", f"v_exp_f32 v{T}, v{T}", f"v_mul_f32 v{D}, v{XR+8}, v{D}",
                        f"v_add_f32 v{T}, 1.0, v{T}", f"v_rcp_f32 v{T}, v{T}", f"v_mul_f32 v{D}, v{D}, v{T}"][k]
            return [f"v_pk_add_f32 {V2(D)}, {V2(D)}, {V2(R)}", f"v_pk_mul_f32 {V2(T)}, {V2(D)}, {V2(XR+8)} op_sel:[0,1] op_sel_hi:[1,1]", None,
                    f"v_pk_mul_f32 {V2(D)}, {V2(D)}, {V2(XR+8)} op_sel_hi:[1,0]", f"v_pk_add_f32 {V2(T)}, {V2(T)}, {V2(62)} op_sel_hi:[1,0]", None,
                    f"v_pk_mul_f32 {V2(D)}, {V2(D)}, {V2(T)}"][k]
        todo = [(k, e) for k in range(7) for e in el]
        def take(n):
            out = [I(stage(k, e, False)) for k, e in todo[:n]]; del todo[:n]
            return out
        def rest_packed():
            out = []
            while todo:
                k, e = todo.pop(0)
                if e % 2 == 0 and todo and todo[0] == (k, e + 1) and stage(k, e, True): todo.pop(0); out.append(I(stage(k, e, True)))
                else: out.append(I(stage(k, e, False)))
            return out
        BARS = [9, 13, 15]
        for t in range(18):
            b = ABUF + 16 * (t % DEPTH)
            bar = t in BARS
            c += mk(f"s_waitcnt vmcnt({young(('a', t))}) lgkmcnt({0 if (bar or t == 16) else nwr})" + ("\ns_barrier" if bar else ""))
            if o.p2stamps and t in (0, 4, 9, 14, 16, 17): c += self.stamp({0: 2, 4: 3, 9: 4, 14: 5, 16: 6, 17: 7}[t], True)
            mm = []
            for h in range(4):
                for cb in range(2):
                    k = 16 * cb
                    d = f"v[{96+k}:{96+k+15}]" if t >= 14 else f"v[{DACC+k}:{DACC+k+15}]"
                    cc = "0" if (t in (0, 14) and h == 0) else d
                    mm.append(I(f"{M32} {d}, {A4((self.frag(4*t+h) if t < 5 else BF[t&1]+8*h)+4*cb)}, {V4(b+4*h)}, {cc}"))
            lds = bread(t + 1) if t < 17 else []
            wr = []
            if True:
                for k in {9: range(0, 4), 10: range(4, 8), 11: range(8, 11), 12: range(11, 14)}.get(t, []):
                    u = 29 + k // 2; blk = k & 1; sg = self.slot(u)
                    wr.append(I(f"ds_write_b128 v{PW+sg//8}, {A4(self.stg(u, blk))} offset:{(sg%8)*8192+blk*1024}"))
            if t == 14:
                wr += [I(f"ds_write_b128 v{PW}, {V4(DACC+16+4*p)} offset:{xo[p]}") for p in range(4)]
            if t == 15:
                lds = [I(f"ds_read_b128 {V4(RX+4*p)}, v{PX} offset:{xo[p]}") for p in range(4)] + lds
            if t == 14: wr += pre_d
            if t == 15: wr += xun
            if t >= 16: wr = take(o.dsh[t - 16])
            ld = []
            if False:
                ld += self.flagstore(sT2, 12); vm.append(("fl", 0))
            if t == TP: ld += self.poll_issue(256 if o.hflag2 else 128); vm.append(("po", 0))
            if t == TP2 and o.hflag2: ld += self.poll_issue(128, 60); vm.append(("po", 1))
            if issued < 18 and issued - DEPTH < t:
                if issued in ((10, 14) if o.hflag2 else (10,)):
                    z = int(issued == 14)
                    ld.append(mk(f"s_waitcnt vmcnt({young(('po', z))})\nv_cmp_ne_u64 vcc, {sNon}, {V2(60 if z else POLL)}\ns_nop 0\ns_and_b32 vcc_lo, vcc_lo, {0x110011 if o.wgflag else 0xff00ff}\ns_cbranch_scc1 L_slow_o{z}\nL_back_o{z}:"))
                ld += aload(issued); issued += 1
            seq = []
            while ld or wr:
                if ld: seq.append(ld.pop(0))
                if wr: seq.append(wr.pop(0))
            if "m" in o.p2: mm = [I("s_nop 0") for _ in mm]
            if "r" in o.p2: lds = [x for x in lds if "tr" not in x.op]
            if "h" in o.p2: lds = [x for k, x in enumerate(lds) if "tr" not in x.op or k % 2 == 0]
            if "b" in o.p2: lds = [I(x.text.replace("ds_read_b64_tr_b16", "ds_read_b64")) for x in lds]
            if "w" in o.p2: seq = [x for x in seq if isinstance(x, list) or not x.op.startswith("ds_write")]
            wv = weave(mm, lds, seq, per_gap=(6 if t >= 16 else o.p2gap), lds_per_gap=o.p2lds, oth_start=(2 if t == 14 else 0))
            dsl = [x for x in wv if x.kind == "ds"]
            last = max([k for k, x in enumerate(dsl) if x.op.startswith("ds_read")], default=-1)
            nwr = len(dsl) - 1 - last
            if o.align == 3:
                for i in wv: i.padok = False
            c += wv
        c += self.stamp(11)
        dval = rest_packed()
        lead = min(8, len(dval))
        c += dval[:lead]; dval = dval[lead:]
        per = -(-len(dval) // 8)
        for p in range(4):
            c += mk(f"ds_write_b128 v{PW}, {V4(112+4*p)} offset:{16384+xo[p]}") + dval[:per]; dval = dval[per:]
        SV = 96
        c += mk("s_waitcnt lgkmcnt(0)\ns_barrier")
        c += [I(f"ds_read_b128 {V4(RX+4*p)}, v{PX} offset:{16384+xo[p]}") for p in range(4)]
        c += dval
        c += mk("s_waitcnt lgkmcnt(0)")
        c += [I(f"v_pk_add_f32 {V2(SV+2*e)}, {V2(SV+2*e)}, {V2(RX+2*e)}") for e in range(8)]
        c += [I(f"v_pk_mul_f32 {V2(SV+2*e)}, {V2(SV+2*e)}, {V2(DACC+2*e)}") for e in range(8)]
        c += [I(f"v_cvt_pk_bf16_f32 v{8+e}, v{SV+2*e}, v{SV+2*e+1}") for e in range(8)]
        c += mk(f"""
ds_write_b128 v{PY}, {V4(8)}
ds_write_b128 v{PY+1}, {V4(12)}
ds_read_b128 {V4(112)}, v{PY+2}
ds_read_b128 {V4(116)}, v{PY+2} offset:1024
""")
        for hh in range(2):
            c += mk(f"s_waitcnt lgkmcnt({1-hh})")
            for k in range(4):
                c += mk(f"v_lshlrev_b32 v{SV+8*hh+2*k}, 16, v{112+4*hh+k}\nv_and_b32 v{SV+8*hh+2*k+1}, 0xffff0000, v{112+4*hh+k}")
            for k in range(4): c += mk(f"v_pk_add_f32 {V2(SV+8*hh+2*k)}, {V2(SV+8*hh+2*k)}, {V2(46+8*hh+2*k)}")
            for k in range(4): c += mk(f"v_cvt_pk_bf16_f32 v{120+4*hh+k}, v{SV+8*hh+2*k}, v{SV+8*hh+2*k+1}")
            c += mk(f"buffer_store_dwordx4 {V4(120+4*hh)}, v{VXO+hh}, {sOUT}, 0 offen {o.outfl}")
        return c

    def finish(self):
        c = []
        if self.opt.amp:
            k, mult = self.opt.amp
            c += self.stamp(12)
            c += mk(f"""
s_waitcnt vmcnt(0)
s_cmp_lg_u32 s2, 77
s_cbranch_scc1 L_end
v_readlane_b32 s96, v7, {k}
s_sub_u32 s96, s96, s98
s_mul_i32 s96, s96, {mult}
s_min_u32 s96, s96, 100000
s_memrealtime s[100:101]
s_waitcnt lgkmcnt(0)
s_add_u32 s96, s96, s100
L_amp:
s_memrealtime s[100:101]
s_waitcnt lgkmcnt(0)
s_sub_u32 s97, s96, s100
s_cmp_gt_i32 s97, 0
s_cbranch_scc1 L_amp
L_end:
s_endpgm
""")
            return c
        if self.opt.stamps:
            c += self.stamp(12)
            c += mk(f"""
s_waitcnt vmcnt(0)
s_memrealtime s[96:97]
s_waitcnt lgkmcnt(0)
v_writelane_b32 v7, s96, 13
v_writelane_b32 v7, s98, 0
v_writelane_b32 v7, {sTyp}, 14
s_add_u32 s{bWS}, s66, {STAMP}
s_addc_u32 s{bWS+1}, s67, 0
s_mov_b32 s{bWS+2}, 0x100000
s_lshl_b32 {sT0}, s2, 2
s_add_u32 {sT0}, {sT0}, {sW}
s_lshl_b32 {sT0}, {sT0}, 7
v_lshlrev_b32 v4, 2, {vL}
s_mov_b64 exec, 0xffffffff
buffer_store_dword v7, v4, {sWS}, {sT0} offen
""")
        c += mk("L_end:\ns_endpgm")
        return c

    def build(self):
        pro = self.prologue()
        tys = [self.type_code(t) for t in range(2)]
        p2 = self.phase2()
        fin = self.finish()
        if self.opt.walk:
            def stubs(code, names, skip):
                code = flatten(code); n = len(code)
                pos = list(range(skip, n - 8, self.opt.walk))
                per = -(-len(pos) // len(names)); ins = {}
                for k, p in enumerate(pos):
                    q, r = divmod(k, per)
                    last = r == per - 1 or k == len(pos) - 1
                    ins[p] = mk(f"H_{names[q]}_{r}:\ns_cbranch_execz " + ("L_wback" if last else f"H_{names[q]}_{r+1}"))
                out = []
                for k, i in enumerate(code):
                    if k in ins: out += ins[k]
                    out.append(i)
                return out
            tys = [(stubs(tys[0][0], ["a0", "a1", "a2"], self.opt.wskip), tys[0][1]), (stubs(tys[1][0], ["b0", "b1", "b2"], self.opt.wskip), tys[1][1])]
            p2 = stubs(p2, ["p"], 1)
        tot = 0
        for t in range(2):
            tot += fix_hazards(pro + tys[t][0] + p2 + fin, self.opt.verbose)
        for t in range(2):
            fix_hazards(tys[t][1], self.opt.verbose)
            e, mx = check_waits(pro + tys[t][0] + p2 + fin, f"t{t}")
            print(f"type {t}: wait errors {e}, max vm outstanding {mx}", file=sys.stderr)
        print(f"inserted nop states: {tot}", file=sys.stderr)
        slow2 = getattr(self, "slow2", [])
        fix_hazards(slow2)
        code = pro + tys[0][0] + tys[1][0] + p2 + fin + tys[0][1] + tys[1][1] + slow2
        L = KN + "_kernel"
        if self.opt.align:
            wrap = lambda t: f'.amdgcn_target "amdgcn-amd-amdhsa--gfx950"\n.text\n.p2align 8\n{t}L_codeend:\n'
            print("align (promoted, padded):", align8(code, wrap, self.opt.align > 1), file=sys.stderr)
        hdr = open("cdna_kernels/" + KN + ".s.ref").read().split("; Override launch")[0] if self.opt.final else ""
        out = hdr + f"; @launch grid=(256,1,1) block=(256,1,1) lds={LDS_BYTES}\n"
        out += f'.amdgcn_target "amdgcn-amd-amdhsa--gfx950"\n.text\n.globl {L}\n.p2align 8\n.type {L},@function\n{L}:\n'
        out += text(code)
        out += "s_endpgm\n.p2align 6\nL_codeend:\n"
        out += f""".section .rodata,"a"
.p2align 6
.amdhsa_kernel {L}
  .amdhsa_next_free_vgpr 512
  .amdhsa_next_free_sgpr 102
  .amdhsa_accum_offset 256
  .amdhsa_group_segment_fixed_size 0
  .amdhsa_kernarg_size 80
  .amdhsa_user_sgpr_count 2
  .amdhsa_user_sgpr_kernarg_segment_ptr 1
  .amdhsa_system_sgpr_workgroup_id_x 1
  .amdhsa_float_denorm_mode_32 3
.end_amdhsa_kernel
"""
        return out

if __name__ == "__main__":
    ap = argparse.ArgumentParser()
    ap.add_argument("-o", default="k.s")
    for f in ("stamps", "p1only", "verbose", "final", "nomfma", "noreads", "nocs", "nopf", "epistamps", "prostamps", "p2stamps"): ap.add_argument("--" + f, action="store_true")
    ap.add_argument("--p2", default="")
    ap.add_argument("--p2gap", type=int, default=4)
    ap.add_argument("--burst", type=int, default=3)
    ap.add_argument("--ramp", type=int, default=2)
    ap.add_argument("--nstage_b", type=int, default=0)
    ap.add_argument("--depth", type=int, default=7)
    ap.add_argument("--pf0", type=int, default=2)
    ap.add_argument("--tlb", type=int, default=0)
    ap.add_argument("--kgroups", type=int, default=4)
    ap.add_argument("--quota", type=int, default=10)
    ap.add_argument("--ko", default="")
    ap.add_argument("--wgflag", type=int, default=1)
    ap.add_argument("--oearly", type=int, default=1)
    ap.add_argument("--lateto", type=float, default=0.8)
    ap.add_argument("--anew", type=int, default=1)
    ap.add_argument("--bdefer", type=int, default=12)
    ap.add_argument("--bint", type=int, default=0)
    ap.add_argument("--bint0", type=int, default=0)
    ap.add_argument("--aint", type=int, default=2)
    ap.add_argument("--qs", type=lambda x: [int(ch, 16) for ch in x], default=[int(ch, 16) for ch in "0999999988880000"])
    ap.add_argument("--qb", type=int, default=1)
    ap.add_argument("--sg", type=int, default=10)
    ap.add_argument("--ss", type=int, default=12)
    ap.add_argument("--sc", type=int, default=2)
    ap.add_argument("--cuts", type=lambda x: [int(v) for v in x.split(",")], default=[36, 56, 86])
    ap.add_argument("--xsched", default="0000000000000000")
    ap.add_argument("--xfirst", type=int, default=3)
    ap.add_argument("--plead", type=int, default=2)
    ap.add_argument("--pfa", type=int, default=0)
    ap.add_argument("--bearly", type=int, default=4)
    ap.add_argument("--stst", type=lambda x: [int(v) for v in x.split(",")], default=[1, 5, 11])
    ap.add_argument("--ntxt", type=int, default=0)
    ap.add_argument("--xt0", type=int, default=0)
    ap.add_argument("--hflag2", type=int, default=0)
    ap.add_argument("--psleep", type=int, default=0)
    ap.add_argument("--dsh", type=lambda x: [int(v) for v in x.split(",")], default=[28, 40])
    ap.add_argument("--latefrom", type=float, default=0.1)
    ap.add_argument("--pord", default="tt1X")
    ap.add_argument("--walk", type=int, default=0)
    ap.add_argument("--wskip", type=int, default=120)
    ap.add_argument("--hearly", type=int, default=1)
    ap.add_argument("--hpos", type=int, default=0)
    ap.add_argument("--nfirst_a", type=int, default=12)
    ap.add_argument("--bsplit", type=int, default=4)
    ap.add_argument("--bpt", type=int, default=64)
    ap.add_argument("--nstage_a", type=int, default=6)
    ap.add_argument("--pollahead", type=int, default=2)
    ap.add_argument("--ofirst", type=int, default=0)
    ap.add_argument("--olate", type=int, default=0)
    ap.add_argument("--npoll", type=int, default=2)
    ap.add_argument("--rotc", type=int, default=0)
    ap.add_argument("--ut0", type=int, default=0)
    ap.add_argument("--utper", type=int, default=2)
    ap.add_argument("--utfl", default="")
    ap.add_argument("--rot", type=int, default=0)
    ap.add_argument("--probe", type=int, default=-1)
    ap.add_argument("--halo", type=int, default=1)
    ap.add_argument("--outfl", default="sc1")
    ap.add_argument("--protouch", type=int, default=2)
    ap.add_argument("--tfirst", type=int, default=1)
    ap.add_argument("--ntx", type=int, default=0)
    ap.add_argument("--ntw", type=int, default=0)
    ap.add_argument("--ntt", type=int, default=0)
    ap.add_argument("--late", type=int, default=0)
    ap.add_argument("--pford", default="h2,h3,h1,o")
    ap.add_argument("--hflag", type=float, default=0.5)
    ap.add_argument("--csplit", type=int, default=1)
    ap.add_argument("--quota0", type=int, default=11)
    ap.add_argument("--wtouch", type=int, default=2)
    ap.add_argument("--wfirst", type=int, default=1)
    ap.add_argument("--statlag", type=int, default=3)
    ap.add_argument("--rotmask", type=int, default=6)
    ap.add_argument("--pfsched", default="0011111111100000")
    ap.add_argument("--statstep", type=int, default=0)
    ap.add_argument("--pfrot", type=int, default=7)
    ap.add_argument("--amp", type=lambda x: tuple(int(v) for v in x.split(",")), default=None)
    ap.add_argument("--wsched", default="033333333333300000")
    ap.add_argument("--bars", default="1,3,5,7,9,11,13,15")
    ap.add_argument("--align", type=int, default=0)
    ap.add_argument("--proextra", type=int, default=1)
    ap.add_argument("--dshadow", type=int, default=60)
    ap.add_argument("--pollpos", type=int, default=5)
    ap.add_argument("--stsched", type=lambda x: [int(ch) for ch in x], default=[int(ch) for ch in "0000000000033334"])
    ap.add_argument("--p2lds", type=int, default=4)
    ap.add_argument("--pfslice", type=int, default=4096)
    opt = ap.parse_args()
    import subprocess, re, os
    for _ in range(2):
        open(opt.o, "w").write(G(opt).build())
        subprocess.check_call(["clang", "-x", "assembler", "-target", "amdgcn-amd-amdhsa", "-mcpu=gfx950", "-c", opt.o, "-o", opt.o + ".o"])
        t = subprocess.check_output(["llvm-objdump", "-t", opt.o + ".o"], text=True)
        sym = {m.group(2): int(m.group(1), 16) for m in re.finditer(r"^([0-9a-f]{16}) .* (L_\w+)$", t, re.M)}
        n = sym["L_codeend"] - sym["L_pc"]
        opt.pfslice = (n - 12288) // 7 // 16 * 16
        assert 0 < opt.pfslice <= 8192
        opt.verbose = False
    os.remove(opt.o + ".o")
    print("code bytes", sym["L_codeend"], "pfslice", opt.pfslice, {k: v for k, v in sym.items() if k in ("L_pc", "L_tb", "L_join", "L_go", "L_end")}, file=sys.stderr)
```

```python
import re

REG = re.compile(r"^(-|\|)?(v|a|s)(\d+|\[(\d+):(\d+)\])\|?$")
TRANS = ("v_exp_", "v_log_", "v_rcp_", "v_rsq_", "v_sqrt_", "v_sin_", "v_cos_")

def regs(tok):
    tok = tok.strip()
    if tok in ("vcc", "exec"): return {(tok, 0), (tok, 1)}
    if tok in ("vcc_lo", "exec_lo"): return {(tok[:-3], 0)}
    if tok in ("vcc_hi", "exec_hi"): return {(tok[:-3], 1)}
    if tok == "m0": return {("m0", 0)}
    m = REG.match(tok)
    if not m: return set()
    f = m.group(2)
    if m.group(4) is not None:
        return {(f, i) for i in range(int(m.group(4)), int(m.group(5)) + 1)}
    return {(f, int(m.group(3)))}

class I:
    def __init__(self, text):
        self.text = text.strip()
        self.nops = 0
        t = self.text.split(";")[0].strip()
        self.is_label = t.endswith(":") or t.startswith(".") or t == ""
        self.op = ""; self.dst = set(); self.src = set(); self.kind = "none"
        self.srcC = set(); self.srcAB = set(); self.data = set()
        if self.is_label: return
        parts = t.split(None, 1)
        op = self.op = parts[0]
        ops = []
        if len(parts) > 1:
            depth = 0; cur = ""
            for ch in parts[1]:
                if ch in "[(": depth += 1
                if ch in "])": depth -= 1
                if ch == "," and depth == 0: ops.append(cur.strip()); cur = ""
                else: cur += ch
            ops.append(cur.strip())
        mods = ""
        if ops:
            last = ops[-1].split(None, 1)
            ops[-1] = last[0]
            mods = last[1] if len(last) > 1 else ""
        self.mods = mods
        R = [regs(o) for o in ops]
        U = lambda l: set().union(*l) if l else set()
        if op.startswith("v_mfma"):
            self.kind = "mfma"
            self.passes = 8 if "32x32x16" in op else 4 if ("16x16x32" in op or "16x16x16" in op) else 2 if "4x4x4" in op else None
            assert self.passes, op
            self.dst = R[0]; self.srcAB = R[1] | R[2]; self.srcC = R[3]; self.src = self.srcAB | self.srcC
        elif op.startswith("v_"):
            self.kind = "valu"
            if op.startswith("v_swap") or op.startswith("v_permlane"):
                self.dst = R[0] | R[1]; self.src = R[0] | R[1]
            elif op.startswith(("v_add_co", "v_sub_co", "v_addc_co", "v_subb_co", "v_mad_u64")):
                self.dst = R[0] | R[1]; self.src = U(R[2:])
            elif op.startswith("v_nop"):
                pass
            else:
                self.dst = R[0]; self.src = U(R[1:])
                if op.startswith(("v_fmac", "v_dot2c", "v_writelane")) or "dpp" in op or "row_" in mods or "quad_perm" in mods:
                    self.src |= R[0]
                if op.startswith("v_cndmask") and len(ops) == 3: self.src |= regs("vcc")
            self.dpp = ("dpp" in op) or ("row_" in mods) or ("quad_perm" in mods)
            self.trans = op.startswith(TRANS)
        elif op.startswith(("buffer_", "global_")):
            self.kind = "vmem"
            toks = mods.split()
            if "lds" in toks or "_lds_" in op:
                self.lds = True; self.src = U(R) | regs("m0")
            elif "load" in op:
                self.dst = R[0]; self.src = U(R[1:])
            elif "atomic" in op:
                self.src = U(R)
                if "sc0" in toks: self.dst = R[0]
            elif op.startswith("buffer_store"):
                self.data = R[0]; self.src = U(R)
            elif op.startswith("global_store"):
                self.data = R[1]; self.src = U(R)
            else:
                self.src = U(R)
        elif op.startswith("ds_"):
            self.kind = "ds"
            if op.startswith("ds_read") or op.startswith("ds_bpermute") or op.startswith("ds_swizzle"):
                self.dst = R[0]; self.src = U(R[1:])
            else:
                self.src = U(R)
        elif op.startswith(("s_load", "s_buffer_load", "s_memtime", "s_memrealtime")):
            self.kind = "smem"; self.dst = R[0]; self.src = U(R[1:])
        elif op.startswith("s_"):
            self.kind = "salu"
            if op.startswith(("s_cmp", "s_waitcnt", "s_barrier", "s_branch", "s_cbranch", "s_nop", "s_setprio", "s_sleep", "s_endpgm", "s_bitcmp", "s_setpc")):
                self.src = U(R)
            else:
                self.dst = R[0]; self.src = U(R[1:])
                if "saveexec" in op: self.dst |= regs("exec"); self.src |= regs("exec")
        else:
            raise ValueError("unknown op " + t)
    def states(self):
        if self.is_label: return 0
        if self.op == "s_nop": return int(self.text.split()[1], 0) + 1
        return 1
    def lines(self):
        out = []
        n = self.nops
        while n > 0:
            k = min(n, 16); out.append(f"  s_nop {k-1}"); n -= k
        out.append(("" if self.is_label else "  ") + self.text)
        return out

class Loop:
    def __init__(self, body, trips): self.body = body; self.trips = trips

def mk(text):
    return [I(l) for l in text.strip("\n").split("\n") if l.strip()]

def flatten(code):
    out = []
    for c in code:
        if isinstance(c, Loop): out += flatten(c.body)
        elif isinstance(c, list): out += flatten(c)
        else: out.append(c)
    return out

def trace(code):
    out = []
    for c in code:
        if isinstance(c, Loop):
            b = trace(c.body)
            out += b * c.trips
        elif isinstance(c, list): out += trace(c)
        else: out.append(c)
    return out

def text(code):
    return "\n".join(l for i in flatten(code) for l in i.lines()) + "\n"

def isv(r): return r[0] in ("v", "a")
def iss(r): return r[0] in ("s", "vcc")

def need(p, c):
    n = 0
    if p.kind == "valu":
        vd = {r for r in p.dst if isv(r)}; sd = {r for r in p.dst if iss(r)}
        if c.kind == "mfma" and vd & c.src: n = max(n, 2)
        if c.kind == "valu":
            if vd & c.src:
                if c.op.startswith("v_permlane") or c.dpp: n = max(n, 2)
                if c.op.startswith(("v_readfirstlane", "v_readlane")): n = max(n, 1)
                if p.trans and not c.trans: n = max(n, 1)
            if sd & c.src: n = max(n, 4 if c.op.startswith(("v_readlane", "v_writelane")) else 2)
            if ("exec", 0) in p.dst: n = max(n, 5)
        if c.kind == "vmem" and sd & c.src: n = max(n, 5)
        if c.kind in ("salu", "smem") and sd & c.src: n = max(n, 1)
        if p.trans and c.kind in ("vmem", "ds", "mfma") and vd & c.src: n = max(n, 2 if c.kind == "mfma" else 1)
    elif p.kind == "mfma":
        P = {2: 0, 4: 1, 8: 2}[p.passes]
        if c.kind == "mfma":
            if p.dst & c.srcAB: n = max(n, (5, 8, 12)[P])
            if p.dst & c.srcC:
                if p.dst == c.srcC and p.passes == c.passes: n = max(n, (2, 0, 0)[P])
                else: n = max(n, (4, 6, 10)[P])
            if p.dst & c.dst and not (p.dst == c.srcC): n = max(n, (5, 8, 12)[P])
        elif c.kind in ("valu", "vmem", "ds"):
            if p.dst & (c.src | c.dst): n = max(n, (5, 8, 12)[P])
            if c.kind == "valu" and p.srcC & c.dst: n = max(n, (1, 3, 7)[P])
    elif p.kind == "vmem":
        if p.data and len(p.data) >= 3 and p.data & c.dst: n = max(n, 2 if c.kind == "valu" else 1)
    elif p.kind == "salu":
        if ("m0", 0) in p.dst and c.kind == "vmem" and getattr(c, "lds", False): n = max(n, 1)
    return n

def fix_hazards(code, verbose=False):
    total = 0
    for _ in range(50):
        tr = [i for i in trace(code) if not i.is_label]
        changed = False
        for k, c in enumerate(tr):
            dist = c.nops
            j = k - 1
            while j >= 0 and dist < 20:
                p = tr[j]
                q = need(p, c)
                if q > dist:
                    if verbose: print(f"hazard: [{p.text}] -> [{c.text}] need {q} have {dist}")
                    c.nops += q - dist; total += q - dist; changed = True
                    dist = q
                dist += p.states() + p.nops
                j -= 1
        if not changed: break
    return total

def check_waits(code, name=""):
    tr = [i for i in trace(code) if not i.is_label]
    vm = []; lg = []
    errs = 0
    maxvm = 0
    for c in tr:
        if c.op == "s_waitcnt":
            m = re.search(r"vmcnt\((\d+)\)", c.text)
            if m:
                n = int(m.group(1)); vm = vm[len(vm) - n:] if n < len(vm) else vm
                if n == 0: vm = []
            m = re.search(r"lgkmcnt\((\d+)\)", c.text)
            if m:
                n = int(m.group(1))
                if n == 0: lg = []
                elif any(p.kind == "smem" for p in lg): pass
                elif n < len(lg): lg = lg[len(lg) - n:]
            continue
        touch = c.src | c.dst
        for q, nm in ((vm, "vm"), (lg, "lgkm")):
            for p in q:
                if p.dst & touch and not (c.kind == p.kind == "ds" and not (p.dst & c.src)):
                    if errs < 5: print(f"{name} WAIT ERROR ({nm}): [{p.text}] pending at [{c.text}]", file=__import__("sys").stderr)
                    errs += 1
        if c.kind == "vmem": vm.append(c); maxvm = max(maxvm, len(vm))
        if c.kind in ("ds", "smem"): lg.append(c)
    return errs, maxvm

def weave(main, lds, oth=(), per_gap=2, lds_start=0, lds_per_gap=1, oth_start=0, shift=0, lds_span=0, front=0):
    lds = list(lds); oth = list(oth)
    out = []
    n = len(main)
    size = lambda x: len([i for i in x if not i.is_label]) if isinstance(x, list) else (0 if x.is_label else 1)
    tot = sum(size(x) for x in oth); done = 0; nl0 = len(lds)
    for idx, m in enumerate(main):
        out.append(m)
        used = 0
        while lds and idx >= lds_start and used < lds_per_gap and (not lds_span or (nl0 - len(lds)) * lds_span <= idx * nl0):
            out.append(lds.pop(0)); used += 1
        target = -(-tot * (idx + 1 - oth_start) // (n - oth_start)) if idx >= oth_start else 0
        if shift: target = max(0, -(-tot * (idx + 1 - shift) // (n - shift)))
        while oth and used < per_gap and (done < target or done < front):
            x = oth.pop(0); k = size(x)
            out += x if isinstance(x, list) else [x]
            used += k; done += k
    for x in lds + oth: out += x if isinstance(x, list) else [x]
    return out


def cap_vm(code, start=0, limit=60, to=48):
    out = []; n = start
    for c in code:
        if c.op == "s_waitcnt":
            m = re.search(r"vmcnt\((\d+)\)", c.text)
            if m: n = min(n, int(m.group(1)))
        if c.kind == "vmem":
            if n >= limit:
                out.append(I(f"s_waitcnt vmcnt({to})")); n = to
            n += 1
        out.append(c)
    return out


import subprocess, os
NOE64 = ("v_readfirstlane", "v_readlane", "v_writelane", "v_swap", "v_accvgpr", "v_nop", "v_fmac", "v_permlane")
def sizes(asm_text, tmp="_al"):
    open(tmp + ".s", "w").write(asm_text)
    subprocess.check_call(["clang", "-x", "assembler", "-target", "amdgcn-amd-amdhsa", "-mcpu=gfx950", "-c", tmp + ".s", "-o", tmp + ".o"])
    t = subprocess.check_output(["llvm-objdump", "-d", "--mcpu=gfx950", tmp + ".o"], text=True)
    out = []
    for l in t.splitlines():
        m = re.search(r"// ([0-9A-F]{12}): ((?:[0-9A-F]{8} ?)+)", l)
        if m: out.append((int(m.group(1), 16), 4 * len(m.group(2).split())))
    return out

def align8(code, wrap, pad_nop=True):
    flat = [i for i in flatten(code)]
    sz = sizes(wrap(text(code)))
    k = 0; rec = []
    for i in flat:
        n = (i.nops + 15) // 16
        pre = n
        k += n
        if i.is_label: rec.append((i, pre, 0)); continue
        rec.append((i, pre, sz[k][1])); k += 1
    off = sz[0][0] % 8
    cand = None; promoted = 0; padded = 0
    for i, pre, size in rec:
        off = (off + 4 * pre) % 8
        if i.is_label:
            continue
        if size >= 8 and off % 8 == 4:
            if cand is not None:
                parts = cand.text.split(None, 1)
                cand.text = parts[0].replace("_e32", "") + "_e64 " + parts[1]; promoted += 1
                off = 0
            elif pad_nop and i.nops % 16 == 0 and getattr(i, "padok", True):
                i.nops += 1; padded += 1; off = 0
        if size >= 8: cand = None
        elif i.kind == "valu" and not i.op.startswith(NOE64) and "_e64" not in i.op and not getattr(i, "dpp", False):
            cand = i
        off = (off + size) % 8
    return promoted, padded
```

```python
import sys, argparse, struct
from fw import *
KN = "recurrent_scan__sliding_local_dilated__glu_gated_bilinear__prompt"

WSLOT = 20480
XBASE = 5 * WSLOT
XSLOT = 18432
MISC = XBASE + 3 * XSLOT
STATL = MISC
LDS_BYTES = 163840
RBS = 144 * 1024
WS_STAT = 0x900000
WS_FLAG = 0x910000
WS_SIZE = 0x920000
STAMP = 200 << 20
def S4(b): return f"s[{b}:{b+3}]"
bX, bWO, bWD, bOUT, bWS, bDBG = 4, 8, 12, 16, 20, 24
sX, sWO, sWD, sOUT, sWS, sDBG = map(S4, (bX, bWO, bWD, bOUT, bWS, bDBG))
bS = [28, 32, 36, 40, 44]; sS = [S4(b) for b in bS]
sW, sM, sN, sR, sC = "s68", "s69", "s70", "s71", "s72"
sKa, sKb, sIncA = "s73", "s74", "s75"
sWoff, sXoff, sHoff = "s76", "s77", "s78"
sIdx, sTyp = "s79", "s80"
sT0, sT1, sT2, sT3 = "s82", "s83", "s84", "s85"
sNon = "s[86:87]"; sNonL, sNonH = "s86", "s87"
sU = ["s88", "s89", "s90"]
sEx = "s[94:95]"
sB = ["s48", "s49", "s50", "s51"]
sWB = ["s52", "s53", "s56", "s57"]
sCnt = "s58"
sXc = "s93"; sXk = "s92"
vL = "v1"
vX = ["v8", "v9"]; vH = ["v10", "v11"]; vWg = ["v12", "v13", "v14", "v15", "v16"]; vB2 = "v17"
RA = 18
RT = 22
VST = 26
BIAS = 30
GAT = 76
NON = 56
GA = 58
SX = 60
V4 = lambda r: f"v[{r}:{r+3}]"
V2 = lambda r: f"v[{r}:{r+1}]"
A4 = lambda r: f"a[{r}:{r+3}]"
A2 = lambda r: f"a[{r}:{r+1}]"
CSACC = 228
ONES = 252
def f2h(x): return "0x%08x" % struct.unpack("<I", struct.pack("<f", x))[0]
aQ = lambda i: 88 + 4 * i
aK = lambda i: 120 + 4 * i
aV = lambda i: 156 + 4 * i
aG = lambda i: 192 + 4 * i
aU = lambda i: 224 + 4 * i
bAcc = lambda g, i: 96 + 32 * g + 4 * i
bMix = lambda u, i: 224 + 16 * u + 4 * i
NA = {0: 9, 1: 8}; NB = {0: 5, 1: 6}
fA = lambda st, i: 56 * st + 4 * i
def fB(ty, st, j): return 56 * st + 4 * NA[ty] + 4 * j
M16 = "v_mfma_f32_16x16x32_bf16"

class G:
    def __init__(self, opt): self.opt = opt; self.young = {}
    def pstamp(self, k):
        return self.stamp(k, True) if self.opt.prostamps else []
    def stamp(self, k, force=False):
        if not self.opt.stamps: return []
        if (self.opt.prostamps or self.opt.p2stamps) and 2 <= k <= 7 and not force: return []
        if self.opt.probe >= 0 and k in (2, 3) and not force: return []
        if self.opt.epistamps and k in (2, 3, 4) and not force: return []
        return mk(f"s_memrealtime s[96:97]\ns_memtime s[100:101]\ns_waitcnt lgkmcnt(0)\nv_writelane_b32 v7, s96, {k}\nv_writelane_b32 v7, s100, {16+k}")

    def scc_live(self, flat, k):
        for ins in flat[k:]:
            if ins.op.startswith(("s_cselect", "s_cbranch_scc", "s_addc")): return True
            if ins.kind == "salu" and not ins.op.startswith(("s_mov", "s_waitcnt", "s_nop", "s_movk")): return False
        return False
    def mksrd(self, b, p, size):
        return mk(f"s_mov_b32 s{b}, s{p}\ns_mov_b32 s{b+1}, s{p+1}\ns_mov_b32 s{b+2}, {size}\ns_mov_b32 s{b+3}, 0x20000")

    def dma_x(self, p, h, halo=True):
        base = XBASE + (p % 3) * XSLOT
        L = [mk(f"s_add_u32 {sXk}, {sXc}, {h*16384}\ns_add_u32 m0, {sXoff}, {base + 2048*h}\nbuffer_load_dwordx4 {vX[0]}, {sX}, {sXk} offen lds"),
             mk(f"s_add_u32 m0, {sXoff}, {base + 2048*h + 1024}\nbuffer_load_dwordx4 {vX[1]}, {sX}, {sXk} offen lds")]
        if halo:
            ho = "s3" if (self.opt.halo and h == 0) else sHoff
            L.append(mk(f"s_add_u32 m0, {ho}, {base + 256*h}\nbuffer_load_dword {vH[h]}, {sX}, {sXc} offen lds"))
        if h == 1: L[-1] += mk(f"s_add_u32 {sXc}, {sXc}, 128\ns_and_b32 {sXc}, {sXc}, 1023")
        if p < self.opt.ntx:
            for a in L:
                for i in a:
                    if i.kind == "vmem": i.text = i.text.replace(" lds", " nt lds")
        if "x" in self.opt.ko and p > 0:
            for a in L:
                for i in a:
                    if i.kind == "vmem": i.text = i.text.replace(sXk, "0").replace(sXc, "0")
        return L
    def dma_w(self, s):
        base = (s % 5) * WSLOT
        L = []
        for g in range(5):
            L.append(mk(f"s_add_u32 m0, {sWoff}, {base + 4096*g}\nbuffer_load_dwordx4 {vWg[g]}, {sS[g]}, {sKa if g < 3 else sKb} offen{' nt' if s < self.opt.ntw else ''} lds"))
        if "w" not in self.opt.ko: L[-1] += mk(f"s_add_u32 {sKa}, {sKa}, {sIncA}\ns_add_u32 {sKb}, {sKb}, {32*3584}")
        G = self.opt.kgroups
        if G > 1 and (s + 1) % (16 // G) == 0 and s < 15:
            L[-1].append(mk(f"s_cmp_eq_u32 {sKb}, {512*3584}\ns_cselect_b32 {sKa}, 0, {sKa}\ns_cselect_b32 {sKb}, 0, {sKb}"))
        return L
    def dma_queue(self, ty):
        Q = []
        for s in range(16):
            if s % 2 == 0 and ("x", s // 2) not in self.vm0:
                p = s // 2
                for h in range(2):
                    for a in self.dma_x(p, h, halo=(ty == 0)): Q.append((max(0, 2 * p - 5), ("x", p), a))
            if ("w", s) not in self.vm0:
                for a in self.dma_w(s): Q.append((max(0, s - 5), ("w", s), a))
        return Q

    def wtouch(self, n):
        return mk(f"""
v_add_u32 v44, 2, v44
v_and_b32 v44, 15, v44
v_lshl_add_u32 v48, v44, 5, v45
v_mad_u32_u24 v49, v48, s86, v46
v_mad_u32_u24 v48, v48, s87, v47
buffer_load_dword a{220 + 2 * n}, v49, s[88:91], s54 offen{' nt' if self.opt.ntt else ''}
buffer_load_dword a{221 + 2 * n}, v48, {sS[4]}, s55 offen{' nt' if self.opt.ntt else ''}
""")
    def prologue(self):
        o = self.opt
        vm = self.vm0 = []
        def note(L, tag):
            L = flatten(L)
            for i in L:
                if i.kind == "vmem": vm.append(tag)
            return L
        c = mk(f"""
s_load_dwordx16 s[48:63], s[0:1], 0
s_load_dwordx4 s[64:67], s[0:1], 64
s_cmp_ge_u32 s2, 256
s_cbranch_scc1 L_end
""")
        if o.stamps: c += mk("v_mov_b32 v7, 0\ns_memrealtime s[98:99]")
        c += note(mk(f"""
s_getpc_b64 s[88:89]
L_pc:
v_lshlrev_b32 v2, 4, v0
s_lshr_b32 {sT1}, s2, 3
s_and_b32 {sT0}, {sT1}, 7
s_mul_i32 {sT0}, {sT0}, {o.pfslice}
global_load_dwordx4 a[112:115], v2, s[88:89]
v_add_u32 v3, 0x1000, v2
s_add_u32 s88, s88, {sT0}
s_addc_u32 s89, s89, 0
global_load_dwordx4 a[116:119], v3, s[88:89]
v_add_u32 v3, 0x1000, v3
global_load_dwordx4 a[120:123], v3, s[88:89]
"""), ("pre", 0))
        c += mk(f"""
v_lshrrev_b32 v2, 6, v0
v_and_b32 {vL}, 63, v0
s_and_b32 {sT0}, s2, 7
v_readfirstlane_b32 {sW}, v2
s_lshr_b32 {sM}, {sT0}, 2
s_lshl_b32 {sM}, {sM}, 3
s_lshr_b32 {sT2}, {sT1}, 2
s_add_u32 {sM}, {sM}, {sT2}
v_lshrrev_b32 v5, 3, {vL}
v_lshrrev_b32 v3, 4, {vL}
v_xor_b32 v4, v3, {vL}
v_and_b32 v4, 7, v4
v_lshlrev_b32 v4, 4, v4
s_lshl_b32 {sT3}, {sM}, 7
s_lshl_b32 {sT2}, {sW}, 5
s_add_u32 {sT2}, {sT2}, {sT3}
v_add_u32 v6, {sT2}, v5
v_lshl_add_u32 {vX[0]}, v6, 10, v4
v_xor_b32 {vX[1]}, 64, {vX[0]}
v_add_u32 {vX[1]}, 0x2000, {vX[1]}
s_lshl_b32 {sT2}, {sW}, 2
s_add_u32 {sT2}, {sT2}, {sT3}
s_sub_u32 {sT2}, {sT2}, 16
v_lshrrev_b32 v6, 5, {vL}
v_add_u32 v6, {sT2}, v6
s_lshl_b32 {sXoff}, {sW}, 5
v_lshlrev_b32 v4, 2, {vL}
v_and_b32 v4, 0x7f, v4
v_xor_b32 v4, {sXoff}, v4
v_max_i32 v2, 0, v6
v_lshl_add_u32 {vH[0]}, v2, 10, v4
v_add_u32 v6, 2, v6
v_max_i32 v2, 0, v6
v_xor_b32 v4, 16, v4
v_lshl_add_u32 {vH[1]}, v2, 10, v4
s_lshl_b32 {sXoff}, {sW}, 12
s_add_u32 {sXoff}, {sXoff}, 2048
s_lshl_b32 {sHoff}, {sW}, 9
s_cmp_eq_u32 {sW}, 0
s_cselect_b32 s3, 0x10000, {sHoff}
s_cselect_b32 {sXc}, {0x80000000 if o.halo else 0}, 0
v_or_b32 {vH[0]}, {sXc}, {vH[0]}
s_lshl_b32 {sXc}, s2, 1
s_and_b32 {sXk}, s2, 4
s_add_u32 {sXc}, {sXc}, {sXk}
s_and_b32 {sXc}, {sXc}, {o.rotmask}
s_lshl_b32 s81, {sXc}, 1
s_lshl_b32 {sXc}, {sXc}, 7
s_and_b32 {sT2}, {sT1}, 3
s_lshl_b32 {sT2}, {sT2}, 2
s_add_u32 {sT2}, {sT2}, {sW}
s_mul_i32 {sT2}, {sT2}, 9
s_add_u32 {sT2}, {sT2}, {sT3}
s_sub_u32 {sT2}, {sT2}, 16
v_add_u32 v50, {sT2}, {vL}
v_max_i32 v50, 0, v50
v_cmp_le_u32 vcc, 9, {vL}
v_lshlrev_b32 v50, 10, v50
v_mov_b32 v6, 0x80000000
v_cndmask_b32 v50, v50, v6, vcc
s_mov_b32 s{bX+2}, {2048*1024}
s_mov_b32 s{bX+3}, 0x20000
s_waitcnt lgkmcnt(0)
s_mov_b32 s{bX}, s48
s_mov_b32 s{bX+1}, s49
""")
        c += self.pstamp(2)
        if o.xt0:
            c += note(mk(f"buffer_load_dword a227, v50, {sX}, {sXc} offen{' nt' if o.ntxt else ''}"), ("xt", 0))
            if o.xt0 > 1: c += note(mk(f"s_add_u32 {sXk}, {sXc}, 128\ns_and_b32 {sXk}, {sXk}, 1023\nbuffer_load_dword a226, v50, {sX}, {sXk} offen{' nt' if o.ntxt else ''}"), ("xt", 0))
        c += note(self.dma_x(0, 0) + self.dma_x(0, 1), ("x", 0))
        c += self.pstamp(3)
        c += mk(f"""
s_lshl_b32 {sWoff}, {sW}, 10
s_and_b32 {sN}, {sT0}, 3
s_lshl_b32 {sIdx}, {sN}, 1
s_lshl_b32 {sN}, {sN}, 2
s_and_b32 {sT2}, {sT1}, 3
s_add_u32 {sN}, {sN}, {sT2}
s_lshr_b32 {sTyp}, {sT2}, 1
s_and_b32 {sT2}, {sT2}, 1
s_add_u32 {sIdx}, {sIdx}, {sT2}
s_and_b32 {sT2}, {sW}, 1
s_lshl_b32 {sT3}, {sT2}, 2
v_and_b32 v4, 2, v5
v_or_b32 v4, {sT3}, v4
v_xor_b32 v4, v4, {vL}
v_and_b32 v4, 7, v4
v_lshlrev_b32 v4, 4, v4
s_lshl_b32 {sT3}, {sW}, 3
v_add_u32 v6, {sT3}, v5
s_movk_i32 s87, 3584
s_movk_i32 s86, 3072
s_lshl_b32 s95, {sIdx}, 7
s_lshl_b32 {sT3}, {sIdx}, 8
s_add_u32 {sT3}, {sT3}, 1024
s_add_u32 s49, s95, 1024
s_add_u32 s94, s95, 2048
s_add_u32 s54, {sT3}, 128
s_lshl_b32 s55, {sIdx}, 6
s_add_u32 s55, s55, 3072
s_cmp_eq_u32 {sTyp}, 1
s_cselect_b32 s86, s87, s86
s_cselect_b32 s48, {sT3}, s95
s_cselect_b32 s49, {sT3}, s49
s_cselect_b32 s94, s54, s94
s_cselect_b32 s55, s55, s95
s_cselect_b32 s95, s54, s95
s_cselect_b64 vcc, -1, 0
s_cselect_b32 s28, s56, s50
s_cselect_b32 s29, s57, s51
s_cselect_b32 s32, s58, s50
s_cselect_b32 s33, s59, s51
s_cselect_b32 s40, s58, s56
s_cselect_b32 s41, s59, s57
v_mad_u32_u24 v2, v6, s86, v4
v_mad_u32_u24 v3, v6, s87, v4
s_lshl_b32 s30, s86, 9
s_lshl_b32 {sIncA}, s86, 5
v_add_u32 {vWg[0]}, s48, v2
v_add_u32 {vWg[1]}, s49, v2
v_add_u32 {vWg[2]}, s94, v2
v_add_u32 {vWg[3]}, s95, v3
s_mov_b32 s31, 0x20000
s_mov_b32 s34, s30
s_mov_b32 s35, 0x20000
s_mov_b32 s36, s28
s_mov_b32 s37, s29
s_mov_b32 s38, s30
s_mov_b32 s39, 0x20000
s_mov_b32 s42, {512*3584}
s_mov_b32 s43, 0x20000
v_lshrrev_b32 v4, 4, {vL}
v_and_b32 v4, 2, v4
v_xor_b32 v4, v4, {vL}
v_and_b32 v4, 3, v4
v_lshlrev_b32 v4, 4, v4
s_lshl_b32 {sT2}, {sT2}, 4
v_lshrrev_b32 v6, 2, {vL}
v_add_u32 v6, {sT2}, v6
v_mad_u32_u24 v4, v6, s87, v4
s_lshl_b32 {sT2}, {sTyp}, 1
s_cmp_lt_u32 {sW}, {sT2}
s_cselect_b32 s44, s56, s58
s_cselect_b32 s45, s57, s59
s_mov_b32 s46, s42
s_mov_b32 s47, 0x20000
v_cndmask_b32 v4, v3, v4, vcc
s_mul_i32 {sKa}, s81, {sIncA}
s_mul_i32 {sKb}, s81, {32*3584}
v_add_u32 {vWg[4]}, s55, v4
""")
        c += note(self.dma_w(0), ("w", 0))
        c += self.pstamp(4)
        c += mk(f"""
v_lshrrev_b32 v2, 4, {vL}
v_bfe_u32 v3, {vL}, 2, 2
v_and_b32 v4, 3, {vL}
v_and_b32 v6, 15, {vL}
v_lshrrev_b32 v5, 1, v6
v_xor_b32 v5, v5, v2
v_lshlrev_b32 v5, 4, v5
v_lshl_add_u32 v5, v6, 7, v5
v_add_u32 v5, {XBASE}, v5
s_lshr_b32 {sT2}, {sW}, 1
s_and_b32 {sT2}, {sT2}, {sTyp}
s_lshl_b32 {sT2}, {sT2}, 13
v_add_u32 v{RA}, {sT2}, v5
v_xor_b32 v{RA+1}, 64, v{RA}
v_subrev_u32 v{RA+2}, {sT2}, v5
v_xor_b32 v{RA+3}, 64, v{RA+2}
v_and_b32 v6, 1, v2
v_lshrrev_b32 v5, 1, v3
v_lshl_or_b32 v5, v6, 1, v5
v_xor_b32 v5, {sW}, v5
v_lshlrev_b32 v5, 5, v5
v_lshl_add_u32 v5, v2, 10, v5
v_lshl_add_u32 v5, v3, 7, v5
v_lshl_add_u32 v{RT}, v4, 3, v5
v_add_u32 v{RT+1}, {3*WSLOT}, v{RT}
v_lshrrev_b32 v5, 1, v2
v_lshlrev_b32 v5, 10, v5
v_lshl_add_u32 v5, v6, 9, v5
v_lshl_add_u32 v5, v3, 6, v5
v_lshl_add_u32 v5, v4, 3, v5
v_xor_b32 v6, {sW}, v6
v_and_b32 v6, 1, v6
v_lshl_add_u32 v{RT+2}, v6, 5, v5
v_add_u32 v{RT+3}, {3*WSLOT}, v{RT+2}
v_mov_b32 v5, 0x3f803f80
v_lshlrev_b32 v6, 2, {vL}
v_add_u32 v6, {XBASE}, v6
{"" if not o.halo else f"ds_write_b32 v6, v5{chr(10)}ds_write_b32 v6, v5 offset:{XSLOT}{chr(10)}ds_write_b32 v6, v5 offset:{2*XSLOT}"}
s_cmp_eq_u32 {sW}, 1
s_cselect_b32 s54, s49, s48
s_cselect_b32 s88, s32, s28
s_cselect_b32 s89, s33, s29
s_cmp_eq_u32 {sW}, 2
s_cselect_b32 s54, s94, s54
s_cmp_eq_u32 {sW}, 3
s_cselect_b32 s54, s95, s54
s_cselect_b32 s88, s40, s88
s_cselect_b32 s89, s41, s89
s_cselect_b32 s90, s42, s30
s_cselect_b32 s86, s87, s86
s_mov_b32 s91, 0x20000
v_accvgpr_write_b32 a{ONES}, v5
v_accvgpr_write_b32 a{ONES+1}, v5
v_accvgpr_write_b32 a{ONES+2}, v5
v_accvgpr_write_b32 a{ONES+3}, v5
s_add_u32 s81, s81, {o.wfirst - 2}
v_lshrrev_b32 v5, 2, {vL}
v_add_u32 v44, s81, v5
s_and_b32 {sT2}, {sM}, 7
s_lshl_b32 {sT2}, {sT2}, 2
v_add_u32 v45, {sT2}, v4
v_lshrrev_b32 v46, 3, {vL}
v_lshlrev_b32 v46, 28, v46
s_lshl_b32 {sT2}, {sTyp}, 1
s_sub_u32 {sT2}, 3, {sT2}
v_xor_b32 v5, {sW}, {vL}
v_and_b32 v5, {sT2}, v5
v_lshl_or_b32 v47, v5, 26, v46
""")
        c += self.mksrd(bDBG, 64, 256)
        c += mk(f"""
s_or_b32 {sT2}, s2, {sW}
s_cmp_lg_u32 {sT2}, 0
s_cbranch_scc1 L_nononce
s_memrealtime s[94:95]
s_waitcnt lgkmcnt(0)
s_or_b32 s94, s94, 1
v_mov_b32 v2, s94
v_mov_b32 v3, s95
v_mov_b32 v4, 0
s_mov_b64 exec, 1
buffer_store_dwordx2 v[2:3], v4, {sDBG}, 0 offen sc1
s_mov_b64 exec, -1
L_nononce:
""")
        c += self.pstamp(7)
        xt = mk(f"buffer_load_dword a226, v50, {sX}, {sXc} offen{' nt' if o.ntxt else ''}")
        for ch in o.pord:
            if ch == "t": c += note(self.wtouch(1 + vm.count(("wt", 0)) // 2 % 2), ("wt", 0))
            if ch == "x": c += note(xt, ("xt", 0))
            if ch == "1": c += note(self.dma_w(1), ("w", 1))
            if ch == "X": c += note(self.dma_x(1, 0) + self.dma_x(1, 1), ("x", 1))
            if ch == "2": c += note(self.dma_w(2), ("w", 2))
        c += self.pstamp(5)
        if o.walk:
            c += mk(f"""
; instruction-cache warm-up: hop along the s_cbranch_execz chains (no other instruction runs with EXEC = 0)
s_mov_b64 exec, 0
s_cmp_eq_u32 {sW}, 3
s_cbranch_scc1 H_p_0
s_lshl_b32 {sT2}, {sTyp}, 2
s_add_u32 {sT2}, {sT2}, {sW}
s_cmp_eq_u32 {sT2}, 0
s_cbranch_scc1 H_a0_0
s_cmp_eq_u32 {sT2}, 1
s_cbranch_scc1 H_a1_0
s_cmp_eq_u32 {sT2}, 2
s_cbranch_scc1 H_a2_0
s_cmp_eq_u32 {sT2}, 4
s_cbranch_scc1 H_b0_0
s_cmp_eq_u32 {sT2}, 5
s_cbranch_scc1 H_b1_0
s_branch H_b2_0
L_wback:
s_mov_b64 exec, -1
""")
        c += mk(f"s_add_u32 s81, {sXc}, {128 * (o.xfirst - 3)}")
        c += self.pstamp(6)
        if o.shift:
            c += mk(f"""
s_lshr_b32 {sT2}, {sW}, {o.verbit}
s_and_b32 {sT2}, {sT2}, 1
s_lshl_b32 {sT1}, {sTyp}, 1
s_add_u32 {sT2}, {sT2}, {sT1}
s_cmp_eq_u32 {sT2}, 1
s_cbranch_scc1 L_t01
s_cmp_eq_u32 {sT2}, 2
s_cbranch_scc1 L_t10
s_cmp_eq_u32 {sT2}, 3
s_cbranch_scc1 L_t11
""")
        else: c += mk(f"s_cmp_eq_u32 {sTyp}, 1\ns_cbranch_scc1 L_t10")
        return c

    def deferred(self, ty):
        o = self.opt
        A = []
        A += self.mksrd(bWO, 52, 512 * 1024) + self.mksrd(bWD, 60, 1792 * 1024) + self.mksrd(bWS, 66, WS_SIZE) + self.mksrd(bOUT, 62, 2048 * 1024)
        A += mk(f"""
s_lshr_b32 {sT1}, s2, 3
s_and_b32 {sT2}, s2, 7
s_lshr_b32 {sR}, {sT2}, {o.csplit}
s_lshl_b32 {sR}, {sR}, {2 + o.csplit}
s_lshr_b32 s64, {sT1}, {3 - o.csplit}
s_add_u32 {sR}, {sR}, s64
s_and_b32 {sC}, {sT1}, {(8 >> o.csplit) - 1}
s_and_b32 {sT2}, {sT2}, {o.csplit}
s_lshl_b32 {sT2}, {sT2}, 2
s_add_u32 {sC}, {sC}, {sT2}
s_lshl_b32 {sT3}, {sW}, 11
s_mul_i32 s62, {sC}, {o.rotc}
s_mul_i32 s63, {sR}, {2 - o.csplit}
s_add_u32 s62, s62, s63
s_and_b32 s62, s62, 7
s_lshl_b32 s63, s62, 12
s_lshl_b32 s62, s62, 16
v_lshrrev_b32 v5, 2, {vL}
v_and_b32 v5, 4, v5
v_xor_b32 v5, v5, {vL}
v_and_b32 v5, 7, v5
v_lshlrev_b32 v5, 4, v5
v_lshrrev_b32 v6, 3, {vL}
v_lshl_add_u32 v5, v6, 10, v5
s_lshl_b32 {sT2}, {sC}, 7
v_add_u32 {vB2}, {sT2}, v5
s_and_b32 {sT1}, {sW}, 1
s_lshr_b32 {sT2}, {sW}, 1
s_lshl_b32 {sT2}, {sT2}, 14
s_lshl_b32 {sWB[0]}, {sT1}, 18
s_add_u32 {sWB[0]}, {sWB[0]}, {sT2}
s_mov_b32 {sWB[1]}, {sWB[0]}
s_lshl_b32 s64, {sT1}, 19
s_add_u32 s64, s64, {sT2}
s_add_u32 s56, s64, {512*1024}
s_lshl_b32 s64, {sT1}, 17
s_add_u32 s64, s64, {sT2}
s_add_u32 s57, s64, {1536*1024}
s_lshl_b32 {sT1}, {sM}, 7
s_sub_u32 {sT2}, {sT1}, 16
v_add_u32 v5, {sT2}, {vL}
v_max_i32 v{GA}, 0, v5
v_lshlrev_b32 v{GA}, 4, v{GA}
v_add_u32 v5, 64, v5
v_lshlrev_b32 v{GA+1}, 4, v5
s_add_u32 {sT1}, {sT1}, 112
v_and_b32 v5, 15, {vL}
v_add_u32 v5, {sT1}, v5
v_lshlrev_b32 v42, 4, v5
""")
        B = []
        if ty == 0:
            B += mk(f"""
v_lshlrev_b32 v{VST}, 4, {vL}
v_add_u32 v{VST+1}, {RBS}, v{VST}
v_add_u32 v{VST+2}, {2*RBS}, v{VST}
v_add_u32 v{VST+3}, {3*RBS}, v{VST}
s_mul_i32 {sT1}, {sM}, 576
s_lshl_b32 {sT2}, {sIdx}, 2
s_add_u32 {sT2}, {sT2}, {sW}
s_add_u32 {sU[1]}, {sT1}, {sT2}
s_add_u32 {sU[0]}, {sU[1]}, 32
s_lshl_b32 {sU[0]}, {sU[0]}, 10
s_lshl_b32 {sU[1]}, {sU[1]}, 10
v_lshrrev_b32 v4, 4, {vL}
v_and_b32 v6, 15, {vL}
v_lshlrev_b32 v4, 2, v4
v_sub_u32 v4, v6, v4
v_mov_b32 v3, 0xff800000
v_mov_b32 v6, 0x80000000
""")
            for r in range(4):
                B += mk(f"""
v_subrev_u32 v5, {r}, v4
v_and_b32 v5, 0x80000001, v5
v_cmp_eq_u32 vcc, 0, v5
v_cmp_eq_u32 {sEx}, v6, v5
v_cndmask_b32_e64 v{BIAS+4+r}, v3, 0, vcc
v_cndmask_b32_e64 v{BIAS+r}, v3, 0, {sEx}
""")
            B.append(mk(f"s_cmp_eq_u32 {sM}, 0\ns_cselect_b64 vcc, -1, 0"))
            for r in range(4): B += mk(f"v_cndmask_b32 v{BIAS+8+r}, v{BIAS+r}, v3, vcc")
        else:
            B += mk(f"""
s_lshr_b32 {sT1}, {sW}, 1
s_mul_i32 {sT2}, {sT1}, {2*RBS}
v_lshlrev_b32 v5, 4, {vL}
v_add_u32 v{VST}, {sT2}, v5
v_add_u32 v{VST+1}, {RBS}, v{VST}
v_subrev_u32 v{VST+2}, {sT2}, v5
v_add_u32 v{VST+2}, {2*RBS}, v{VST+2}
v_add_u32 v{VST+3}, {RBS}, v{VST+2}
s_mul_i32 {sT1}, {sM}, 576
s_lshl_b32 {sT2}, {sIdx}, 3
s_add_u32 {sT2}, {sT2}, {sW}
s_add_u32 {sT2}, {sT2}, {sT1}
s_add_u32 {sU[0]}, {sT2}, 64
s_add_u32 {sU[1]}, {sT2}, 68
s_lshl_b32 {sT2}, {sIdx}, 1
s_and_b32 s64, {sW}, 1
s_add_u32 {sT2}, {sT2}, s64
s_add_u32 {sT2}, {sT2}, {sT1}
s_add_u32 {sU[2]}, {sT2}, 128
s_lshl_b32 {sU[0]}, {sU[0]}, 10
s_lshl_b32 {sU[1]}, {sU[1]}, 10
s_lshl_b32 {sU[2]}, {sU[2]}, 10
""")
        return A, B

    def reads(self, ty, stage):
        st = stage & 1
        xb = ((stage // 2) % 3) * XSLOT; kh = stage & 1
        ws = stage % 5; rg = ws // 3; wb = (ws % 3) * WSLOT
        out = []
        for i in range(NA[ty]):
            if ty == 0: out.append(I(f"ds_read_b128 {A4(fA(st, i))}, v{RA+kh} offset:{xb + 2048*i}"))
            else: out.append(I(f"ds_read_b128 {A4(fA(st, i))}, v{RA+kh+(2 if i >= 4 else 0)} offset:{xb + 2048*(i+1)}"))
        def tr(j, reg, off, second):
            return [I(f"ds_read_b64_tr_b16 {A2(fB(ty, st, j))}, v{reg} offset:{wb+off}"),
                    I(f"ds_read_b64_tr_b16 {A2(fB(ty, st, j)+2)}, v{reg} offset:{wb+off+second}")]
        B = []
        for g in range(5 if ty == 0 else 4): B += tr(g, RT + rg, 4096 * g, 512)
        if ty == 1: B += tr(4, RT + 2 + rg, 16384, 256) + tr(5, RT + 2 + rg, 16384 + 2048, 256)
        if self.opt.mixrd:
            z = []
            while out or B:
                if out: z.append(out.pop(0))
                if B: z.append(B.pop(0))
            return z
        return out + B

    def mfmas(self, ty, stage):
        st = stage & 1
        out = []
        Z = lambda d: "0" if stage == 0 else d
        def T(d, j, i): out.append(I(f"{M16} {V4(d)}, {A4(fB(ty, st, j))}, {A4(fA(st, i))}, {Z(V4(d))}"))
        def CS(k, flip=False):
            d = A4(CSACC + 4 * k); f = A4(fB(ty, st, k))
            if self.opt.nocs: return
            out.append(I(f"{M16} {d}, {A4(ONES)}, {f}, {Z(d)}" if flip else f"{M16} {d}, {f}, {A4(ONES)}, {Z(d)}"))
        if ty == 0:
            for i in range(8): T(aQ(i), 0, i + 1)
            CS(0)
            for i in range(9): T(aK(i), 1, i)
            if not self.opt.halo: CS(1)
            for i in range(9): out.append(I(f"{M16} {V4(aV(i))}, {A4(fA(st, i))}, {A4(fB(ty, st, 2))}, {Z(V4(aV(i)))}"))
            if not self.opt.halo: CS(2, True)
            for i in range(8): T(aG(i), 3, i + 1)
            CS(3)
            for i in range(8): T(aU(i), 4, i + 1)
            CS(4)
        else:
            for g in range(4):
                for i in range(8): T(bAcc(g, i), g, i)
                CS(g)
            for u in range(2):
                for i in range(4): T(bMix(u, i), 4 + u, i)
                CS(4 + u)
        return out

    TILES = [(2, 2*k) for k in range(16)] + [(3, 2*k) for k in range(4)] + [(1, 2*k) for k in range(8)] + [(0, 2*k) for k in range(8)]
    RSIZE = {0: 16, 1: 16, 2: 32, 3: 8}
    def b2off(self, r, k, blk):
        if not self.opt.rot: return f"s_add_u32 {sT0}, {sWB[r]}, {(16*k + 8*blk)*1024}"
        if blk: return f"s_add_u32 {sT0}, {sT0}, 8192"
        return f"s_add_u32 {sT0}, s62, {k*16384}\ns_and_b32 {sT0}, {sT0}, {self.RSIZE[r]*16384 - 1}\ns_add_u32 {sT0}, {sT0}, {sWB[r]}"
    def b2_dma(self, s):
        def free_at(q):
            a = q * 2048
            if a < XBASE: return [s_ for s_ in range(11, 16) if s_ % 5 == a // WSLOT][0]
            return {2: 11, 0: 13, 1: 15}[(a - XBASE) // XSLOT]
        out = []
        for i in sorted(range(19), key=lambda u: u):
            if max(free_at(4 * self.slot(i) + w) for w in range(4)) != s: continue
            r, k = self.TILES[i]; srd = sWO if r == 0 else sWD
            for blk in range(2):
                out += mk(self.b2off(r, k, blk) + "\n"
                          f"s_add_u32 m0, {sT3}, {self.slot(i)*8192 + blk*1024}\nbuffer_load_dwordx4 {vB2}, {srd}, {sT0} offen lds")
        return out

    PFG = {"h2": (sWD, 512, 4), "h3": (sWD, 1536, 1), "h1": (sWD, 0, 2), "o": (sWO, 0, 2), "A": (sWD, 0, 1), "B": (sWD, 256, 1), "C": (sWO, 0, 1)}
    def l2pf(self, grp, k, seq):
        srd, row0, n = self.PFG[grp]; cs = self.opt.csplit
        thin = grp in "ABC"; one = thin and cs == 0
        L = []
        if seq == 0 and self.opt.pfa:
            L += mk(f"""
s_lshr_b32 s91, s2, 5
s_lshl_b32 s91, s91, 1
s_bfe_u32 s65, s2, 0x10003
s_add_u32 s91, s91, s65
s_lshl_b32 s91, s91, 2
s_add_u32 s91, s91, {sW}
s_lshl_b32 s91, s91, 12
v_lshrrev_b32 v3, 4, {vL}
v_lshlrev_b32 v3, 28, v3
s_and_b32 s65, s2, 1
s_lshl_b32 s65, s65, 9
s_add_u32 s91, s91, s65
v_and_b32 v2, 3, {vL}
v_lshl_or_b32 v3, v2, 7, v3
v_bfe_u32 v2, {vL}, 2, 2
v_lshl_or_b32 v2, v2, 10, v3
v_add_u32 v2, s91, v2
s_lshr_b32 s91, s2, 1
""")
        elif seq == 0:
            L += mk(f"""
s_lshr_b32 s91, s2, 3
s_lshl_b32 s91, s91, 2
s_add_u32 s91, s91, {sW}
s_lshl_b32 s91, s91, {10 if one else 11}
v_lshrrev_b32 v3, {4 if (cs == 0 and not one) else 3}, {vL}
v_lshlrev_b32 v3, 28, v3
""")
            if cs == 0: L += mk(f"v_lshl_or_b32 v2, {vL}, 7, v3")
            else: L += mk(f"""
s_and_b32 s65, s2, 1
s_lshl_b32 s65, s65, 9
s_add_u32 s91, s91, s65
v_and_b32 v2, 3, {vL}
v_lshl_or_b32 v3, v2, 7, v3
v_bfe_u32 v2, {vL}, 2, 1
v_lshl_or_b32 v2, v2, 10, v3
""")
            L += mk(f"v_add_u32 v2, s91, v2\ns_lshr_b32 s91, s2, {cs}")
        if thin:
            return L + mk(f"""
s_and_b32 s65, s91, {(8 >> cs) - 1}
s_mul_i32 s65, s65, {((64 if grp == "C" else 224) << cs) * 1024}
s_add_u32 s65, s65, {(row0 >> (1 - cs)) * 1024}
buffer_load_dword a{216 + seq % 12}, v2, {srd}, s65 offen
""")
        return L + mk(f"""
s_add_u32 s65, s91, {k}
s_and_b32 s65, s65, {(n - 1) & self.opt.pfrot}
s_lshl_b32 s65, s65, 18
s_add_u32 s65, s65, {row0 * 1024}
buffer_load_dword a{216 + seq % 12}, v2, {srd}, s65 offen
""")

    def utouch(self, ty, n, per):
        units = [(0, j) for j in range(4)] + [(1, j) for j in range(4)] + ([(2, j) for j in range(2)] if ty else [])
        L = []
        if n == 0:
            L += mk(f"v_lshrrev_b32 v51, 3, {vL}\nv_lshlrev_b32 v51, 28, v51\nv_mul_u32_u24 v50, 112, {vL}\nv_add_u32 v50, v50, v51")
        for k, (u, j) in enumerate(units[n * per:(n + 1) * per]):
            L += mk(f"v_add_u32 v51, v50, v{VST+j}\nbuffer_load_dword a{216 + (n * per + k) % 10}, v51, {sWS}, {sU[u]} offen{self.opt.utfl}")
        return L
    def flagaddr(self, dst, off):
        return mk(f"""
s_lshl_b32 {dst}, {sM}, 2
s_lshr_b32 {sT1}, {sN}, 2
s_add_u32 {dst}, {dst}, {sT1}
s_lshl_b32 {dst}, {dst}, 6
s_and_b32 {sT1}, {sN}, 3
s_lshl_b32 {sT1}, {sT1}, 2
s_add_u32 {dst}, {dst}, {sT1}
s_add_u32 {dst}, {dst}, {sW}
s_lshl_b32 {dst}, {dst}, 3
s_add_u32 {dst}, {dst}, {WS_FLAG + off}
""") + (mk(f"s_lshl_b32 {sT1}, {sW}, 27\ns_add_u32 {dst}, {dst}, {sT1}") if self.opt.wgflag else [])
    def flagstore(self, so, r):
        return mk(f"""
v_mov_b32 v{r}, {sNonL}
v_mov_b32 v{r+1}, {sNonH}
v_lshlrev_b32 v{r+2}, 31, {vL}
v_lshl_or_b32 v{r+2}, {vL}, 25, v{r+2}
buffer_store_dwordx2 {V2(r)}, v{r+2}, {sWS}, {so} offen sc1
""")

    def stats_load(self):
        return mk(f"""
s_lshl_b32 {sT2}, {sM}, 7
s_lshl_b32 {sT1}, {sN}, 3
s_add_u32 {sT1}, {sT1}, {sT2}
s_lshl_b32 {sT2}, {sW}, 1
s_add_u32 {sT1}, {sT1}, {sT2}
s_lshl_b32 {sT1}, {sT1}, 10
v_lshlrev_b32 v{SX+16}, 4, {vL}
buffer_load_dwordx4 v[{SX}:{SX+3}], v{SX+16}, {sX}, {sT1} offen
buffer_load_dwordx4 v[{SX+4}:{SX+7}], v{SX+16}, {sX}, {sT1} offen offset:1024
""")

    def stats_compute(self):
        def row(x, e, t):
            L = []
            for k in range(4):
                L.append(f"v_lshlrev_b32 v{e+2*k}, 16, v{x+k}")
                L.append(f"v_and_b32 v{e+2*k+1}, 0xffff0000, v{x+k}")
            L += [f"v_add_f32 v{x}, v{e}, v{e+1}", f"v_add_f32 v{x+1}, v{e+2}, v{e+3}", f"v_add_f32 v{x+2}, v{e+4}, v{e+5}", f"v_add_f32 v{x+3}, v{e+6}, v{e+7}",
                  f"v_add_f32 v{x}, v{x}, v{x+1}", f"v_add_f32 v{x+2}, v{x+2}, v{x+3}", f"v_add_f32 v{x}, v{x}, v{x+2}"]
            def red(r):
                R = [f"v_add_f32_dpp v{r}, v{r}, v{r} row_ror:{sh} row_mask:0xf bank_mask:0xf" for sh in (8, 4, 2, 1)]
                for p in ("16", "32"):
                    R += [f"v_mov_b32 v{r+1}, v{r}", f"v_permlane{p}_swap_b32 v{r}, v{r+1}", f"v_add_f32 v{r}, v{r}, v{r+1}"]
                return R
            L += red(x)
            L.append(f"v_mul_f32 v{t+1}, 0x3b000000, v{x}")
            for k in range(8): L.append(f"v_sub_f32 v{e+k}, v{e+k}, v{t+1}")
            L += [f"v_mul_f32 v{x}, v{e}, v{e}", f"v_mul_f32 v{x+1}, v{e+1}, v{e+1}"]
            for k in range(2, 8): L.append(f"v_fmac_f32 v{x+(k&1)}, v{e+k}, v{e+k}")
            L.append(f"v_add_f32 v{x}, v{x}, v{x+1}")
            L += red(x)
            L += [f"v_mov_b32 v{x+1}, 0x3727c5ac", f"v_fmac_f32 v{x+1}, 0x3b000000, v{x}", f"v_rsq_f32 v{t}, v{x+1}"]
            return L
        a = row(SX, SX + 8, SX + 24); b = row(SX + 4, SX + 16, SX + 26)
        out = []
        for p, q in zip(a, b): out += [I(p), I(q)]
        return out

    def publish(self, ty):
        L = mk(f"""
v_readfirstlane_b32 {sNonL}, v{NON}
v_readfirstlane_b32 {sNonH}, v{NON+1}
v_cmp_eq_u32 vcc, 1, {vL}
s_lshl_b32 {sT1}, {sM}, 7
s_lshl_b32 {sT2}, {sN}, 3
s_cmp_eq_u32 {sNonL}, 0
s_cbranch_scc1 L_slow_nonce{ty}
L_back_nonce{ty}:
v_cndmask_b32 v{SX}, v{SX+24}, v{SX+26}, vcc
v_cndmask_b32 v{SX+1}, v{SX+25}, v{SX+27}, vcc
v_mov_b32 v{SX+2}, {sNonL}
v_mov_b32 v{SX+3}, {sNonH}
s_add_u32 {sT1}, {sT1}, {sT2}
s_lshl_b32 {sT2}, {sW}, 1
s_add_u32 {sT1}, {sT1}, {sT2}
s_lshl_b32 {sT1}, {sT1}, 4
s_add_u32 {sT1}, {sT1}, {WS_STAT}
v_lshlrev_b32 v{SX+4}, 4, {vL}
v_cmp_lt_u32 vcc, 1, {vL}
v_mov_b32 v{SX+5}, 0x80000000
v_cndmask_b32 v{SX+4}, v{SX+4}, v{SX+5}, vcc
buffer_store_dwordx4 v[{SX}:{SX+3}], v{SX+4}, {sWS}, {sT1} offen sc1
""")
        return L[:5] + [L[5:8]] + L[8:]

    def gather_load(self):
        return mk(f"""
s_mov_b32 {sT1}, {WS_STAT}
buffer_load_dwordx4 {V4(GAT)}, v{GA}, {sWS}, {sT1} offen sc1
buffer_load_dwordx4 {V4(GAT+4)}, v{GA+1}, {sWS}, {sT1} offen sc1
buffer_load_dwordx4 {V4(GAT+8)}, v42, {sWS}, {sT1} offen sc1
""")
    def gather_cmp(self):
        return mk(f"""
v_cmp_ne_u64 vcc, {sNon}, {V2(GAT+2)}
v_cmp_ne_u64 {sEx}, {sNon}, {V2(GAT+6)}
v_cmp_ne_u64 s[92:93], {sNon}, {V2(GAT+10)}
s_or_b64 vcc, vcc, {sEx}
s_or_b64 vcc, vcc, s[92:93]
""")

    ST = 60
    def stats_stage(self, ty, tv):
        ST = self.ST
        L = [self.gather_cmp() + mk(f"s_cbranch_vccnz L_slow_gat{tv}\nL_back_gat{tv}:")]
        L += mk(f"""
s_mul_i32 {sT1}, {sW}, 1152
s_add_u32 {sT1}, {sT1}, {STATL}
v_lshl_add_u32 v44, {vL}, 2, {sT1}
v_and_b32 v45, 15, {vL}
v_lshl_add_u32 v45, v45, 2, {sT1}
v_add_u32 v46, 512, v45
""")
        W = mk(f"""
ds_write2_b32 v44, v{GAT}, v{GAT+1} offset0:0 offset1:144
ds_write2_b32 v44, v{GAT+4}, v{GAT+5} offset0:64 offset1:208
ds_write2_b32 v46, v{GAT+8}, v{GAT+9} offset0:0 offset1:144
""")
        if ty == 0:
            L += mk(f"v_add_u32 v47, 256, v45\nv_lshrrev_b32 v43, 4, {vL}\nv_lshl_add_u32 v43, v43, 4, {sT1}")
            for i in range(9):
                if i < 4: W += mk(f"ds_read2_b32 {V2(ST+2*i)}, v45 offset0:{16*i} offset1:{144+16*i}")
                else: W += mk(f"ds_read2_b32 {V2(ST+2*i)}, v47 offset0:{16*i-64} offset1:{80+16*i}")
        else:
            L += mk(f"""
s_lshr_b32 {sT2}, {sW}, 1
s_lshl_b32 {sT2}, {sT2}, 8
v_add_u32 v47, {sT2}, v45
v_subrev_u32 v48, {sT2}, v45
v_add_u32 v48, 256, v48
""")
            for i in range(8):
                W += mk(f"ds_read2_b32 {V2(ST+2*i)}, v{47 if i < 4 else 48} offset0:{16+16*(i%4)} offset1:{160+16*(i%4)}")
        return L + W

    def type_code(self, ty, ver=0):
        o = self.opt
        c = mk(f"L_t{ty}{ver}:")
        tv = f"{ty}{ver}"
        vm = list(self.vm0)
        def waitfor(tags):
            for t in tags: assert vm.count(t) >= {"w": 5, "x": 4}.get(t[0], 1) and all(q[1] != t for q in dq), (t, ty)
            idx = max([k for k, t in enumerate(vm) if t in tags], default=-1)
            return len(vm) - 1 - idx
        noted = []
        def note(L, tag):
            for i in flatten(L):
                if i.kind == "vmem": vm.append(tag); noted.append(i)
            return L
        need = lambda s: [("w", s), ("x", s // 2)]
        dq = []
        c += mk(f"s_waitcnt vmcnt({waitfor(need(0))}) lgkmcnt(0)\ns_barrier")
        defA, defB = self.deferred(ty)
        c += self.stamp(1)
        c += self.reads(ty, 0)
        stats = self.stats_compute()
        dq = self.dma_queue(ty)
        pfq = [(g, k) for g in o.pford.split(",") for k in range(self.PFG[g][2])]; pfn = 0

        third = -(-len(stats) // 6) * 2
        SL = o.statstep; SC = o.sc
        cuts = [0] + o.cuts + [len(stats)]
        SN, SP, SG, SS = 1, SC + len(cuts) - 1, o.sg, o.ss
        for s in range(16):
            tags = need(s + 1) if s < 15 else []
            if s == SC: tags = tags + [("sl", 0)]
            if s == SP: tags = tags + [("non", 0)]
            if s == SS: tags = tags + [("gat", 0)]
            if s == 13: tags = tags + [("b2", 11)]
            if s == 14: tags = tags + [("b2", 12)]
            if s == 15: tags = tags + [("b2", 13)]
            c += mk((f"s_waitcnt vmcnt({waitfor(tags)}) lgkmcnt(0)" if tags else "s_waitcnt lgkmcnt(0)") + "\ns_barrier")
            if o.stamps and s in o.stst: c += self.stamp(2 + o.stst.index(s))
            rd = self.reads(ty, s + 1) if s < 15 else []
            other = []; atoms = []; prefix = []; mark = len(vm)
            if s == SN:
                other += note(mk(f"v_mov_b32 v{NON}, 0\nbuffer_load_dwordx2 {V2(NON)}, v{NON}, {sDBG}, 0 offen sc1"), ("non", 0))
            if s == SG: other += note(self.gather_load(), ("gat", 0))
            if s == SL: other += note(self.stats_load(), ("sl", 0))
            if s < o.wtouch and o.tfirst: other += note(self.wtouch(s % 3), ("wt", 0))
            for _ in range(int(o.xsched[s])):
                other += note(mk(f"s_add_u32 s81, s81, 128\ns_and_b32 s81, s81, 1023\nbuffer_load_dword a{226 + (s & 1)}, v50, {sX}, s81 offen"), ("xt", 0))
            k = 0
            while dq and dq[0][0] <= s and k < (o.quota0 if s == 0 else o.qs[s] - (ty if o.qb else 0) if o.qs else o.quota):
                _, tag, atom = dq.pop(0); atoms.append(note(atom, tag)); k += 1
            if s < o.wtouch and not o.tfirst: other += note(self.wtouch(s % 3), ("wt", 0))
            nb1 = 11 if ty == 0 else len(defB)
            blocks = {0: defA[:16], 1: defA[16:33], 7: defA[33:], 8: defB[:nb1], 9: defB[nb1:]}
            late = blocks.get(s, [])
            if s > 10:
                assert not dq or s <= 13
                d = self.b2_dma(s)
                if s == 15 and ty == 1 and o.bdefer:
                    self.defer_b = [d[k:k + 3] for k in range(len(d) - 3 * o.bdefer, len(d), 3)]; d = d[:len(d) - 3 * o.bdefer]
                note(d, ("b2", s)); atoms += [d[k:k + 3] for k in range(0, len(d), 3)]
            if not o.nopf and not (o.pfa and ty == 1):
                for _ in range(int(o.pfsched[s])):
                    if not pfq: break
                    g, k = pfq.pop(0); other += note(self.l2pf(g, k, pfn), ("pf", 0)); pfn += 1
            if o.ut0 and o.ut0 <= s < min(11, o.ut0 + (10 + o.utper - 1) // o.utper): other += note(self.utouch(ty, s - o.ut0, o.utper), ("ut", 0))
            if SC <= s < SP: other += stats[cuts[s - SC]: cuts[s - SC + 1]]
            if s == SP: other += note(self.publish(tv), ("pub", 0))
            if s == SS:
                ss = self.stats_stage(ty, tv)
                if "r" in o.ko: ss = [x for x in ss if isinstance(x, list) or not x.op.startswith("ds_read")]
                if "e" in o.ko: ss = [x for x in ss if isinstance(x, list) or not x.op.startswith("ds_write")]
                if "g" in o.ko: ss = [[ss[0][-1]]] + ss[1:]
                ssd = [x for x in ss if not isinstance(x, list) and x.kind == "ds"]
                ssv = [x for x in ss if isinstance(x, list) or x.kind != "ds"]
                prefix = ssv; rd = rd + ssd
            if s == 10 and ty == 0: other += self.selectors()
            other += late
            if s == 11: other += self.traddr([2, 3, 4, 5, 6, 49])
            if s >= 13: rd = rd + flatten(self.passthru([2, 3, 4, 5, 6, 49], {13: range(0, 6), 14: range(6, 12), 15: range(12, 20)}[s]))
            if s in (14, 15): atoms += note(self.round2(self.R2_14 if s == 14 else self.R2_15), ("b2", 20))
            if ty == 1 and s == 12 and o.bearly:
                for k, it in enumerate(self.round2(range(29, 36))[:o.bearly]):
                    it[-1] = I(it[-1].text.replace(A4(56 + 4 * k), V4(self.BE[k])))
                    atoms.append(note(it, ("b2", 21)))
            if o.even:
                A = [x for at in atoms for x in at]
                nA = len(atoms); merged = []; P = list(other); tot = len(A) + len(P)
                k = 0; pos = 0
                for j, at in enumerate(atoms):
                    tgt = int((j + o.evoff) * tot / nA) - len(at)
                    while P and pos < tgt: merged.append(P.pop(0)); pos += 1
                    merged += at; pos += len(at)
                other = prefix + merged + P
            else: other = prefix + [x for at in atoms for x in at] + other
            tagof = {}
            for x, t in zip(noted, vm[mark:]): tagof[id(x)] = t
            vm[mark:] = [tagof[id(x)] for x in flatten(other) if x.kind == "vmem"]
            del noted[:]
            mm = self.mfmas(ty, s)
            if o.nomfma: mm = [I("s_nop 0") for _ in mm]
            if o.noreads: rd = []
            no = len([i for i in flatten(other) if not i.is_label])
            room = 2 * (len(mm) - len(rd))
            ost = len(rd) if no <= room else max(0, len(rd) - (no - room))
            wv = weave(mm, rd, other, per_gap=2, shift=(o.shift if ver else 0), lds_span=(o.span if len(rd) <= o.span else 0), front=len([x for x in flatten(prefix) if not x.is_label]))
            if prefix:
                lastp = max(k for k, x in enumerate(wv) if any(x is y for y in flatten(prefix)))
                firstd = min(k for k, x in enumerate(wv) if any(x is y for y in ssd))
                assert lastp < firstd, (lastp, firstd)
            if o.align == 3:
                for i in wv: i.padok = False
            if 8 <= s <= 10:
                if "V" in o.ko: wv = [x for x in wv if x.kind != "vmem"]
                if "D" in o.ko: wv = [x for x in wv if x.kind != "ds"]
                if "O" in o.ko: wv = [x for x in wv if x.kind not in ("valu", "salu")]
                if "B" in o.ko: c = [x for k, x in enumerate(c) if not (x.op == "s_barrier" and k > len(c) - 12)]
            c += wv
        c += self.stamp(5)
        if o.probe >= 0:
            g, k = self.TILES[o.probe]
            c += mk(f"""
s_waitcnt vmcnt(0)
v_readfirstlane_b32 s64, {vB2}
v_and_b32 v4, 15, {vL}
v_lshrrev_b32 v5, 4, {vL}
v_lshlrev_b32 v5, 5, v5
v_add_u32 v4, v4, v5
v_lshlrev_b32 v4, 10, v4
v_add_u32 v4, s64, v4
s_add_u32 s65, {sWB[g]}, {16*k*1024}
""") + self.stamp(2, True) + mk(f"buffer_load_dword v5, v4, {sWO if g == 0 else sWD}, s65 offen\ns_waitcnt vmcnt(0)") + self.stamp(3, True)
        c += mk("s_waitcnt lgkmcnt(0)")
        if o.shift and ver == 0: c += mk(f"s_branch L_epi{ty}")
        self.loop_end = len(c)
        c += mk(f"L_epi{ty}:")
        c += self.epi_a() if ty == 0 else self.epi_b()
        if ty == 0: c += mk("s_branch L_join")
        self.loop_last = c[self.loop_end - 1]
        c = cap_vm(flatten(c), len(self.vm0), *((1000, 48) if "c" in o.ko else (60, 48)))
        slow = mk(f"""
L_slow_nonce{tv}:
s_mov_b32 {sCnt}, 0
L_sn{tv}:
v_mov_b32 v{NON}, 0
buffer_load_dwordx2 {V2(NON)}, v{NON}, {sDBG}, 0 offen sc1
s_waitcnt vmcnt(0)
v_readfirstlane_b32 {sNonL}, v{NON}
v_readfirstlane_b32 {sNonH}, v{NON+1}
s_add_u32 {sCnt}, {sCnt}, 1
s_cmp_gt_u32 {sCnt}, 20000
s_cbranch_scc1 L_back_nonce{tv}
s_cmp_eq_u32 {sNonL}, 0
s_cbranch_scc1 L_sn{tv}
s_branch L_back_nonce{tv}
L_slow_gat{tv}:
s_mov_b32 {sCnt}, 0
L_sg{tv}:
""") + self.gather_load() + mk("s_waitcnt vmcnt(0)") + self.gather_cmp() + mk(f"""
s_add_u32 {sCnt}, {sCnt}, 1
s_cmp_gt_u32 {sCnt}, 20000
s_cbranch_scc1 L_back_gat{tv}
s_cbranch_vccnz L_sg{tv}
s_branch L_back_gat{tv}
""")
        return c, slow

    def stg(self, u, blk): return 56 + 8 * (u - 29) + 4 * blk
    SL1 = [3, 4, 17, 18, 5, 6, 7, 8, 9, 13, 10, 11, 12, 0, 1, 2, 14, 15, 16]
    def slot(self, u): return self.SL1[u] if u < 19 else self.SL1[[0, 1, 4, 5, 6, 2, 3, 7, 8, 9][u - 19]] if u < 29 else self.SL1[10 + u - 29]
    def frag(self, i): return 112 + 8 * i if i < 14 else 8 * (i - 14)
    def round2(self, us):
        L = []
        for u in us:
            g, k = self.TILES[u]; srd = sWO if g == 0 else sWD
            for blk in range(2):
                t = self.b2off(g, k, blk).replace(sT0, "s61")
                if u < 29: L.append(mk(t + f"\ns_add_u32 m0, {sT3}, {self.slot(u)*8192 + blk*1024}\nbuffer_load_dwordx4 {vB2}, {srd}, s61 offen lds"))
                else: L.append(mk(t + f"\nbuffer_load_dwordx4 {A4(self.stg(u, blk))}, {vB2}, {srd}, s61 offen"))
        return L
    BE = [30, 34, 38, 88, 92]
    R2_14 = [19, 20, 24]; R2_15 = [25, 21, 22]; R2_E = [23, 26, 27, 28]
    TR = {0: [42, 58, 59, 16], 1: [88, 89, 90, 91]}
    def traddr(self, R):
        L = mk(f"""
s_and_b32 {sT1}, {sW}, 1
s_lshl_b32 {sT1}, {sT1}, 6
v_lshrrev_b32 v4, 5, {vL}
v_lshlrev_b32 v4, 10, v4
v_bfe_u32 v6, {vL}, 2, 2
v_lshl_add_u32 v4, v6, 7, v4
v_lshrrev_b32 v6, 1, v6
v_lshl_add_u32 v4, v6, 6, v4
v_bfe_u32 v6, {vL}, 4, 1
v_lshl_add_u32 v4, v6, 5, v4
v_and_b32 v6, 1, {vL}
v_lshl_add_u32 v4, v6, 4, v4
v_bfe_u32 v6, {vL}, 1, 1
v_lshl_add_u32 v4, v6, 3, v4
v_xor_b32 v4, {sT1}, v4
s_lshl_b32 {sT1}, {sT1}, 5
v_add_u32 v{R[0]}, {sT1}, v4
v_xor_b32 v{R[1]}, 64, v{R[0]}
""")
        for k in range(2, len(R)): L += mk(f"v_add_u32 v{R[k]}, {0x10000 * (k // 2)}, v{R[k & 1]}")
        return L
    def passthru(self, R, tiles):
        L = []
        for i in tiles:
            sg = 2 * self.slot(i // 2) + (i & 1)
            L += [[I(f"ds_read_b64_tr_b16 {A2(self.frag(i) + 4*cb + 2*e)}, v{R[2*(sg//16)+cb]} offset:{(sg%16)*4096+e*512}")] for cb in range(2) for e in range(2)]
        return L
    def sprinkle(self, code, items, start, stop):
        out = []; n = len(items); k = 0
        for idx, ins in enumerate(code):
            out.append(ins)
            while k < n and idx >= start and (idx - start + 1) * n >= (k + 1) * (stop - start):
                out += items[k]; k += 1
        for it in items[k:]: out += it
        return out
    NEG = "op_sel:[0,1,0] op_sel_hi:[1,1,1] neg_lo:[0,1,0] neg_hi:[0,1,0]"
    def gu(self, cs, g, u, stp, dst):
        NEG = self.NEG
        L = [f"v_pk_fma_f32 {V2(g+2*h)}, {V2(cs+2*h)}, {V2(stp)}, {V2(g+2*h)} {NEG}" for h in range(2)]
        L += [f"v_pk_fma_f32 {V2(u+2*h)}, {V2(cs+4+2*h)}, {V2(stp)}, {V2(u+2*h)} {NEG}" for h in range(2)]
        L += [f"v_pk_mul_f32 {V2(g+2*h)}, {V2(g+2*h)}, {V2(u+2*h)}" for h in range(2)]
        L += [f"v_cvt_pk_bf16_f32 v{dst+h}, v{g+2*h}, v{g+2*h+1}" for h in range(2)]
        return L
    def gu_unit(self, cs, g0, u0, g1, u1, st0, st1, vo, so):
        c = []
        for x, y in zip(self.gu(cs, g0, u0, st0, u0), self.gu(cs, g1, u1, st1, u0 + 2)): c += mk(x + "\n" + y)
        return c + self.unit_store(u0, vo, so)
    def unit_store(self, r, vo, so):
        if "n" in self.opt.ko: return []
        return mk(f"v_permlane16_swap_b32 v{r}, v{r+2}\nv_permlane16_swap_b32 v{r+1}, v{r+3}\nbuffer_store_dwordx4 {V4(r)}, v{vo}, {sWS}, {so} offen" + ("" if "p" in self.opt.ko else " sc1"))
    def csread(self, dst, k, n=4):
        return [I(f"v_accvgpr_read_b32 v{dst+r}, a{CSACC+4*k+r}") for r in range(n)]

    def epi_b(self):
        ST = self.ST; o = self.opt
        c = []
        for k in range(6): c += self.csread(8 + 4 * k if k < 2 else 36 + 4 * k, k)
        U = []
        for P in range(2):
            cs = 8 if P == 0 else 44
            for j in range(4):
                U.append(self.gu_unit(cs, bAcc(2*P, 2*j), bAcc(2*P+1, 2*j), bAcc(2*P, 2*j+1), bAcc(2*P+1, 2*j+1), ST+4*j, ST+4*j+2, VST+j, sU[P]))
        for j in range(2):
            U.append(self.gu_unit(52, bMix(0, 2*j), bMix(1, 2*j), bMix(0, 2*j+1), bMix(1, 2*j+1), ST+4*j, ST+4*j+2, VST+j, sU[2]))
        st = self.round2(range(29, 36))[o.bearly:] + getattr(self, "defer_b", []) + self.round2(self.R2_E); nb = o.nstage_b
        assert o.bearly % 2 == 0 or not o.rot
        ni = 0
        for j, u in enumerate(U):
            c += u
            if j >= o.bint0:
                for _ in range(o.bint):
                    if ni < 14 - o.bearly: c += st.pop(0); ni += 1
                    if j == len(U) - 1: nlast = o.bint
        tail_l = o.bint if (o.bint and len(U) - 1 >= o.bint0) else 0
        tail_l = len([1 for x in c[max(k for k, x in enumerate(c) if x.kind == "vmem" and x.data):] if x.kind == "vmem"]) - 1
        c += self.stamp(6)
        mv = [I(f"v_accvgpr_write_b32 a{56+4*k+r}, v{self.BE[k]+r}") for k in range(o.bearly) for r in range(4)]
        su = mk("s_waitcnt vmcnt(40)" if mv else "") + mv + self.flagaddr(sT2, 0) + self.polladdr() + self.p2setup()
        c += self.sprinkle(su, st[:nb], 0, len(su))
        if o.wgflag: c += mk(f"s_waitcnt vmcnt({nb + 2 + tail_l}) lgkmcnt(0)\ns_barrier") + self.flagstore(sT2, 8) + self.stamp(7) + mk(f"s_mov_b32 {sT2}, 0x8000000")
        else:
            c += mk(f"s_waitcnt vmcnt({nb + 2 + tail_l}) lgkmcnt(0)") + self.flagstore(sT2, 8) + self.stamp(7)
            c += mk(f"s_mov_b32 {sT2}, 0x8000000\ns_barrier")
        k = len(st) - o.pollahead
        for it in st[nb:k]: c += it
        c += self.poll_issue(0)
        for it in st[k:]: c += it
        c += mk(f"s_waitcnt vmcnt({o.pollahead})")
        return c

    SEL = 54
    def selectors(self):
        S = self.SEL
        L = mk(f"""
v_and_b32 v4, 15, {vL}
v_lshrrev_b32 v5, 4, {vL}
v_lshlrev_b32 v5, 2, v5
v_sub_u32 v4, v4, v5
v_and_b32 v5, 1, {vL}
v_sub_u32 v4, v4, v5
v_lshlrev_b32 v5, 4, v5
v_mov_b32 v6, 0x0c0c0c0c
""")
        for jj, pat in ((0, 0x0c0c0100), (1, 0x0c0c0302)):
            L += mk(f"v_mov_b32 v{S+jj}, {pat:#x}\nv_alignbit_b32 v{S+2+jj}, v{S+jj}, v{S+jj}, v5")
            L += mk(f"v_cmp_le_i32 vcc, {2*jj}, v4\nv_nop\nv_cndmask_b32 v{S+jj}, v{S+2+jj}, v6, vcc\nv_cndmask_b32 v{S+2+jj}, v6, v{S+2+jj}, vcc")
        return L

    def epi_a(self):
        o = self.opt
        ST = self.ST; NEG = self.NEG; SEL = self.SEL
        def inter(LL):
            out = []
            for step in range(max(len(l) for l in LL)):
                for l in LL:
                    if step < len(l): out += mk(l[step])
            return out
        c = []
        c += self.csread(8, 3) + self.csread(12, 4) + self.csread(44, 0)
        if not o.halo: c += self.csread(48, 1) + self.csread(52, 2, 1)
        vs = lambda i: 192 + 8 * (i % 4) if i < 8 else 78
        def vsread(i): return mk(f"ds_read_b128 {V4(vs(i))}, v43 offset:{64*i}\nds_read_b128 {V4(vs(i)+4)}, v43 offset:{576+64*i}")
        c += vsread(8)
        hst = []
        for j in range(4):
            gu = self.gu_unit(8, aG(2*j), aU(2*j), aG(2*j+1), aU(2*j+1), ST+2+4*j, ST+4+4*j, VST+j, sU[0])
            hst.append([gu.pop()])
            c += gu + vsread(j)
        c += self.stamp(6)
        c += mk("s_waitcnt lgkmcnt(0)\ns_barrier")
        if o.epistamps: c += self.stamp(2, True)
        head = c; c = []
        st = self.round2(self.R2_E) + self.round2(range(29, 36))
        if o.halo:
            c += [I(f"v_mov_b32_dpp v{48+r}, v{aK(0)+r} row_newbcast:0 row_mask:0xf bank_mask:0xf") for r in range(4)]
            c += mk(f"v_mov_b32 v52, v{aV(0)}\nv_mov_b32 v53, v{aV(0)}\ns_nop 0\nv_permlane16_swap_b32 v52, v53\nv_mov_b32 v53, v52\ns_nop 1\nv_permlane32_swap_b32 v52, v53")
        kp = lambda i: 8 + 2 * i if i < 4 else 18 + 2 * (i - 4) if i < 8 else 86
        def kfix(i):
            k = aK(i); stp = ST + 2 * i
            return [f"v_pk_fma_f32 {V2(k)}, {V2(48)}, {V2(stp)}, {V2(k)} {NEG}",
                    f"v_pk_fma_f32 {V2(k+2)}, {V2(50)}, {V2(stp)}, {V2(k+2)} {NEG}",
                    f"v_pk_mul_f32 {V2(k)}, {V2(k)}, {V2(stp)} op_sel_hi:[1,0]",
                    f"v_pk_mul_f32 {V2(k+2)}, {V2(k+2)}, {V2(stp)} op_sel_hi:[1,0]",
                    f"v_cvt_pk_bf16_f32 v{kp(i)}, v{k}, v{k+1}",
                    f"v_cvt_pk_bf16_f32 v{kp(i)+1}, v{k+2}, v{k+3}"]
        qp = lambda i: 120 + 2 * i
        def qfix(i):
            q = aQ(i); stp = ST + 2 * (i + 1)
            return [f"v_pk_fma_f32 {V2(q)}, {V2(44)}, {V2(stp)}, {V2(q)} {NEG}",
                    f"v_pk_fma_f32 {V2(q+2)}, {V2(46)}, {V2(stp)}, {V2(q+2)} {NEG}",
                    f"v_cvt_pk_bf16_f32 v{qp(i)}, v{q}, v{q+1}",
                    f"v_cvt_pk_bf16_f32 v{qp(i)+1}, v{q+2}, v{q+3}"]
        NEGV = "op_sel_hi:[1,0,1] neg_lo:[0,1,0] neg_hi:[0,1,0]"
        vp = lambda i: 136 + 2 * i
        def vfix(i):
            v = aV(i); s_ = vs(i)
            return [f"v_pk_fma_f32 {V2(v)}, {V2(s_+4)}, {V2(52)}, {V2(v)} {NEGV}",
                    f"v_pk_fma_f32 {V2(v+2)}, {V2(s_+6)}, {V2(52)}, {V2(v+2)} {NEGV}",
                    f"v_pk_mul_f32 {V2(v)}, {V2(v)}, {V2(s_)}",
                    f"v_pk_mul_f32 {V2(v+2)}, {V2(v+2)}, {V2(s_+2)}",
                    f"v_cvt_pk_bf16_f32 v{vp(i)}, v{v}, v{v+1}",
                    f"v_cvt_pk_bf16_f32 v{vp(i)+1}, v{v+2}, v{v+3}"]
        c += inter([kfix(i) for i in range(9)])
        c += mk("s_waitcnt lgkmcnt(0)")
        c += inter([vfix(i) for i in (0, 1, 2, 3, 8)])
        for i in range(4, 8): c += vsread(i)
        c += inter([qfix(i) for i in range(8)])
        c += mk("s_waitcnt lgkmcnt(0)")
        c += inter([vfix(i) for i in range(4, 8)])
        if o.aint:
            z = []
            for h in hst: z += [h] + st[:o.aint]; st = st[o.aint:]
            st = z + st
        else: st = st[:o.hpos] + hst + st[o.hpos:]
        n1 = o.nfirst_a
        head += self.sprinkle(c, st[:n1], 0, len(c))
        if o.epistamps: head += self.stamp(3, True) + self.stamp(4, True)
        c = []
        MK = "v_mfma_f32_16x16x16_bf16"
        sp = lambda i: 88 + 8 * i if i < 4 else 156 + 8 * (i - 4)
        sch = f2h(0.25 * 1.4426950408889634)
        def smf(i):
            bp = BIAS + 8 if i == 0 else BIAS
            return [f"{MK} {V4(sp(i))}, {V2(kp(i))}, {V2(qp(i))}, {V4(bp)}", f"{MK} {V4(sp(i)+4)}, {V2(kp(i+1))}, {V2(qp(i))}, {V4(BIAS+4)}"]
        def merge(i):
            s_ = sp(i)
            return [f"v_max3_f32 v{s_}, v{s_}, v{s_+1}, v{s_+4}", f"v_max3_f32 v{s_+2}, v{s_+2}, v{s_+3}, v{s_+6}",
                    f"v_max_f32 v{s_}, v{s_}, v{s_+5}", f"v_max_f32 v{s_+1}, v{s_+2}, v{s_+7}",
                    f"v_mul_f32 v{s_+4}, {sch}, v{ST+2*(i+1)}", f"v_max_f32 v{s_+2}, v{s_}, v{s_+1}"]
        for i in range(8):
            a = smf(i); b = merge(i - 3) if i >= 3 else []
            c += mk(a[0]) + mk("\n".join(b[:3])) + mk(a[1]) + mk("\n".join(b[3:]))
        c += inter([merge(i) for i in (5, 6, 7)])
        def cross(A, B, C, D):
            a, b, cc, d = (sp(x) + 2 for x in (A, B, C, D))
            return [f"v_permlane32_swap_b32 v{a}, v{b}", f"v_permlane32_swap_b32 v{cc}, v{d}",
                    f"v_max_f32 v{a}, v{a}, v{b}", f"v_max_f32 v{cc}, v{cc}, v{d}", "s_nop 0",
                    f"v_permlane16_swap_b32 v{a}, v{cc}", f"v_max_f32 v{a}, v{a}, v{cc}", f"v_mov_b32 v{cc}, v{a}", "s_nop 0",
                    f"v_permlane16_swap_b32 v{a}, v{cc}", f"v_mov_b32 v{b}, v{a}", f"v_mov_b32 v{d}, v{cc}",
                    f"v_permlane32_swap_b32 v{a}, v{b}", f"v_permlane32_swap_b32 v{cc}, v{d}"]
        c += [x for x in inter([cross(0, 1, 2, 3), cross(4, 5, 6, 7)]) if x.op != "s_nop"]
        O = lambda i: 192 + 4 * i
        oq = lambda i: 120 + 4 * (i // 2) + 2 * (i % 2)
        def expo(i):
            s_ = sp(i)
            return [f"v_mul_f32_e64 v{s_+5}, -v{s_+2}, v{s_+4}",
                    f"v_fma_f32 v{s_}, v{s_}, v{s_+4}, v{s_+5}", f"v_fma_f32 v{s_+1}, v{s_+1}, v{s_+4}, v{s_+5}",
                    f"v_exp_f32 v{s_}, v{s_}", f"v_exp_f32 v{s_+1}, v{s_+1}",
                    f"v_cvt_pk_bf16_f32 v{s_+2}, v{s_}, v{s_+1}"] + [f"v_perm_b32 v{s_+4+k}, 0, v{s_+2}, v{SEL+k}" for k in range(4)]
        def pv(i): return [f"{M16} {V4(sp(i))}, {A4(ONES)}, {V4(sp(i)+4)}, 0", f"{M16} {V4(O(i))}, {V4(vp(i))}, {V4(sp(i)+4)}, 0"]
        def fin(i):
            d = oq(i)
            return [f"v_rcp_f32 v{sp(i)}, v{sp(i)}"] + [f"v_mul_f32 v{O(i)+r}, v{O(i)+r}, v{sp(i)}" for r in range(4)] + \
                   [f"v_cvt_pk_bf16_f32 v{d}, v{O(i)}, v{O(i)+1}", f"v_cvt_pk_bf16_f32 v{d+1}, v{O(i)+2}, v{O(i)+3}"]
        E = [inter([expo(2 * p), expo(2 * p + 1)]) for p in range(4)]
        F = [inter([fin(2 * p), fin(2 * p + 1)]) for p in range(4)]
        P = [mk("\n".join(pv(2 * p) + pv(2 * p + 1))) for p in range(4)]
        def mix(valu, mf, first=2, every=3):
            out = []; mf = list(mf)
            for k, x in enumerate(valu):
                if mf and k >= first and (k - first) % every == 0: out.append(mf.pop(0))
                out.append(x)
            return out + mf
        def swp(r): return mk(f"v_permlane16_swap_b32 v{r}, v{r+2}\nv_permlane16_swap_b32 v{r+1}, v{r+3}")
        if o.anew:
            pre = c
            ost = lambda j: [I(f"buffer_store_dwordx4 {V4(120+4*j)}, v{8+j}, {sWS}, {sU[1]} offen sc1")] if j < o.oearly else []
            c = E[0] + mix(E[1], P[0]) + mix(E[2], P[1]) + F[0] + swp(120) + ost(0)
            c += mix(E[3], P[2]) + mix(F[1], P[3]) + swp(124) + ost(1) + F[2] + swp(128) + ost(2) + F[3] + swp(132)
            vst = [I(f"v_mov_b32 v{8+j}, v{VST+j}") for j in range(4)]
            su = vst + self.polladdr() + self.p2setup() + self.flagaddr(sT2, 0 if o.hflag2 == 1 else 128)
            k = len(st) - o.pollahead
            n2 = min(k, n1 + o.nstage_a)
            pre = self.sprinkle(pre, st[n1:n2], 0, len(pre))
            items = [[x] for x in su]
            c = self.sprinkle(c, items, 0, int(len(c) * 0.6))
            late = st[n2:k] + [self.poll_issue(0)] + st[k:]
            c = self.sprinkle(c, late, int(len(c) * o.latefrom), int(len(c) * o.lateto) - o.pollpos)
            nx = len([1 for x in c[[i for i, x in enumerate(c) if x.text == late[k - n2][0].text][0] + 1:] if x.kind == "vmem"])
            if o.hflag2 == 2:
                hp = head + pre
                ny = len([1 for x in hp[max(k for k, x in enumerate(hp) if x.kind == "vmem" and x.data) + 1:] if x.kind == "vmem"])
                pre = pre + self.flagaddr("s64", 256) + mk(f"s_waitcnt vmcnt({ny})" + ("\ns_barrier" if o.wgflag else "")) + self.flagstore("s64", 12)
            c = head + pre + c
            c += self.stamp(7)
            c += [I(f"buffer_store_dwordx4 {V4(120+4*j)}, v{8+j}, {sWS}, {sU[1]} offen sc1") for j in range(o.oearly, 4)]
            c += mk(f"s_waitcnt vmcnt({nx + 4 - o.oearly})")
            if o.hflag2 == 1: c += self.flagstore(sT2, 12) + mk(f"s_add_u32 {sT2}, {sT2}, 128")
            return c
        c += E[0] + mix(E[1], P[0]) + mix(E[2], P[1]) + F[0] + swp(120)
        c += mix(E[3], P[2]) + mix(F[1], P[3]) + swp(124) + F[2] + swp(128) + F[3] + swp(132)
        na = min(n1 + o.nstage_a, len(st) - o.pollahead)
        c = head + self.sprinkle(c, st[n1:na], 0, len(c))
        c += self.stamp(7)
        c += [I(f"buffer_store_dwordx4 {V4(120+4*j)}, v{VST+j}, {sWS}, {sU[1]} offen sc1") for j in range(4)] if o.ofirst else []
        su = self.polladdr() + self.p2setup() + self.flagaddr(sT2, 0 if o.hflag2 else 128)
        k = len(st) - o.pollahead
        vst = [I(f"v_mov_b32 v{8+j}, v{VST+j}") for j in range(4)]
        c += vst + self.sprinkle(su, st[na:k], 0, len(su))
        c += self.poll_issue(0)
        for it in st[k:]: c += it
        if not o.ofirst: c += [I(f"buffer_store_dwordx4 {V4(120+4*j)}, v{8+j}, {sWS}, {sU[1]} offen sc1") for j in range(4)]
        c += mk(f"s_waitcnt vmcnt({o.pollahead + (0 if o.ofirst else 4)})")
        if o.hflag2: c += self.flagstore(sT2, 12) + mk(f"s_add_u32 {sT2}, {sT2}, 128")
        return c

    POLL = 58
    def polladdr(self):
        return mk(f"""
s_lshr_b32 s81, {sR}, 1
s_lshl_b32 s81, s81, 1
s_and_b32 {sT1}, {sW}, 1
s_add_u32 s81, s81, {sT1}
s_lshl_b32 s81, s81, 10
s_add_u32 s81, s81, {WS_FLAG}
v_and_b32 v16, 15, {vL}
v_lshlrev_b32 v16, 3, v16
v_bfe_u32 v{self.POLL}, {vL}, 4, 1
v_lshl_add_u32 v16, v{self.POLL}, 9, v16
""")
    def poll_issue(self, off, reg=None):
        return mk(f"buffer_load_dwordx2 {V2(reg or self.POLL)}, v16, {sWS}, s81 offen offset:{off} sc1")
    PT = 18; PW = 24; PX = 27; PY = 29; VXO = 34; XR = 36
    def p2setup(self):
        PT, PW, PX, PY, VXO, XR = self.PT, self.PW, self.PX, self.PY, self.VXO, self.XR
        c = mk(f"""
s_lshl_b32 {sT0}, {sR}, 1
s_lshr_b32 {sT1}, {sW}, 1
s_add_u32 {sT0}, {sT0}, {sT1}
s_lshl_b32 s59, {sT0}, 5
s_mul_i32 {sT0}, {sT0}, {RBS}
s_and_b32 {sT1}, {sW}, 1
s_lshl_b32 {sB[0]}, {sT1}, 14
s_add_u32 {sB[0]}, {sB[0]}, {sT0}
s_add_u32 {sB[1]}, {sB[0]}, {32*1024}
s_lshl_b32 {sB[2]}, {sT1}, 15
s_add_u32 {sB[2]}, {sB[2]}, {sT0}
s_add_u32 {sB[2]}, {sB[2]}, {64*1024}
s_lshl_b32 {sB[3]}, {sT1}, 13
s_add_u32 {sB[3]}, {sB[3]}, {sT0}
s_add_u32 {sB[3]}, {sB[3]}, {128*1024}
v_lshlrev_b32 v2, 4, {vL}
v_lshrrev_b32 v4, 2, {vL}
v_add_u32 v6, s59, v4
v_and_b32 v5, 3, {vL}
v_lshlrev_b32 v3, 4, v5
v_lshl_add_u32 v6, v6, 10, v3
s_lshl_b32 {sT0}, {sC}, 7
s_lshl_b32 {sT1}, {sT1}, 6
s_add_u32 {sT0}, {sT0}, {sT1}
v_add_u32 v{VXO}, {sT0}, v6
v_add_u32 v{VXO+1}, 0x4000, v{VXO}
buffer_load_dwordx4 {V4(XR)}, v{VXO}, {sX}, 0 offen
buffer_load_dwordx4 {V4(XR+4)}, v{VXO+1}, {sX}, 0 offen
v_and_b32 v6, 31, {vL}
v_add_u32 v3, s59, v6
v_lshlrev_b32 v33, 4, v3
v_add_u32 v{PW}, {sT3}, v2
v_add_u32 v{PW+1}, 0x10000, v{PW}
v_add_u32 v{PW+2}, 0x20000, v{PW}
v_xor_b32 v{PX}, 0x800, v{PW}
; output transpose (private 2KB at 131072 + w*2048): write s*64 + ((2jj+hi)^((s>>1)&3))*16 ; read row*64 + (q^((row>>1)&3))*16
v_lshrrev_b32 v3, 5, {vL}
v_bfe_u32 v{PY}, {vL}, 1, 2
v_xor_b32 v3, v3, v{PY}
v_lshlrev_b32 v3, 4, v3
v_lshl_add_u32 v3, v6, 6, v3
s_add_u32 {sT0}, {sT3}, {7*8192}
v_add_u32 v{PY}, {sT0}, v3
v_xor_b32 v{PY+1}, 32, v{PY}
v_bfe_u32 v3, {vL}, 3, 2
v_xor_b32 v3, v3, v5
v_lshlrev_b32 v3, 4, v3
v_lshl_add_u32 v3, v4, 6, v3
v_add_u32 v{PY+2}, {sT0}, v3
""")
        c += self.traddr([PT + k for k in range(6)])
        return c

    def phase2(self):
        o = self.opt
        BF = [112, 144]; SACC = 176; DACC = 64; ABUF = 144; DEPTH = o.depth
        PT, PW, PX, PY, VXO, XR, POLL = self.PT, self.PW, self.PX, self.PY, self.VXO, self.XR, self.POLL
        TILES = self.TILES
        c = mk("L_join:")
        c += self.stamp(8)
        if o.p1only:
            return c
        def bread(t):
            out = []
            if t < 5: return out
            for h in range(4):
                sg = 2 * self.slot((4 * t + h) // 2) + (h & 1)
                for cb in range(2):
                    for e in range(2):
                        out.append(I(f"ds_read_b64_tr_b16 {A2(BF[t&1]+8*h+4*cb+2*e)}, v{PT+2*(sg//16)+cb} offset:{(sg%16)*4096+e*512}"))
            return out
        c += mk(f"""
v_cmp_ne_u64 vcc, {sNon}, {V2(POLL)}
s_nop 0
s_and_b32 vcc_lo, vcc_lo, {0x11001100 if o.wgflag else 0xff00ff00}
s_cbranch_scc1 L_slow_e
L_go:
""")
        PR = [POLL, 62, 64, 66]
        pe = mk(f"L_slow_e:\ns_mov_b32 {sCnt}, 0")
        NP = o.npoll
        for k in range(NP - 1): pe += self.poll_issue(0, PR[k]) + mk("s_sleep 4")
        if NP == 1 and o.psleep: pe += mk(f"s_branch L_se\nL_se2:\ns_sleep {o.psleep}")
        pe += mk("L_se:")
        for k in range(NP):
            pe += self.poll_issue(0, PR[(k + NP - 1) % NP]) + mk(f"s_waitcnt vmcnt({NP - 1})\nv_cmp_ne_u64 vcc, {sNon}, {V2(PR[k])}\ns_nop 1\ns_and_b32 vcc_lo, vcc_lo, {0x11001100 if o.wgflag else 0xff00ff00}\ns_cbranch_scc0 L_se_done")
        pe += mk(f"""
s_add_u32 {sCnt}, {sCnt}, 1
s_cmp_gt_u32 {sCnt}, 10000
s_cbranch_scc0 {"L_se2" if NP == 1 and o.psleep else "L_se"}
L_se_done:
s_branch L_go
""")
        for z in range(2 if o.hflag2 else 1):
            pe += mk(f"L_slow_o{z}:\ns_mov_b32 {sCnt}, 0\nL_so{z}:") + self.poll_issue(256 if (o.hflag2 and z == 0) else 128) + mk(f"""
s_add_u32 {sCnt}, {sCnt}, 1
s_waitcnt vmcnt(0)
v_cmp_ne_u64 vcc, {sNon}, {V2(POLL)}
s_and_b32 vcc_lo, vcc_lo, {0x110011 if o.wgflag else 0xff00ff}
s_cbranch_scc0 L_back_o{z}
s_cmp_gt_u32 {sCnt}, 20000
s_cbranch_scc0 L_so{z}
s_branch L_back_o{z}
""")
        self.slow2 = pe
        c += self.stamp(9) + self.stamp(10)
        vm = []
        def aload(t):
            r, k = TILES[2 * t]; b = ABUF + 16 * (t % DEPTH)
            vm.extend([("a", t)] * 4)
            t0 = f"s_add_u32 {sT0}, {sB[r]}, {k*1024}" if not o.rot else f"s_add_u32 {sT0}, s63, {k*1024}\ns_and_b32 {sT0}, {sT0}, {self.RSIZE[r]*1024 - 1}\ns_add_u32 {sT0}, {sT0}, {sB[r]}"
            return mk(t0) + [I(f"buffer_load_dwordx4 {V4(b+4*h)}, v2, {sWS}, {sT0} offen offset:{1024*h} sc1") for h in range(4)]
        def young(tag): return len(vm) - 1 - max(k for k, t in enumerate(vm) if t == tag)
        for t in range(o.burst): c += aload(t)
        c += mk(f"s_mov_b32 {sT1}, {WS_STAT}\nbuffer_load_dword v{XR+8}, v33, {sWS}, {sT1} offen sc1"); vm.append(("rs", 0))
        c += mk(f"s_waitcnt vmcnt({len(vm)})")
        c += (mk("s_barrier") if o.wgflag else []) + self.flagstore(sT2, 12); vm.append(("fl", 0))
        c += mk("" if o.wgflag else "s_barrier")
        c += bread(0)
        M32 = "v_mfma_f32_32x32x16_bf16"
        issued = o.burst; nwr = 0
        TP = 10 - o.burst - o.plead; TP2 = 14 - o.burst - o.plead
        xo = [24576, 25600, 32768, 33792]
        RX = ABUF + 16 * (12 % DEPTH)
        TM = ABUF + 16 * (13 % DEPTH)
        el = range(16)
        xun = []
        for k in range(8):
            xun += mk(f"v_lshlrev_b32 v{46+2*k}, 16, v{XR+k}\nv_and_b32 v{47+2*k}, 0xffff0000, v{XR+k}")
        pre_d = mk(f"v_mul_f32 v{XR+8}, v{XR+8}, v{XR+8}\nv_mul_f32 v{XR+9}, 0xbfb8aa3b, v{XR+8}\nv_mov_b32 v62, 1.0")
        def stage(k, e, pk):
            D, R, T = DACC + e, RX + e, TM + e
            if not pk:
                return [f"v_add_f32 v{D}, v{D}, v{R}", f"v_mul_f32 v{T}, v{XR+9}, v{D}", f"v_exp_f32 v{T}, v{T}", f"v_mul_f32 v{D}, v{XR+8}, v{D}",
                        f"v_add_f32 v{T}, 1.0, v{T}", f"v_rcp_f32 v{T}, v{T}", f"v_mul_f32 v{D}, v{D}, v{T}"][k]
            return [f"v_pk_add_f32 {V2(D)}, {V2(D)}, {V2(R)}", f"v_pk_mul_f32 {V2(T)}, {V2(D)}, {V2(XR+8)} op_sel:[0,1] op_sel_hi:[1,1]", None,
                    f"v_pk_mul_f32 {V2(D)}, {V2(D)}, {V2(XR+8)} op_sel_hi:[1,0]", f"v_pk_add_f32 {V2(T)}, {V2(T)}, {V2(62)} op_sel_hi:[1,0]", None,
                    f"v_pk_mul_f32 {V2(D)}, {V2(D)}, {V2(T)}"][k]
        todo = [(k, e) for k in range(7) for e in el]
        def take(n):
            out = [I(stage(k, e, False)) for k, e in todo[:n]]; del todo[:n]
            return out
        def rest_packed():
            out = []
            while todo:
                k, e = todo.pop(0)
                if e % 2 == 0 and todo and todo[0] == (k, e + 1) and stage(k, e, True): todo.pop(0); out.append(I(stage(k, e, True)))
                else: out.append(I(stage(k, e, False)))
            return out
        BARS = [9, 13, 15]
        for t in range(18):
            b = ABUF + 16 * (t % DEPTH)
            bar = t in BARS
            c += mk(f"s_waitcnt vmcnt({young(('a', t))}) lgkmcnt({0 if (bar or t == 16) else nwr})" + ("\ns_barrier" if bar else ""))
            if o.p2stamps and t in (0, 4, 9, 14, 16, 17): c += self.stamp({0: 2, 4: 3, 9: 4, 14: 5, 16: 6, 17: 7}[t], True)
            mm = []
            for h in range(4):
                for cb in range(2):
                    k = 16 * cb
                    d = f"v[{96+k}:{96+k+15}]" if t >= 14 else f"v[{DACC+k}:{DACC+k+15}]"
                    cc = "0" if (t in (0, 14) and h == 0) else d
                    mm.append(I(f"{M32} {d}, {A4((self.frag(4*t+h) if t < 5 else BF[t&1]+8*h)+4*cb)}, {V4(b+4*h)}, {cc}"))
            lds = bread(t + 1) if t < 17 else []
            wr = []
            if True:
                for k in {9: range(0, 4), 10: range(4, 8), 11: range(8, 11), 12: range(11, 14)}.get(t, []):
                    u = 29 + k // 2; blk = k & 1; sg = self.slot(u)
                    wr.append(I(f"ds_write_b128 v{PW+sg//8}, {A4(self.stg(u, blk))} offset:{(sg%8)*8192+blk*1024}"))
            if t == 14:
                wr += [I(f"ds_write_b128 v{PW}, {V4(DACC+16+4*p)} offset:{xo[p]}") for p in range(4)]
            if t == 15:
                lds = [I(f"ds_read_b128 {V4(RX+4*p)}, v{PX} offset:{xo[p]}") for p in range(4)] + lds
            if t == 14: wr += pre_d
            if t == 15: wr += xun
            if t >= 16: wr = take(o.dsh[t - 16])
            ld = []
            if False:
                ld += self.flagstore(sT2, 12); vm.append(("fl", 0))
            if t == TP: ld += self.poll_issue(256 if o.hflag2 else 128); vm.append(("po", 0))
            if t == TP2 and o.hflag2: ld += self.poll_issue(128, 60); vm.append(("po", 1))
            if issued < 18 and issued - DEPTH < t:
                if issued in ((10, 14) if o.hflag2 else (10,)):
                    z = int(issued == 14)
                    ld.append(mk(f"s_waitcnt vmcnt({young(('po', z))})\nv_cmp_ne_u64 vcc, {sNon}, {V2(60 if z else POLL)}\ns_nop 0\ns_and_b32 vcc_lo, vcc_lo, {0x110011 if o.wgflag else 0xff00ff}\ns_cbranch_scc1 L_slow_o{z}\nL_back_o{z}:"))
                ld += aload(issued); issued += 1
            seq = []
            while ld or wr:
                if ld: seq.append(ld.pop(0))
                if wr: seq.append(wr.pop(0))
            if "m" in o.p2: mm = [I("s_nop 0") for _ in mm]
            if "r" in o.p2: lds = [x for x in lds if "tr" not in x.op]
            if "h" in o.p2: lds = [x for k, x in enumerate(lds) if "tr" not in x.op or k % 2 == 0]
            if "b" in o.p2: lds = [I(x.text.replace("ds_read_b64_tr_b16", "ds_read_b64")) for x in lds]
            if "w" in o.p2: seq = [x for x in seq if isinstance(x, list) or not x.op.startswith("ds_write")]
            wv = weave(mm, lds, seq, per_gap=(6 if t >= 16 else o.p2gap), lds_per_gap=o.p2lds, oth_start=(2 if t == 14 else 0))
            dsl = [x for x in wv if x.kind == "ds"]
            last = max([k for k, x in enumerate(dsl) if x.op.startswith("ds_read")], default=-1)
            nwr = len(dsl) - 1 - last
            if o.align == 3:
                for i in wv: i.padok = False
            c += wv
        c += self.stamp(11)
        dval = rest_packed()
        lead = min(8, len(dval))
        c += dval[:lead]; dval = dval[lead:]
        per = -(-len(dval) // 8)
        for p in range(4):
            c += mk(f"ds_write_b128 v{PW}, {V4(112+4*p)} offset:{16384+xo[p]}") + dval[:per]; dval = dval[per:]
        SV = 96
        c += mk("s_waitcnt lgkmcnt(0)\ns_barrier")
        c += [I(f"ds_read_b128 {V4(RX+4*p)}, v{PX} offset:{16384+xo[p]}") for p in range(4)]
        c += dval
        c += mk("s_waitcnt lgkmcnt(0)")
        c += [I(f"v_pk_add_f32 {V2(SV+2*e)}, {V2(SV+2*e)}, {V2(RX+2*e)}") for e in range(8)]
        c += [I(f"v_pk_mul_f32 {V2(SV+2*e)}, {V2(SV+2*e)}, {V2(DACC+2*e)}") for e in range(8)]
        c += [I(f"v_cvt_pk_bf16_f32 v{8+e}, v{SV+2*e}, v{SV+2*e+1}") for e in range(8)]
        c += mk(f"""
ds_write_b128 v{PY}, {V4(8)}
ds_write_b128 v{PY+1}, {V4(12)}
ds_read_b128 {V4(112)}, v{PY+2}
ds_read_b128 {V4(116)}, v{PY+2} offset:1024
""")
        for hh in range(2):
            c += mk(f"s_waitcnt lgkmcnt({1-hh})")
            for k in range(4):
                c += mk(f"v_lshlrev_b32 v{SV+8*hh+2*k}, 16, v{112+4*hh+k}\nv_and_b32 v{SV+8*hh+2*k+1}, 0xffff0000, v{112+4*hh+k}")
            for k in range(4): c += mk(f"v_pk_add_f32 {V2(SV+8*hh+2*k)}, {V2(SV+8*hh+2*k)}, {V2(46+8*hh+2*k)}")
            for k in range(4): c += mk(f"v_cvt_pk_bf16_f32 v{120+4*hh+k}, v{SV+8*hh+2*k}, v{SV+8*hh+2*k+1}")
            c += mk(f"buffer_store_dwordx4 {V4(120+4*hh)}, v{VXO+hh}, {sOUT}, 0 offen {o.outfl}")
        return c

    def finish(self):
        c = []
        if self.opt.amp:
            k, mult = self.opt.amp
            c += self.stamp(12)
            c += mk(f"""
s_waitcnt vmcnt(0)
s_cmp_lg_u32 s2, 77
s_cbranch_scc1 L_end
v_readlane_b32 s96, v7, {k}
s_sub_u32 s96, s96, s98
s_mul_i32 s96, s96, {mult}
s_min_u32 s96, s96, 100000
s_memrealtime s[100:101]
s_waitcnt lgkmcnt(0)
s_add_u32 s96, s96, s100
L_amp:
s_memrealtime s[100:101]
s_waitcnt lgkmcnt(0)
s_sub_u32 s97, s96, s100
s_cmp_gt_i32 s97, 0
s_cbranch_scc1 L_amp
L_end:
s_endpgm
""")
            return c
        if self.opt.stamps:
            c += self.stamp(12)
            c += mk(f"""
s_waitcnt vmcnt(0)
s_memrealtime s[96:97]
s_waitcnt lgkmcnt(0)
v_writelane_b32 v7, s96, 13
v_writelane_b32 v7, s98, 0
v_writelane_b32 v7, {sTyp}, 14
s_add_u32 s{bWS}, s66, {STAMP}
s_addc_u32 s{bWS+1}, s67, 0
s_mov_b32 s{bWS+2}, 0x100000
s_lshl_b32 {sT0}, s2, 2
s_add_u32 {sT0}, {sT0}, {sW}
s_lshl_b32 {sT0}, {sT0}, 7
v_lshlrev_b32 v4, 2, {vL}
s_mov_b64 exec, 0xffffffff
buffer_store_dword v7, v4, {sWS}, {sT0} offen
""")
        c += mk("L_end:\ns_endpgm")
        return c

    def build(self):
        pro = self.prologue()
        nv = 2 if self.opt.shift else 1
        parts = {}
        for t in range(2):
            for v in range(nv):
                c, slow = self.type_code(t, v)
                k = [i for i, x in enumerate(c) if x is self.loop_last][0] + 1
                parts[t, v] = (c[:k], c[k:], slow)
        p2 = self.phase2()
        fin = self.finish()
        tot = 0
        for (t, v), (lp, ep, slow) in parts.items():
            ep = parts[t, nv - 1][1]
            tot += fix_hazards(pro + lp + ep + p2 + fin, self.opt.verbose)
        for (t, v), (lp, ep, slow) in parts.items():
            fix_hazards(slow, self.opt.verbose)
            e, mx = check_waits(pro + lp + parts[t, nv - 1][1] + p2 + fin, f"t{t}{v}")
            print(f"type {t} ver {v}: wait errors {e}, max vm outstanding {mx}", file=sys.stderr)
        print(f"inserted nop states: {tot}", file=sys.stderr)
        slow2 = getattr(self, "slow2", [])
        fix_hazards(slow2)
        code = list(pro)
        for t in range(2):
            for v in range(nv): code += parts[t, v][0]
            code += parts[t, nv - 1][1]
        code += p2 + fin
        for k in parts: code += parts[k][2]
        code += slow2
        L = KN + "_kernel"
        if self.opt.align:
            wrap = lambda t: f'.amdgcn_target "amdgcn-amd-amdhsa--gfx950"\n.text\n.p2align 8\n{t}L_codeend:\n'
            print("align (promoted, padded):", align8(code, wrap, self.opt.align > 1), file=sys.stderr)
        hdr = open("cdna_kernels/" + KN + ".s.ref").read().split("; Override launch")[0] if self.opt.final else ""
        out = hdr + f"; @launch grid=(256,1,1) block=(256,1,1) lds={LDS_BYTES}\n"
        out += f'.amdgcn_target "amdgcn-amd-amdhsa--gfx950"\n.text\n.globl {L}\n.p2align 8\n.type {L},@function\n{L}:\n'
        out += text(code)
        out += "s_endpgm\n.p2align 6\nL_codeend:\n"
        out += f""".section .rodata,"a"
.p2align 6
.amdhsa_kernel {L}
  .amdhsa_next_free_vgpr 512
  .amdhsa_next_free_sgpr 102
  .amdhsa_accum_offset 256
  .amdhsa_group_segment_fixed_size 0
  .amdhsa_kernarg_size 80
  .amdhsa_user_sgpr_count 2
  .amdhsa_user_sgpr_kernarg_segment_ptr 1
  .amdhsa_system_sgpr_workgroup_id_x 1
  .amdhsa_float_denorm_mode_32 3
.end_amdhsa_kernel
"""
        return out

if __name__ == "__main__":
    ap = argparse.ArgumentParser()
    ap.add_argument("-o", default="k.s")
    for f in ("stamps", "p1only", "verbose", "final", "nomfma", "noreads", "nocs", "nopf", "epistamps", "prostamps", "p2stamps"): ap.add_argument("--" + f, action="store_true")
    ap.add_argument("--p2", default="")
    ap.add_argument("--p2gap", type=int, default=4)
    ap.add_argument("--burst", type=int, default=3)
    ap.add_argument("--ramp", type=int, default=2)
    ap.add_argument("--nstage_b", type=int, default=0)
    ap.add_argument("--depth", type=int, default=7)
    ap.add_argument("--pf0", type=int, default=2)
    ap.add_argument("--tlb", type=int, default=0)
    ap.add_argument("--kgroups", type=int, default=4)
    ap.add_argument("--quota", type=int, default=10)
    ap.add_argument("--ko", default="")
    ap.add_argument("--even", type=int, default=1)
    ap.add_argument("--evoff", type=float, default=0.5)
    ap.add_argument("--span", type=int, default=0)
    ap.add_argument("--mixrd", type=int, default=0)
    ap.add_argument("--shift", type=int, default=0)
    ap.add_argument("--verbit", type=int, default=0)
    ap.add_argument("--wgflag", type=int, default=1)
    ap.add_argument("--oearly", type=int, default=1)
    ap.add_argument("--lateto", type=float, default=0.8)
    ap.add_argument("--anew", type=int, default=1)
    ap.add_argument("--bdefer", type=int, default=12)
    ap.add_argument("--bint", type=int, default=0)
    ap.add_argument("--bint0", type=int, default=0)
    ap.add_argument("--aint", type=int, default=2)
    ap.add_argument("--qs", type=lambda x: [int(ch, 16) for ch in x], default=[int(ch, 16) for ch in "0aaaaaaaaaaa0000"])
    ap.add_argument("--qb", type=int, default=0)
    ap.add_argument("--sg", type=int, default=10)
    ap.add_argument("--ss", type=int, default=12)
    ap.add_argument("--sc", type=int, default=2)
    ap.add_argument("--cuts", type=lambda x: [int(v) for v in x.split(",")], default=[36, 56, 86])
    ap.add_argument("--xsched", default="0000000000000000")
    ap.add_argument("--xfirst", type=int, default=3)
    ap.add_argument("--plead", type=int, default=2)
    ap.add_argument("--pfa", type=int, default=0)
    ap.add_argument("--bearly", type=int, default=4)
    ap.add_argument("--stst", type=lambda x: [int(v) for v in x.split(",")], default=[1, 5, 11])
    ap.add_argument("--ntxt", type=int, default=0)
    ap.add_argument("--xt0", type=int, default=0)
    ap.add_argument("--hflag2", type=int, default=0)
    ap.add_argument("--psleep", type=int, default=0)
    ap.add_argument("--dsh", type=lambda x: [int(v) for v in x.split(",")], default=[28, 40])
    ap.add_argument("--latefrom", type=float, default=0.1)
    ap.add_argument("--pord", default="t1Xt")
    ap.add_argument("--walk", type=int, default=0)
    ap.add_argument("--wskip", type=int, default=120)
    ap.add_argument("--hearly", type=int, default=1)
    ap.add_argument("--hpos", type=int, default=0)
    ap.add_argument("--nfirst_a", type=int, default=12)
    ap.add_argument("--bsplit", type=int, default=4)
    ap.add_argument("--bpt", type=int, default=64)
    ap.add_argument("--nstage_a", type=int, default=6)
    ap.add_argument("--pollahead", type=int, default=2)
    ap.add_argument("--ofirst", type=int, default=0)
    ap.add_argument("--olate", type=int, default=0)
    ap.add_argument("--npoll", type=int, default=2)
    ap.add_argument("--rotc", type=int, default=0)
    ap.add_argument("--ut0", type=int, default=0)
    ap.add_argument("--utper", type=int, default=2)
    ap.add_argument("--utfl", default="")
    ap.add_argument("--rot", type=int, default=0)
    ap.add_argument("--probe", type=int, default=-1)
    ap.add_argument("--halo", type=int, default=1)
    ap.add_argument("--outfl", default="sc1")
    ap.add_argument("--protouch", type=int, default=2)
    ap.add_argument("--tfirst", type=int, default=1)
    ap.add_argument("--ntx", type=int, default=0)
    ap.add_argument("--ntw", type=int, default=0)
    ap.add_argument("--ntt", type=int, default=0)
    ap.add_argument("--late", type=int, default=0)
    ap.add_argument("--pford", default="h2,h3,h1,o")
    ap.add_argument("--hflag", type=float, default=0.5)
    ap.add_argument("--csplit", type=int, default=1)
    ap.add_argument("--quota0", type=int, default=11)
    ap.add_argument("--wtouch", type=int, default=2)
    ap.add_argument("--wfirst", type=int, default=1)
    ap.add_argument("--statlag", type=int, default=3)
    ap.add_argument("--rotmask", type=int, default=6)
    ap.add_argument("--pfsched", default="0011111111100000")
    ap.add_argument("--statstep", type=int, default=0)
    ap.add_argument("--pfrot", type=int, default=7)
    ap.add_argument("--amp", type=lambda x: tuple(int(v) for v in x.split(",")), default=None)
    ap.add_argument("--wsched", default="033333333333300000")
    ap.add_argument("--bars", default="1,3,5,7,9,11,13,15")
    ap.add_argument("--align", type=int, default=0)
    ap.add_argument("--proextra", type=int, default=1)
    ap.add_argument("--dshadow", type=int, default=60)
    ap.add_argument("--pollpos", type=int, default=5)
    ap.add_argument("--stsched", type=lambda x: [int(ch) for ch in x], default=[int(ch) for ch in "0000000000033334"])
    ap.add_argument("--p2lds", type=int, default=4)
    ap.add_argument("--pfslice", type=int, default=4096)
    opt = ap.parse_args()
    import subprocess, re, os
    for _ in range(2):
        open(opt.o, "w").write(G(opt).build())
        subprocess.check_call(["clang", "-x", "assembler", "-target", "amdgcn-amd-amdhsa", "-mcpu=gfx950", "-c", opt.o, "-o", opt.o + ".o"])
        t = subprocess.check_output(["llvm-objdump", "-t", opt.o + ".o"], text=True)
        sym = {m.group(2): int(m.group(1), 16) for m in re.finditer(r"^([0-9a-f]{16}) .* (L_\w+)$", t, re.M)}
        n = sym["L_codeend"] - sym["L_pc"]
        opt.pfslice = (n - 12288) // 7 // 16 * 16
        opt.pfslice = min(opt.pfslice, 8192)
        opt.verbose = False
    os.remove(opt.o + ".o")
    print("code bytes", sym["L_codeend"], "pfslice", opt.pfslice, {k: v for k, v in sym.items() if k in ("L_pc", "L_t10", "L_join", "L_go", "L_end")}, file=sys.stderr)
```

```python
import sys, argparse, struct
from fw import *
KN = "recurrent_scan__sliding_local_dilated__glu_gated_bilinear__prompt"

WSLOT = 20480
XBASE = 5 * WSLOT
XSLOT = 18432
MISC = XBASE + 3 * XSLOT
STATL = MISC
LDS_BYTES = 163840
RBS = 144 * 1024
WS_STAT = 0x900000
WS_FLAG = 0x910000
WS_SIZE = 0x920000
STAMP = 200 << 20
def S4(b): return f"s[{b}:{b+3}]"
bX, bWO, bWD, bOUT, bWS, bDBG = 4, 8, 12, 16, 20, 24
sX, sWO, sWD, sOUT, sWS, sDBG = map(S4, (bX, bWO, bWD, bOUT, bWS, bDBG))
bS = [28, 32, 36, 40, 44]; sS = [S4(b) for b in bS]
sW, sM, sN, sR, sC = "s68", "s69", "s70", "s71", "s72"
sKa, sKb, sIncA = "s73", "s74", "s75"
sWoff, sXoff, sHoff = "s76", "s77", "s78"
sIdx, sTyp = "s79", "s80"
sT0, sT1, sT2, sT3 = "s82", "s83", "s84", "s85"
sNon = "s[86:87]"; sNonL, sNonH = "s86", "s87"
sU = ["s88", "s89", "s90"]
sEx = "s[94:95]"
sB = ["s48", "s49", "s50", "s51"]
sWB = ["s52", "s53", "s56", "s57"]
sCnt = "s58"
sXc = "s93"; sXk = "s92"
vL = "v1"
vX = ["v8", "v9"]; vH = ["v10", "v11"]; vWg = ["v12", "v13", "v14", "v15", "v16"]; vB2 = "v17"
RA = 18
RT = 22
VST = 26
BIAS = 30
GAT = 76
NON = 56
GA = 58
SX = 60
V4 = lambda r: f"v[{r}:{r+3}]"
V2 = lambda r: f"v[{r}:{r+1}]"
A4 = lambda r: f"a[{r}:{r+3}]"
A2 = lambda r: f"a[{r}:{r+1}]"
CSACC = 228
ONES = 252
def f2h(x): return "0x%08x" % struct.unpack("<I", struct.pack("<f", x))[0]
aQ = lambda i: 88 + 4 * i
aK = lambda i: 120 + 4 * i
aV = lambda i: 156 + 4 * i
aG = lambda i: 192 + 4 * i
aU = lambda i: 224 + 4 * i
bAcc = lambda g, i: 96 + 32 * g + 4 * i
bMix = lambda u, i: 224 + 16 * u + 4 * i
NA = {0: 9, 1: 8}; NB = {0: 5, 1: 6}
fA = lambda st, i: 56 * st + 4 * i
def fB(ty, st, j): return 56 * st + 4 * NA[ty] + 4 * j
M16 = "v_mfma_f32_16x16x32_bf16"

class G:
    def __init__(self, opt): self.opt = opt; self.young = {}
    def pstamp(self, k):
        return self.stamp(k, True) if self.opt.prostamps else []
    def stamp(self, k, force=False):
        if not self.opt.stamps: return []
        if (self.opt.prostamps or self.opt.p2stamps) and 2 <= k <= 7 and not force: return []
        if self.opt.probe >= 0 and k in (2, 3) and not force: return []
        if self.opt.epistamps and k in (2, 3, 4) and not force: return []
        return mk(f"s_memrealtime s[96:97]\ns_memtime s[100:101]\ns_waitcnt lgkmcnt(0)\nv_writelane_b32 v7, s96, {k}\nv_writelane_b32 v7, s100, {16+k}")

    def scc_live(self, flat, k):
        for ins in flat[k:]:
            if ins.op.startswith(("s_cselect", "s_cbranch_scc", "s_addc")): return True
            if ins.kind == "salu" and not ins.op.startswith(("s_mov", "s_waitcnt", "s_nop", "s_movk")): return False
        return False
    def mksrd(self, b, p, size):
        return mk(f"s_mov_b32 s{b}, s{p}\ns_mov_b32 s{b+1}, s{p+1}\ns_mov_b32 s{b+2}, {size}\ns_mov_b32 s{b+3}, 0x20000")

    def dma_x(self, p, h, halo=True):
        base = XBASE + (p % 3) * XSLOT
        L = [mk(f"s_add_u32 {sXk}, {sXc}, {h*16384}\ns_add_u32 m0, {sXoff}, {base + 2048*h}\nbuffer_load_dwordx4 {vX[0]}, {sX}, {sXk} offen lds"),
             mk(f"s_add_u32 m0, {sXoff}, {base + 2048*h + 1024}\nbuffer_load_dwordx4 {vX[1]}, {sX}, {sXk} offen lds")]
        if halo:
            ho = "s3" if (self.opt.halo and h == 0) else sHoff
            L.append(mk(f"s_add_u32 m0, {ho}, {base + 256*h}\nbuffer_load_dword {vH[h]}, {sX}, {sXc} offen lds"))
        if h == 1: L[-1] += mk(f"s_add_u32 {sXc}, {sXc}, 128\ns_and_b32 {sXc}, {sXc}, 1023")
        if p < self.opt.ntx:
            for a in L:
                for i in a:
                    if i.kind == "vmem": i.text = i.text.replace(" lds", " nt lds")
        if "x" in self.opt.ko and p > 0:
            for a in L:
                for i in a:
                    if i.kind == "vmem": i.text = i.text.replace(sXk, "0").replace(sXc, "0")
        return L
    def dma_w(self, s):
        base = (s % 5) * WSLOT
        L = []
        for g in self.opt.gord:
            L.append(mk(f"s_add_u32 m0, {sWoff}, {base + 4096*g}\nbuffer_load_dwordx4 {vWg[g]}, {sS[g]}, {sKa if g < 3 else sKb} offen{' nt' if s < self.opt.ntw else ''} lds"))
        if "w" not in self.opt.ko: L[-1] += mk(f"s_add_u32 {sKa}, {sKa}, {sIncA}\ns_add_u32 {sKb}, {sKb}, {32*3584}")
        G = self.opt.kgroups
        if G > 1 and (s + 1) % (16 // G) == 0 and s < 15:
            L[-1].append(mk(f"s_cmp_eq_u32 {sKb}, {512*3584}\ns_cselect_b32 {sKa}, 0, {sKa}\ns_cselect_b32 {sKb}, 0, {sKb}"))
        return L
    def dma_queue(self, ty):
        Q = []
        for s in range(16):
            if s % 2 == 0 and ("x", s // 2) not in self.vm0:
                p = s // 2
                for h in range(2):
                    for a in self.dma_x(p, h, halo=(ty == 0)): Q.append((max(0, 2 * p - 5), ("x", p), a))
            if ("w", s) not in self.vm0:
                for a in self.dma_w(s): Q.append((max(0, s - 5), ("w", s), a))
        if self.opt.xmix:
            out = []; i = 0
            while i < len(Q):
                if Q[i][1][0] == "x":
                    j = i
                    while j < len(Q) and Q[j][1] == Q[i][1]: j += 1
                    xs = Q[i:j]; k = j
                    while k < len(Q) and Q[k][1] == Q[j][1]: k += 1
                    ws = Q[j:k]
                    e = max(q[0] for q in xs + ws)
                    while xs or ws:
                        if xs: t = xs.pop(0); out.append((e, t[1], t[2]))
                        if ws: t = ws.pop(0); out.append((e, t[1], t[2]))
                    i = k
                else: out.append(Q[i]); i += 1
            Q = out
        return Q

    def wtouch(self, n):
        return mk(f"""
v_add_u32 v44, 2, v44
v_and_b32 v44, 15, v44
v_lshl_add_u32 v48, v44, 5, v45
v_mad_u32_u24 v49, v48, s86, v46
v_mad_u32_u24 v48, v48, s87, v47
buffer_load_dword a{220 + 2 * n}, v49, s[88:91], s54 offen{' nt' if self.opt.ntt else ''}
buffer_load_dword a{221 + 2 * n}, v48, {sS[4]}, s55 offen{' nt' if self.opt.ntt else ''}
""")
    def prologue(self):
        o = self.opt
        vm = self.vm0 = []
        def note(L, tag):
            L = flatten(L)
            for i in L:
                if i.kind == "vmem": vm.append(tag)
            return L
        c = mk(f"""
s_load_dwordx16 s[48:63], s[0:1], 0
s_load_dwordx4 s[64:67], s[0:1], 64
s_cmp_ge_u32 s2, 256
s_cbranch_scc1 L_end
""")
        if o.stamps: c += mk("v_mov_b32 v7, 0\ns_memrealtime s[98:99]")
        c += note(mk(f"""
s_getpc_b64 s[88:89]
L_pc:
v_lshlrev_b32 v2, 4, v0
s_lshr_b32 {sT1}, s2, 3
s_and_b32 {sT0}, {sT1}, 7
s_mul_i32 {sT0}, {sT0}, {o.pfslice}
global_load_dwordx4 a[112:115], v2, s[88:89]
v_add_u32 v3, 0x1000, v2
s_add_u32 s88, s88, {sT0}
s_addc_u32 s89, s89, 0
global_load_dwordx4 a[116:119], v3, s[88:89]
v_add_u32 v3, 0x1000, v3
global_load_dwordx4 a[120:123], v3, s[88:89]
"""), ("pre", 0))
        c += mk(f"""
v_lshrrev_b32 v2, 6, v0
v_and_b32 {vL}, 63, v0
s_and_b32 {sT0}, s2, 7
v_readfirstlane_b32 {sW}, v2
s_lshr_b32 {sM}, {sT0}, 2
s_lshl_b32 {sM}, {sM}, 3
s_lshr_b32 {sT2}, {sT1}, 2
s_add_u32 {sM}, {sM}, {sT2}
v_lshrrev_b32 v5, 3, {vL}
v_lshrrev_b32 v3, 4, {vL}
v_xor_b32 v4, v3, {vL}
v_and_b32 v4, 7, v4
v_lshlrev_b32 v4, 4, v4
s_lshl_b32 {sT3}, {sM}, 7
s_lshl_b32 {sT2}, {sW}, 5
s_add_u32 {sT2}, {sT2}, {sT3}
v_add_u32 v6, {sT2}, v5
v_lshl_add_u32 {vX[0]}, v6, 10, v4
v_xor_b32 {vX[1]}, 64, {vX[0]}
v_add_u32 {vX[1]}, 0x2000, {vX[1]}
s_lshl_b32 {sT2}, {sW}, 2
s_add_u32 {sT2}, {sT2}, {sT3}
s_sub_u32 {sT2}, {sT2}, 16
v_lshrrev_b32 v6, 5, {vL}
v_add_u32 v6, {sT2}, v6
s_lshl_b32 {sXoff}, {sW}, 5
v_lshlrev_b32 v4, 2, {vL}
v_and_b32 v4, 0x7f, v4
v_xor_b32 v4, {sXoff}, v4
v_max_i32 v2, 0, v6
v_lshl_add_u32 {vH[0]}, v2, 10, v4
v_add_u32 v6, 2, v6
v_max_i32 v2, 0, v6
v_xor_b32 v4, 16, v4
v_lshl_add_u32 {vH[1]}, v2, 10, v4
s_lshl_b32 {sXoff}, {sW}, 12
s_add_u32 {sXoff}, {sXoff}, 2048
s_lshl_b32 {sHoff}, {sW}, 9
s_cmp_eq_u32 {sW}, 0
s_cselect_b32 s3, 0x10000, {sHoff}
s_cselect_b32 {sXc}, {0x80000000 if o.halo else 0}, 0
v_or_b32 {vH[0]}, {sXc}, {vH[0]}
s_lshl_b32 {sXc}, s2, 1
s_and_b32 {sXk}, s2, 4
s_add_u32 {sXc}, {sXc}, {sXk}
s_and_b32 {sXc}, {sXc}, {o.rotmask}
s_lshl_b32 s81, {sXc}, 1
s_lshl_b32 {sXc}, {sXc}, 7
s_and_b32 {sT2}, {sT1}, 3
s_lshl_b32 {sT2}, {sT2}, 2
s_add_u32 {sT2}, {sT2}, {sW}
s_mul_i32 {sT2}, {sT2}, 9
s_add_u32 {sT2}, {sT2}, {sT3}
s_sub_u32 {sT2}, {sT2}, 16
v_add_u32 v50, {sT2}, {vL}
v_max_i32 v50, 0, v50
v_cmp_le_u32 vcc, 9, {vL}
v_lshlrev_b32 v50, 10, v50
v_mov_b32 v6, 0x80000000
v_cndmask_b32 v50, v50, v6, vcc
s_mov_b32 s{bX+2}, {2048*1024}
s_mov_b32 s{bX+3}, 0x20000
s_waitcnt lgkmcnt(0)
s_mov_b32 s{bX}, s48
s_mov_b32 s{bX+1}, s49
""")
        if o.stamps: c += mk("s_mov_b32 s99, 0")
        c += self.pstamp(2)
        if o.xt0:
            c += note(mk(f"buffer_load_dword a227, v50, {sX}, {sXc} offen{' nt' if o.ntxt else ''}"), ("xt", 0))
            if o.xt0 > 1: c += note(mk(f"s_add_u32 {sXk}, {sXc}, 128\ns_and_b32 {sXk}, {sXk}, 1023\nbuffer_load_dword a226, v50, {sX}, {sXk} offen{' nt' if o.ntxt else ''}"), ("xt", 0))
        c += note(self.dma_x(0, 0) + self.dma_x(0, 1), ("x", 0))
        c += self.pstamp(3)
        c += mk(f"""
s_lshl_b32 {sWoff}, {sW}, 10
s_and_b32 {sN}, {sT0}, 3
s_lshl_b32 {sIdx}, {sN}, 1
s_lshl_b32 {sN}, {sN}, 2
s_and_b32 {sT2}, {sT1}, 3
s_add_u32 {sN}, {sN}, {sT2}
s_lshr_b32 {sTyp}, {sT2}, 1
s_and_b32 {sT2}, {sT2}, 1
s_add_u32 {sIdx}, {sIdx}, {sT2}
s_and_b32 {sT2}, {sW}, 1
s_lshl_b32 {sT3}, {sT2}, 2
v_and_b32 v4, 2, v5
v_or_b32 v4, {sT3}, v4
v_xor_b32 v4, v4, {vL}
v_and_b32 v4, 7, v4
v_lshlrev_b32 v4, 4, v4
s_lshl_b32 {sT3}, {sW}, 3
v_add_u32 v6, {sT3}, v5
s_movk_i32 s87, 3584
s_movk_i32 s86, 3072
s_lshl_b32 s95, {sIdx}, 7
s_lshl_b32 {sT3}, {sIdx}, 8
s_add_u32 {sT3}, {sT3}, 1024
s_add_u32 s49, s95, 1024
s_add_u32 s94, s95, 2048
s_add_u32 s54, {sT3}, 128
s_lshl_b32 s55, {sIdx}, 6
s_add_u32 s55, s55, 3072
s_cmp_eq_u32 {sTyp}, 1
s_cselect_b32 s86, s87, s86
s_cselect_b32 s48, {sT3}, s95
s_cselect_b32 s49, {sT3}, s49
s_cselect_b32 s94, s54, s94
s_cselect_b32 s55, s55, s95
s_cselect_b32 s95, s54, s95
s_cselect_b64 vcc, -1, 0
s_cselect_b32 s28, s56, s50
s_cselect_b32 s29, s57, s51
s_cselect_b32 s32, s58, s50
s_cselect_b32 s33, s59, s51
s_cselect_b32 s40, s58, s56
s_cselect_b32 s41, s59, s57
v_mad_u32_u24 v2, v6, s86, v4
v_mad_u32_u24 v3, v6, s87, v4
s_lshl_b32 s30, s86, 9
s_lshl_b32 {sIncA}, s86, 5
v_add_u32 {vWg[0]}, s48, v2
v_add_u32 {vWg[1]}, s49, v2
v_add_u32 {vWg[2]}, s94, v2
v_add_u32 {vWg[3]}, s95, v3
s_mov_b32 s31, 0x20000
s_mov_b32 s34, s30
s_mov_b32 s35, 0x20000
s_mov_b32 s36, s28
s_mov_b32 s37, s29
s_mov_b32 s38, s30
s_mov_b32 s39, 0x20000
s_mov_b32 s42, {512*3584}
s_mov_b32 s43, 0x20000
v_lshrrev_b32 v4, 4, {vL}
v_and_b32 v4, 2, v4
v_xor_b32 v4, v4, {vL}
v_and_b32 v4, 3, v4
v_lshlrev_b32 v4, 4, v4
s_lshl_b32 {sT2}, {sT2}, 4
v_lshrrev_b32 v6, 2, {vL}
v_add_u32 v6, {sT2}, v6
v_mad_u32_u24 v4, v6, s87, v4
s_lshl_b32 {sT2}, {sTyp}, 1
s_cmp_lt_u32 {sW}, {sT2}
s_cselect_b32 s44, s56, s58
s_cselect_b32 s45, s57, s59
s_mov_b32 s46, s42
s_mov_b32 s47, 0x20000
v_cndmask_b32 v4, v3, v4, vcc
s_mul_i32 {sKa}, s81, {sIncA}
s_mul_i32 {sKb}, s81, {32*3584}
v_add_u32 {vWg[4]}, s55, v4
""")
        c += note(self.dma_w(0), ("w", 0))
        c += self.pstamp(4)
        c += mk(f"""
v_lshrrev_b32 v2, 4, {vL}
v_bfe_u32 v3, {vL}, 2, 2
v_and_b32 v4, 3, {vL}
v_and_b32 v6, 15, {vL}
v_lshrrev_b32 v5, 1, v6
v_xor_b32 v5, v5, v2
v_lshlrev_b32 v5, 4, v5
v_lshl_add_u32 v5, v6, 7, v5
v_add_u32 v5, {XBASE}, v5
s_lshr_b32 {sT2}, {sW}, 1
s_and_b32 {sT2}, {sT2}, {sTyp}
s_lshl_b32 {sT2}, {sT2}, 13
v_add_u32 v{RA}, {sT2}, v5
v_xor_b32 v{RA+1}, 64, v{RA}
v_subrev_u32 v{RA+2}, {sT2}, v5
v_xor_b32 v{RA+3}, 64, v{RA+2}
v_and_b32 v6, 1, v2
v_lshrrev_b32 v5, 1, v3
v_lshl_or_b32 v5, v6, 1, v5
v_xor_b32 v5, {sW}, v5
v_lshlrev_b32 v5, 5, v5
v_lshl_add_u32 v5, v2, 10, v5
v_lshl_add_u32 v5, v3, 7, v5
v_lshl_add_u32 v{RT}, v4, 3, v5
v_add_u32 v{RT+1}, {3*WSLOT}, v{RT}
v_lshrrev_b32 v5, 1, v2
v_lshlrev_b32 v5, 10, v5
v_lshl_add_u32 v5, v6, 9, v5
v_lshl_add_u32 v5, v3, 6, v5
v_lshl_add_u32 v5, v4, 3, v5
v_xor_b32 v6, {sW}, v6
v_and_b32 v6, 1, v6
v_lshl_add_u32 v{RT+2}, v6, 5, v5
v_add_u32 v{RT+3}, {3*WSLOT}, v{RT+2}
v_mov_b32 v5, 0x3f803f80
v_lshlrev_b32 v6, 2, {vL}
v_add_u32 v6, {XBASE}, v6
{"" if not o.halo else f"ds_write_b32 v6, v5{chr(10)}ds_write_b32 v6, v5 offset:{XSLOT}{chr(10)}ds_write_b32 v6, v5 offset:{2*XSLOT}"}
s_cmp_eq_u32 {sW}, 1
s_cselect_b32 s54, s49, s48
s_cselect_b32 s88, s32, s28
s_cselect_b32 s89, s33, s29
s_cmp_eq_u32 {sW}, 2
s_cselect_b32 s54, s94, s54
s_cmp_eq_u32 {sW}, 3
s_cselect_b32 s54, s95, s54
s_cselect_b32 s88, s40, s88
s_cselect_b32 s89, s41, s89
s_cselect_b32 s90, s42, s30
s_cselect_b32 s86, s87, s86
s_mov_b32 s91, 0x20000
v_accvgpr_write_b32 a{ONES}, v5
v_accvgpr_write_b32 a{ONES+1}, v5
v_accvgpr_write_b32 a{ONES+2}, v5
v_accvgpr_write_b32 a{ONES+3}, v5
s_add_u32 s81, s81, {o.wfirst - 2}
v_lshrrev_b32 v5, 2, {vL}
v_add_u32 v44, s81, v5
s_and_b32 {sT2}, {sM}, 7
s_lshl_b32 {sT2}, {sT2}, 2
v_add_u32 v45, {sT2}, v4
v_lshrrev_b32 v46, 3, {vL}
v_lshlrev_b32 v46, 28, v46
s_lshl_b32 {sT2}, {sTyp}, 1
s_sub_u32 {sT2}, 3, {sT2}
v_xor_b32 v5, {sW}, {vL}
v_and_b32 v5, {sT2}, v5
v_lshl_or_b32 v47, v5, 26, v46
""")
        c += self.mksrd(bDBG, 64, 256)
        c += mk(f"""
s_or_b32 {sT2}, s2, {sW}
s_cmp_lg_u32 {sT2}, 0
s_cbranch_scc1 L_nononce
s_memrealtime s[94:95]
s_waitcnt lgkmcnt(0)
s_or_b32 s94, s94, 1
v_mov_b32 v2, s94
v_mov_b32 v3, s95
v_mov_b32 v4, 0
s_mov_b64 exec, 1
buffer_store_dwordx2 v[2:3], v4, {sDBG}, 0 offen sc1
s_mov_b64 exec, -1
L_nononce:
""")
        c += self.pstamp(7)
        xt = mk(f"buffer_load_dword a226, v50, {sX}, {sXc} offen{' nt' if o.ntxt else ''}")
        for ch in o.pord:
            if ch == "t": c += note(self.wtouch(1 + vm.count(("wt", 0)) // 2 % 2), ("wt", 0))
            if ch == "x": c += note(xt, ("xt", 0))
            if ch == "1": c += note(self.dma_w(1), ("w", 1))
            if ch == "X": c += note(self.dma_x(1, 0) + self.dma_x(1, 1), ("x", 1))
            if ch == "2": c += note(self.dma_w(2), ("w", 2))
        c += self.pstamp(5)
        if o.walk:
            c += mk(f"""
; instruction-cache warm-up: hop along the s_cbranch_execz chains (no other instruction runs with EXEC = 0)
s_mov_b64 exec, 0
s_cmp_eq_u32 {sW}, 3
s_cbranch_scc1 H_p_0
s_lshl_b32 {sT2}, {sTyp}, 2
s_add_u32 {sT2}, {sT2}, {sW}
s_cmp_eq_u32 {sT2}, 0
s_cbranch_scc1 H_a0_0
s_cmp_eq_u32 {sT2}, 1
s_cbranch_scc1 H_a1_0
s_cmp_eq_u32 {sT2}, 2
s_cbranch_scc1 H_a2_0
s_cmp_eq_u32 {sT2}, 4
s_cbranch_scc1 H_b0_0
s_cmp_eq_u32 {sT2}, 5
s_cbranch_scc1 H_b1_0
s_branch H_b2_0
L_wback:
s_mov_b64 exec, -1
""")
        c += mk(f"s_add_u32 s81, {sXc}, {128 * (o.xfirst - 3)}")
        c += self.pstamp(6)
        if o.shift:
            c += mk(f"""
s_lshr_b32 {sT2}, {sW}, {o.verbit}
s_and_b32 {sT2}, {sT2}, 1
s_lshl_b32 {sT1}, {sTyp}, 1
s_add_u32 {sT2}, {sT2}, {sT1}
s_cmp_eq_u32 {sT2}, 1
s_cbranch_scc1 L_t01
s_cmp_eq_u32 {sT2}, 2
s_cbranch_scc1 L_t10
s_cmp_eq_u32 {sT2}, 3
s_cbranch_scc1 L_t11
""")
        else: c += mk(f"s_cmp_eq_u32 {sTyp}, 1\ns_cbranch_scc1 L_t10")
        return c

    def deferred(self, ty):
        o = self.opt
        A = []
        A += self.mksrd(bWO, 52, 512 * 1024) + self.mksrd(bWD, 60, 1792 * 1024) + self.mksrd(bWS, 66, WS_SIZE) + self.mksrd(bOUT, 62, 2048 * 1024)
        A += mk(f"""
s_lshr_b32 {sT1}, s2, 3
s_and_b32 {sT2}, s2, 7
s_lshr_b32 {sR}, {sT2}, {o.csplit}
s_lshl_b32 {sR}, {sR}, {2 + o.csplit}
s_lshr_b32 s64, {sT1}, {3 - o.csplit}
s_add_u32 {sR}, {sR}, s64
s_and_b32 {sC}, {sT1}, {(8 >> o.csplit) - 1}
s_and_b32 {sT2}, {sT2}, {o.csplit}
s_lshl_b32 {sT2}, {sT2}, 2
s_add_u32 {sC}, {sC}, {sT2}
s_lshl_b32 {sT3}, {sW}, 11
s_mul_i32 s62, {sC}, {o.rotc}
s_mul_i32 s63, {sR}, {2 - o.csplit}
s_add_u32 s62, s62, s63
s_and_b32 s62, s62, 7
s_lshl_b32 s63, s62, 12
s_lshl_b32 s62, s62, 16
v_lshrrev_b32 v5, 2, {vL}
v_and_b32 v5, 4, v5
v_xor_b32 v5, v5, {vL}
v_and_b32 v5, 7, v5
v_lshlrev_b32 v5, 4, v5
v_lshrrev_b32 v6, 3, {vL}
v_lshl_add_u32 v5, v6, 10, v5
s_lshl_b32 {sT2}, {sC}, 7
v_add_u32 {vB2}, {sT2}, v5
s_and_b32 {sT1}, {sW}, 1
s_lshr_b32 {sT2}, {sW}, 1
s_lshl_b32 {sT2}, {sT2}, 14
s_lshl_b32 {sWB[0]}, {sT1}, 18
s_add_u32 {sWB[0]}, {sWB[0]}, {sT2}
s_mov_b32 {sWB[1]}, {sWB[0]}
s_lshl_b32 s64, {sT1}, 19
s_add_u32 s64, s64, {sT2}
s_add_u32 s56, s64, {512*1024}
s_lshl_b32 s64, {sT1}, 17
s_add_u32 s64, s64, {sT2}
s_add_u32 s57, s64, {1536*1024}
s_lshl_b32 {sT1}, {sM}, 7
s_sub_u32 {sT2}, {sT1}, 16
v_add_u32 v5, {sT2}, {vL}
v_max_i32 v{GA}, 0, v5
v_lshlrev_b32 v{GA}, 4, v{GA}
v_add_u32 v5, 64, v5
v_lshlrev_b32 v{GA+1}, 4, v5
s_add_u32 {sT1}, {sT1}, 112
v_and_b32 v5, 15, {vL}
v_add_u32 v5, {sT1}, v5
v_lshlrev_b32 v42, 4, v5
""")
        B = []
        if ty == 0:
            B += mk(f"""
v_lshlrev_b32 v{VST}, 4, {vL}
v_add_u32 v{VST+1}, {RBS}, v{VST}
v_add_u32 v{VST+2}, {2*RBS}, v{VST}
v_add_u32 v{VST+3}, {3*RBS}, v{VST}
s_mul_i32 {sT1}, {sM}, 576
s_lshl_b32 {sT2}, {sIdx}, 2
s_add_u32 {sT2}, {sT2}, {sW}
s_add_u32 {sU[1]}, {sT1}, {sT2}
s_add_u32 {sU[0]}, {sU[1]}, 32
s_lshl_b32 {sU[0]}, {sU[0]}, 10
s_lshl_b32 {sU[1]}, {sU[1]}, 10
v_lshrrev_b32 v4, 4, {vL}
v_and_b32 v6, 15, {vL}
v_lshlrev_b32 v4, 2, v4
v_sub_u32 v4, v6, v4
v_mov_b32 v3, 0xff800000
v_mov_b32 v6, 0x80000000
""")
            for r in range(4):
                B += mk(f"""
v_subrev_u32 v5, {r}, v4
v_and_b32 v5, 0x80000001, v5
v_cmp_eq_u32 vcc, 0, v5
v_cmp_eq_u32 {sEx}, v6, v5
v_cndmask_b32_e64 v{BIAS+4+r}, v3, 0, vcc
v_cndmask_b32_e64 v{BIAS+r}, v3, 0, {sEx}
""")
            B.append(mk(f"s_cmp_eq_u32 {sM}, 0\ns_cselect_b64 vcc, -1, 0"))
            for r in range(4): B += mk(f"v_cndmask_b32 v{BIAS+8+r}, v{BIAS+r}, v3, vcc")
        else:
            B += mk(f"""
s_lshr_b32 {sT1}, {sW}, 1
s_mul_i32 {sT2}, {sT1}, {2*RBS}
v_lshlrev_b32 v5, 4, {vL}
v_add_u32 v{VST}, {sT2}, v5
v_add_u32 v{VST+1}, {RBS}, v{VST}
v_subrev_u32 v{VST+2}, {sT2}, v5
v_add_u32 v{VST+2}, {2*RBS}, v{VST+2}
v_add_u32 v{VST+3}, {RBS}, v{VST+2}
s_mul_i32 {sT1}, {sM}, 576
s_lshl_b32 {sT2}, {sIdx}, 3
s_add_u32 {sT2}, {sT2}, {sW}
s_add_u32 {sT2}, {sT2}, {sT1}
s_add_u32 {sU[0]}, {sT2}, 64
s_add_u32 {sU[1]}, {sT2}, 68
s_lshl_b32 {sT2}, {sIdx}, 1
s_and_b32 s64, {sW}, 1
s_add_u32 {sT2}, {sT2}, s64
s_add_u32 {sT2}, {sT2}, {sT1}
s_add_u32 {sU[2]}, {sT2}, 128
s_lshl_b32 {sU[0]}, {sU[0]}, 10
s_lshl_b32 {sU[1]}, {sU[1]}, 10
s_lshl_b32 {sU[2]}, {sU[2]}, 10
""")
        return A, B

    def reads(self, ty, stage):
        st = stage & 1
        xb = ((stage // 2) % 3) * XSLOT; kh = stage & 1
        ws = stage % 5; rg = ws // 3; wb = (ws % 3) * WSLOT
        out = []
        for i in range(NA[ty]):
            if ty == 0: out.append(I(f"ds_read_b128 {A4(fA(st, i))}, v{RA+kh} offset:{xb + 2048*i}"))
            else: out.append(I(f"ds_read_b128 {A4(fA(st, i))}, v{RA+kh+(2 if i >= 4 else 0)} offset:{xb + 2048*(i+1)}"))
        def tr(j, reg, off, second):
            return [I(f"ds_read_b64_tr_b16 {A2(fB(ty, st, j))}, v{reg} offset:{wb+off}"),
                    I(f"ds_read_b64_tr_b16 {A2(fB(ty, st, j)+2)}, v{reg} offset:{wb+off+second}")]
        B = []
        for g in range(5 if ty == 0 else 4): B += tr(g, RT + rg, 4096 * g, 512)
        if ty == 1: B += tr(4, RT + 2 + rg, 16384, 256) + tr(5, RT + 2 + rg, 16384 + 2048, 256)
        if self.opt.mixrd:
            z = []
            while out or B:
                if out: z.append(out.pop(0))
                if B: z.append(B.pop(0))
            return z
        return out + B

    def mfmas(self, ty, stage):
        st = stage & 1
        out = []
        Z = lambda d: "0" if stage == 0 else d
        def T(d, j, i): out.append(I(f"{M16} {V4(d)}, {A4(fB(ty, st, j))}, {A4(fA(st, i))}, {Z(V4(d))}"))
        def CS(k, flip=False):
            d = A4(CSACC + 4 * k); f = A4(fB(ty, st, k))
            if self.opt.nocs: return
            out.append(I(f"{M16} {d}, {A4(ONES)}, {f}, {Z(d)}" if flip else f"{M16} {d}, {f}, {A4(ONES)}, {Z(d)}"))
        if ty == 0:
            for i in range(8): T(aQ(i), 0, i + 1)
            CS(0)
            for i in range(9): T(aK(i), 1, i)
            if not self.opt.halo: CS(1)
            for i in range(9): out.append(I(f"{M16} {V4(aV(i))}, {A4(fA(st, i))}, {A4(fB(ty, st, 2))}, {Z(V4(aV(i)))}"))
            if not self.opt.halo: CS(2, True)
            for i in range(8): T(aG(i), 3, i + 1)
            CS(3)
            for i in range(8): T(aU(i), 4, i + 1)
            CS(4)
        else:
            for g in range(4):
                for i in range(8): T(bAcc(g, i), g, i)
                CS(g)
            for u in range(2):
                for i in range(4): T(bMix(u, i), 4 + u, i)
                CS(4 + u)
        return out

    TILES = [(2, 2*k) for k in range(16)] + [(3, 2*k) for k in range(4)] + [(1, 2*k) for k in range(8)] + [(0, 2*k) for k in range(8)]
    RSIZE = {0: 16, 1: 16, 2: 32, 3: 8}
    def b2off(self, r, k, blk):
        if not self.opt.rot: return f"s_add_u32 {sT0}, {sWB[r]}, {(16*k + 8*blk)*1024}"
        if blk: return f"s_add_u32 {sT0}, {sT0}, 8192"
        return f"s_add_u32 {sT0}, s62, {k*16384}\ns_and_b32 {sT0}, {sT0}, {self.RSIZE[r]*16384 - 1}\ns_add_u32 {sT0}, {sT0}, {sWB[r]}"
    def b2_dma(self, s):
        def free_at(q):
            a = q * 2048
            if a < XBASE: return [s_ for s_ in range(11, 16) if s_ % 5 == a // WSLOT][0]
            return {2: 11, 0: 13, 1: 15}[(a - XBASE) // XSLOT]
        out = []
        for i in sorted(range(19), key=lambda u: u):
            if max(free_at(4 * self.slot(i) + w) for w in range(4)) != s: continue
            r, k = self.TILES[i]; srd = sWO if r == 0 else sWD
            for blk in range(2):
                out += mk(self.b2off(r, k, blk) + "\n"
                          f"s_add_u32 m0, {sT3}, {self.slot(i)*8192 + blk*1024}\nbuffer_load_dwordx4 {vB2}, {srd}, {sT0} offen lds")
        return out

    PFG = {"h2": (sWD, 512, 4), "h3": (sWD, 1536, 1), "h1": (sWD, 0, 2), "o": (sWO, 0, 2), "A": (sWD, 0, 1), "B": (sWD, 256, 1), "C": (sWO, 0, 1)}
    def l2pf(self, grp, k, seq):
        srd, row0, n = self.PFG[grp]; cs = self.opt.csplit
        thin = grp in "ABC"; one = thin and cs == 0
        L = []
        if seq == 0 and self.opt.pfa:
            L += mk(f"""
s_lshr_b32 s59, s2, 5
s_lshl_b32 s59, s59, 1
s_bfe_u32 s65, s2, 0x10003
s_add_u32 s59, s59, s65
s_lshl_b32 s59, s59, 2
s_add_u32 s59, s59, {sW}
s_lshl_b32 s59, s59, 12
v_lshrrev_b32 v3, 4, {vL}
v_lshlrev_b32 v3, 28, v3
s_and_b32 s65, s2, 1
s_lshl_b32 s65, s65, 9
s_add_u32 s59, s59, s65
v_and_b32 v2, 3, {vL}
v_lshl_or_b32 v3, v2, 7, v3
v_bfe_u32 v2, {vL}, 2, 2
v_lshl_or_b32 v2, v2, 10, v3
v_add_u32 v2, s59, v2
s_lshr_b32 s59, s2, 1
""")
        elif seq == 0:
            L += mk(f"""
s_lshr_b32 s59, s2, 3
s_lshl_b32 s59, s59, 2
s_add_u32 s59, s59, {sW}
s_lshl_b32 s59, s59, {10 if one else 11}
v_lshrrev_b32 v3, {4 if (cs == 0 and not one) else 3}, {vL}
v_lshlrev_b32 v3, 28, v3
""")
            if cs == 0: L += mk(f"v_lshl_or_b32 v2, {vL}, 7, v3")
            else: L += mk(f"""
s_and_b32 s65, s2, 1
s_lshl_b32 s65, s65, 9
s_add_u32 s59, s59, s65
v_and_b32 v2, 3, {vL}
v_lshl_or_b32 v3, v2, 7, v3
v_bfe_u32 v2, {vL}, 2, 1
v_lshl_or_b32 v2, v2, 10, v3
""")
            L += mk(f"v_add_u32 v2, s59, v2\ns_lshr_b32 s59, s2, {cs}")
        if thin:
            return L + mk(f"""
s_and_b32 s65, s59, {(8 >> cs) - 1}
s_mul_i32 s65, s65, {((64 if grp == "C" else 224) << cs) * 1024}
s_add_u32 s65, s65, {(row0 >> (1 - cs)) * 1024}
buffer_load_dword a{216 + seq % 12}, v2, {srd}, s65 offen
""")
        return L + mk(f"""
s_add_u32 s65, s59, {k}
s_and_b32 s65, s65, {(n - 1) & self.opt.pfrot}
s_lshl_b32 s65, s65, 18
s_add_u32 s65, s65, {row0 * 1024}
buffer_load_dword a{216 + seq % 12}, v2, {srd}, s65 offen
""")

    def utouch(self, ty, n, per):
        units = [(0, j) for j in range(4)] + [(1, j) for j in range(4)] + ([(2, j) for j in range(2)] if ty else [])
        L = []
        if n == 0:
            L += mk(f"v_lshrrev_b32 v51, 3, {vL}\nv_lshlrev_b32 v51, 28, v51\nv_mul_u32_u24 v50, 112, {vL}\nv_add_u32 v50, v50, v51")
        for k, (u, j) in enumerate(units[n * per:(n + 1) * per]):
            L += mk(f"v_add_u32 v51, v50, v{VST+j}\nbuffer_load_dword a{216 + (n * per + k) % 10}, v51, {sWS}, {sU[u]} offen{self.opt.utfl}")
        return L
    def flagaddr(self, dst, off):
        return mk(f"""
s_lshl_b32 {dst}, {sM}, 2
s_lshr_b32 {sT1}, {sN}, 2
s_add_u32 {dst}, {dst}, {sT1}
s_lshl_b32 {dst}, {dst}, 6
s_and_b32 {sT1}, {sN}, 3
s_lshl_b32 {sT1}, {sT1}, 2
s_add_u32 {dst}, {dst}, {sT1}
s_add_u32 {dst}, {dst}, {sW}
s_lshl_b32 {dst}, {dst}, 3
s_add_u32 {dst}, {dst}, {WS_FLAG + off}
""") + (mk(f"s_lshl_b32 {sT1}, {sW}, 27\ns_add_u32 {dst}, {dst}, {sT1}") if self.opt.wgflag else [])
    def flagstore(self, so, r):
        return mk(f"""
v_mov_b32 v{r}, {sNonL}
v_mov_b32 v{r+1}, {sNonH}
v_lshlrev_b32 v{r+2}, 31, {vL}
v_lshl_or_b32 v{r+2}, {vL}, 25, v{r+2}
buffer_store_dwordx2 {V2(r)}, v{r+2}, {sWS}, {so} offen sc1
""")

    def stats_load(self):
        return mk(f"""
s_lshl_b32 {sT2}, {sM}, 7
s_lshl_b32 {sT1}, {sN}, 3
s_add_u32 {sT1}, {sT1}, {sT2}
s_lshl_b32 {sT2}, {sW}, 1
s_add_u32 {sT1}, {sT1}, {sT2}
s_lshl_b32 {sT1}, {sT1}, 10
v_lshlrev_b32 v{SX+16}, 4, {vL}
buffer_load_dwordx4 v[{SX}:{SX+3}], v{SX+16}, {sX}, {sT1} offen
buffer_load_dwordx4 v[{SX+4}:{SX+7}], v{SX+16}, {sX}, {sT1} offen offset:1024
""")

    def stats_compute(self):
        def row(x, e, t):
            L = []
            for k in range(4):
                L.append(f"v_lshlrev_b32 v{e+2*k}, 16, v{x+k}")
                L.append(f"v_and_b32 v{e+2*k+1}, 0xffff0000, v{x+k}")
            L += [f"v_add_f32 v{x}, v{e}, v{e+1}", f"v_add_f32 v{x+1}, v{e+2}, v{e+3}", f"v_add_f32 v{x+2}, v{e+4}, v{e+5}", f"v_add_f32 v{x+3}, v{e+6}, v{e+7}",
                  f"v_add_f32 v{x}, v{x}, v{x+1}", f"v_add_f32 v{x+2}, v{x+2}, v{x+3}", f"v_add_f32 v{x}, v{x}, v{x+2}"]
            def red(r):
                R = [f"v_add_f32_dpp v{r}, v{r}, v{r} row_ror:{sh} row_mask:0xf bank_mask:0xf" for sh in (8, 4, 2, 1)]
                for p in ("16", "32"):
                    R += [f"v_mov_b32 v{r+1}, v{r}", f"v_permlane{p}_swap_b32 v{r}, v{r+1}", f"v_add_f32 v{r}, v{r}, v{r+1}"]
                return R
            L += red(x)
            L.append(f"v_mul_f32 v{t+1}, 0x3b000000, v{x}")
            for k in range(8): L.append(f"v_sub_f32 v{e+k}, v{e+k}, v{t+1}")
            L += [f"v_mul_f32 v{x}, v{e}, v{e}", f"v_mul_f32 v{x+1}, v{e+1}, v{e+1}"]
            for k in range(2, 8): L.append(f"v_fmac_f32 v{x+(k&1)}, v{e+k}, v{e+k}")
            L.append(f"v_add_f32 v{x}, v{x}, v{x+1}")
            L += red(x)
            L += [f"v_mov_b32 v{x+1}, 0x3727c5ac", f"v_fmac_f32 v{x+1}, 0x3b000000, v{x}", f"v_rsq_f32 v{t}, v{x+1}"]
            return L
        a = row(SX, SX + 8, SX + 24); b = row(SX + 4, SX + 16, SX + 26)
        out = []
        for p, q in zip(a, b): out += [I(p), I(q)]
        return out

    def publish(self, ty):
        L = mk(f"""
v_readfirstlane_b32 {sNonL}, v{NON}
v_readfirstlane_b32 {sNonH}, v{NON+1}
v_cmp_eq_u32 vcc, 1, {vL}
s_lshl_b32 {sT1}, {sM}, 7
s_lshl_b32 {sT2}, {sN}, 3
s_cmp_eq_u32 {sNonL}, 0
s_cbranch_scc1 L_slow_nonce{ty}
L_back_nonce{ty}:
v_cndmask_b32 v{SX}, v{SX+24}, v{SX+26}, vcc
v_cndmask_b32 v{SX+1}, v{SX+25}, v{SX+27}, vcc
v_mov_b32 v{SX+2}, {sNonL}
v_mov_b32 v{SX+3}, {sNonH}
s_add_u32 {sT1}, {sT1}, {sT2}
s_lshl_b32 {sT2}, {sW}, 1
s_add_u32 {sT1}, {sT1}, {sT2}
s_lshl_b32 {sT1}, {sT1}, 4
s_add_u32 {sT1}, {sT1}, {WS_STAT}
v_lshlrev_b32 v{SX+4}, 4, {vL}
v_cmp_lt_u32 vcc, 1, {vL}
v_mov_b32 v{SX+5}, 0x80000000
v_cndmask_b32 v{SX+4}, v{SX+4}, v{SX+5}, vcc
buffer_store_dwordx4 v[{SX}:{SX+3}], v{SX+4}, {sWS}, {sT1} offen sc1
""")
        return L[:5] + [L[5:8]] + L[8:]

    def gather_load(self):
        return mk(f"""
s_mov_b32 {sT1}, {WS_STAT}
buffer_load_dwordx4 {V4(GAT)}, v{GA}, {sWS}, {sT1} offen sc1
buffer_load_dwordx4 {V4(GAT+4)}, v{GA+1}, {sWS}, {sT1} offen sc1
buffer_load_dwordx4 {V4(GAT+8)}, v42, {sWS}, {sT1} offen sc1
""")
    def gather_cmp(self):
        return mk(f"""
v_cmp_ne_u64 vcc, {sNon}, {V2(GAT+2)}
v_cmp_ne_u64 {sEx}, {sNon}, {V2(GAT+6)}
v_cmp_ne_u64 s[92:93], {sNon}, {V2(GAT+10)}
s_or_b64 vcc, vcc, {sEx}
s_or_b64 vcc, vcc, s[92:93]
""")

    ST = 60
    def stats_stage(self, ty, tv):
        ST = self.ST
        L = [self.gather_cmp() + mk(f"s_cbranch_vccnz L_slow_gat{tv}\nL_back_gat{tv}:")]
        L += mk(f"""
s_mul_i32 {sT1}, {sW}, 1152
s_add_u32 {sT1}, {sT1}, {STATL}
v_lshl_add_u32 v44, {vL}, 2, {sT1}
v_and_b32 v45, 15, {vL}
v_lshl_add_u32 v45, v45, 2, {sT1}
v_add_u32 v46, 512, v45
""")
        W = mk(f"""
ds_write2_b32 v44, v{GAT}, v{GAT+1} offset0:0 offset1:144
ds_write2_b32 v44, v{GAT+4}, v{GAT+5} offset0:64 offset1:208
ds_write2_b32 v46, v{GAT+8}, v{GAT+9} offset0:0 offset1:144
""")
        if ty == 0:
            L += mk(f"v_add_u32 v47, 256, v45\nv_lshrrev_b32 v43, 4, {vL}\nv_lshl_add_u32 v43, v43, 4, {sT1}")
            for i in range(9):
                if i < 4: W += mk(f"ds_read2_b32 {V2(ST+2*i)}, v45 offset0:{16*i} offset1:{144+16*i}")
                else: W += mk(f"ds_read2_b32 {V2(ST+2*i)}, v47 offset0:{16*i-64} offset1:{80+16*i}")
        else:
            L += mk(f"""
s_lshr_b32 {sT2}, {sW}, 1
s_lshl_b32 {sT2}, {sT2}, 8
v_add_u32 v47, {sT2}, v45
v_subrev_u32 v48, {sT2}, v45
v_add_u32 v48, 256, v48
""")
            for i in range(8):
                W += mk(f"ds_read2_b32 {V2(ST+2*i)}, v{47 if i < 4 else 48} offset0:{16+16*(i%4)} offset1:{160+16*(i%4)}")
        return L + W

    def type_code(self, ty, ver=0):
        o = self.opt
        c = mk(f"L_t{ty}{ver}:")
        tv = f"{ty}{ver}"
        vm = list(self.vm0)
        def waitfor(tags):
            for t in tags: assert vm.count(t) >= {"w": 5, "x": 4}.get(t[0], 1) and all(q[1] != t for q in dq), (t, ty)
            idx = max([k for k, t in enumerate(vm) if t in tags], default=-1)
            return len(vm) - 1 - idx
        noted = []
        def note(L, tag):
            for i in flatten(L):
                if i.kind == "vmem": vm.append(tag); noted.append(i)
            return L
        need = lambda s: [("w", s), ("x", s // 2)]
        dq = []
        c += mk(f"s_waitcnt vmcnt({waitfor(need(0))}) lgkmcnt(0)\ns_barrier")
        defA, defB = self.deferred(ty)
        c += self.stamp(1)
        c += self.reads(ty, 0)
        stats = self.stats_compute()
        dq = self.dma_queue(ty)
        pfq = [(g, k) for g in o.pford.split(",") for k in range(self.PFG[g][2])]; pfn = 0

        third = -(-len(stats) // 6) * 2
        SL = o.statstep; SC = o.sc
        cuts = [0] + o.cuts + [len(stats)]
        SN, SP, SG, SS = 1, SC + len(cuts) - 1, o.sg, o.ss
        for s in range(16):
            tags = need(s + 1) if s < 15 else []
            if s == SC: tags = tags + [("sl", 0)]
            if s == SP: tags = tags + [("non", 0)]
            if s == SS: tags = tags + [("gat", 0)]
            if s == 13: tags = tags + [("b2", 11)]
            if s == 14: tags = tags + [("b2", 12)]
            if s == 15: tags = tags + [("b2", 13)]
            c += mk((f"s_waitcnt vmcnt({waitfor(tags)}) lgkmcnt(0)" if tags else "s_waitcnt lgkmcnt(0)") + "\ns_barrier")
            if o.stamps and s in o.stst: c += self.stamp(2 + o.stst.index(s))
            rd = self.reads(ty, s + 1) if s < 15 else []
            other = []; atoms = []; prefix = []; slowv = []; mark = len(vm)
            if s == SN:
                slowv += note(mk(f"v_mov_b32 v{NON}, 0\nbuffer_load_dwordx2 {V2(NON)}, v{NON}, {sDBG}, 0 offen sc1"), ("non", 0))
            if s == SG: slowv += note(self.gather_load(), ("gat", 0))
            if s == SL: slowv += note(self.stats_load(), ("sl", 0))
            if s < o.wtouch and o.tfirst: slowv += note(self.wtouch(s % 3), ("wt", 0))
            for _ in range(int(o.xsched[s])):
                other += note(mk(f"s_add_u32 s81, s81, 128\ns_and_b32 s81, s81, 1023\nbuffer_load_dword a{226 + (s & 1)}, v50, {sX}, s81 offen"), ("xt", 0))
            k = 0
            while dq and dq[0][0] <= s and k < (o.quota0 if s == 0 else o.qs[s] - (ty if o.qb else 0) if o.qs else o.quota):
                _, tag, atom = dq.pop(0); atoms.append(note(atom, tag)); k += 1
            if s < o.wtouch and not o.tfirst: slowv += note(self.wtouch(s % 3), ("wt", 0))
            nb1 = 11 if ty == 0 else len(defB)
            blocks = {0: defA[:16], 1: defA[16:33], 7: defA[33:], 8: defB[:nb1], 9: defB[nb1:]}
            late = blocks.get(s, [])
            if s > 10:
                assert not dq or s <= 13
                d = self.b2_dma(s)
                if s == 15 and ty == 1 and o.bdefer:
                    self.defer_b = [d[k:k + 3] for k in range(len(d) - 3 * o.bdefer, len(d), 3)]; d = d[:len(d) - 3 * o.bdefer]
                note(d, ("b2", s)); atoms += [d[k:k + 3] for k in range(0, len(d), 3)]
            if not o.nopf and not (o.pfa and ty == 1):
                for _ in range(int(o.pfsched[s])):
                    if not pfq: break
                    g, k = pfq.pop(0); slowv += note(self.l2pf(g, k, pfn), ("pf", 0)); pfn += 1
            if o.ut0 and o.ut0 <= s < min(11, o.ut0 + (10 + o.utper - 1) // o.utper): other += note(self.utouch(ty, s - o.ut0, o.utper), ("ut", 0))
            if SC <= s < SP: other += stats[cuts[s - SC]: cuts[s - SC + 1]]
            if s == SP: slowv += note(self.publish(tv), ("pub", 0))
            if s == SS:
                ss = self.stats_stage(ty, tv)
                if "r" in o.ko: ss = [x for x in ss if isinstance(x, list) or not x.op.startswith("ds_read")]
                if "e" in o.ko: ss = [x for x in ss if isinstance(x, list) or not x.op.startswith("ds_write")]
                if "g" in o.ko: ss = [[ss[0][-1]]] + ss[1:]
                ssd = [x for x in ss if not isinstance(x, list) and x.kind == "ds"]
                ssv = [x for x in ss if isinstance(x, list) or x.kind != "ds"]
                prefix = ssv; rd = rd + ssd
            if s == 10 and ty == 0: other += self.selectors()
            other += late
            if s == 11: other += self.traddr([2, 3, 4, 5, 6, 49])
            if s >= 13: rd = rd + flatten(self.passthru([2, 3, 4, 5, 6, 49], {13: range(0, 6), 14: range(6, 12), 15: range(12, 20)}[s]))
            if s in (14, 15): atoms += note(self.round2(self.R2_14 if s == 14 else self.R2_15), ("b2", 20))
            if ty == 1 and s == 12 and o.bearly:
                for k, it in enumerate(self.round2(range(29, 36))[:o.bearly]):
                    it[-1] = I(it[-1].text.replace(A4(56 + 4 * k), V4(self.BE[k])))
                    atoms.append(note(it, ("b2", 21)))
            other = other + slowv if o.slowlast else slowv + other
            if o.even and s > o.afirst:
                A = [x for at in atoms for x in at]
                nA = len(atoms); merged = []; P = list(other); tot = len(A) + len(P)
                k = 0; pos = 0
                for j, at in enumerate(atoms):
                    tgt = int((j + o.evoff) * tot / nA) - len(at)
                    while P and pos < tgt: merged.append(P.pop(0)); pos += 1
                    merged += at; pos += len(at)
                other = prefix + merged + P
            else: other = prefix + [x for at in atoms for x in at] + other
            tagof = {}
            for x, t in zip(noted, vm[mark:]): tagof[id(x)] = t
            vm[mark:] = [tagof[id(x)] for x in flatten(other) if x.kind == "vmem"]
            del noted[:]
            mm = self.mfmas(ty, s)
            if o.nomfma: mm = [I("s_nop 0") for _ in mm]
            if o.noreads: rd = []
            no = len([i for i in flatten(other) if not i.is_label])
            room = 2 * (len(mm) - len(rd))
            ost = len(rd) if no <= room else max(0, len(rd) - (no - room))
            wv = weave(mm, rd, other, per_gap=2, shift=(o.shift if ver else 0), lds_span=(o.span if len(rd) <= o.span else 0), front=len([x for x in flatten(prefix) if not x.is_label]))
            if prefix:
                lastp = max(k for k, x in enumerate(wv) if any(x is y for y in flatten(prefix)))
                firstd = min(k for k, x in enumerate(wv) if any(x is y for y in ssd))
                assert lastp < firstd, (lastp, firstd)
            if o.align == 3:
                for i in wv: i.padok = False
            if 8 <= s <= 10:
                if "V" in o.ko: wv = [x for x in wv if x.kind != "vmem"]
                if "D" in o.ko: wv = [x for x in wv if x.kind != "ds"]
                if "O" in o.ko: wv = [x for x in wv if x.kind not in ("valu", "salu")]
                if "B" in o.ko: c = [x for k, x in enumerate(c) if not (x.op == "s_barrier" and k > len(c) - 12)]
            c += wv
        c += self.stamp(5)
        if o.probe >= 0:
            g, k = self.TILES[o.probe]
            c += mk(f"""
s_waitcnt vmcnt(0)
v_readfirstlane_b32 s64, {vB2}
v_and_b32 v4, 15, {vL}
v_lshrrev_b32 v5, 4, {vL}
v_lshlrev_b32 v5, 5, v5
v_add_u32 v4, v4, v5
v_lshlrev_b32 v4, 10, v4
v_add_u32 v4, s64, v4
s_add_u32 s65, {sWB[g]}, {16*k*1024}
""") + self.stamp(2, True) + mk(f"buffer_load_dword v5, v4, {sWO if g == 0 else sWD}, s65 offen\ns_waitcnt vmcnt(0)") + self.stamp(3, True)
        c += mk("s_waitcnt lgkmcnt(0)")
        if o.shift and ver == 0: c += mk(f"s_branch L_epi{ty}")
        self.loop_end = len(c)
        c += mk(f"L_epi{ty}:")
        c += self.epi_a() if ty == 0 else self.epi_b()
        if ty == 0: c += mk("s_branch L_join")
        self.loop_last = c[self.loop_end - 1]
        c = cap_vm(flatten(c), len(self.vm0), *((1000, 48) if "c" in o.ko else (60, 48)))
        slow = mk(f"""
L_slow_nonce{tv}:
{"s_or_b32 s99, s99, 1" if o.stamps else ""}
s_mov_b32 {sCnt}, 0
L_sn{tv}:
v_mov_b32 v{NON}, 0
buffer_load_dwordx2 {V2(NON)}, v{NON}, {sDBG}, 0 offen sc1
s_waitcnt vmcnt(0)
v_readfirstlane_b32 {sNonL}, v{NON}
v_readfirstlane_b32 {sNonH}, v{NON+1}
s_add_u32 {sCnt}, {sCnt}, 1
s_cmp_gt_u32 {sCnt}, 20000
s_cbranch_scc1 L_back_nonce{tv}
s_cmp_eq_u32 {sNonL}, 0
s_cbranch_scc1 L_sn{tv}
s_branch L_back_nonce{tv}
L_slow_gat{tv}:
{"s_or_b32 s99, s99, 2" if o.stamps else ""}
s_mov_b32 {sCnt}, 0
L_sg{tv}:
""") + self.gather_load() + mk("s_waitcnt vmcnt(0)") + self.gather_cmp() + mk(f"""
s_add_u32 {sCnt}, {sCnt}, 1
s_cmp_gt_u32 {sCnt}, 20000
s_cbranch_scc1 L_back_gat{tv}
s_cbranch_vccnz L_sg{tv}
s_branch L_back_gat{tv}
""")
        return c, slow

    def stg(self, u, blk): return 56 + 8 * (u - 29) + 4 * blk
    SL1 = [3, 4, 17, 18, 5, 6, 7, 8, 9, 13, 10, 11, 12, 0, 1, 2, 14, 15, 16]
    def slot(self, u): return self.SL1[u] if u < 19 else self.SL1[[0, 1, 4, 5, 6, 2, 3, 7, 8, 9][u - 19]] if u < 29 else self.SL1[10 + u - 29]
    def frag(self, i): return 112 + 8 * i if i < 14 else 8 * (i - 14)
    def round2(self, us):
        L = []
        for u in us:
            g, k = self.TILES[u]; srd = sWO if g == 0 else sWD
            for blk in range(2):
                t = self.b2off(g, k, blk).replace(sT0, "s61")
                if u < 29: L.append(mk(t + f"\ns_add_u32 m0, {sT3}, {self.slot(u)*8192 + blk*1024}\nbuffer_load_dwordx4 {vB2}, {srd}, s61 offen lds"))
                else: L.append(mk(t + f"\nbuffer_load_dwordx4 {A4(self.stg(u, blk))}, {vB2}, {srd}, s61 offen"))
        return L
    BE = [30, 34, 38, 88, 92]
    R2_14 = [19, 20, 24]; R2_15 = [25, 21, 22]; R2_E = [23, 26, 27, 28]
    TR = {0: [42, 58, 59, 16], 1: [88, 89, 90, 91]}
    def traddr(self, R):
        L = mk(f"""
s_and_b32 {sT1}, {sW}, 1
s_lshl_b32 {sT1}, {sT1}, 6
v_lshrrev_b32 v4, 5, {vL}
v_lshlrev_b32 v4, 10, v4
v_bfe_u32 v6, {vL}, 2, 2
v_lshl_add_u32 v4, v6, 7, v4
v_lshrrev_b32 v6, 1, v6
v_lshl_add_u32 v4, v6, 6, v4
v_bfe_u32 v6, {vL}, 4, 1
v_lshl_add_u32 v4, v6, 5, v4
v_and_b32 v6, 1, {vL}
v_lshl_add_u32 v4, v6, 4, v4
v_bfe_u32 v6, {vL}, 1, 1
v_lshl_add_u32 v4, v6, 3, v4
v_xor_b32 v4, {sT1}, v4
s_lshl_b32 {sT1}, {sT1}, 5
v_add_u32 v{R[0]}, {sT1}, v4
v_xor_b32 v{R[1]}, 64, v{R[0]}
""")
        for k in range(2, len(R)): L += mk(f"v_add_u32 v{R[k]}, {0x10000 * (k // 2)}, v{R[k & 1]}")
        return L
    def passthru(self, R, tiles):
        L = []
        for i in tiles:
            sg = 2 * self.slot(i // 2) + (i & 1)
            L += [[I(f"ds_read_b64_tr_b16 {A2(self.frag(i) + 4*cb + 2*e)}, v{R[2*(sg//16)+cb]} offset:{(sg%16)*4096+e*512}")] for cb in range(2) for e in range(2)]
        return L
    def sprinkle(self, code, items, start, stop):
        out = []; n = len(items); k = 0
        for idx, ins in enumerate(code):
            out.append(ins)
            while k < n and idx >= start and (idx - start + 1) * n >= (k + 1) * (stop - start):
                out += items[k]; k += 1
        for it in items[k:]: out += it
        return out
    NEG = "op_sel:[0,1,0] op_sel_hi:[1,1,1] neg_lo:[0,1,0] neg_hi:[0,1,0]"
    def gu(self, cs, g, u, stp, dst):
        NEG = self.NEG
        L = [f"v_pk_fma_f32 {V2(g+2*h)}, {V2(cs+2*h)}, {V2(stp)}, {V2(g+2*h)} {NEG}" for h in range(2)]
        L += [f"v_pk_fma_f32 {V2(u+2*h)}, {V2(cs+4+2*h)}, {V2(stp)}, {V2(u+2*h)} {NEG}" for h in range(2)]
        L += [f"v_pk_mul_f32 {V2(g+2*h)}, {V2(g+2*h)}, {V2(u+2*h)}" for h in range(2)]
        L += [f"v_cvt_pk_bf16_f32 v{dst+h}, v{g+2*h}, v{g+2*h+1}" for h in range(2)]
        return L
    def gu_unit(self, cs, g0, u0, g1, u1, st0, st1, vo, so):
        c = []
        for x, y in zip(self.gu(cs, g0, u0, st0, u0), self.gu(cs, g1, u1, st1, u0 + 2)): c += mk(x + "\n" + y)
        return c + self.unit_store(u0, vo, so)
    def unit_store(self, r, vo, so):
        if "n" in self.opt.ko: return []
        return mk(f"v_permlane16_swap_b32 v{r}, v{r+2}\nv_permlane16_swap_b32 v{r+1}, v{r+3}\nbuffer_store_dwordx4 {V4(r)}, v{vo}, {sWS}, {so} offen" + ("" if "p" in self.opt.ko else " sc1"))
    def csread(self, dst, k, n=4):
        return [I(f"v_accvgpr_read_b32 v{dst+r}, a{CSACC+4*k+r}") for r in range(n)]

    def epi_b(self):
        ST = self.ST; o = self.opt
        c = []
        for k in range(6): c += self.csread(8 + 4 * k if k < 2 else 36 + 4 * k, k)
        U = []
        for P in range(2):
            cs = 8 if P == 0 else 44
            for j in range(4):
                U.append(self.gu_unit(cs, bAcc(2*P, 2*j), bAcc(2*P+1, 2*j), bAcc(2*P, 2*j+1), bAcc(2*P+1, 2*j+1), ST+4*j, ST+4*j+2, VST+j, sU[P]))
        for j in range(2):
            U.append(self.gu_unit(52, bMix(0, 2*j), bMix(1, 2*j), bMix(0, 2*j+1), bMix(1, 2*j+1), ST+4*j, ST+4*j+2, VST+j, sU[2]))
        st = self.round2(range(29, 36))[o.bearly:] + getattr(self, "defer_b", []) + self.round2(self.R2_E); nb = o.nstage_b
        assert o.bearly % 2 == 0 or not o.rot
        ni = 0
        for j, u in enumerate(U):
            c += u
            if j >= o.bint0:
                for _ in range(o.bint):
                    if ni < 14 - o.bearly: c += st.pop(0); ni += 1
                    if j == len(U) - 1: nlast = o.bint
        tail_l = o.bint if (o.bint and len(U) - 1 >= o.bint0) else 0
        tail_l = len([1 for x in c[max(k for k, x in enumerate(c) if x.kind == "vmem" and x.data):] if x.kind == "vmem"]) - 1
        c += self.stamp(6)
        mv = [I(f"v_accvgpr_write_b32 a{56+4*k+r}, v{self.BE[k]+r}") for k in range(o.bearly) for r in range(4)]
        su = mk("s_waitcnt vmcnt(40)" if mv else "") + mv + self.flagaddr(sT2, 0) + self.polladdr() + self.p2setup()
        c += self.sprinkle(su, st[:nb], 0, len(su))
        if o.wgflag: c += mk(f"s_waitcnt vmcnt({nb + 2 + tail_l}) lgkmcnt(0)\ns_barrier") + self.flagstore(sT2, 8) + self.stamp(7) + mk(f"s_mov_b32 {sT2}, 0x8000000")
        else:
            c += mk(f"s_waitcnt vmcnt({nb + 2 + tail_l}) lgkmcnt(0)") + self.flagstore(sT2, 8) + self.stamp(7)
            c += mk(f"s_mov_b32 {sT2}, 0x8000000\ns_barrier")
        k = len(st) - o.pollahead
        for it in st[nb:k]: c += it
        c += self.poll_issue(0)
        for it in st[k:]: c += it
        c += mk(f"s_waitcnt vmcnt({o.pollahead})")
        return c

    SEL = 54
    def selectors(self):
        S = self.SEL
        L = mk(f"""
v_and_b32 v4, 15, {vL}
v_lshrrev_b32 v5, 4, {vL}
v_lshlrev_b32 v5, 2, v5
v_sub_u32 v4, v4, v5
v_and_b32 v5, 1, {vL}
v_sub_u32 v4, v4, v5
v_lshlrev_b32 v5, 4, v5
v_mov_b32 v6, 0x0c0c0c0c
""")
        for jj, pat in ((0, 0x0c0c0100), (1, 0x0c0c0302)):
            L += mk(f"v_mov_b32 v{S+jj}, {pat:#x}\nv_alignbit_b32 v{S+2+jj}, v{S+jj}, v{S+jj}, v5")
            L += mk(f"v_cmp_le_i32 vcc, {2*jj}, v4\nv_nop\nv_cndmask_b32 v{S+jj}, v{S+2+jj}, v6, vcc\nv_cndmask_b32 v{S+2+jj}, v6, v{S+2+jj}, vcc")
        return L

    def epi_a(self):
        o = self.opt
        ST = self.ST; NEG = self.NEG; SEL = self.SEL
        def inter(LL):
            out = []
            for step in range(max(len(l) for l in LL)):
                for l in LL:
                    if step < len(l): out += mk(l[step])
            return out
        c = []
        c += self.csread(8, 3) + self.csread(12, 4) + self.csread(44, 0)
        if not o.halo: c += self.csread(48, 1) + self.csread(52, 2, 1)
        vs = lambda i: 192 + 8 * (i % 4) if i < 8 else 78
        def vsread(i): return mk(f"ds_read_b128 {V4(vs(i))}, v43 offset:{64*i}\nds_read_b128 {V4(vs(i)+4)}, v43 offset:{576+64*i}")
        c += vsread(8)
        hst = []
        for j in range(4):
            gu = self.gu_unit(8, aG(2*j), aU(2*j), aG(2*j+1), aU(2*j+1), ST+2+4*j, ST+4+4*j, VST+j, sU[0])
            hst.append([gu.pop()])
            c += gu + vsread(j)
        c += self.stamp(6)
        c += mk("s_waitcnt lgkmcnt(0)\ns_barrier")
        if o.epistamps: c += self.stamp(2, True)
        head = c; c = []
        st = self.round2(self.R2_E) + self.round2(range(29, 36))
        if o.halo:
            c += [I(f"v_mov_b32_dpp v{48+r}, v{aK(0)+r} row_newbcast:0 row_mask:0xf bank_mask:0xf") for r in range(4)]
            c += mk(f"v_mov_b32 v52, v{aV(0)}\nv_mov_b32 v53, v{aV(0)}\ns_nop 0\nv_permlane16_swap_b32 v52, v53\nv_mov_b32 v53, v52\ns_nop 1\nv_permlane32_swap_b32 v52, v53")
        kp = lambda i: 8 + 2 * i if i < 4 else 18 + 2 * (i - 4) if i < 8 else 86
        def kfix(i):
            k = aK(i); stp = ST + 2 * i
            return [f"v_pk_fma_f32 {V2(k)}, {V2(48)}, {V2(stp)}, {V2(k)} {NEG}",
                    f"v_pk_fma_f32 {V2(k+2)}, {V2(50)}, {V2(stp)}, {V2(k+2)} {NEG}",
                    f"v_pk_mul_f32 {V2(k)}, {V2(k)}, {V2(stp)} op_sel_hi:[1,0]",
                    f"v_pk_mul_f32 {V2(k+2)}, {V2(k+2)}, {V2(stp)} op_sel_hi:[1,0]",
                    f"v_cvt_pk_bf16_f32 v{kp(i)}, v{k}, v{k+1}",
                    f"v_cvt_pk_bf16_f32 v{kp(i)+1}, v{k+2}, v{k+3}"]
        qp = lambda i: 120 + 2 * i
        def qfix(i):
            q = aQ(i); stp = ST + 2 * (i + 1)
            return [f"v_pk_fma_f32 {V2(q)}, {V2(44)}, {V2(stp)}, {V2(q)} {NEG}",
                    f"v_pk_fma_f32 {V2(q+2)}, {V2(46)}, {V2(stp)}, {V2(q+2)} {NEG}",
                    f"v_cvt_pk_bf16_f32 v{qp(i)}, v{q}, v{q+1}",
                    f"v_cvt_pk_bf16_f32 v{qp(i)+1}, v{q+2}, v{q+3}"]
        NEGV = "op_sel_hi:[1,0,1] neg_lo:[0,1,0] neg_hi:[0,1,0]"
        vp = lambda i: 136 + 2 * i
        def vfix(i):
            v = aV(i); s_ = vs(i)
            return [f"v_pk_fma_f32 {V2(v)}, {V2(s_+4)}, {V2(52)}, {V2(v)} {NEGV}",
                    f"v_pk_fma_f32 {V2(v+2)}, {V2(s_+6)}, {V2(52)}, {V2(v+2)} {NEGV}",
                    f"v_pk_mul_f32 {V2(v)}, {V2(v)}, {V2(s_)}",
                    f"v_pk_mul_f32 {V2(v+2)}, {V2(v+2)}, {V2(s_+2)}",
                    f"v_cvt_pk_bf16_f32 v{vp(i)}, v{v}, v{v+1}",
                    f"v_cvt_pk_bf16_f32 v{vp(i)+1}, v{v+2}, v{v+3}"]
        c += inter([kfix(i) for i in range(9)])
        c += mk("s_waitcnt lgkmcnt(0)")
        c += inter([vfix(i) for i in (0, 1, 2, 3, 8)])
        for i in range(4, 8): c += vsread(i)
        c += inter([qfix(i) for i in range(8)])
        c += mk("s_waitcnt lgkmcnt(0)")
        c += inter([vfix(i) for i in range(4, 8)])
        if o.aint:
            z = []
            for h in hst: z += [h] + st[:o.aint]; st = st[o.aint:]
            st = z + st
        else: st = st[:o.hpos] + hst + st[o.hpos:]
        n1 = o.nfirst_a
        head += self.sprinkle(c, st[:n1], 0, len(c))
        if o.epistamps: head += self.stamp(3, True) + self.stamp(4, True)
        c = []
        MK = "v_mfma_f32_16x16x16_bf16"
        sp = lambda i: 88 + 8 * i if i < 4 else 156 + 8 * (i - 4)
        sch = f2h(0.25 * 1.4426950408889634)
        def smf(i):
            bp = BIAS + 8 if i == 0 else BIAS
            return [f"{MK} {V4(sp(i))}, {V2(kp(i))}, {V2(qp(i))}, {V4(bp)}", f"{MK} {V4(sp(i)+4)}, {V2(kp(i+1))}, {V2(qp(i))}, {V4(BIAS+4)}"]
        def merge(i):
            s_ = sp(i)
            return [f"v_max3_f32 v{s_}, v{s_}, v{s_+1}, v{s_+4}", f"v_max3_f32 v{s_+2}, v{s_+2}, v{s_+3}, v{s_+6}",
                    f"v_max_f32 v{s_}, v{s_}, v{s_+5}", f"v_max_f32 v{s_+1}, v{s_+2}, v{s_+7}",
                    f"v_mul_f32 v{s_+4}, {sch}, v{ST+2*(i+1)}", f"v_max_f32 v{s_+2}, v{s_}, v{s_+1}"]
        for i in range(8):
            a = smf(i); b = merge(i - 3) if i >= 3 else []
            c += mk(a[0]) + mk("\n".join(b[:3])) + mk(a[1]) + mk("\n".join(b[3:]))
        c += inter([merge(i) for i in (5, 6, 7)])
        def cross(A, B, C, D):
            a, b, cc, d = (sp(x) + 2 for x in (A, B, C, D))
            return [f"v_permlane32_swap_b32 v{a}, v{b}", f"v_permlane32_swap_b32 v{cc}, v{d}",
                    f"v_max_f32 v{a}, v{a}, v{b}", f"v_max_f32 v{cc}, v{cc}, v{d}", "s_nop 0",
                    f"v_permlane16_swap_b32 v{a}, v{cc}", f"v_max_f32 v{a}, v{a}, v{cc}", f"v_mov_b32 v{cc}, v{a}", "s_nop 0",
                    f"v_permlane16_swap_b32 v{a}, v{cc}", f"v_mov_b32 v{b}, v{a}", f"v_mov_b32 v{d}, v{cc}",
                    f"v_permlane32_swap_b32 v{a}, v{b}", f"v_permlane32_swap_b32 v{cc}, v{d}"]
        c += [x for x in inter([cross(0, 1, 2, 3), cross(4, 5, 6, 7)]) if x.op != "s_nop"]
        O = lambda i: 192 + 4 * i
        oq = lambda i: 120 + 4 * (i // 2) + 2 * (i % 2)
        def expo(i):
            s_ = sp(i)
            return [f"v_mul_f32_e64 v{s_+5}, -v{s_+2}, v{s_+4}",
                    f"v_fma_f32 v{s_}, v{s_}, v{s_+4}, v{s_+5}", f"v_fma_f32 v{s_+1}, v{s_+1}, v{s_+4}, v{s_+5}",
                    f"v_exp_f32 v{s_}, v{s_}", f"v_exp_f32 v{s_+1}, v{s_+1}",
                    f"v_cvt_pk_bf16_f32 v{s_+2}, v{s_}, v{s_+1}"] + [f"v_perm_b32 v{s_+4+k}, 0, v{s_+2}, v{SEL+k}" for k in range(4)]
        def pv(i): return [f"{M16} {V4(sp(i))}, {A4(ONES)}, {V4(sp(i)+4)}, 0", f"{M16} {V4(O(i))}, {V4(vp(i))}, {V4(sp(i)+4)}, 0"]
        def fin(i):
            d = oq(i)
            return [f"v_rcp_f32 v{sp(i)}, v{sp(i)}"] + [f"v_mul_f32 v{O(i)+r}, v{O(i)+r}, v{sp(i)}" for r in range(4)] + \
                   [f"v_cvt_pk_bf16_f32 v{d}, v{O(i)}, v{O(i)+1}", f"v_cvt_pk_bf16_f32 v{d+1}, v{O(i)+2}, v{O(i)+3}"]
        E = [inter([expo(2 * p), expo(2 * p + 1)]) for p in range(4)]
        F = [inter([fin(2 * p), fin(2 * p + 1)]) for p in range(4)]
        P = [mk("\n".join(pv(2 * p) + pv(2 * p + 1))) for p in range(4)]
        def mix(valu, mf, first=2, every=3):
            out = []; mf = list(mf)
            for k, x in enumerate(valu):
                if mf and k >= first and (k - first) % every == 0: out.append(mf.pop(0))
                out.append(x)
            return out + mf
        def swp(r): return mk(f"v_permlane16_swap_b32 v{r}, v{r+2}\nv_permlane16_swap_b32 v{r+1}, v{r+3}")
        if o.anew:
            pre = c
            ost = lambda j: [I(f"buffer_store_dwordx4 {V4(120+4*j)}, v{8+j}, {sWS}, {sU[1]} offen sc1")] if j < o.oearly else []
            c = E[0] + mix(E[1], P[0]) + mix(E[2], P[1]) + F[0] + swp(120) + ost(0)
            c += mix(E[3], P[2]) + mix(F[1], P[3]) + swp(124) + ost(1) + F[2] + swp(128) + ost(2) + F[3] + swp(132)
            vst = [I(f"v_mov_b32 v{8+j}, v{VST+j}") for j in range(4)]
            su = vst + self.polladdr() + self.p2setup() + self.flagaddr(sT2, 0 if o.hflag2 == 1 else 128)
            k = len(st) - o.pollahead
            n2 = min(k, n1 + o.nstage_a)
            pre = self.sprinkle(pre, st[n1:n2], 0, len(pre))
            items = [[x] for x in su]
            c = self.sprinkle(c, items, 0, int(len(c) * 0.6))
            late = st[n2:k] + [self.poll_issue(0)] + st[k:]
            c = self.sprinkle(c, late, int(len(c) * o.latefrom), int(len(c) * o.lateto) - o.pollpos)
            nx = len([1 for x in c[[i for i, x in enumerate(c) if x.text == late[k - n2][0].text][0] + 1:] if x.kind == "vmem"])
            if o.hflag2 == 2:
                hp = head + pre
                ny = len([1 for x in hp[max(k for k, x in enumerate(hp) if x.kind == "vmem" and x.data) + 1:] if x.kind == "vmem"])
                pre = pre + self.flagaddr("s64", 256) + mk(f"s_waitcnt vmcnt({ny})" + ("\ns_barrier" if o.wgflag else "")) + self.flagstore("s64", 12)
            c = head + pre + c
            c += self.stamp(7)
            c += [I(f"buffer_store_dwordx4 {V4(120+4*j)}, v{8+j}, {sWS}, {sU[1]} offen sc1") for j in range(o.oearly, 4)]
            c += mk(f"s_waitcnt vmcnt({nx + 4 - o.oearly})")
            if o.hflag2 == 1: c += self.flagstore(sT2, 12) + mk(f"s_add_u32 {sT2}, {sT2}, 128")
            return c
        c += E[0] + mix(E[1], P[0]) + mix(E[2], P[1]) + F[0] + swp(120)
        c += mix(E[3], P[2]) + mix(F[1], P[3]) + swp(124) + F[2] + swp(128) + F[3] + swp(132)
        na = min(n1 + o.nstage_a, len(st) - o.pollahead)
        c = head + self.sprinkle(c, st[n1:na], 0, len(c))
        c += self.stamp(7)
        c += [I(f"buffer_store_dwordx4 {V4(120+4*j)}, v{VST+j}, {sWS}, {sU[1]} offen sc1") for j in range(4)] if o.ofirst else []
        su = self.polladdr() + self.p2setup() + self.flagaddr(sT2, 0 if o.hflag2 else 128)
        k = len(st) - o.pollahead
        vst = [I(f"v_mov_b32 v{8+j}, v{VST+j}") for j in range(4)]
        c += vst + self.sprinkle(su, st[na:k], 0, len(su))
        c += self.poll_issue(0)
        for it in st[k:]: c += it
        if not o.ofirst: c += [I(f"buffer_store_dwordx4 {V4(120+4*j)}, v{8+j}, {sWS}, {sU[1]} offen sc1") for j in range(4)]
        c += mk(f"s_waitcnt vmcnt({o.pollahead + (0 if o.ofirst else 4)})")
        if o.hflag2: c += self.flagstore(sT2, 12) + mk(f"s_add_u32 {sT2}, {sT2}, 128")
        return c

    POLL = 58
    def polladdr(self):
        return mk(f"""
s_lshr_b32 s81, {sR}, 1
s_lshl_b32 s81, s81, 1
s_and_b32 {sT1}, {sW}, 1
s_add_u32 s81, s81, {sT1}
s_lshl_b32 s81, s81, 10
s_add_u32 s81, s81, {WS_FLAG}
v_and_b32 v16, 15, {vL}
v_lshlrev_b32 v16, 3, v16
v_bfe_u32 v{self.POLL}, {vL}, 4, 1
v_lshl_add_u32 v16, v{self.POLL}, 9, v16
""")
    def poll_issue(self, off, reg=None):
        return mk(f"buffer_load_dwordx2 {V2(reg or self.POLL)}, v16, {sWS}, s81 offen offset:{off} sc1")
    PT = 18; PW = 24; PX = 27; PY = 29; VXO = 34; XR = 36
    def p2setup(self):
        PT, PW, PX, PY, VXO, XR = self.PT, self.PW, self.PX, self.PY, self.VXO, self.XR
        c = mk(f"""
s_lshl_b32 {sT0}, {sR}, 1
s_lshr_b32 {sT1}, {sW}, 1
s_add_u32 {sT0}, {sT0}, {sT1}
s_lshl_b32 s59, {sT0}, 5
s_mul_i32 {sT0}, {sT0}, {RBS}
s_and_b32 {sT1}, {sW}, 1
s_lshl_b32 {sB[0]}, {sT1}, 14
s_add_u32 {sB[0]}, {sB[0]}, {sT0}
s_add_u32 {sB[1]}, {sB[0]}, {32*1024}
s_lshl_b32 {sB[2]}, {sT1}, 15
s_add_u32 {sB[2]}, {sB[2]}, {sT0}
s_add_u32 {sB[2]}, {sB[2]}, {64*1024}
s_lshl_b32 {sB[3]}, {sT1}, 13
s_add_u32 {sB[3]}, {sB[3]}, {sT0}
s_add_u32 {sB[3]}, {sB[3]}, {128*1024}
v_lshlrev_b32 v2, 4, {vL}
v_lshrrev_b32 v4, 2, {vL}
v_add_u32 v6, s59, v4
v_and_b32 v5, 3, {vL}
v_lshlrev_b32 v3, 4, v5
v_lshl_add_u32 v6, v6, 10, v3
s_lshl_b32 {sT0}, {sC}, 7
s_lshl_b32 {sT1}, {sT1}, 6
s_add_u32 {sT0}, {sT0}, {sT1}
v_add_u32 v{VXO}, {sT0}, v6
v_add_u32 v{VXO+1}, 0x4000, v{VXO}
buffer_load_dwordx4 {V4(XR)}, v{VXO}, {sX}, 0 offen
buffer_load_dwordx4 {V4(XR+4)}, v{VXO+1}, {sX}, 0 offen
v_and_b32 v6, 31, {vL}
v_add_u32 v3, s59, v6
v_lshlrev_b32 v33, 4, v3
v_add_u32 v{PW}, {sT3}, v2
v_add_u32 v{PW+1}, 0x10000, v{PW}
v_add_u32 v{PW+2}, 0x20000, v{PW}
v_xor_b32 v{PX}, 0x800, v{PW}
; output transpose (private 2KB at 131072 + w*2048): write s*64 + ((2jj+hi)^((s>>1)&3))*16 ; read row*64 + (q^((row>>1)&3))*16
v_lshrrev_b32 v3, 5, {vL}
v_bfe_u32 v{PY}, {vL}, 1, 2
v_xor_b32 v3, v3, v{PY}
v_lshlrev_b32 v3, 4, v3
v_lshl_add_u32 v3, v6, 6, v3
s_add_u32 {sT0}, {sT3}, {7*8192}
v_add_u32 v{PY}, {sT0}, v3
v_xor_b32 v{PY+1}, 32, v{PY}
v_bfe_u32 v3, {vL}, 3, 2
v_xor_b32 v3, v3, v5
v_lshlrev_b32 v3, 4, v3
v_lshl_add_u32 v3, v4, 6, v3
v_add_u32 v{PY+2}, {sT0}, v3
""")
        c += self.traddr([PT + k for k in range(6)])
        return c

    def phase2(self):
        o = self.opt
        BF = [112, 144]; SACC = 176; DACC = 64; ABUF = 144; DEPTH = o.depth
        PT, PW, PX, PY, VXO, XR, POLL = self.PT, self.PW, self.PX, self.PY, self.VXO, self.XR, self.POLL
        TILES = self.TILES
        c = mk("L_join:")
        c += self.stamp(8)
        if o.p1only:
            return c
        def bread(t):
            out = []
            if t < 5: return out
            for h in range(4):
                sg = 2 * self.slot((4 * t + h) // 2) + (h & 1)
                for cb in range(2):
                    for e in range(2):
                        out.append(I(f"ds_read_b64_tr_b16 {A2(BF[t&1]+8*h+4*cb+2*e)}, v{PT+2*(sg//16)+cb} offset:{(sg%16)*4096+e*512}"))
            return out
        c += mk(f"""
v_cmp_ne_u64 vcc, {sNon}, {V2(POLL)}
s_nop 0
s_and_b32 vcc_lo, vcc_lo, {0x11001100 if o.wgflag else 0xff00ff00}
s_cbranch_scc1 L_slow_e
L_go:
""")
        PR = [POLL, 62, 64, 66]
        pe = mk(f"L_slow_e:\ns_mov_b32 {sCnt}, 0" + ("\ns_or_b32 s99, s99, 4" if o.stamps else ""))
        NP = o.npoll
        for k in range(NP - 1): pe += self.poll_issue(0, PR[k]) + mk("s_sleep 4")
        if NP == 1 and o.psleep: pe += mk(f"s_branch L_se\nL_se2:\ns_sleep {o.psleep}")
        pe += mk("L_se:")
        for k in range(NP):
            pe += self.poll_issue(0, PR[(k + NP - 1) % NP]) + mk(f"s_waitcnt vmcnt({NP - 1})\nv_cmp_ne_u64 vcc, {sNon}, {V2(PR[k])}\ns_nop 1\ns_and_b32 vcc_lo, vcc_lo, {0x11001100 if o.wgflag else 0xff00ff00}\ns_cbranch_scc0 L_se_done")
        pe += mk(f"""
s_add_u32 {sCnt}, {sCnt}, 1
s_cmp_gt_u32 {sCnt}, 10000
s_cbranch_scc0 {"L_se2" if NP == 1 and o.psleep else "L_se"}
L_se_done:
s_branch L_go
""")
        for z in range(2 if o.hflag2 else 1):
            pe += mk(f"L_slow_o{z}:\ns_mov_b32 {sCnt}, 0" + ("\ns_or_b32 s99, s99, 8" if o.stamps else "") + f"\nL_so{z}:") + self.poll_issue(256 if (o.hflag2 and z == 0) else 128) + mk(f"""
s_add_u32 {sCnt}, {sCnt}, 1
s_waitcnt vmcnt(0)
v_cmp_ne_u64 vcc, {sNon}, {V2(POLL)}
s_and_b32 vcc_lo, vcc_lo, {0x110011 if o.wgflag else 0xff00ff}
s_cbranch_scc0 L_back_o{z}
s_cmp_gt_u32 {sCnt}, 20000
s_cbranch_scc0 L_so{z}
s_branch L_back_o{z}
""")
        self.slow2 = pe
        c += self.stamp(9) + self.stamp(10)
        vm = []
        def aload(t):
            r, k = TILES[2 * t]; b = ABUF + 16 * (t % DEPTH)
            vm.extend([("a", t)] * 4)
            t0 = f"s_add_u32 {sT0}, {sB[r]}, {k*1024}" if not o.rot else f"s_add_u32 {sT0}, s63, {k*1024}\ns_and_b32 {sT0}, {sT0}, {self.RSIZE[r]*1024 - 1}\ns_add_u32 {sT0}, {sT0}, {sB[r]}"
            return mk(t0) + [I(f"buffer_load_dwordx4 {V4(b+4*h)}, v2, {sWS}, {sT0} offen offset:{1024*h} sc1") for h in range(4)]
        def young(tag): return len(vm) - 1 - max(k for k, t in enumerate(vm) if t == tag)
        for t in range(o.burst): c += aload(t)
        c += mk(f"s_mov_b32 {sT1}, {WS_STAT}\nbuffer_load_dword v{XR+8}, v33, {sWS}, {sT1} offen sc1"); vm.append(("rs", 0))
        c += mk(f"s_waitcnt vmcnt({len(vm)})")
        c += (mk("s_barrier") if o.wgflag else []) + self.flagstore(sT2, 12); vm.append(("fl", 0))
        c += mk("" if o.wgflag else "s_barrier")
        c += bread(0)
        M32 = "v_mfma_f32_32x32x16_bf16"
        issued = o.burst; nwr = 0
        TP = 10 - o.burst - o.plead; TP2 = 14 - o.burst - o.plead
        xo = [24576, 25600, 32768, 33792]
        RX = ABUF + 16 * (12 % DEPTH)
        TM = ABUF + 16 * (13 % DEPTH)
        el = range(16)
        xun = []
        for k in range(8):
            xun += mk(f"v_lshlrev_b32 v{46+2*k}, 16, v{XR+k}\nv_and_b32 v{47+2*k}, 0xffff0000, v{XR+k}")
        pre_d = mk(f"v_mul_f32 v{XR+8}, v{XR+8}, v{XR+8}\nv_mul_f32 v{XR+9}, 0xbfb8aa3b, v{XR+8}\nv_mov_b32 v62, 1.0")
        def stage(k, e, pk):
            D, R, T = DACC + e, RX + e, TM + e
            if not pk:
                return [f"v_add_f32 v{D}, v{D}, v{R}", f"v_mul_f32 v{T}, v{XR+9}, v{D}", f"v_exp_f32 v{T}, v{T}", f"v_mul_f32 v{D}, v{XR+8}, v{D}",
                        f"v_add_f32 v{T}, 1.0, v{T}", f"v_rcp_f32 v{T}, v{T}", f"v_mul_f32 v{D}, v{D}, v{T}"][k]
            return [f"v_pk_add_f32 {V2(D)}, {V2(D)}, {V2(R)}", f"v_pk_mul_f32 {V2(T)}, {V2(D)}, {V2(XR+8)} op_sel:[0,1] op_sel_hi:[1,1]", None,
                    f"v_pk_mul_f32 {V2(D)}, {V2(D)}, {V2(XR+8)} op_sel_hi:[1,0]", f"v_pk_add_f32 {V2(T)}, {V2(T)}, {V2(62)} op_sel_hi:[1,0]", None,
                    f"v_pk_mul_f32 {V2(D)}, {V2(D)}, {V2(T)}"][k]
        todo = [(k, e) for k in range(7) for e in el]
        def take(n):
            out = [I(stage(k, e, False)) for k, e in todo[:n]]; del todo[:n]
            return out
        def rest_packed():
            out = []
            while todo:
                k, e = todo.pop(0)
                if e % 2 == 0 and todo and todo[0] == (k, e + 1) and stage(k, e, True): todo.pop(0); out.append(I(stage(k, e, True)))
                else: out.append(I(stage(k, e, False)))
            return out
        BARS = [9, 13, 15]
        for t in range(18):
            b = ABUF + 16 * (t % DEPTH)
            bar = t in BARS
            c += mk(f"s_waitcnt vmcnt({young(('a', t))}) lgkmcnt({0 if (bar or t == 16) else nwr})" + ("\ns_barrier" if bar else ""))
            if o.p2stamps and t in (0, 4, 9, 14, 16, 17): c += self.stamp({0: 2, 4: 3, 9: 4, 14: 5, 16: 6, 17: 7}[t], True)
            mm = []
            for h in range(4):
                for cb in range(2):
                    k = 16 * cb
                    d = f"v[{96+k}:{96+k+15}]" if t >= 14 else f"v[{DACC+k}:{DACC+k+15}]"
                    cc = "0" if (t in (0, 14) and h == 0) else d
                    mm.append(I(f"{M32} {d}, {A4((self.frag(4*t+h) if t < 5 else BF[t&1]+8*h)+4*cb)}, {V4(b+4*h)}, {cc}"))
            lds = bread(t + 1) if t < 17 else []
            wr = []
            if True:
                for k in {9: range(0, 4), 10: range(4, 8), 11: range(8, 11), 12: range(11, 14)}.get(t, []):
                    u = 29 + k // 2; blk = k & 1; sg = self.slot(u)
                    wr.append(I(f"ds_write_b128 v{PW+sg//8}, {A4(self.stg(u, blk))} offset:{(sg%8)*8192+blk*1024}"))
            if t == 14:
                wr += [I(f"ds_write_b128 v{PW}, {V4(DACC+16+4*p)} offset:{xo[p]}") for p in range(4)]
            if t == 15:
                lds = [I(f"ds_read_b128 {V4(RX+4*p)}, v{PX} offset:{xo[p]}") for p in range(4)] + lds
            if t == 14: wr += pre_d
            if t == 15: wr += xun
            if t >= 16: wr = take(o.dsh[t - 16])
            ld = []
            if False:
                ld += self.flagstore(sT2, 12); vm.append(("fl", 0))
            if t == TP: ld += self.poll_issue(256 if o.hflag2 else 128); vm.append(("po", 0))
            if t == TP2 and o.hflag2: ld += self.poll_issue(128, 60); vm.append(("po", 1))
            if issued < 18 and issued - DEPTH < t:
                if issued in ((10, 14) if o.hflag2 else (10,)):
                    z = int(issued == 14)
                    ld.append(mk(f"s_waitcnt vmcnt({young(('po', z))})\nv_cmp_ne_u64 vcc, {sNon}, {V2(60 if z else POLL)}\ns_nop 0\ns_and_b32 vcc_lo, vcc_lo, {0x110011 if o.wgflag else 0xff00ff}\ns_cbranch_scc1 L_slow_o{z}\nL_back_o{z}:"))
                ld += aload(issued); issued += 1
            seq = []
            while ld or wr:
                if ld: seq.append(ld.pop(0))
                if wr: seq.append(wr.pop(0))
            if "m" in o.p2: mm = [I("s_nop 0") for _ in mm]
            if "r" in o.p2: lds = [x for x in lds if "tr" not in x.op]
            if "h" in o.p2: lds = [x for k, x in enumerate(lds) if "tr" not in x.op or k % 2 == 0]
            if "b" in o.p2: lds = [I(x.text.replace("ds_read_b64_tr_b16", "ds_read_b64")) for x in lds]
            if "w" in o.p2: seq = [x for x in seq if isinstance(x, list) or not x.op.startswith("ds_write")]
            wv = weave(mm, lds, seq, per_gap=(6 if t >= 16 else o.p2gap), lds_per_gap=o.p2lds, oth_start=(2 if t == 14 else 0))
            dsl = [x for x in wv if x.kind == "ds"]
            last = max([k for k, x in enumerate(dsl) if x.op.startswith("ds_read")], default=-1)
            nwr = len(dsl) - 1 - last
            if o.align == 3:
                for i in wv: i.padok = False
            c += wv
        c += self.stamp(11)
        dval = rest_packed()
        lead = min(8, len(dval))
        c += dval[:lead]; dval = dval[lead:]
        per = -(-len(dval) // 8)
        for p in range(4):
            c += mk(f"ds_write_b128 v{PW}, {V4(112+4*p)} offset:{16384+xo[p]}") + dval[:per]; dval = dval[per:]
        SV = 96
        c += mk("s_waitcnt lgkmcnt(0)\ns_barrier")
        c += [I(f"ds_read_b128 {V4(RX+4*p)}, v{PX} offset:{16384+xo[p]}") for p in range(4)]
        c += dval
        c += mk("s_waitcnt lgkmcnt(0)")
        c += [I(f"v_pk_add_f32 {V2(SV+2*e)}, {V2(SV+2*e)}, {V2(RX+2*e)}") for e in range(8)]
        c += [I(f"v_pk_mul_f32 {V2(SV+2*e)}, {V2(SV+2*e)}, {V2(DACC+2*e)}") for e in range(8)]
        c += [I(f"v_cvt_pk_bf16_f32 v{8+e}, v{SV+2*e}, v{SV+2*e+1}") for e in range(8)]
        c += mk(f"""
ds_write_b128 v{PY}, {V4(8)}
ds_write_b128 v{PY+1}, {V4(12)}
ds_read_b128 {V4(112)}, v{PY+2}
ds_read_b128 {V4(116)}, v{PY+2} offset:1024
""")
        for hh in range(2):
            c += mk(f"s_waitcnt lgkmcnt({1-hh})")
            for k in range(4):
                c += mk(f"v_lshlrev_b32 v{SV+8*hh+2*k}, 16, v{112+4*hh+k}\nv_and_b32 v{SV+8*hh+2*k+1}, 0xffff0000, v{112+4*hh+k}")
            for k in range(4): c += mk(f"v_pk_add_f32 {V2(SV+8*hh+2*k)}, {V2(SV+8*hh+2*k)}, {V2(46+8*hh+2*k)}")
            for k in range(4): c += mk(f"v_cvt_pk_bf16_f32 v{120+4*hh+k}, v{SV+8*hh+2*k}, v{SV+8*hh+2*k+1}")
            c += mk(f"buffer_store_dwordx4 {V4(120+4*hh)}, v{VXO+hh}, {sOUT}, 0 offen {o.outfl}")
        return c

    def finish(self):
        c = []
        if self.opt.amp:
            k, mult = self.opt.amp
            c += self.stamp(12)
            c += mk(f"""
s_waitcnt vmcnt(0)
s_cmp_lg_u32 s2, 77
s_cbranch_scc1 L_end
v_readlane_b32 s96, v7, {k}
s_sub_u32 s96, s96, s98
s_mul_i32 s96, s96, {mult}
s_min_u32 s96, s96, 100000
s_memrealtime s[100:101]
s_waitcnt lgkmcnt(0)
s_add_u32 s96, s96, s100
L_amp:
s_memrealtime s[100:101]
s_waitcnt lgkmcnt(0)
s_sub_u32 s97, s96, s100
s_cmp_gt_i32 s97, 0
s_cbranch_scc1 L_amp
L_end:
s_endpgm
""")
            return c
        if self.opt.stamps:
            c += self.stamp(12)
            c += mk(f"""
s_waitcnt vmcnt(0)
s_memrealtime s[96:97]
s_waitcnt lgkmcnt(0)
v_writelane_b32 v7, s96, 13
v_writelane_b32 v7, s98, 0
v_writelane_b32 v7, {sTyp}, 14
v_writelane_b32 v7, s99, 15
s_add_u32 s{bWS}, s66, {STAMP}
s_addc_u32 s{bWS+1}, s67, 0
s_mov_b32 s{bWS+2}, 0x100000
s_lshl_b32 {sT0}, s2, 2
s_add_u32 {sT0}, {sT0}, {sW}
s_lshl_b32 {sT0}, {sT0}, 7
v_lshlrev_b32 v4, 2, {vL}
s_mov_b64 exec, 0xffffffff
buffer_store_dword v7, v4, {sWS}, {sT0} offen
""")
        c += mk("L_end:\ns_endpgm")
        return c

    def build(self):
        pro = self.prologue()
        nv = 2 if self.opt.shift else 1
        parts = {}
        for t in range(2):
            for v in range(nv):
                c, slow = self.type_code(t, v)
                k = [i for i, x in enumerate(c) if x is self.loop_last][0] + 1
                parts[t, v] = (c[:k], c[k:], slow)
        p2 = self.phase2()
        fin = self.finish()
        tot = 0
        for (t, v), (lp, ep, slow) in parts.items():
            ep = parts[t, nv - 1][1]
            tot += fix_hazards(pro + lp + ep + p2 + fin, self.opt.verbose)
        for (t, v), (lp, ep, slow) in parts.items():
            fix_hazards(slow, self.opt.verbose)
            e, mx = check_waits(pro + lp + parts[t, nv - 1][1] + p2 + fin, f"t{t}{v}")
            print(f"type {t} ver {v}: wait errors {e}, max vm outstanding {mx}", file=sys.stderr)
        print(f"inserted nop states: {tot}", file=sys.stderr)
        slow2 = getattr(self, "slow2", [])
        fix_hazards(slow2)
        code = list(pro)
        for t in range(2):
            for v in range(nv): code += parts[t, v][0]
            code += parts[t, nv - 1][1]
        code += p2 + fin
        for k in parts: code += parts[k][2]
        code += slow2
        L = KN + "_kernel"
        if self.opt.align:
            wrap = lambda t: f'.amdgcn_target "amdgcn-amd-amdhsa--gfx950"\n.text\n.p2align 8\n{t}L_codeend:\n'
            print("align (promoted, padded):", align8(code, wrap, self.opt.align > 1), file=sys.stderr)
        hdr = open("cdna_kernels/" + KN + ".s.ref").read().split("; Override launch")[0] if self.opt.final else ""
        out = hdr + f"; @launch grid=(256,1,1) block=(256,1,1) lds={LDS_BYTES}\n"
        out += f'.amdgcn_target "amdgcn-amd-amdhsa--gfx950"\n.text\n.globl {L}\n.p2align 8\n.type {L},@function\n{L}:\n'
        out += text(code)
        out += "s_endpgm\n.p2align 6\nL_codeend:\n"
        out += f""".section .rodata,"a"
.p2align 6
.amdhsa_kernel {L}
  .amdhsa_next_free_vgpr 512
  .amdhsa_next_free_sgpr 102
  .amdhsa_accum_offset 256
  .amdhsa_group_segment_fixed_size 0
  .amdhsa_kernarg_size 80
  .amdhsa_user_sgpr_count 2
  .amdhsa_user_sgpr_kernarg_segment_ptr 1
  .amdhsa_system_sgpr_workgroup_id_x 1
  .amdhsa_float_denorm_mode_32 3
.end_amdhsa_kernel
"""
        return out

if __name__ == "__main__":
    ap = argparse.ArgumentParser()
    ap.add_argument("-o", default="k.s")
    for f in ("stamps", "p1only", "verbose", "final", "nomfma", "noreads", "nocs", "nopf", "epistamps", "prostamps", "p2stamps"): ap.add_argument("--" + f, action="store_true")
    ap.add_argument("--p2", default="")
    ap.add_argument("--p2gap", type=int, default=4)
    ap.add_argument("--burst", type=int, default=3)
    ap.add_argument("--ramp", type=int, default=2)
    ap.add_argument("--nstage_b", type=int, default=0)
    ap.add_argument("--depth", type=int, default=7)
    ap.add_argument("--pf0", type=int, default=2)
    ap.add_argument("--tlb", type=int, default=0)
    ap.add_argument("--kgroups", type=int, default=4)
    ap.add_argument("--quota", type=int, default=10)
    ap.add_argument("--ko", default="")
    ap.add_argument("--gord", type=lambda x: [int(c) for c in x], default=[0, 1, 2, 3, 4])
    ap.add_argument("--xmix", type=int, default=0)
    ap.add_argument("--slowlast", type=int, default=0)
    ap.add_argument("--afirst", type=int, default=0)
    ap.add_argument("--even", type=int, default=1)
    ap.add_argument("--evoff", type=float, default=0.5)
    ap.add_argument("--span", type=int, default=0)
    ap.add_argument("--mixrd", type=int, default=0)
    ap.add_argument("--shift", type=int, default=0)
    ap.add_argument("--verbit", type=int, default=0)
    ap.add_argument("--wgflag", type=int, default=1)
    ap.add_argument("--oearly", type=int, default=1)
    ap.add_argument("--lateto", type=float, default=0.8)
    ap.add_argument("--anew", type=int, default=1)
    ap.add_argument("--bdefer", type=int, default=12)
    ap.add_argument("--bint", type=int, default=0)
    ap.add_argument("--bint0", type=int, default=0)
    ap.add_argument("--aint", type=int, default=2)
    ap.add_argument("--qs", type=lambda x: [int(ch, 16) for ch in x], default=[int(ch, 16) for ch in "0aaaaaaaaaaa0000"])
    ap.add_argument("--qb", type=int, default=0)
    ap.add_argument("--sg", type=int, default=10)
    ap.add_argument("--ss", type=int, default=12)
    ap.add_argument("--sc", type=int, default=2)
    ap.add_argument("--cuts", type=lambda x: [int(v) for v in x.split(",")], default=[36, 56, 86])
    ap.add_argument("--xsched", default="0000000000000000")
    ap.add_argument("--xfirst", type=int, default=3)
    ap.add_argument("--plead", type=int, default=2)
    ap.add_argument("--pfa", type=int, default=0)
    ap.add_argument("--bearly", type=int, default=4)
    ap.add_argument("--stst", type=lambda x: [int(v) for v in x.split(",")], default=[1, 5, 11])
    ap.add_argument("--ntxt", type=int, default=0)
    ap.add_argument("--xt0", type=int, default=0)
    ap.add_argument("--hflag2", type=int, default=0)
    ap.add_argument("--psleep", type=int, default=0)
    ap.add_argument("--dsh", type=lambda x: [int(v) for v in x.split(",")], default=[28, 40])
    ap.add_argument("--latefrom", type=float, default=0.1)
    ap.add_argument("--pord", default="t1Xt")
    ap.add_argument("--walk", type=int, default=0)
    ap.add_argument("--wskip", type=int, default=120)
    ap.add_argument("--hearly", type=int, default=1)
    ap.add_argument("--hpos", type=int, default=0)
    ap.add_argument("--nfirst_a", type=int, default=12)
    ap.add_argument("--bsplit", type=int, default=4)
    ap.add_argument("--bpt", type=int, default=64)
    ap.add_argument("--nstage_a", type=int, default=6)
    ap.add_argument("--pollahead", type=int, default=2)
    ap.add_argument("--ofirst", type=int, default=0)
    ap.add_argument("--olate", type=int, default=0)
    ap.add_argument("--npoll", type=int, default=2)
    ap.add_argument("--rotc", type=int, default=0)
    ap.add_argument("--ut0", type=int, default=0)
    ap.add_argument("--utper", type=int, default=2)
    ap.add_argument("--utfl", default="")
    ap.add_argument("--rot", type=int, default=0)
    ap.add_argument("--probe", type=int, default=-1)
    ap.add_argument("--halo", type=int, default=1)
    ap.add_argument("--outfl", default="sc1")
    ap.add_argument("--protouch", type=int, default=2)
    ap.add_argument("--tfirst", type=int, default=1)
    ap.add_argument("--ntx", type=int, default=0)
    ap.add_argument("--ntw", type=int, default=0)
    ap.add_argument("--ntt", type=int, default=0)
    ap.add_argument("--late", type=int, default=0)
    ap.add_argument("--pford", default="h2,h3,h1,o")
    ap.add_argument("--hflag", type=float, default=0.5)
    ap.add_argument("--csplit", type=int, default=1)
    ap.add_argument("--quota0", type=int, default=11)
    ap.add_argument("--wtouch", type=int, default=2)
    ap.add_argument("--wfirst", type=int, default=1)
    ap.add_argument("--statlag", type=int, default=3)
    ap.add_argument("--rotmask", type=int, default=6)
    ap.add_argument("--pfsched", default="0011111111100000")
    ap.add_argument("--statstep", type=int, default=0)
    ap.add_argument("--pfrot", type=int, default=7)
    ap.add_argument("--amp", type=lambda x: tuple(int(v) for v in x.split(",")), default=None)
    ap.add_argument("--wsched", default="033333333333300000")
    ap.add_argument("--bars", default="1,3,5,7,9,11,13,15")
    ap.add_argument("--align", type=int, default=0)
    ap.add_argument("--proextra", type=int, default=1)
    ap.add_argument("--dshadow", type=int, default=60)
    ap.add_argument("--pollpos", type=int, default=5)
    ap.add_argument("--stsched", type=lambda x: [int(ch) for ch in x], default=[int(ch) for ch in "0000000000033334"])
    ap.add_argument("--p2lds", type=int, default=4)
    ap.add_argument("--pfslice", type=int, default=4096)
    opt = ap.parse_args()
    import subprocess, re, os
    for _ in range(2):
        open(opt.o, "w").write(G(opt).build())
        subprocess.check_call(["clang", "-x", "assembler", "-target", "amdgcn-amd-amdhsa", "-mcpu=gfx950", "-c", opt.o, "-o", opt.o + ".o"])
        t = subprocess.check_output(["llvm-objdump", "-t", opt.o + ".o"], text=True)
        sym = {m.group(2): int(m.group(1), 16) for m in re.finditer(r"^([0-9a-f]{16}) .* (L_\w+)$", t, re.M)}
        n = sym["L_codeend"] - sym["L_pc"]
        opt.pfslice = (n - 12288) // 7 // 16 * 16
        opt.pfslice = min(opt.pfslice, 8192)
        opt.verbose = False
    os.remove(opt.o + ".o")
    print("code bytes", sym["L_codeend"], "pfslice", opt.pfslice, {k: v for k, v in sym.items() if k in ("L_pc", "L_t10", "L_join", "L_go", "L_end")}, file=sys.stderr)
```

```python
import sys, argparse, struct
from fw import *
KN = "recurrent_scan__sliding_local_dilated__glu_gated_bilinear__prompt"

WSLOT = 20480
XBASE = 5 * WSLOT
XSLOT = 18432
MISC = XBASE + 3 * XSLOT
STATL = MISC
LDS_BYTES = 163840
RBS = 144 * 1024
WS_STAT = 0x900000
WS_FLAG = 0x910000
WS_SIZE = 0x920000
STAMP = 200 << 20
def S4(b): return f"s[{b}:{b+3}]"
bX, bWO, bWD, bOUT, bWS, bDBG = 4, 8, 12, 16, 20, 24
sX, sWO, sWD, sOUT, sWS, sDBG = map(S4, (bX, bWO, bWD, bOUT, bWS, bDBG))
bS = [28, 32, 36, 40, 44]; sS = [S4(b) for b in bS]
sW, sM, sN, sR, sC = "s68", "s69", "s70", "s71", "s72"
sKa, sKb, sIncA = "s73", "s74", "s75"
sWoff, sXoff, sHoff = "s76", "s77", "s78"
sIdx, sTyp = "s79", "s80"
sT0, sT1, sT2, sT3 = "s82", "s83", "s84", "s85"
sNon = "s[86:87]"; sNonL, sNonH = "s86", "s87"
sU = ["s88", "s89", "s90"]
sEx = "s[94:95]"
sB = ["s48", "s49", "s50", "s51"]
sWB = ["s52", "s53", "s56", "s57"]
sCnt = "s58"
sXc = "s93"; sXk = "s92"
vL = "v1"
vX = ["v8", "v9"]; vH = ["v10", "v11"]; vWg = ["v12", "v13", "v14", "v15", "v16"]; vB2 = "v17"
RA = 18
RT = 22
VST = 26
BIAS = 30
GAT = 76
NON = 56
GA = 58
SX = 60
V4 = lambda r: f"v[{r}:{r+3}]"
V2 = lambda r: f"v[{r}:{r+1}]"
A4 = lambda r: f"a[{r}:{r+3}]"
A2 = lambda r: f"a[{r}:{r+1}]"
CSACC = 228
ONES = 252
def f2h(x): return "0x%08x" % struct.unpack("<I", struct.pack("<f", x))[0]
aQ = lambda i: 88 + 4 * i
aK = lambda i: 120 + 4 * i
aV = lambda i: 156 + 4 * i
aG = lambda i: 192 + 4 * i
aU = lambda i: 224 + 4 * i
bAcc = lambda g, i: 96 + 32 * g + 4 * i
bMix = lambda u, i: 224 + 16 * u + 4 * i
NA = {0: 9, 1: 8}; NB = {0: 5, 1: 6}
fA = lambda st, i: 56 * st + 4 * i
def fB(ty, st, j): return 56 * st + 4 * NA[ty] + 4 * j
M16 = "v_mfma_f32_16x16x32_bf16"

class G:
    def __init__(self, opt): self.opt = opt; self.young = {}
    def pstamp(self, k):
        return self.stamp(k, True) if self.opt.prostamps else []
    def stamp(self, k, force=False):
        if not self.opt.stamps: return []
        if (self.opt.prostamps or self.opt.p2stamps) and 2 <= k <= 7 and not force: return []
        if self.opt.probe >= 0 and k in (2, 3) and not force: return []
        if self.opt.epistamps and k in (2, 3, 4) and not force: return []
        return mk(f"s_memrealtime s[96:97]\ns_memtime s[100:101]\ns_waitcnt lgkmcnt(0)\nv_writelane_b32 v7, s96, {k}\nv_writelane_b32 v7, s100, {16+k}")

    def scc_live(self, flat, k):
        for ins in flat[k:]:
            if ins.op.startswith(("s_cselect", "s_cbranch_scc", "s_addc")): return True
            if ins.kind == "salu" and not ins.op.startswith(("s_mov", "s_waitcnt", "s_nop", "s_movk")): return False
        return False
    def mksrd(self, b, p, size):
        return mk(f"s_mov_b32 s{b}, s{p}\ns_mov_b32 s{b+1}, s{p+1}\ns_mov_b32 s{b+2}, {size}\ns_mov_b32 s{b+3}, 0x20000")

    def dma_x(self, p, h, halo=True):
        base = XBASE + (p % 3) * XSLOT
        L = [mk(f"s_add_u32 {sXk}, {sXc}, {h*16384}\ns_add_u32 m0, {sXoff}, {base + 2048*h}\nbuffer_load_dwordx4 {vX[0]}, {sX}, {sXk} offen lds"),
             mk(f"s_add_u32 m0, {sXoff}, {base + 2048*h + 1024}\nbuffer_load_dwordx4 {vX[1]}, {sX}, {sXk} offen lds")]
        if halo:
            ho = "s3" if (self.opt.halo and h == 0) else sHoff
            L.append(mk(f"s_add_u32 m0, {ho}, {base + 256*h}\nbuffer_load_dword {vH[h]}, {sX}, {sXc} offen lds"))
        if h == 1: L[-1] += mk(f"s_add_u32 {sXc}, {sXc}, 128\ns_and_b32 {sXc}, {sXc}, 1023")
        if p < self.opt.ntx:
            for a in L:
                for i in a:
                    if i.kind == "vmem": i.text = i.text.replace(" lds", " nt lds")
        if "x" in self.opt.ko and p > 0:
            for a in L:
                for i in a:
                    if i.kind == "vmem": i.text = i.text.replace(sXk, "0").replace(sXc, "0")
        return L
    def dma_w(self, s):
        base = (s % 5) * WSLOT
        L = []
        for g in self.opt.gord:
            L.append(mk(f"s_add_u32 m0, {sWoff}, {base + 4096*g}\nbuffer_load_dwordx4 {vWg[g]}, {sS[g]}, {sKa if g < 3 else sKb} offen{' nt' if s < self.opt.ntw else ''} lds"))
        if "w" not in self.opt.ko: L[-1] += mk(f"s_add_u32 {sKa}, {sKa}, {sIncA}\ns_add_u32 {sKb}, {sKb}, {32*3584}")
        G = self.opt.kgroups
        if G > 1 and (s + 1) % (16 // G) == 0 and s < 15:
            L[-1].append(mk(f"s_cmp_eq_u32 {sKb}, {512*3584}\ns_cselect_b32 {sKa}, 0, {sKa}\ns_cselect_b32 {sKb}, 0, {sKb}"))
        return L
    def dma_queue(self, ty):
        Q = []
        for s in range(16):
            if s % 2 == 0 and ("x", s // 2) not in self.vm0:
                p = s // 2
                for h in range(2):
                    for a in self.dma_x(p, h, halo=(ty == 0)): Q.append((max(0, 2 * p - 5), ("x", p), a))
            if ("w", s) not in self.vm0:
                for a in self.dma_w(s): Q.append((max(0, s - 5), ("w", s), a))
        if self.opt.xmix:
            out = []; i = 0
            while i < len(Q):
                if Q[i][1][0] == "x":
                    j = i
                    while j < len(Q) and Q[j][1] == Q[i][1]: j += 1
                    xs = Q[i:j]; k = j
                    while k < len(Q) and Q[k][1] == Q[j][1]: k += 1
                    ws = Q[j:k]
                    e = max(q[0] for q in xs + ws)
                    while xs or ws:
                        if xs: t = xs.pop(0); out.append((e, t[1], t[2]))
                        if ws: t = ws.pop(0); out.append((e, t[1], t[2]))
                    i = k
                else: out.append(Q[i]); i += 1
            Q = out
        return Q

    def wtouch(self, n):
        return mk(f"""
v_add_u32 v44, 2, v44
v_and_b32 v44, 15, v44
v_lshl_add_u32 v48, v44, 5, v45
v_mad_u32_u24 v49, v48, s86, v46
v_mad_u32_u24 v48, v48, s87, v47
buffer_load_dword a{220 + 2 * n}, v49, s[88:91], s54 offen{' nt' if self.opt.ntt else ''}
buffer_load_dword a{221 + 2 * n}, v48, {sS[4]}, s55 offen{' nt' if self.opt.ntt else ''}
""")
    def prologue(self):
        o = self.opt
        vm = self.vm0 = []
        def note(L, tag):
            L = flatten(L)
            for i in L:
                if i.kind == "vmem": vm.append(tag)
            return L
        c = mk(f"""
s_load_dwordx16 s[48:63], s[0:1], 0
s_load_dwordx4 s[64:67], s[0:1], 64
s_cmp_ge_u32 s2, 256
s_cbranch_scc1 L_end
""")
        if o.stamps: c += mk("v_mov_b32 v7, 0\ns_memrealtime s[98:99]")
        c += note(mk(f"""
s_getpc_b64 s[88:89]
L_pc:
v_lshlrev_b32 v2, 4, v0
s_lshr_b32 {sT1}, s2, 3
s_and_b32 {sT0}, {sT1}, 7
s_mul_i32 {sT0}, {sT0}, {o.pfslice}
global_load_dwordx4 a[112:115], v2, s[88:89]
v_add_u32 v3, 0x1000, v2
s_add_u32 s88, s88, {sT0}
s_addc_u32 s89, s89, 0
global_load_dwordx4 a[116:119], v3, s[88:89]
v_add_u32 v3, 0x1000, v3
global_load_dwordx4 a[120:123], v3, s[88:89]
"""), ("pre", 0))
        c += mk(f"""
v_lshrrev_b32 v2, 6, v0
v_and_b32 {vL}, 63, v0
s_and_b32 {sT0}, s2, 7
v_readfirstlane_b32 {sW}, v2
s_lshr_b32 {sM}, {sT0}, 2
s_lshl_b32 {sM}, {sM}, 3
s_lshr_b32 {sT2}, {sT1}, 2
s_add_u32 {sM}, {sM}, {sT2}
v_lshrrev_b32 v5, 3, {vL}
v_lshrrev_b32 v3, 4, {vL}
v_xor_b32 v4, v3, {vL}
v_and_b32 v4, 7, v4
v_lshlrev_b32 v4, 4, v4
s_lshl_b32 {sT3}, {sM}, 7
s_lshl_b32 {sT2}, {sW}, 5
s_add_u32 {sT2}, {sT2}, {sT3}
v_add_u32 v6, {sT2}, v5
v_lshl_add_u32 {vX[0]}, v6, 10, v4
v_xor_b32 {vX[1]}, 64, {vX[0]}
v_add_u32 {vX[1]}, 0x2000, {vX[1]}
s_lshl_b32 {sT2}, {sW}, 2
s_add_u32 {sT2}, {sT2}, {sT3}
s_sub_u32 {sT2}, {sT2}, 16
v_lshrrev_b32 v6, 5, {vL}
v_add_u32 v6, {sT2}, v6
s_lshl_b32 {sXoff}, {sW}, 5
v_lshlrev_b32 v4, 2, {vL}
v_and_b32 v4, 0x7f, v4
v_xor_b32 v4, {sXoff}, v4
v_max_i32 v2, 0, v6
v_lshl_add_u32 {vH[0]}, v2, 10, v4
v_add_u32 v6, 2, v6
v_max_i32 v2, 0, v6
v_xor_b32 v4, 16, v4
v_lshl_add_u32 {vH[1]}, v2, 10, v4
s_lshl_b32 {sXoff}, {sW}, 12
s_add_u32 {sXoff}, {sXoff}, 2048
s_lshl_b32 {sHoff}, {sW}, 9
s_cmp_eq_u32 {sW}, 0
s_cselect_b32 s3, 0x10000, {sHoff}
s_cselect_b32 {sXc}, {0x80000000 if o.halo else 0}, 0
v_or_b32 {vH[0]}, {sXc}, {vH[0]}
s_lshl_b32 {sXc}, s2, 1
s_and_b32 {sXk}, s2, 4
s_add_u32 {sXc}, {sXc}, {sXk}
s_add_u32 {sXc}, {sXc}, {o.rotadd}
s_and_b32 {sXc}, {sXc}, {o.rotmask}
s_lshl_b32 s81, {sXc}, 1
s_lshl_b32 {sXc}, {sXc}, 7
s_and_b32 {sT2}, {sT1}, 3
s_lshl_b32 {sT2}, {sT2}, 2
s_add_u32 {sT2}, {sT2}, {sW}
s_mul_i32 {sT2}, {sT2}, 9
s_add_u32 {sT2}, {sT2}, {sT3}
s_sub_u32 {sT2}, {sT2}, 16
v_add_u32 v50, {sT2}, {vL}
v_max_i32 v50, 0, v50
v_cmp_le_u32 vcc, 9, {vL}
v_lshlrev_b32 v50, 10, v50
v_mov_b32 v6, 0x80000000
v_cndmask_b32 v50, v50, v6, vcc
s_mov_b32 s{bX+2}, {2048*1024}
s_mov_b32 s{bX+3}, 0x20000
s_waitcnt lgkmcnt(0)
s_mov_b32 s{bX}, s48
s_mov_b32 s{bX+1}, s49
""")
        if o.stamps: c += mk("s_mov_b32 s99, 0")
        c += self.pstamp(2)
        if o.xt0:
            c += note(mk(f"buffer_load_dword a227, v50, {sX}, {sXc} offen{' nt' if o.ntxt else ''}"), ("xt", 0))
            if o.xt0 > 1: c += note(mk(f"s_add_u32 {sXk}, {sXc}, 128\ns_and_b32 {sXk}, {sXk}, 1023\nbuffer_load_dword a226, v50, {sX}, {sXk} offen{' nt' if o.ntxt else ''}"), ("xt", 0))
        c += note(self.dma_x(0, 0) + self.dma_x(0, 1), ("x", 0))
        c += self.pstamp(3)
        c += mk(f"""
s_lshl_b32 {sWoff}, {sW}, 10
s_and_b32 {sN}, {sT0}, 3
s_lshl_b32 {sIdx}, {sN}, 1
s_lshl_b32 {sN}, {sN}, 2
s_and_b32 {sT2}, {sT1}, 3
s_add_u32 {sN}, {sN}, {sT2}
s_lshr_b32 {sTyp}, {sT2}, 1
s_and_b32 {sT2}, {sT2}, 1
s_add_u32 {sIdx}, {sIdx}, {sT2}
s_and_b32 {sT2}, {sW}, 1
s_lshl_b32 {sT3}, {sT2}, 2
v_and_b32 v4, 2, v5
v_or_b32 v4, {sT3}, v4
v_xor_b32 v4, v4, {vL}
v_and_b32 v4, 7, v4
v_lshlrev_b32 v4, 4, v4
s_lshl_b32 {sT3}, {sW}, 3
v_add_u32 v6, {sT3}, v5
s_movk_i32 s87, 3584
s_movk_i32 s86, 3072
s_lshl_b32 s95, {sIdx}, 7
s_lshl_b32 {sT3}, {sIdx}, 8
s_add_u32 {sT3}, {sT3}, 1024
s_add_u32 s49, s95, 1024
s_add_u32 s94, s95, 2048
s_add_u32 s54, {sT3}, 128
s_lshl_b32 s55, {sIdx}, 6
s_add_u32 s55, s55, 3072
s_cmp_eq_u32 {sTyp}, 1
s_cselect_b32 s86, s87, s86
s_cselect_b32 s48, {sT3}, s95
s_cselect_b32 s49, {sT3}, s49
s_cselect_b32 s94, s54, s94
s_cselect_b32 s55, s55, s95
s_cselect_b32 s95, s54, s95
s_cselect_b64 vcc, -1, 0
s_cselect_b32 s28, s56, s50
s_cselect_b32 s29, s57, s51
s_cselect_b32 s32, s58, s50
s_cselect_b32 s33, s59, s51
s_cselect_b32 s40, s58, s56
s_cselect_b32 s41, s59, s57
v_mad_u32_u24 v2, v6, s86, v4
v_mad_u32_u24 v3, v6, s87, v4
s_lshl_b32 s30, s86, 9
s_lshl_b32 {sIncA}, s86, 5
v_add_u32 {vWg[0]}, s48, v2
v_add_u32 {vWg[1]}, s49, v2
v_add_u32 {vWg[2]}, s94, v2
v_add_u32 {vWg[3]}, s95, v3
s_mov_b32 s31, 0x20000
s_mov_b32 s34, s30
s_mov_b32 s35, 0x20000
s_mov_b32 s36, s28
s_mov_b32 s37, s29
s_mov_b32 s38, s30
s_mov_b32 s39, 0x20000
s_mov_b32 s42, {512*3584}
s_mov_b32 s43, 0x20000
v_lshrrev_b32 v4, 4, {vL}
v_and_b32 v4, 2, v4
v_xor_b32 v4, v4, {vL}
v_and_b32 v4, 3, v4
v_lshlrev_b32 v4, 4, v4
s_lshl_b32 {sT2}, {sT2}, 4
v_lshrrev_b32 v6, 2, {vL}
v_add_u32 v6, {sT2}, v6
v_mad_u32_u24 v4, v6, s87, v4
s_lshl_b32 {sT2}, {sTyp}, 1
s_cmp_lt_u32 {sW}, {sT2}
s_cselect_b32 s44, s56, s58
s_cselect_b32 s45, s57, s59
s_mov_b32 s46, s42
s_mov_b32 s47, 0x20000
v_cndmask_b32 v4, v3, v4, vcc
s_mul_i32 {sKa}, s81, {sIncA}
s_mul_i32 {sKb}, s81, {32*3584}
v_add_u32 {vWg[4]}, s55, v4
""")
        c += note(self.dma_w(0), ("w", 0))
        c += self.pstamp(4)
        c += mk(f"""
v_lshrrev_b32 v2, 4, {vL}
v_bfe_u32 v3, {vL}, 2, 2
v_and_b32 v4, 3, {vL}
v_and_b32 v6, 15, {vL}
v_lshrrev_b32 v5, 1, v6
v_xor_b32 v5, v5, v2
v_lshlrev_b32 v5, 4, v5
v_lshl_add_u32 v5, v6, 7, v5
v_add_u32 v5, {XBASE}, v5
s_lshr_b32 {sT2}, {sW}, 1
s_and_b32 {sT2}, {sT2}, {sTyp}
s_lshl_b32 {sT2}, {sT2}, 13
v_add_u32 v{RA}, {sT2}, v5
v_xor_b32 v{RA+1}, 64, v{RA}
v_subrev_u32 v{RA+2}, {sT2}, v5
v_xor_b32 v{RA+3}, 64, v{RA+2}
v_and_b32 v6, 1, v2
v_lshrrev_b32 v5, 1, v3
v_lshl_or_b32 v5, v6, 1, v5
v_xor_b32 v5, {sW}, v5
v_lshlrev_b32 v5, 5, v5
v_lshl_add_u32 v5, v2, 10, v5
v_lshl_add_u32 v5, v3, 7, v5
v_lshl_add_u32 v{RT}, v4, 3, v5
v_add_u32 v{RT+1}, {3*WSLOT}, v{RT}
v_lshrrev_b32 v5, 1, v2
v_lshlrev_b32 v5, 10, v5
v_lshl_add_u32 v5, v6, 9, v5
v_lshl_add_u32 v5, v3, 6, v5
v_lshl_add_u32 v5, v4, 3, v5
v_xor_b32 v6, {sW}, v6
v_and_b32 v6, 1, v6
v_lshl_add_u32 v{RT+2}, v6, 5, v5
v_add_u32 v{RT+3}, {3*WSLOT}, v{RT+2}
v_mov_b32 v5, 0x3f803f80
v_lshlrev_b32 v6, 2, {vL}
v_add_u32 v6, {XBASE}, v6
{"" if not o.halo else f"ds_write_b32 v6, v5{chr(10)}ds_write_b32 v6, v5 offset:{XSLOT}{chr(10)}ds_write_b32 v6, v5 offset:{2*XSLOT}"}
s_cmp_eq_u32 {sW}, 1
s_cselect_b32 s54, s49, s48
s_cselect_b32 s88, s32, s28
s_cselect_b32 s89, s33, s29
s_cmp_eq_u32 {sW}, 2
s_cselect_b32 s54, s94, s54
s_cmp_eq_u32 {sW}, 3
s_cselect_b32 s54, s95, s54
s_cselect_b32 s88, s40, s88
s_cselect_b32 s89, s41, s89
s_cselect_b32 s90, s42, s30
s_cselect_b32 s86, s87, s86
s_mov_b32 s91, 0x20000
v_accvgpr_write_b32 a{ONES}, v5
v_accvgpr_write_b32 a{ONES+1}, v5
v_accvgpr_write_b32 a{ONES+2}, v5
v_accvgpr_write_b32 a{ONES+3}, v5
s_add_u32 s81, s81, {o.wfirst - 2}
v_lshrrev_b32 v5, 2, {vL}
v_add_u32 v44, s81, v5
s_and_b32 {sT2}, {sM}, 7
s_lshl_b32 {sT2}, {sT2}, 2
v_add_u32 v45, {sT2}, v4
v_lshrrev_b32 v46, 3, {vL}
v_lshlrev_b32 v46, 28, v46
s_lshl_b32 {sT2}, {sTyp}, 1
s_sub_u32 {sT2}, 3, {sT2}
v_xor_b32 v5, {sW}, {vL}
v_and_b32 v5, {sT2}, v5
v_lshl_or_b32 v47, v5, 26, v46
""")
        c += self.mksrd(bDBG, 64, 256)
        c += mk(f"""
s_or_b32 {sT2}, s2, {sW}
s_cmp_lg_u32 {sT2}, 0
s_cbranch_scc1 L_nononce
s_memrealtime s[94:95]
s_waitcnt lgkmcnt(0)
s_or_b32 s94, s94, 1
v_mov_b32 v2, s94
v_mov_b32 v3, s95
v_mov_b32 v4, 0
s_mov_b64 exec, 1
buffer_store_dwordx2 v[2:3], v4, {sDBG}, 0 offen sc1
s_mov_b64 exec, -1
L_nononce:
""")
        c += self.pstamp(7)
        xt = mk(f"buffer_load_dword a226, v50, {sX}, {sXc} offen{' nt' if o.ntxt else ''}")
        for ch in o.pord:
            if ch == "t": c += note(self.wtouch(1 + vm.count(("wt", 0)) // 2 % 2), ("wt", 0))
            if ch == "x": c += note(xt, ("xt", 0))
            if ch == "1": c += note(self.dma_w(1), ("w", 1))
            if ch == "X": c += note(self.dma_x(1, 0) + self.dma_x(1, 1), ("x", 1))
            if ch == "2": c += note(self.dma_w(2), ("w", 2))
        c += self.pstamp(5)
        if o.walk:
            c += mk(f"""
; instruction-cache warm-up: hop along the s_cbranch_execz chains (no other instruction runs with EXEC = 0)
s_mov_b64 exec, 0
s_cmp_eq_u32 {sW}, 3
s_cbranch_scc1 H_p_0
s_lshl_b32 {sT2}, {sTyp}, 2
s_add_u32 {sT2}, {sT2}, {sW}
s_cmp_eq_u32 {sT2}, 0
s_cbranch_scc1 H_a0_0
s_cmp_eq_u32 {sT2}, 1
s_cbranch_scc1 H_a1_0
s_cmp_eq_u32 {sT2}, 2
s_cbranch_scc1 H_a2_0
s_cmp_eq_u32 {sT2}, 4
s_cbranch_scc1 H_b0_0
s_cmp_eq_u32 {sT2}, 5
s_cbranch_scc1 H_b1_0
s_branch H_b2_0
L_wback:
s_mov_b64 exec, -1
""")
        c += mk(f"s_add_u32 s81, {sXc}, {128 * (o.xfirst - 3)}")
        c += self.pstamp(6)
        if o.shift:
            c += mk(f"""
s_lshr_b32 {sT2}, {sW}, {o.verbit}
s_and_b32 {sT2}, {sT2}, 1
s_lshl_b32 {sT1}, {sTyp}, 1
s_add_u32 {sT2}, {sT2}, {sT1}
s_cmp_eq_u32 {sT2}, 1
s_cbranch_scc1 L_t01
s_cmp_eq_u32 {sT2}, 2
s_cbranch_scc1 L_t10
s_cmp_eq_u32 {sT2}, 3
s_cbranch_scc1 L_t11
""")
        else: c += mk(f"s_cmp_eq_u32 {sTyp}, 1\ns_cbranch_scc1 L_t10")
        return c

    def deferred(self, ty):
        o = self.opt
        A = []
        A += self.mksrd(bWO, 52, 512 * 1024) + self.mksrd(bWD, 60, 1792 * 1024) + self.mksrd(bWS, 66, WS_SIZE) + self.mksrd(bOUT, 62, 2048 * 1024)
        A += mk(f"""
s_lshr_b32 {sT1}, s2, 3
s_and_b32 {sT2}, s2, 7
s_lshr_b32 {sR}, {sT2}, {o.csplit}
s_lshl_b32 {sR}, {sR}, {2 + o.csplit}
s_lshr_b32 s64, {sT1}, {3 - o.csplit}
s_add_u32 {sR}, {sR}, s64
s_and_b32 {sC}, {sT1}, {(8 >> o.csplit) - 1}
s_and_b32 {sT2}, {sT2}, {o.csplit}
s_xor_b32 {sT2}, {sT2}, {o.cflip}
s_lshl_b32 {sT2}, {sT2}, 2
s_add_u32 {sC}, {sC}, {sT2}
s_lshl_b32 {sT3}, {sW}, 11
s_mul_i32 s62, {sC}, {o.rotc}
s_mul_i32 s63, {sR}, {2 - o.csplit}
s_add_u32 s62, s62, s63
s_and_b32 s62, s62, 7
s_lshl_b32 s63, s62, 12
s_lshl_b32 s62, s62, 16
v_lshrrev_b32 v5, 2, {vL}
v_and_b32 v5, 4, v5
v_xor_b32 v5, v5, {vL}
v_and_b32 v5, 7, v5
v_lshlrev_b32 v5, 4, v5
v_lshrrev_b32 v6, 3, {vL}
v_lshl_add_u32 v5, v6, 10, v5
s_lshl_b32 {sT2}, {sC}, 7
v_add_u32 {vB2}, {sT2}, v5
s_and_b32 {sT1}, {sW}, 1
s_lshr_b32 {sT2}, {sW}, 1
s_lshl_b32 {sT2}, {sT2}, 14
s_lshl_b32 {sWB[0]}, {sT1}, 18
s_add_u32 {sWB[0]}, {sWB[0]}, {sT2}
s_mov_b32 {sWB[1]}, {sWB[0]}
s_lshl_b32 s64, {sT1}, 19
s_add_u32 s64, s64, {sT2}
s_add_u32 s56, s64, {512*1024}
s_lshl_b32 s64, {sT1}, 17
s_add_u32 s64, s64, {sT2}
s_add_u32 s57, s64, {1536*1024}
s_lshl_b32 {sT1}, {sM}, 7
s_sub_u32 {sT2}, {sT1}, 16
v_add_u32 v5, {sT2}, {vL}
v_max_i32 v{GA}, 0, v5
v_lshlrev_b32 v{GA}, 4, v{GA}
v_add_u32 v5, 64, v5
v_lshlrev_b32 v{GA+1}, 4, v5
s_add_u32 {sT1}, {sT1}, 112
v_and_b32 v5, 15, {vL}
v_add_u32 v5, {sT1}, v5
v_lshlrev_b32 v42, 4, v5
""")
        B = []
        if ty == 0:
            B += mk(f"""
v_lshlrev_b32 v{VST}, 4, {vL}
v_add_u32 v{VST+1}, {RBS}, v{VST}
v_add_u32 v{VST+2}, {2*RBS}, v{VST}
v_add_u32 v{VST+3}, {3*RBS}, v{VST}
s_mul_i32 {sT1}, {sM}, 576
s_lshl_b32 {sT2}, {sIdx}, 2
s_add_u32 {sT2}, {sT2}, {sW}
s_add_u32 {sU[1]}, {sT1}, {sT2}
s_add_u32 {sU[0]}, {sU[1]}, 32
s_lshl_b32 {sU[0]}, {sU[0]}, 10
s_lshl_b32 {sU[1]}, {sU[1]}, 10
v_lshrrev_b32 v4, 4, {vL}
v_and_b32 v6, 15, {vL}
v_lshlrev_b32 v4, 2, v4
v_sub_u32 v4, v6, v4
v_mov_b32 v3, 0xff800000
v_mov_b32 v6, 0x80000000
""")
            for r in range(4):
                B += mk(f"""
v_subrev_u32 v5, {r}, v4
v_and_b32 v5, 0x80000001, v5
v_cmp_eq_u32 vcc, 0, v5
v_cmp_eq_u32 {sEx}, v6, v5
v_cndmask_b32_e64 v{BIAS+4+r}, v3, 0, vcc
v_cndmask_b32_e64 v{BIAS+r}, v3, 0, {sEx}
""")
            B.append(mk(f"s_cmp_eq_u32 {sM}, 0\ns_cselect_b64 vcc, -1, 0"))
            for r in range(4): B += mk(f"v_cndmask_b32 v{BIAS+8+r}, v{BIAS+r}, v3, vcc")
        else:
            B += mk(f"""
s_lshr_b32 {sT1}, {sW}, 1
s_mul_i32 {sT2}, {sT1}, {2*RBS}
v_lshlrev_b32 v5, 4, {vL}
v_add_u32 v{VST}, {sT2}, v5
v_add_u32 v{VST+1}, {RBS}, v{VST}
v_subrev_u32 v{VST+2}, {sT2}, v5
v_add_u32 v{VST+2}, {2*RBS}, v{VST+2}
v_add_u32 v{VST+3}, {RBS}, v{VST+2}
s_mul_i32 {sT1}, {sM}, 576
s_lshl_b32 {sT2}, {sIdx}, 3
s_add_u32 {sT2}, {sT2}, {sW}
s_add_u32 {sT2}, {sT2}, {sT1}
s_add_u32 {sU[0]}, {sT2}, 64
s_add_u32 {sU[1]}, {sT2}, 68
s_lshl_b32 {sT2}, {sIdx}, 1
s_and_b32 s64, {sW}, 1
s_add_u32 {sT2}, {sT2}, s64
s_add_u32 {sT2}, {sT2}, {sT1}
s_add_u32 {sU[2]}, {sT2}, 128
s_lshl_b32 {sU[0]}, {sU[0]}, 10
s_lshl_b32 {sU[1]}, {sU[1]}, 10
s_lshl_b32 {sU[2]}, {sU[2]}, 10
""")
        return A, B

    def reads(self, ty, stage):
        st = stage & 1
        xb = ((stage // 2) % 3) * XSLOT; kh = stage & 1
        ws = stage % 5; rg = ws // 3; wb = (ws % 3) * WSLOT
        out = []
        for i in range(NA[ty]):
            if ty == 0: out.append(I(f"ds_read_b128 {A4(fA(st, i))}, v{RA+kh} offset:{xb + 2048*i}"))
            else: out.append(I(f"ds_read_b128 {A4(fA(st, i))}, v{RA+kh+(2 if i >= 4 else 0)} offset:{xb + 2048*(i+1)}"))
        def tr(j, reg, off, second):
            return [I(f"ds_read_b64_tr_b16 {A2(fB(ty, st, j))}, v{reg} offset:{wb+off}"),
                    I(f"ds_read_b64_tr_b16 {A2(fB(ty, st, j)+2)}, v{reg} offset:{wb+off+second}")]
        B = []
        for g in range(5 if ty == 0 else 4): B += tr(g, RT + rg, 4096 * g, 512)
        if ty == 1: B += tr(4, RT + 2 + rg, 16384, 256) + tr(5, RT + 2 + rg, 16384 + 2048, 256)
        if self.opt.mixrd:
            z = []
            while out or B:
                if out: z.append(out.pop(0))
                if B: z.append(B.pop(0))
            return z
        return out + B

    def mfmas(self, ty, stage):
        st = stage & 1
        out = []
        Z = lambda d: "0" if stage == 0 else d
        def T(d, j, i): out.append(I(f"{M16} {V4(d)}, {A4(fB(ty, st, j))}, {A4(fA(st, i))}, {Z(V4(d))}"))
        def CS(k, flip=False):
            d = A4(CSACC + 4 * k); f = A4(fB(ty, st, k))
            if self.opt.nocs: return
            out.append(I(f"{M16} {d}, {A4(ONES)}, {f}, {Z(d)}" if flip else f"{M16} {d}, {f}, {A4(ONES)}, {Z(d)}"))
        if ty == 0:
            for i in range(8): T(aQ(i), 0, i + 1)
            CS(0)
            for i in range(9): T(aK(i), 1, i)
            if not self.opt.halo: CS(1)
            for i in range(9): out.append(I(f"{M16} {V4(aV(i))}, {A4(fA(st, i))}, {A4(fB(ty, st, 2))}, {Z(V4(aV(i)))}"))
            if not self.opt.halo: CS(2, True)
            for i in range(8): T(aG(i), 3, i + 1)
            CS(3)
            for i in range(8): T(aU(i), 4, i + 1)
            CS(4)
        else:
            for g in range(4):
                for i in range(8): T(bAcc(g, i), g, i)
                CS(g)
            for u in range(2):
                for i in range(4): T(bMix(u, i), 4 + u, i)
                CS(4 + u)
        return out

    TILES = [(2, 2*k) for k in range(16)] + [(3, 2*k) for k in range(4)] + [(1, 2*k) for k in range(8)] + [(0, 2*k) for k in range(8)]
    RSIZE = {0: 16, 1: 16, 2: 32, 3: 8}
    def b2off(self, r, k, blk):
        if not self.opt.rot: return f"s_add_u32 {sT0}, {sWB[r]}, {(16*k + 8*blk)*1024}"
        if blk: return f"s_add_u32 {sT0}, {sT0}, 8192"
        return f"s_add_u32 {sT0}, s62, {k*16384}\ns_and_b32 {sT0}, {sT0}, {self.RSIZE[r]*16384 - 1}\ns_add_u32 {sT0}, {sT0}, {sWB[r]}"
    def b2_dma(self, s):
        def free_at(q):
            a = q * 2048
            if a < XBASE: return [s_ for s_ in range(11, 16) if s_ % 5 == a // WSLOT][0]
            return {2: 11, 0: 13, 1: 15}[(a - XBASE) // XSLOT]
        out = []
        for i in sorted(range(19), key=lambda u: u):
            if max(free_at(4 * self.slot(i) + w) for w in range(4)) != s: continue
            r, k = self.TILES[i]; srd = sWO if r == 0 else sWD
            for blk in range(2):
                out += mk(self.b2off(r, k, blk) + "\n"
                          f"s_add_u32 m0, {sT3}, {self.slot(i)*8192 + blk*1024}\nbuffer_load_dwordx4 {vB2}, {srd}, {sT0} offen lds")
        return out

    PFG = {"h2": (sWD, 512, 4), "h3": (sWD, 1536, 1), "h1": (sWD, 0, 2), "o": (sWO, 0, 2), "A": (sWD, 0, 1), "B": (sWD, 256, 1), "C": (sWO, 0, 1)}
    def l2pf(self, grp, k, seq):
        if self.opt.wide:
            wd = self.opt.wide
            L = []
            if seq == 0:
                L += mk(f"""
s_lshr_b32 s59, s2, 3
s_lshl_b32 s59, s59, 2
s_add_u32 s59, s59, {sW}
s_lshl_b32 s59, s59, {10 + wd}
v_lshrrev_b32 v3, {2 + wd}, {vL}
v_lshlrev_b32 v3, 28, v3
s_and_b32 s65, s2, 1
s_xor_b32 s65, s65, {self.opt.cflip}
s_lshl_b32 s65, s65, 9
s_add_u32 s59, s59, s65
v_and_b32 v2, 3, {vL}
v_lshl_or_b32 v3, v2, 7, v3
v_bfe_u32 v2, {vL}, 2, {wd}
v_lshl_or_b32 v2, v2, 10, v3
v_add_u32 v2, s59, v2
s_lshr_b32 s59, s2, 1
""")
            n = 16 >> wd
            if seq < n:
                return L + mk(f"s_add_u32 s65, s59, {seq + 1}\ns_and_b32 s65, s65, {n - 1}\ns_lshl_b32 s65, s65, {17 + wd}\nbuffer_load_dword a{216 + seq}, v2, {sWD}, s65 offen")
            return L + mk(f"buffer_load_dword a{216 + seq}, v2, {sWO}, 0 offen")
        srd, row0, n = self.PFG[grp]; cs = self.opt.csplit
        thin = grp in "ABC"; one = thin and cs == 0
        L = []
        if seq == 0 and self.opt.shares:
            sh = [int(c) for c in self.opt.shares]
            assert sum(sh[:4]) == 8 and sum(sh[4:]) == 8
            st = [sum(sh[(k & 4):k]) for k in range(8)]
            pack = lambda t: sum(v << (4 * k) for k, v in enumerate(t))
            L += mk(f"""
s_and_b32 s65, {sN}, 7
s_lshl_b32 s65, s65, 2
s_lshr_b32 s64, {pack(sh):#x}, s65
s_and_b32 s64, s64, 15
s_lshr_b32 s65, {pack(st):#x}, s65
s_and_b32 s65, s65, 15
s_lshr_b32 s59, s2, 5
s_lshl_b32 s59, s59, 2
s_add_u32 s59, s59, {sW}
s_lshl_b32 s59, s59, 3
s_add_u32 s59, s59, s65
s_lshl_b32 s59, s59, 10
s_and_b32 s65, s2, 1
s_lshl_b32 s65, s65, 9
s_add_u32 s59, s59, s65
v_and_b32 v2, 3, {vL}
v_lshlrev_b32 v2, 7, v2
v_lshrrev_b32 v3, 2, {vL}
v_cmp_le_u32 vcc, s64, v3
v_lshl_add_u32 v2, v3, 10, v2
v_add_u32 v2, s59, v2
v_mov_b32 v3, 0x80000000
v_cndmask_b32 v2, v2, v3, vcc
s_lshr_b32 s59, s2, 1
""")
        elif seq == 0 and self.opt.pfa:
            L += mk(f"""
s_lshr_b32 s59, s2, 5
s_lshl_b32 s59, s59, 1
s_bfe_u32 s65, s2, 0x10003
s_add_u32 s59, s59, s65
s_lshl_b32 s59, s59, 2
s_add_u32 s59, s59, {sW}
s_lshl_b32 s59, s59, 12
v_lshrrev_b32 v3, 4, {vL}
v_lshlrev_b32 v3, 28, v3
s_and_b32 s65, s2, 1
s_xor_b32 s65, s65, {self.opt.cflip}
s_lshl_b32 s65, s65, 9
s_add_u32 s59, s59, s65
v_and_b32 v2, 3, {vL}
v_lshl_or_b32 v3, v2, 7, v3
v_bfe_u32 v2, {vL}, 2, 2
v_lshl_or_b32 v2, v2, 10, v3
v_add_u32 v2, s59, v2
s_lshr_b32 s59, s2, 1
""")
        elif seq == 0:
            L += mk(f"""
s_lshr_b32 s59, s2, 3
s_lshl_b32 s59, s59, 2
s_add_u32 s59, s59, {sW}
s_lshl_b32 s59, s59, {10 if one else 11}
v_lshrrev_b32 v3, {4 if (cs == 0 and not one) else 3}, {vL}
v_lshlrev_b32 v3, 28, v3
""")
            if cs == 0: L += mk(f"v_lshl_or_b32 v2, {vL}, 7, v3")
            else: L += mk(f"""
s_and_b32 s65, s2, 1
s_xor_b32 s65, s65, {self.opt.cflip}
s_lshl_b32 s65, s65, 9
s_add_u32 s59, s59, s65
v_and_b32 v2, 3, {vL}
v_lshl_or_b32 v3, v2, 7, v3
v_bfe_u32 v2, {vL}, 2, 1
v_lshl_or_b32 v2, v2, 10, v3
""")
            L += mk(f"v_add_u32 v2, s59, v2\ns_lshr_b32 s59, s2, {cs}")
            if self.opt.skip37:
                L += mk(f"""
s_and_b32 s65, {sIdx}, 3
s_lshl_b32 s64, {sTyp}, 2
s_or_b32 s65, s65, s64
v_and_b32 v2, 0xfffffff, v2
v_bfe_u32 v3, {vL}, 3, 1
{"v_lshl_add_u32 v2, v3, 13, v2" if self.opt.skip37 == 1 else "v_mul_u32_u24 v3, 9216, v3" + chr(10) + "v_add_u32 v2, v2, v3"}
""")
                hi, lo = (16, 0) if self.opt.skip37 == 1 else (12, 4)
                L.append(mk(f"s_cmp_eq_u32 s65, 2\ns_cselect_b32 s64, {hi}, 8\ns_cmp_eq_u32 s65, 3\ns_cselect_b32 s64, {lo}, s64"))
                L += mk(f"v_mov_b32 v3, 0x80000000\nv_cmp_le_u32 vcc, s64, {vL}\nv_nop\nv_cndmask_b32 v2, v2, v3, vcc")
        if thin:
            return L + mk(f"""
s_and_b32 s65, s59, {(8 >> cs) - 1}
s_mul_i32 s65, s65, {((64 if grp == "C" else 224) << cs) * 1024}
s_add_u32 s65, s65, {(row0 >> (1 - cs)) * 1024}
buffer_load_dword a{216 + seq % 12}, v2, {srd}, s65 offen
""")
        return L + mk(f"""
s_add_u32 s65, s59, {k}
s_and_b32 s65, s65, {(n - 1) & self.opt.pfrot}
s_lshl_b32 s65, s65, 18
s_add_u32 s65, s65, {row0 * 1024}
buffer_load_dword a{216 + seq % 12}, v2, {srd}, s65 offen
""")

    def utouch(self, ty, n, per):
        units = [(0, j) for j in range(4)] + [(1, j) for j in range(4)] + ([(2, j) for j in range(2)] if ty else [])
        L = []
        if n == 0:
            L += mk(f"v_lshrrev_b32 v51, 3, {vL}\nv_lshlrev_b32 v51, 28, v51\nv_mul_u32_u24 v50, 112, {vL}\nv_add_u32 v50, v50, v51")
        for k, (u, j) in enumerate(units[n * per:(n + 1) * per]):
            L += mk(f"v_add_u32 v51, v50, v{VST+j}\nbuffer_load_dword a{216 + (n * per + k) % 10}, v51, {sWS}, {sU[u]} offen{self.opt.utfl}")
        return L
    def flagaddr(self, dst, off):
        return mk(f"""
s_lshl_b32 {dst}, {sM}, 2
s_lshr_b32 {sT1}, {sN}, 2
s_add_u32 {dst}, {dst}, {sT1}
s_lshl_b32 {dst}, {dst}, 6
s_and_b32 {sT1}, {sN}, 3
s_lshl_b32 {sT1}, {sT1}, 2
s_add_u32 {dst}, {dst}, {sT1}
s_add_u32 {dst}, {dst}, {sW}
s_lshl_b32 {dst}, {dst}, 3
s_add_u32 {dst}, {dst}, {WS_FLAG + off}
""") + (mk(f"s_lshl_b32 {sT1}, {sW}, 27\ns_add_u32 {dst}, {dst}, {sT1}") if self.opt.wgflag else [])
    def flagstore(self, so, r):
        return mk(f"""
v_mov_b32 v{r}, {sNonL}
v_mov_b32 v{r+1}, {sNonH}
v_lshlrev_b32 v{r+2}, 31, {vL}
v_lshl_or_b32 v{r+2}, {vL}, 25, v{r+2}
buffer_store_dwordx2 {V2(r)}, v{r+2}, {sWS}, {so} offen sc1
""")

    def stats_load(self):
        return mk(f"""
s_lshl_b32 {sT2}, {sM}, 7
s_lshl_b32 {sT1}, {sN}, 3
s_add_u32 {sT1}, {sT1}, {sT2}
s_lshl_b32 {sT2}, {sW}, 1
s_add_u32 {sT1}, {sT1}, {sT2}
s_lshl_b32 {sT1}, {sT1}, 10
v_lshlrev_b32 v{SX+16}, 4, {vL}
buffer_load_dwordx4 v[{SX}:{SX+3}], v{SX+16}, {sX}, {sT1} offen
buffer_load_dwordx4 v[{SX+4}:{SX+7}], v{SX+16}, {sX}, {sT1} offen offset:1024
""")

    def stats_compute(self):
        def row(x, e, t):
            L = []
            for k in range(4):
                L.append(f"v_lshlrev_b32 v{e+2*k}, 16, v{x+k}")
                L.append(f"v_and_b32 v{e+2*k+1}, 0xffff0000, v{x+k}")
            L += [f"v_add_f32 v{x}, v{e}, v{e+1}", f"v_add_f32 v{x+1}, v{e+2}, v{e+3}", f"v_add_f32 v{x+2}, v{e+4}, v{e+5}", f"v_add_f32 v{x+3}, v{e+6}, v{e+7}",
                  f"v_add_f32 v{x}, v{x}, v{x+1}", f"v_add_f32 v{x+2}, v{x+2}, v{x+3}", f"v_add_f32 v{x}, v{x}, v{x+2}"]
            def red(r):
                R = [f"v_add_f32_dpp v{r}, v{r}, v{r} row_ror:{sh} row_mask:0xf bank_mask:0xf" for sh in (8, 4, 2, 1)]
                for p in ("16", "32"):
                    R += [f"v_mov_b32 v{r+1}, v{r}", f"v_permlane{p}_swap_b32 v{r}, v{r+1}", f"v_add_f32 v{r}, v{r}, v{r+1}"]
                return R
            L += red(x)
            L.append(f"v_mul_f32 v{t+1}, 0x3b000000, v{x}")
            for k in range(8): L.append(f"v_sub_f32 v{e+k}, v{e+k}, v{t+1}")
            L += [f"v_mul_f32 v{x}, v{e}, v{e}", f"v_mul_f32 v{x+1}, v{e+1}, v{e+1}"]
            for k in range(2, 8): L.append(f"v_fmac_f32 v{x+(k&1)}, v{e+k}, v{e+k}")
            L.append(f"v_add_f32 v{x}, v{x}, v{x+1}")
            L += red(x)
            L += [f"v_mov_b32 v{x+1}, 0x3727c5ac", f"v_fmac_f32 v{x+1}, 0x3b000000, v{x}", f"v_rsq_f32 v{t}, v{x+1}"]
            return L
        a = row(SX, SX + 8, SX + 24); b = row(SX + 4, SX + 16, SX + 26)
        out = []
        for p, q in zip(a, b): out += [I(p), I(q)]
        return out

    def publish(self, ty):
        L = mk(f"""
v_readfirstlane_b32 {sNonL}, v{NON}
v_readfirstlane_b32 {sNonH}, v{NON+1}
v_cmp_eq_u32 vcc, 1, {vL}
s_lshl_b32 {sT1}, {sM}, 7
s_lshl_b32 {sT2}, {sN}, 3
s_cmp_eq_u32 {sNonL}, 0
s_cbranch_scc1 L_slow_nonce{ty}
L_back_nonce{ty}:
v_cndmask_b32 v{SX}, v{SX+24}, v{SX+26}, vcc
v_cndmask_b32 v{SX+1}, v{SX+25}, v{SX+27}, vcc
v_mov_b32 v{SX+2}, {sNonL}
v_mov_b32 v{SX+3}, {sNonH}
s_add_u32 {sT1}, {sT1}, {sT2}
s_lshl_b32 {sT2}, {sW}, 1
s_add_u32 {sT1}, {sT1}, {sT2}
s_lshl_b32 {sT1}, {sT1}, 4
s_add_u32 {sT1}, {sT1}, {WS_STAT}
v_lshlrev_b32 v{SX+4}, 4, {vL}
v_cmp_lt_u32 vcc, 1, {vL}
v_mov_b32 v{SX+5}, 0x80000000
v_cndmask_b32 v{SX+4}, v{SX+4}, v{SX+5}, vcc
buffer_store_dwordx4 v[{SX}:{SX+3}], v{SX+4}, {sWS}, {sT1} offen sc1
""")
        return L[:5] + [L[5:8]] + L[8:]

    def gather_load(self):
        return mk(f"""
s_mov_b32 {sT1}, {WS_STAT}
buffer_load_dwordx4 {V4(GAT)}, v{GA}, {sWS}, {sT1} offen sc1
buffer_load_dwordx4 {V4(GAT+4)}, v{GA+1}, {sWS}, {sT1} offen sc1
buffer_load_dwordx4 {V4(GAT+8)}, v42, {sWS}, {sT1} offen sc1
""")
    def gather_cmp(self):
        return mk(f"""
v_cmp_ne_u64 vcc, {sNon}, {V2(GAT+2)}
v_cmp_ne_u64 {sEx}, {sNon}, {V2(GAT+6)}
v_cmp_ne_u64 s[92:93], {sNon}, {V2(GAT+10)}
s_or_b64 vcc, vcc, {sEx}
s_or_b64 vcc, vcc, s[92:93]
""")

    ST = 60
    def stats_stage(self, ty, tv):
        ST = self.ST
        L = [self.gather_cmp() + mk(f"s_cbranch_vccnz L_slow_gat{tv}\nL_back_gat{tv}:")]
        L += mk(f"""
s_mul_i32 {sT1}, {sW}, 1152
s_add_u32 {sT1}, {sT1}, {STATL}
v_lshl_add_u32 v44, {vL}, 2, {sT1}
v_and_b32 v45, 15, {vL}
v_lshl_add_u32 v45, v45, 2, {sT1}
v_add_u32 v46, 512, v45
""")
        W = mk(f"""
ds_write2_b32 v44, v{GAT}, v{GAT+1} offset0:0 offset1:144
ds_write2_b32 v44, v{GAT+4}, v{GAT+5} offset0:64 offset1:208
ds_write2_b32 v46, v{GAT+8}, v{GAT+9} offset0:0 offset1:144
""")
        if ty == 0:
            L += mk(f"v_add_u32 v47, 256, v45\nv_lshrrev_b32 v43, 4, {vL}\nv_lshl_add_u32 v43, v43, 4, {sT1}")
            for i in range(9):
                if i < 4: W += mk(f"ds_read2_b32 {V2(ST+2*i)}, v45 offset0:{16*i} offset1:{144+16*i}")
                else: W += mk(f"ds_read2_b32 {V2(ST+2*i)}, v47 offset0:{16*i-64} offset1:{80+16*i}")
        else:
            L += mk(f"""
s_lshr_b32 {sT2}, {sW}, 1
s_lshl_b32 {sT2}, {sT2}, 8
v_add_u32 v47, {sT2}, v45
v_subrev_u32 v48, {sT2}, v45
v_add_u32 v48, 256, v48
""")
            for i in range(8):
                W += mk(f"ds_read2_b32 {V2(ST+2*i)}, v{47 if i < 4 else 48} offset0:{16+16*(i%4)} offset1:{160+16*(i%4)}")
        return L + W

    def type_code(self, ty, ver=0):
        o = self.opt
        c = mk(f"L_t{ty}{ver}:")
        tv = f"{ty}{ver}"
        vm = list(self.vm0)
        def waitfor(tags):
            for t in tags: assert vm.count(t) >= {"w": 5, "x": 4}.get(t[0], 1) and all(q[1] != t for q in dq), (t, ty)
            idx = max([k for k, t in enumerate(vm) if t in tags], default=-1)
            return len(vm) - 1 - idx
        noted = []
        def note(L, tag):
            for i in flatten(L):
                if i.kind == "vmem": vm.append(tag); noted.append(i)
            return L
        need = lambda s: [("w", s), ("x", s // 2)]
        dq = []
        c += mk(f"s_waitcnt vmcnt({waitfor(need(0))}) lgkmcnt(0)\ns_barrier")
        defA, defB = self.deferred(ty)
        c += self.stamp(1)
        c += self.reads(ty, 0)
        stats = self.stats_compute()
        dq = self.dma_queue(ty)
        pfq = [(g, k) for g in o.pford.split(",") for k in range(self.PFG[g][2])]; pfn = 0
        if o.wide: pfq = pfq[:(16 >> o.wide) + 1]

        third = -(-len(stats) // 6) * 2
        SL = o.statstep; SC = o.sc
        cuts = [0] + o.cuts + [len(stats)]
        SN, SP, SG, SS = 1, SC + len(cuts) - 1, o.sg, o.ss
        for s in range(16):
            tags = need(s + 1) if s < 15 else []
            if s == SC: tags = tags + [("sl", 0)]
            if s == SP: tags = tags + [("non", 0)]
            if s == SS: tags = tags + [("gat", 0)]
            if s == 13: tags = tags + [("b2", 11)]
            if s == 14: tags = tags + [("b2", 12)]
            if s == 15: tags = tags + [("b2", 13)]
            c += mk((f"s_waitcnt vmcnt({waitfor(tags)}) lgkmcnt(0)" if tags else "s_waitcnt lgkmcnt(0)") + "\ns_barrier")
            if o.stamps and s in o.stst: c += self.stamp(2 + o.stst.index(s))
            rd = self.reads(ty, s + 1) if s < 15 else []
            other = []; atoms = []; prefix = []; slowv = []; mark = len(vm)
            if s == SN:
                slowv += note(mk(f"v_mov_b32 v{NON}, 0\nbuffer_load_dwordx2 {V2(NON)}, v{NON}, {sDBG}, 0 offen sc1"), ("non", 0))
            if s == SG: slowv += note(self.gather_load(), ("gat", 0))
            if s == SL: slowv += note(self.stats_load(), ("sl", 0))
            if s < o.wtouch and o.tfirst: slowv += note(self.wtouch(s % 3), ("wt", 0))
            for _ in range(int(o.xsched[s])):
                other += note(mk(f"s_add_u32 s81, s81, 128\ns_and_b32 s81, s81, 1023\nbuffer_load_dword a{226 + (s & 1)}, v50, {sX}, s81 offen"), ("xt", 0))
            k = 0
            while dq and dq[0][0] <= s and k < (o.quota0 if s == 0 else o.qs[s] - (ty if o.qb else 0) if o.qs else o.quota):
                _, tag, atom = dq.pop(0); atoms.append(note(atom, tag)); k += 1
            if s < o.wtouch and not o.tfirst: slowv += note(self.wtouch(s % 3), ("wt", 0))
            nb1 = 11 if ty == 0 else len(defB)
            blocks = {0: defA[:16], 1: defA[16:34], 7: defA[34:], 8: defB[:nb1], 9: defB[nb1:]}
            late = blocks.get(s, [])
            if s > 10:
                assert not dq or s <= 13
                d = self.b2_dma(s)
                if s == 15 and ty == 1 and o.bdefer:
                    self.defer_b = [d[k:k + 3] for k in range(len(d) - 3 * o.bdefer, len(d), 3)]; d = d[:len(d) - 3 * o.bdefer]
                note(d, ("b2", s)); atoms += [d[k:k + 3] for k in range(0, len(d), 3)]
            if not o.nopf and not (o.pfa and ty == 1):
                for _ in range(int(o.pfsched[s])):
                    if not pfq: break
                    g, k = pfq.pop(0); slowv += note(self.l2pf(g, k, pfn), ("pf", 0)); pfn += 1
            if o.ut0 and o.ut0 <= s < min(11, o.ut0 + (10 + o.utper - 1) // o.utper): other += note(self.utouch(ty, s - o.ut0, o.utper), ("ut", 0))
            if SC <= s < SP: other += stats[cuts[s - SC]: cuts[s - SC + 1]]
            if s == SP: slowv += note(self.publish(tv), ("pub", 0))
            if s == SS:
                ss = self.stats_stage(ty, tv)
                if "r" in o.ko: ss = [x for x in ss if isinstance(x, list) or not x.op.startswith("ds_read")]
                if "e" in o.ko: ss = [x for x in ss if isinstance(x, list) or not x.op.startswith("ds_write")]
                if "g" in o.ko: ss = [[ss[0][-1]]] + ss[1:]
                ssd = [x for x in ss if not isinstance(x, list) and x.kind == "ds"]
                ssv = [x for x in ss if isinstance(x, list) or x.kind != "ds"]
                prefix = ssv; rd = rd + ssd
            if s == 10 and ty == 0: other += self.selectors()
            other += late
            if s == 11: other += self.traddr([2, 3, 4, 5, 6, 49])
            if s >= 13: rd = rd + flatten(self.passthru([2, 3, 4, 5, 6, 49], {13: range(0, 6), 14: range(6, 12), 15: range(12, 20)}[s]))
            if s in (14, 15): atoms += note(self.round2(self.R2_14 if s == 14 else self.R2_15), ("b2", 20))
            if ty == 1 and s == 12 and o.bearly:
                for k, it in enumerate(self.round2(range(29, 36))[:o.bearly]):
                    it[-1] = I(it[-1].text.replace(A4(56 + 4 * k), V4(self.BE[k])))
                    atoms.append(note(it, ("b2", 21)))
            other = other + slowv if o.slowlast else slowv + other
            if o.even and s > o.afirst:
                A = [x for at in atoms for x in at]
                nA = len(atoms); merged = []; P = list(other); tot = len(A) + len(P)
                k = 0; pos = 0
                for j, at in enumerate(atoms):
                    tgt = int((j + o.evoff) * tot / nA) - len(at)
                    while P and pos < tgt: merged.append(P.pop(0)); pos += 1
                    merged += at; pos += len(at)
                other = prefix + merged + P
            else: other = prefix + [x for at in atoms for x in at] + other
            tagof = {}
            for x, t in zip(noted, vm[mark:]): tagof[id(x)] = t
            vm[mark:] = [tagof[id(x)] for x in flatten(other) if x.kind == "vmem"]
            del noted[:]
            mm = self.mfmas(ty, s)
            if o.nomfma: mm = [I("s_nop 0") for _ in mm]
            if o.noreads: rd = []
            no = len([i for i in flatten(other) if not i.is_label])
            room = 2 * (len(mm) - len(rd))
            ost = len(rd) if no <= room else max(0, len(rd) - (no - room))
            wv = weave(mm, rd, other, per_gap=2, shift=(o.shift if ver else 0), lds_span=(o.span if len(rd) <= o.span else 0), front=len([x for x in flatten(prefix) if not x.is_label]))
            if prefix:
                lastp = max(k for k, x in enumerate(wv) if any(x is y for y in flatten(prefix)))
                firstd = min(k for k, x in enumerate(wv) if any(x is y for y in ssd))
                assert lastp < firstd, (lastp, firstd)
            if o.align == 3:
                for i in wv: i.padok = False
            if 8 <= s <= 10:
                if "V" in o.ko: wv = [x for x in wv if x.kind != "vmem"]
                if "D" in o.ko: wv = [x for x in wv if x.kind != "ds"]
                if "O" in o.ko: wv = [x for x in wv if x.kind not in ("valu", "salu")]
                if "B" in o.ko: c = [x for k, x in enumerate(c) if not (x.op == "s_barrier" and k > len(c) - 12)]
            c += wv
        c += self.stamp(5)
        if o.probe >= 0:
            g, k = self.TILES[o.probe]
            c += mk(f"""
s_waitcnt vmcnt(0)
v_readfirstlane_b32 s64, {vB2}
v_and_b32 v4, 15, {vL}
v_lshrrev_b32 v5, 4, {vL}
v_lshlrev_b32 v5, 5, v5
v_add_u32 v4, v4, v5
v_lshlrev_b32 v4, 10, v4
v_add_u32 v4, s64, v4
s_add_u32 s65, {sWB[g]}, {16*k*1024}
""") + self.stamp(2, True) + mk(f"buffer_load_dword v5, v4, {sWO if g == 0 else sWD}, s65 offen\ns_waitcnt vmcnt(0)") + self.stamp(3, True)
        c += mk("s_waitcnt lgkmcnt(0)")
        if o.shift and ver == 0: c += mk(f"s_branch L_epi{ty}")
        self.loop_end = len(c)
        c += mk(f"L_epi{ty}:")
        c += self.epi_a() if ty == 0 else self.epi_b()
        if ty == 0: c += mk("s_branch L_join")
        self.loop_last = c[self.loop_end - 1]
        c = cap_vm(flatten(c), len(self.vm0), *((1000, 48) if "c" in o.ko else (60, 48)))
        slow = mk(f"""
L_slow_nonce{tv}:
{"s_or_b32 s99, s99, 1" if o.stamps else ""}
s_mov_b32 {sCnt}, 0
L_sn{tv}:
v_mov_b32 v{NON}, 0
buffer_load_dwordx2 {V2(NON)}, v{NON}, {sDBG}, 0 offen sc1
s_waitcnt vmcnt(0)
v_readfirstlane_b32 {sNonL}, v{NON}
v_readfirstlane_b32 {sNonH}, v{NON+1}
s_add_u32 {sCnt}, {sCnt}, 1
s_cmp_gt_u32 {sCnt}, 20000
s_cbranch_scc1 L_back_nonce{tv}
s_cmp_eq_u32 {sNonL}, 0
s_cbranch_scc1 L_sn{tv}
s_branch L_back_nonce{tv}
L_slow_gat{tv}:
{"s_or_b32 s99, s99, 2" if o.stamps else ""}
s_mov_b32 {sCnt}, 0
L_sg{tv}:
""") + self.gather_load() + mk("s_waitcnt vmcnt(0)") + self.gather_cmp() + mk(f"""
s_add_u32 {sCnt}, {sCnt}, 1
s_cmp_gt_u32 {sCnt}, 20000
s_cbranch_scc1 L_back_gat{tv}
s_cbranch_vccnz L_sg{tv}
s_branch L_back_gat{tv}
""")
        return c, slow

    def stg(self, u, blk): return 56 + 8 * (u - 29) + 4 * blk
    SL1 = [3, 4, 17, 18, 5, 6, 7, 8, 9, 13, 10, 11, 12, 0, 1, 2, 14, 15, 16]
    def slot(self, u): return self.SL1[u] if u < 19 else self.SL1[[0, 1, 4, 5, 6, 2, 3, 7, 8, 9][u - 19]] if u < 29 else self.SL1[10 + u - 29]
    def frag(self, i): return 112 + 8 * i if i < 14 else 8 * (i - 14)
    def round2(self, us):
        L = []
        for u in us:
            g, k = self.TILES[u]; srd = sWO if g == 0 else sWD
            for blk in range(2):
                t = self.b2off(g, k, blk).replace(sT0, "s61")
                if u < 29: L.append(mk(t + f"\ns_add_u32 m0, {sT3}, {self.slot(u)*8192 + blk*1024}\nbuffer_load_dwordx4 {vB2}, {srd}, s61 offen lds"))
                else: L.append(mk(t + f"\nbuffer_load_dwordx4 {A4(self.stg(u, blk))}, {vB2}, {srd}, s61 offen"))
        return L
    BE = [30, 34, 38, 88, 92]
    R2_14 = [19, 20, 24]; R2_15 = [25, 21, 22]; R2_E = [23, 26, 27, 28]
    TR = {0: [42, 58, 59, 16], 1: [88, 89, 90, 91]}
    def traddr(self, R):
        L = mk(f"""
s_and_b32 {sT1}, {sW}, 1
s_lshl_b32 {sT1}, {sT1}, 6
v_lshrrev_b32 v4, 5, {vL}
v_lshlrev_b32 v4, 10, v4
v_bfe_u32 v6, {vL}, 2, 2
v_lshl_add_u32 v4, v6, 7, v4
v_lshrrev_b32 v6, 1, v6
v_lshl_add_u32 v4, v6, 6, v4
v_bfe_u32 v6, {vL}, 4, 1
v_lshl_add_u32 v4, v6, 5, v4
v_and_b32 v6, 1, {vL}
v_lshl_add_u32 v4, v6, 4, v4
v_bfe_u32 v6, {vL}, 1, 1
v_lshl_add_u32 v4, v6, 3, v4
v_xor_b32 v4, {sT1}, v4
s_lshl_b32 {sT1}, {sT1}, 5
v_add_u32 v{R[0]}, {sT1}, v4
v_xor_b32 v{R[1]}, 64, v{R[0]}
""")
        for k in range(2, len(R)): L += mk(f"v_add_u32 v{R[k]}, {0x10000 * (k // 2)}, v{R[k & 1]}")
        return L
    def passthru(self, R, tiles):
        L = []
        for i in tiles:
            sg = 2 * self.slot(i // 2) + (i & 1)
            L += [[I(f"ds_read_b64_tr_b16 {A2(self.frag(i) + 4*cb + 2*e)}, v{R[2*(sg//16)+cb]} offset:{(sg%16)*4096+e*512}")] for cb in range(2) for e in range(2)]
        return L
    def sprinkle(self, code, items, start, stop):
        out = []; n = len(items); k = 0
        for idx, ins in enumerate(code):
            out.append(ins)
            while k < n and idx >= start and (idx - start + 1) * n >= (k + 1) * (stop - start):
                out += items[k]; k += 1
        for it in items[k:]: out += it
        return out
    NEG = "op_sel:[0,1,0] op_sel_hi:[1,1,1] neg_lo:[0,1,0] neg_hi:[0,1,0]"
    def gu(self, cs, g, u, stp, dst):
        NEG = self.NEG
        L = [f"v_pk_fma_f32 {V2(g+2*h)}, {V2(cs+2*h)}, {V2(stp)}, {V2(g+2*h)} {NEG}" for h in range(2)]
        L += [f"v_pk_fma_f32 {V2(u+2*h)}, {V2(cs+4+2*h)}, {V2(stp)}, {V2(u+2*h)} {NEG}" for h in range(2)]
        L += [f"v_pk_mul_f32 {V2(g+2*h)}, {V2(g+2*h)}, {V2(u+2*h)}" for h in range(2)]
        L += [f"v_cvt_pk_bf16_f32 v{dst+h}, v{g+2*h}, v{g+2*h+1}" for h in range(2)]
        return L
    def gu_unit(self, cs, g0, u0, g1, u1, st0, st1, vo, so):
        c = []
        for x, y in zip(self.gu(cs, g0, u0, st0, u0), self.gu(cs, g1, u1, st1, u0 + 2)): c += mk(x + "\n" + y)
        return c + self.unit_store(u0, vo, so)
    def unit_store(self, r, vo, so):
        if "n" in self.opt.ko: return []
        return mk(f"v_permlane16_swap_b32 v{r}, v{r+2}\nv_permlane16_swap_b32 v{r+1}, v{r+3}\nbuffer_store_dwordx4 {V4(r)}, v{vo}, {sWS}, {so} offen" + ("" if "p" in self.opt.ko else " sc1"))
    def csread(self, dst, k, n=4):
        return [I(f"v_accvgpr_read_b32 v{dst+r}, a{CSACC+4*k+r}") for r in range(n)]

    def epi_b(self):
        ST = self.ST; o = self.opt
        c = []
        for k in range(6): c += self.csread(8 + 4 * k if k < 2 else 36 + 4 * k, k)
        U = []
        for P in range(2):
            cs = 8 if P == 0 else 44
            for j in range(4):
                U.append(self.gu_unit(cs, bAcc(2*P, 2*j), bAcc(2*P+1, 2*j), bAcc(2*P, 2*j+1), bAcc(2*P+1, 2*j+1), ST+4*j, ST+4*j+2, VST+j, sU[P]))
        for j in range(2):
            U.append(self.gu_unit(52, bMix(0, 2*j), bMix(1, 2*j), bMix(0, 2*j+1), bMix(1, 2*j+1), ST+4*j, ST+4*j+2, VST+j, sU[2]))
        st = self.round2(range(29, 36))[o.bearly:] + getattr(self, "defer_b", []) + self.round2(self.R2_E); nb = o.nstage_b
        assert o.bearly % 2 == 0 or not o.rot
        ni = 0
        for j, u in enumerate(U):
            c += u
            if j >= o.bint0:
                for _ in range(o.bint):
                    if ni < 14 - o.bearly: c += st.pop(0); ni += 1
                    if j == len(U) - 1: nlast = o.bint
        tail_l = o.bint if (o.bint and len(U) - 1 >= o.bint0) else 0
        tail_l = len([1 for x in c[max(k for k, x in enumerate(c) if x.kind == "vmem" and x.data):] if x.kind == "vmem"]) - 1
        c += self.stamp(6)
        mv = [I(f"v_accvgpr_write_b32 a{56+4*k+r}, v{self.BE[k]+r}") for k in range(o.bearly) for r in range(4)]
        su = mk("s_waitcnt vmcnt(40)" if mv else "") + mv + self.flagaddr(sT2, 0) + self.polladdr() + self.p2setup()
        c += self.sprinkle(su, st[:nb], 0, len(su))
        if o.wgflag: c += mk(f"s_waitcnt vmcnt({nb + 2 + tail_l}) lgkmcnt(0)\ns_barrier") + self.flagstore(sT2, 8) + self.stamp(7) + mk(f"s_mov_b32 {sT2}, 0x8000000")
        else:
            c += mk(f"s_waitcnt vmcnt({nb + 2 + tail_l}) lgkmcnt(0)") + self.flagstore(sT2, 8) + self.stamp(7)
            c += mk(f"s_mov_b32 {sT2}, 0x8000000\ns_barrier")
        k = len(st) - o.pollahead
        for it in st[nb:k]: c += it
        c += self.poll_issue(0)
        for it in st[k:]: c += it
        c += mk(f"s_waitcnt vmcnt({o.pollahead})")
        return c

    SEL = 54
    def selectors(self):
        S = self.SEL
        L = mk(f"""
v_and_b32 v4, 15, {vL}
v_lshrrev_b32 v5, 4, {vL}
v_lshlrev_b32 v5, 2, v5
v_sub_u32 v4, v4, v5
v_and_b32 v5, 1, {vL}
v_sub_u32 v4, v4, v5
v_lshlrev_b32 v5, 4, v5
v_mov_b32 v6, 0x0c0c0c0c
""")
        for jj, pat in ((0, 0x0c0c0100), (1, 0x0c0c0302)):
            L += mk(f"v_mov_b32 v{S+jj}, {pat:#x}\nv_alignbit_b32 v{S+2+jj}, v{S+jj}, v{S+jj}, v5")
            L += mk(f"v_cmp_le_i32 vcc, {2*jj}, v4\nv_nop\nv_cndmask_b32 v{S+jj}, v{S+2+jj}, v6, vcc\nv_cndmask_b32 v{S+2+jj}, v6, v{S+2+jj}, vcc")
        return L

    def epi_a(self):
        o = self.opt
        ST = self.ST; NEG = self.NEG; SEL = self.SEL
        def inter(LL):
            out = []
            for step in range(max(len(l) for l in LL)):
                for l in LL:
                    if step < len(l): out += mk(l[step])
            return out
        c = []
        c += self.csread(8, 3) + self.csread(12, 4) + self.csread(44, 0)
        if not o.halo: c += self.csread(48, 1) + self.csread(52, 2, 1)
        vs = lambda i: 192 + 8 * (i % 4) if i < 8 else 78
        def vsread(i): return mk(f"ds_read_b128 {V4(vs(i))}, v43 offset:{64*i}\nds_read_b128 {V4(vs(i)+4)}, v43 offset:{576+64*i}")
        c += vsread(8)
        hst = []
        for j in range(4):
            gu = self.gu_unit(8, aG(2*j), aU(2*j), aG(2*j+1), aU(2*j+1), ST+2+4*j, ST+4+4*j, VST+j, sU[0])
            hst.append([gu.pop()])
            c += gu + vsread(j)
        c += self.stamp(6)
        c += mk("s_waitcnt lgkmcnt(0)\ns_barrier")
        if o.epistamps: c += self.stamp(2, True)
        head = c; c = []
        st = self.round2(self.R2_E) + self.round2(range(29, 36))
        if o.halo:
            c += [I(f"v_mov_b32_dpp v{48+r}, v{aK(0)+r} row_newbcast:0 row_mask:0xf bank_mask:0xf") for r in range(4)]
            c += mk(f"v_mov_b32 v52, v{aV(0)}\nv_mov_b32 v53, v{aV(0)}\ns_nop 0\nv_permlane16_swap_b32 v52, v53\nv_mov_b32 v53, v52\ns_nop 1\nv_permlane32_swap_b32 v52, v53")
        kp = lambda i: 8 + 2 * i if i < 4 else 18 + 2 * (i - 4) if i < 8 else 86
        def kfix(i):
            k = aK(i); stp = ST + 2 * i
            return [f"v_pk_fma_f32 {V2(k)}, {V2(48)}, {V2(stp)}, {V2(k)} {NEG}",
                    f"v_pk_fma_f32 {V2(k+2)}, {V2(50)}, {V2(stp)}, {V2(k+2)} {NEG}",
                    f"v_pk_mul_f32 {V2(k)}, {V2(k)}, {V2(stp)} op_sel_hi:[1,0]",
                    f"v_pk_mul_f32 {V2(k+2)}, {V2(k+2)}, {V2(stp)} op_sel_hi:[1,0]",
                    f"v_cvt_pk_bf16_f32 v{kp(i)}, v{k}, v{k+1}",
                    f"v_cvt_pk_bf16_f32 v{kp(i)+1}, v{k+2}, v{k+3}"]
        qp = lambda i: 120 + 2 * i
        def qfix(i):
            q = aQ(i); stp = ST + 2 * (i + 1)
            return [f"v_pk_fma_f32 {V2(q)}, {V2(44)}, {V2(stp)}, {V2(q)} {NEG}",
                    f"v_pk_fma_f32 {V2(q+2)}, {V2(46)}, {V2(stp)}, {V2(q+2)} {NEG}",
                    f"v_cvt_pk_bf16_f32 v{qp(i)}, v{q}, v{q+1}",
                    f"v_cvt_pk_bf16_f32 v{qp(i)+1}, v{q+2}, v{q+3}"]
        NEGV = "op_sel_hi:[1,0,1] neg_lo:[0,1,0] neg_hi:[0,1,0]"
        vp = lambda i: 136 + 2 * i
        def vfix(i):
            v = aV(i); s_ = vs(i)
            return [f"v_pk_fma_f32 {V2(v)}, {V2(s_+4)}, {V2(52)}, {V2(v)} {NEGV}",
                    f"v_pk_fma_f32 {V2(v+2)}, {V2(s_+6)}, {V2(52)}, {V2(v+2)} {NEGV}",
                    f"v_pk_mul_f32 {V2(v)}, {V2(v)}, {V2(s_)}",
                    f"v_pk_mul_f32 {V2(v+2)}, {V2(v+2)}, {V2(s_+2)}",
                    f"v_cvt_pk_bf16_f32 v{vp(i)}, v{v}, v{v+1}",
                    f"v_cvt_pk_bf16_f32 v{vp(i)+1}, v{v+2}, v{v+3}"]
        c += inter([kfix(i) for i in range(9)])
        c += mk("s_waitcnt lgkmcnt(0)")
        c += inter([vfix(i) for i in (0, 1, 2, 3, 8)])
        for i in range(4, 8): c += vsread(i)
        c += inter([qfix(i) for i in range(8)])
        c += mk("s_waitcnt lgkmcnt(0)")
        c += inter([vfix(i) for i in range(4, 8)])
        if o.aint:
            z = []
            for h in hst: z += [h] + st[:o.aint]; st = st[o.aint:]
            st = z + st
        else: st = st[:o.hpos] + hst + st[o.hpos:]
        n1 = o.nfirst_a
        head += self.sprinkle(c, st[:n1], 0, len(c))
        if o.epistamps: head += self.stamp(3, True) + self.stamp(4, True)
        c = []
        MK = "v_mfma_f32_16x16x16_bf16"
        sp = lambda i: 88 + 8 * i if i < 4 else 156 + 8 * (i - 4)
        sch = f2h(0.25 * 1.4426950408889634)
        def smf(i):
            bp = BIAS + 8 if i == 0 else BIAS
            return [f"{MK} {V4(sp(i))}, {V2(kp(i))}, {V2(qp(i))}, {V4(bp)}", f"{MK} {V4(sp(i)+4)}, {V2(kp(i+1))}, {V2(qp(i))}, {V4(BIAS+4)}"]
        def merge(i):
            s_ = sp(i)
            return [f"v_max3_f32 v{s_}, v{s_}, v{s_+1}, v{s_+4}", f"v_max3_f32 v{s_+2}, v{s_+2}, v{s_+3}, v{s_+6}",
                    f"v_max_f32 v{s_}, v{s_}, v{s_+5}", f"v_max_f32 v{s_+1}, v{s_+2}, v{s_+7}",
                    f"v_mul_f32 v{s_+4}, {sch}, v{ST+2*(i+1)}", f"v_max_f32 v{s_+2}, v{s_}, v{s_+1}"]
        for i in range(8):
            a = smf(i); b = merge(i - 3) if i >= 3 else []
            c += mk(a[0]) + mk("\n".join(b[:3])) + mk(a[1]) + mk("\n".join(b[3:]))
        c += inter([merge(i) for i in (5, 6, 7)])
        def cross(A, B, C, D):
            a, b, cc, d = (sp(x) + 2 for x in (A, B, C, D))
            return [f"v_permlane32_swap_b32 v{a}, v{b}", f"v_permlane32_swap_b32 v{cc}, v{d}",
                    f"v_max_f32 v{a}, v{a}, v{b}", f"v_max_f32 v{cc}, v{cc}, v{d}", "s_nop 0",
                    f"v_permlane16_swap_b32 v{a}, v{cc}", f"v_max_f32 v{a}, v{a}, v{cc}", f"v_mov_b32 v{cc}, v{a}", "s_nop 0",
                    f"v_permlane16_swap_b32 v{a}, v{cc}", f"v_mov_b32 v{b}, v{a}", f"v_mov_b32 v{d}, v{cc}",
                    f"v_permlane32_swap_b32 v{a}, v{b}", f"v_permlane32_swap_b32 v{cc}, v{d}"]
        c += [x for x in inter([cross(0, 1, 2, 3), cross(4, 5, 6, 7)]) if x.op != "s_nop"]
        O = lambda i: 192 + 4 * i
        oq = lambda i: 120 + 4 * (i // 2) + 2 * (i % 2)
        def expo(i):
            s_ = sp(i)
            return [f"v_mul_f32_e64 v{s_+5}, -v{s_+2}, v{s_+4}",
                    f"v_fma_f32 v{s_}, v{s_}, v{s_+4}, v{s_+5}", f"v_fma_f32 v{s_+1}, v{s_+1}, v{s_+4}, v{s_+5}",
                    f"v_exp_f32 v{s_}, v{s_}", f"v_exp_f32 v{s_+1}, v{s_+1}",
                    f"v_cvt_pk_bf16_f32 v{s_+2}, v{s_}, v{s_+1}"] + [f"v_perm_b32 v{s_+4+k}, 0, v{s_+2}, v{SEL+k}" for k in range(4)]
        def pv(i): return [f"{M16} {V4(sp(i))}, {A4(ONES)}, {V4(sp(i)+4)}, 0", f"{M16} {V4(O(i))}, {V4(vp(i))}, {V4(sp(i)+4)}, 0"]
        def fin(i):
            d = oq(i)
            return [f"v_rcp_f32 v{sp(i)}, v{sp(i)}"] + [f"v_mul_f32 v{O(i)+r}, v{O(i)+r}, v{sp(i)}" for r in range(4)] + \
                   [f"v_cvt_pk_bf16_f32 v{d}, v{O(i)}, v{O(i)+1}", f"v_cvt_pk_bf16_f32 v{d+1}, v{O(i)+2}, v{O(i)+3}"]
        E = [inter([expo(2 * p), expo(2 * p + 1)]) for p in range(4)]
        F = [inter([fin(2 * p), fin(2 * p + 1)]) for p in range(4)]
        P = [mk("\n".join(pv(2 * p) + pv(2 * p + 1))) for p in range(4)]
        def mix(valu, mf, first=2, every=3):
            out = []; mf = list(mf)
            for k, x in enumerate(valu):
                if mf and k >= first and (k - first) % every == 0: out.append(mf.pop(0))
                out.append(x)
            return out + mf
        def swp(r): return mk(f"v_permlane16_swap_b32 v{r}, v{r+2}\nv_permlane16_swap_b32 v{r+1}, v{r+3}")
        if o.anew:
            pre = c
            ost = lambda j: [I(f"buffer_store_dwordx4 {V4(120+4*j)}, v{8+j}, {sWS}, {sU[1]} offen sc1")] if j < o.oearly else []
            c = E[0] + mix(E[1], P[0]) + mix(E[2], P[1]) + F[0] + swp(120) + ost(0)
            c += mix(E[3], P[2]) + mix(F[1], P[3]) + swp(124) + ost(1) + F[2] + swp(128) + ost(2) + F[3] + swp(132)
            vst = [I(f"v_mov_b32 v{8+j}, v{VST+j}") for j in range(4)]
            su = vst + self.polladdr() + self.p2setup() + self.flagaddr(sT2, 0 if o.hflag2 == 1 else 128)
            k = len(st) - o.pollahead
            n2 = min(k, n1 + o.nstage_a)
            pre = self.sprinkle(pre, st[n1:n2], 0, len(pre))
            items = [[x] for x in su]
            c = self.sprinkle(c, items, 0, int(len(c) * 0.6))
            late = st[n2:k] + [self.poll_issue(0)] + st[k:]
            c = self.sprinkle(c, late, int(len(c) * o.latefrom), int(len(c) * o.lateto) - o.pollpos)
            nx = len([1 for x in c[[i for i, x in enumerate(c) if x.text == late[k - n2][0].text][0] + 1:] if x.kind == "vmem"])
            if o.hflag2 == 2:
                hp = head + pre
                ny = len([1 for x in hp[max(k for k, x in enumerate(hp) if x.kind == "vmem" and x.data) + 1:] if x.kind == "vmem"])
                pre = pre + self.flagaddr("s64", 256) + mk(f"s_waitcnt vmcnt({ny})" + ("\ns_barrier" if o.wgflag else "")) + self.flagstore("s64", 12)
            c = head + pre + c
            c += self.stamp(7)
            c += [I(f"buffer_store_dwordx4 {V4(120+4*j)}, v{8+j}, {sWS}, {sU[1]} offen sc1") for j in range(o.oearly, 4)]
            c += mk(f"s_waitcnt vmcnt({nx + 4 - o.oearly})")
            if o.hflag2 == 1: c += self.flagstore(sT2, 12) + mk(f"s_add_u32 {sT2}, {sT2}, 128")
            return c
        c += E[0] + mix(E[1], P[0]) + mix(E[2], P[1]) + F[0] + swp(120)
        c += mix(E[3], P[2]) + mix(F[1], P[3]) + swp(124) + F[2] + swp(128) + F[3] + swp(132)
        na = min(n1 + o.nstage_a, len(st) - o.pollahead)
        c = head + self.sprinkle(c, st[n1:na], 0, len(c))
        c += self.stamp(7)
        c += [I(f"buffer_store_dwordx4 {V4(120+4*j)}, v{VST+j}, {sWS}, {sU[1]} offen sc1") for j in range(4)] if o.ofirst else []
        su = self.polladdr() + self.p2setup() + self.flagaddr(sT2, 0 if o.hflag2 else 128)
        k = len(st) - o.pollahead
        vst = [I(f"v_mov_b32 v{8+j}, v{VST+j}") for j in range(4)]
        c += vst + self.sprinkle(su, st[na:k], 0, len(su))
        c += self.poll_issue(0)
        for it in st[k:]: c += it
        if not o.ofirst: c += [I(f"buffer_store_dwordx4 {V4(120+4*j)}, v{8+j}, {sWS}, {sU[1]} offen sc1") for j in range(4)]
        c += mk(f"s_waitcnt vmcnt({o.pollahead + (0 if o.ofirst else 4)})")
        if o.hflag2: c += self.flagstore(sT2, 12) + mk(f"s_add_u32 {sT2}, {sT2}, 128")
        return c

    POLL = 58
    def polladdr(self):
        return mk(f"""
s_lshr_b32 s81, {sR}, 1
s_lshl_b32 s81, s81, 1
s_and_b32 {sT1}, {sW}, 1
s_add_u32 s81, s81, {sT1}
s_lshl_b32 s81, s81, 10
s_add_u32 s81, s81, {WS_FLAG}
v_and_b32 v16, 15, {vL}
v_lshlrev_b32 v16, 3, v16
v_bfe_u32 v{self.POLL}, {vL}, 4, 1
v_lshl_add_u32 v16, v{self.POLL}, 9, v16
""")
    def poll_issue(self, off, reg=None):
        return mk(f"buffer_load_dwordx2 {V2(reg or self.POLL)}, v16, {sWS}, s81 offen offset:{off} sc1")
    PT = 18; PW = 24; PX = 27; PY = 29; VXO = 34; XR = 36
    def p2setup(self):
        PT, PW, PX, PY, VXO, XR = self.PT, self.PW, self.PX, self.PY, self.VXO, self.XR
        c = mk(f"""
s_lshl_b32 {sT0}, {sR}, 1
s_lshr_b32 {sT1}, {sW}, 1
s_add_u32 {sT0}, {sT0}, {sT1}
s_lshl_b32 s59, {sT0}, 5
s_mul_i32 {sT0}, {sT0}, {RBS}
s_and_b32 {sT1}, {sW}, 1
s_lshl_b32 {sB[0]}, {sT1}, 14
s_add_u32 {sB[0]}, {sB[0]}, {sT0}
s_add_u32 {sB[1]}, {sB[0]}, {32*1024}
s_lshl_b32 {sB[2]}, {sT1}, 15
s_add_u32 {sB[2]}, {sB[2]}, {sT0}
s_add_u32 {sB[2]}, {sB[2]}, {64*1024}
s_lshl_b32 {sB[3]}, {sT1}, 13
s_add_u32 {sB[3]}, {sB[3]}, {sT0}
s_add_u32 {sB[3]}, {sB[3]}, {128*1024}
v_lshlrev_b32 v2, 4, {vL}
v_lshrrev_b32 v4, 2, {vL}
v_add_u32 v6, s59, v4
v_and_b32 v5, 3, {vL}
v_lshlrev_b32 v3, 4, v5
v_lshl_add_u32 v6, v6, 10, v3
s_lshl_b32 {sT0}, {sC}, 7
s_lshl_b32 {sT1}, {sT1}, 6
s_add_u32 {sT0}, {sT0}, {sT1}
v_add_u32 v{VXO}, {sT0}, v6
v_add_u32 v{VXO+1}, 0x4000, v{VXO}
buffer_load_dwordx4 {V4(XR)}, v{VXO}, {sX}, 0 offen
buffer_load_dwordx4 {V4(XR+4)}, v{VXO+1}, {sX}, 0 offen
v_and_b32 v6, 31, {vL}
v_add_u32 v3, s59, v6
v_lshlrev_b32 v33, 4, v3
v_add_u32 v{PW}, {sT3}, v2
v_add_u32 v{PW+1}, 0x10000, v{PW}
v_add_u32 v{PW+2}, 0x20000, v{PW}
v_xor_b32 v{PX}, 0x800, v{PW}
; output transpose (private 2KB at 131072 + w*2048): write s*64 + ((2jj+hi)^((s>>1)&3))*16 ; read row*64 + (q^((row>>1)&3))*16
v_lshrrev_b32 v3, 5, {vL}
v_bfe_u32 v{PY}, {vL}, 1, 2
v_xor_b32 v3, v3, v{PY}
v_lshlrev_b32 v3, 4, v3
v_lshl_add_u32 v3, v6, 6, v3
s_add_u32 {sT0}, {sT3}, {7*8192}
v_add_u32 v{PY}, {sT0}, v3
v_xor_b32 v{PY+1}, 32, v{PY}
v_bfe_u32 v3, {vL}, 3, 2
v_xor_b32 v3, v3, v5
v_lshlrev_b32 v3, 4, v3
v_lshl_add_u32 v3, v4, 6, v3
v_add_u32 v{PY+2}, {sT0}, v3
""")
        c += self.traddr([PT + k for k in range(6)])
        return c

    def phase2(self):
        o = self.opt
        BF = [112, 144]; SACC = 176; DACC = 64; ABUF = 144; DEPTH = o.depth
        PT, PW, PX, PY, VXO, XR, POLL = self.PT, self.PW, self.PX, self.PY, self.VXO, self.XR, self.POLL
        TILES = self.TILES
        c = mk("L_join:")
        c += self.stamp(8)
        if o.p1only:
            return c
        def bread(t):
            out = []
            if t < 5: return out
            for h in range(4):
                sg = 2 * self.slot((4 * t + h) // 2) + (h & 1)
                for cb in range(2):
                    for e in range(2):
                        out.append(I(f"ds_read_b64_tr_b16 {A2(BF[t&1]+8*h+4*cb+2*e)}, v{PT+2*(sg//16)+cb} offset:{(sg%16)*4096+e*512}"))
            return out
        c += mk(f"""
v_cmp_ne_u64 vcc, {sNon}, {V2(POLL)}
s_nop 0
s_and_b32 vcc_lo, vcc_lo, {0x1100 if o.split else 0x11001100 if o.wgflag else 0xff00ff00}
s_cbranch_scc1 L_slow_e
L_go:
""")
        PR = [POLL, 62, 64, 66]
        pe = mk(f"L_slow_e:\ns_mov_b32 {sCnt}, 0" + ("\ns_or_b32 s99, s99, 4" if o.stamps else ""))
        NP = o.npoll
        for k in range(NP - 1): pe += self.poll_issue(0, PR[k]) + mk("s_sleep 4")
        if NP == 1 and o.psleep: pe += mk(f"s_branch L_se\nL_se2:\ns_sleep {o.psleep}")
        pe += mk("L_se:")
        for k in range(NP):
            pe += self.poll_issue(0, PR[(k + NP - 1) % NP]) + mk(f"s_waitcnt vmcnt({NP - 1})\nv_cmp_ne_u64 vcc, {sNon}, {V2(PR[k])}\ns_nop 1\ns_and_b32 vcc_lo, vcc_lo, {0x1100 if o.split else 0x11001100 if o.wgflag else 0xff00ff00}\ns_cbranch_scc0 L_se_done")
        pe += mk(f"""
s_add_u32 {sCnt}, {sCnt}, 1
s_cmp_gt_u32 {sCnt}, 10000
s_cbranch_scc0 {"L_se2" if NP == 1 and o.psleep else "L_se"}
L_se_done:
s_branch L_go
""")
        for z in range(2 if o.hflag2 else 1):
            pe += mk(f"L_slow_o{z}:\ns_mov_b32 {sCnt}, 0" + ("\ns_or_b32 s99, s99, 8" if o.stamps else "") + f"\nL_so{z}:") + self.poll_issue(256 if (o.hflag2 and z == 0) else 128) + mk(f"""
s_add_u32 {sCnt}, {sCnt}, 1
s_waitcnt vmcnt(0)
v_cmp_ne_u64 vcc, {sNon}, {V2(POLL)}
s_and_b32 vcc_lo, vcc_lo, {0x110011 if o.wgflag else 0xff00ff}
s_cbranch_scc0 L_back_o{z}
s_cmp_gt_u32 {sCnt}, 20000
s_cbranch_scc0 L_so{z}
s_branch L_back_o{z}
""")
        if o.split:
            pe += mk(f"L_slow_q:\ns_mov_b32 {sCnt}, 0\nL_sq:") + self.poll_issue(0) + mk(f"""
s_add_u32 {sCnt}, {sCnt}, 1
s_waitcnt vmcnt(0)
v_cmp_ne_u64 vcc, {sNon}, {V2(POLL)}
s_and_b32 vcc_lo, vcc_lo, 0x11000000
s_cbranch_scc0 L_back_q
s_cmp_gt_u32 {sCnt}, 20000
s_cbranch_scc0 L_sq
s_branch L_back_q
""")
        self.slow2 = pe
        c += self.stamp(9) + self.stamp(10)
        vm = []
        def aload(t):
            r, k = TILES[2 * t]; b = ABUF + 16 * (t % DEPTH)
            vm.extend([("a", t)] * 4)
            t0 = f"s_add_u32 {sT0}, {sB[r]}, {k*1024}" if not o.rot else f"s_add_u32 {sT0}, s63, {k*1024}\ns_and_b32 {sT0}, {sT0}, {self.RSIZE[r]*1024 - 1}\ns_add_u32 {sT0}, {sT0}, {sB[r]}"
            return mk(t0) + [I(f"buffer_load_dwordx4 {V4(b+4*h)}, v2, {sWS}, {sT0} offen offset:{1024*h} sc1") for h in range(4)]
        def young(tag): return len(vm) - 1 - max(k for k, t in enumerate(vm) if t == tag)
        for t in range(o.burst): c += aload(t)
        c += mk(f"s_mov_b32 {sT1}, {WS_STAT}\nbuffer_load_dword v{XR+8}, v33, {sWS}, {sT1} offen sc1"); vm.append(("rs", 0))
        c += mk(f"s_waitcnt vmcnt({len(vm)})")
        c += (mk("s_barrier") if o.wgflag else []) + self.flagstore(sT2, 12); vm.append(("fl", 0))
        c += mk("" if o.wgflag else "s_barrier")
        c += bread(0)
        M32 = "v_mfma_f32_32x32x16_bf16"
        issued = o.burst; nwr = 0
        TP = 10 - o.burst - o.plead; TP2 = 14 - o.burst - o.plead
        xo = [24576, 25600, 32768, 33792]
        RX = ABUF + 16 * (12 % DEPTH)
        TM = ABUF + 16 * (13 % DEPTH)
        el = range(16)
        xun = []
        for k in range(8):
            xun += mk(f"v_lshlrev_b32 v{46+2*k}, 16, v{XR+k}\nv_and_b32 v{47+2*k}, 0xffff0000, v{XR+k}")
        pre_d = mk(f"v_mul_f32 v{XR+8}, v{XR+8}, v{XR+8}\nv_mul_f32 v{XR+9}, 0xbfb8aa3b, v{XR+8}\nv_mov_b32 v62, 1.0")
        def stage(k, e, pk):
            D, R, T = DACC + e, RX + e, TM + e
            if not pk:
                return [f"v_add_f32 v{D}, v{D}, v{R}", f"v_mul_f32 v{T}, v{XR+9}, v{D}", f"v_exp_f32 v{T}, v{T}", f"v_mul_f32 v{D}, v{XR+8}, v{D}",
                        f"v_add_f32 v{T}, 1.0, v{T}", f"v_rcp_f32 v{T}, v{T}", f"v_mul_f32 v{D}, v{D}, v{T}"][k]
            return [f"v_pk_add_f32 {V2(D)}, {V2(D)}, {V2(R)}", f"v_pk_mul_f32 {V2(T)}, {V2(D)}, {V2(XR+8)} op_sel:[0,1] op_sel_hi:[1,1]", None,
                    f"v_pk_mul_f32 {V2(D)}, {V2(D)}, {V2(XR+8)} op_sel_hi:[1,0]", f"v_pk_add_f32 {V2(T)}, {V2(T)}, {V2(62)} op_sel_hi:[1,0]", None,
                    f"v_pk_mul_f32 {V2(D)}, {V2(D)}, {V2(T)}"][k]
        todo = [(k, e) for k in range(7) for e in el]
        def take(n):
            out = [I(stage(k, e, False)) for k, e in todo[:n]]; del todo[:n]
            return out
        def rest_packed():
            out = []
            while todo:
                k, e = todo.pop(0)
                if e % 2 == 0 and todo and todo[0] == (k, e + 1) and stage(k, e, True): todo.pop(0); out.append(I(stage(k, e, True)))
                else: out.append(I(stage(k, e, False)))
            return out
        BARS = [9, 13, 15]
        for t in range(18):
            b = ABUF + 16 * (t % DEPTH)
            bar = t in BARS
            c += mk(f"s_waitcnt vmcnt({young(('a', t))}) lgkmcnt({0 if (bar or t == 16) else nwr})" + ("\ns_barrier" if bar else ""))
            if o.p2stamps and t in (0, 4, 9, 14, 16, 17): c += self.stamp({0: 2, 4: 3, 9: 4, 14: 5, 16: 6, 17: 7}[t], True)
            mm = []
            for h in range(4):
                for cb in range(2):
                    k = 16 * cb
                    d = f"v[{96+k}:{96+k+15}]" if t >= 14 else f"v[{DACC+k}:{DACC+k+15}]"
                    cc = "0" if (t in (0, 14) and h == 0) else d
                    mm.append(I(f"{M32} {d}, {A4((self.frag(4*t+h) if t < 5 else BF[t&1]+8*h)+4*cb)}, {V4(b+4*h)}, {cc}"))
            lds = bread(t + 1) if t < 17 else []
            wr = []
            if True:
                for k in {9: range(0, 4), 10: range(4, 8), 11: range(8, 11), 12: range(11, 14)}.get(t, []):
                    u = 29 + k // 2; blk = k & 1; sg = self.slot(u)
                    wr.append(I(f"ds_write_b128 v{PW+sg//8}, {A4(self.stg(u, blk))} offset:{(sg%8)*8192+blk*1024}"))
            if t == 14:
                wr += [I(f"ds_write_b128 v{PW}, {V4(DACC+16+4*p)} offset:{xo[p]}") for p in range(4)]
            if t == 15:
                lds = [I(f"ds_read_b128 {V4(RX+4*p)}, v{PX} offset:{xo[p]}") for p in range(4)] + lds
            if t == 14: wr += pre_d
            if t == 15: wr += xun
            if t >= 16: wr = take(o.dsh[t - 16])
            ld = []
            if False:
                ld += self.flagstore(sT2, 12); vm.append(("fl", 0))
            if o.split and t == 4 - o.burst - o.split: ld += self.poll_issue(0, 62); vm.append(("po", 2))
            if t == TP: ld += self.poll_issue(256 if o.hflag2 else 128); vm.append(("po", 0))
            if t == TP2 and o.hflag2: ld += self.poll_issue(128, 60); vm.append(("po", 1))
            if issued < 18 and issued - DEPTH < t:
                if o.split and issued == 4:
                    ld.append(mk(f"s_waitcnt vmcnt({young(('po', 2))})\nv_cmp_ne_u64 vcc, {sNon}, {V2(62)}\ns_nop 0\ns_and_b32 vcc_lo, vcc_lo, 0x11000000\ns_cbranch_scc1 L_slow_q\nL_back_q:"))
                if issued in ((10, 14) if o.hflag2 else (10,)):
                    z = int(issued == 14)
                    ld.append(mk(f"s_waitcnt vmcnt({young(('po', z))})\nv_cmp_ne_u64 vcc, {sNon}, {V2(60 if z else POLL)}\ns_nop 0\ns_and_b32 vcc_lo, vcc_lo, {0x110011 if o.wgflag else 0xff00ff}\ns_cbranch_scc1 L_slow_o{z}\nL_back_o{z}:"))
                ld += aload(issued); issued += 1
            seq = []
            while ld or wr:
                if ld: seq.append(ld.pop(0))
                if wr: seq.append(wr.pop(0))
            if "m" in o.p2: mm = [I("s_nop 0") for _ in mm]
            if "r" in o.p2: lds = [x for x in lds if "tr" not in x.op]
            if "h" in o.p2: lds = [x for k, x in enumerate(lds) if "tr" not in x.op or k % 2 == 0]
            if "b" in o.p2: lds = [I(x.text.replace("ds_read_b64_tr_b16", "ds_read_b64")) for x in lds]
            if "w" in o.p2: seq = [x for x in seq if isinstance(x, list) or not x.op.startswith("ds_write")]
            wv = weave(mm, lds, seq, per_gap=(6 if t >= 16 else o.p2gap), lds_per_gap=o.p2lds, oth_start=(2 if t == 14 else 0))
            dsl = [x for x in wv if x.kind == "ds"]
            last = max([k for k, x in enumerate(dsl) if x.op.startswith("ds_read")], default=-1)
            nwr = len(dsl) - 1 - last
            if o.align == 3:
                for i in wv: i.padok = False
            c += wv
        c += self.stamp(11)
        dval = rest_packed()
        lead = min(8, len(dval))
        c += dval[:lead]; dval = dval[lead:]
        per = -(-len(dval) // 8)
        for p in range(4):
            c += mk(f"ds_write_b128 v{PW}, {V4(112+4*p)} offset:{16384+xo[p]}") + dval[:per]; dval = dval[per:]
        SV = 96
        c += mk("s_waitcnt lgkmcnt(0)\ns_barrier")
        c += [I(f"ds_read_b128 {V4(RX+4*p)}, v{PX} offset:{16384+xo[p]}") for p in range(4)]
        c += dval
        c += mk("s_waitcnt lgkmcnt(0)")
        c += [I(f"v_pk_add_f32 {V2(SV+2*e)}, {V2(SV+2*e)}, {V2(RX+2*e)}") for e in range(8)]
        c += [I(f"v_pk_mul_f32 {V2(SV+2*e)}, {V2(SV+2*e)}, {V2(DACC+2*e)}") for e in range(8)]
        c += [I(f"v_cvt_pk_bf16_f32 v{8+e}, v{SV+2*e}, v{SV+2*e+1}") for e in range(8)]
        c += mk(f"""
ds_write_b128 v{PY}, {V4(8)}
ds_write_b128 v{PY+1}, {V4(12)}
ds_read_b128 {V4(112)}, v{PY+2}
ds_read_b128 {V4(116)}, v{PY+2} offset:1024
""")
        for hh in range(2):
            c += mk(f"s_waitcnt lgkmcnt({1-hh})")
            for k in range(4):
                c += mk(f"v_lshlrev_b32 v{SV+8*hh+2*k}, 16, v{112+4*hh+k}\nv_and_b32 v{SV+8*hh+2*k+1}, 0xffff0000, v{112+4*hh+k}")
            for k in range(4): c += mk(f"v_pk_add_f32 {V2(SV+8*hh+2*k)}, {V2(SV+8*hh+2*k)}, {V2(46+8*hh+2*k)}")
            for k in range(4): c += mk(f"v_cvt_pk_bf16_f32 v{120+4*hh+k}, v{SV+8*hh+2*k}, v{SV+8*hh+2*k+1}")
            c += mk(f"buffer_store_dwordx4 {V4(120+4*hh)}, v{VXO+hh}, {sOUT}, 0 offen {o.outfl}")
        return c

    def finish(self):
        c = []
        if self.opt.amp:
            k, mult = self.opt.amp
            c += self.stamp(12)
            c += mk(f"""
s_waitcnt vmcnt(0)
s_cmp_lg_u32 s2, 77
s_cbranch_scc1 L_end
v_readlane_b32 s96, v7, {k}
s_sub_u32 s96, s96, s98
s_mul_i32 s96, s96, {mult}
s_min_u32 s96, s96, 100000
s_memrealtime s[100:101]
s_waitcnt lgkmcnt(0)
s_add_u32 s96, s96, s100
L_amp:
s_memrealtime s[100:101]
s_waitcnt lgkmcnt(0)
s_sub_u32 s97, s96, s100
s_cmp_gt_i32 s97, 0
s_cbranch_scc1 L_amp
L_end:
s_endpgm
""")
            return c
        if self.opt.stamps:
            c += self.stamp(12)
            c += mk(f"""
s_waitcnt vmcnt(0)
s_memrealtime s[96:97]
s_waitcnt lgkmcnt(0)
v_writelane_b32 v7, s96, 13
v_writelane_b32 v7, s98, 0
v_writelane_b32 v7, {sTyp}, 14
v_writelane_b32 v7, s99, 15
s_add_u32 s{bWS}, s66, {STAMP}
s_addc_u32 s{bWS+1}, s67, 0
s_mov_b32 s{bWS+2}, 0x100000
s_lshl_b32 {sT0}, s2, 2
s_add_u32 {sT0}, {sT0}, {sW}
s_lshl_b32 {sT0}, {sT0}, 7
v_lshlrev_b32 v4, 2, {vL}
s_mov_b64 exec, 0xffffffff
buffer_store_dword v7, v4, {sWS}, {sT0} offen
""")
        c += mk("L_end:\ns_endpgm")
        return c

    def build(self):
        pro = self.prologue()
        nv = 2 if self.opt.shift else 1
        parts = {}
        for t in range(2):
            for v in range(nv):
                c, slow = self.type_code(t, v)
                k = [i for i, x in enumerate(c) if x is self.loop_last][0] + 1
                parts[t, v] = (c[:k], c[k:], slow)
        p2 = self.phase2()
        fin = self.finish()
        tot = 0
        for (t, v), (lp, ep, slow) in parts.items():
            ep = parts[t, nv - 1][1]
            tot += fix_hazards(pro + lp + ep + p2 + fin, self.opt.verbose)
        for (t, v), (lp, ep, slow) in parts.items():
            fix_hazards(slow, self.opt.verbose)
            e, mx = check_waits(pro + lp + parts[t, nv - 1][1] + p2 + fin, f"t{t}{v}")
            print(f"type {t} ver {v}: wait errors {e}, max vm outstanding {mx}", file=sys.stderr)
        print(f"inserted nop states: {tot}", file=sys.stderr)
        slow2 = getattr(self, "slow2", [])
        fix_hazards(slow2)
        code = list(pro)
        for t in range(2):
            for v in range(nv): code += parts[t, v][0]
            code += parts[t, nv - 1][1]
        code += p2 + fin
        for k in parts: code += parts[k][2]
        code += slow2
        L = KN + "_kernel"
        if self.opt.align:
            wrap = lambda t: f'.amdgcn_target "amdgcn-amd-amdhsa--gfx950"\n.text\n.p2align 8\n{t}L_codeend:\n'
            print("align (promoted, padded):", align8(code, wrap, self.opt.align > 1), file=sys.stderr)
        hdr = open("cdna_kernels/" + KN + ".s.ref").read().split("; Override launch")[0] if self.opt.final else ""
        out = hdr + f"; @launch grid=(256,1,1) block=(256,1,1) lds={LDS_BYTES}\n"
        out += f'.amdgcn_target "amdgcn-amd-amdhsa--gfx950"\n.text\n.globl {L}\n.p2align 8\n.type {L},@function\n{L}:\n'
        out += text(code)
        out += "s_endpgm\n.p2align 6\nL_codeend:\n"
        out += f""".section .rodata,"a"
.p2align 6
.amdhsa_kernel {L}
  .amdhsa_next_free_vgpr 512
  .amdhsa_next_free_sgpr 102
  .amdhsa_accum_offset 256
  .amdhsa_group_segment_fixed_size 0
  .amdhsa_kernarg_size 80
  .amdhsa_user_sgpr_count 2
  .amdhsa_user_sgpr_kernarg_segment_ptr 1
  .amdhsa_system_sgpr_workgroup_id_x 1
  .amdhsa_float_denorm_mode_32 3
.end_amdhsa_kernel
"""
        return out

if __name__ == "__main__":
    ap = argparse.ArgumentParser()
    ap.add_argument("-o", default="k.s")
    for f in ("stamps", "p1only", "verbose", "final", "nomfma", "noreads", "nocs", "nopf", "epistamps", "prostamps", "p2stamps"): ap.add_argument("--" + f, action="store_true")
    ap.add_argument("--p2", default="")
    ap.add_argument("--p2gap", type=int, default=4)
    ap.add_argument("--burst", type=int, default=3)
    ap.add_argument("--ramp", type=int, default=2)
    ap.add_argument("--nstage_b", type=int, default=0)
    ap.add_argument("--depth", type=int, default=7)
    ap.add_argument("--pf0", type=int, default=2)
    ap.add_argument("--tlb", type=int, default=0)
    ap.add_argument("--kgroups", type=int, default=4)
    ap.add_argument("--quota", type=int, default=10)
    ap.add_argument("--ko", default="")
    ap.add_argument("--shares", default="")
    ap.add_argument("--skip37", type=int, default=0)
    ap.add_argument("--cflip", type=int, default=0)
    ap.add_argument("--rotadd", type=int, default=0)
    ap.add_argument("--wide", type=int, default=0)
    ap.add_argument("--split", type=int, default=0)
    ap.add_argument("--gord", type=lambda x: [int(c) for c in x], default=[0, 1, 2, 3, 4])
    ap.add_argument("--xmix", type=int, default=0)
    ap.add_argument("--slowlast", type=int, default=0)
    ap.add_argument("--afirst", type=int, default=0)
    ap.add_argument("--even", type=int, default=1)
    ap.add_argument("--evoff", type=float, default=0.5)
    ap.add_argument("--span", type=int, default=0)
    ap.add_argument("--mixrd", type=int, default=0)
    ap.add_argument("--shift", type=int, default=0)
    ap.add_argument("--verbit", type=int, default=0)
    ap.add_argument("--wgflag", type=int, default=1)
    ap.add_argument("--oearly", type=int, default=1)
    ap.add_argument("--lateto", type=float, default=0.8)
    ap.add_argument("--anew", type=int, default=1)
    ap.add_argument("--bdefer", type=int, default=12)
    ap.add_argument("--bint", type=int, default=0)
    ap.add_argument("--bint0", type=int, default=0)
    ap.add_argument("--aint", type=int, default=2)
    ap.add_argument("--qs", type=lambda x: [int(ch, 16) for ch in x], default=[int(ch, 16) for ch in "0aaaaaaaaaaa0000"])
    ap.add_argument("--qb", type=int, default=0)
    ap.add_argument("--sg", type=int, default=10)
    ap.add_argument("--ss", type=int, default=12)
    ap.add_argument("--sc", type=int, default=2)
    ap.add_argument("--cuts", type=lambda x: [int(v) for v in x.split(",")], default=[36, 56, 86])
    ap.add_argument("--xsched", default="0000000000000000")
    ap.add_argument("--xfirst", type=int, default=3)
    ap.add_argument("--plead", type=int, default=2)
    ap.add_argument("--pfa", type=int, default=0)
    ap.add_argument("--bearly", type=int, default=4)
    ap.add_argument("--stst", type=lambda x: [int(v) for v in x.split(",")], default=[1, 5, 11])
    ap.add_argument("--ntxt", type=int, default=0)
    ap.add_argument("--xt0", type=int, default=0)
    ap.add_argument("--hflag2", type=int, default=0)
    ap.add_argument("--psleep", type=int, default=0)
    ap.add_argument("--dsh", type=lambda x: [int(v) for v in x.split(",")], default=[28, 40])
    ap.add_argument("--latefrom", type=float, default=0.1)
    ap.add_argument("--pord", default="t1Xt")
    ap.add_argument("--walk", type=int, default=0)
    ap.add_argument("--wskip", type=int, default=120)
    ap.add_argument("--hearly", type=int, default=1)
    ap.add_argument("--hpos", type=int, default=0)
    ap.add_argument("--nfirst_a", type=int, default=12)
    ap.add_argument("--bsplit", type=int, default=4)
    ap.add_argument("--bpt", type=int, default=64)
    ap.add_argument("--nstage_a", type=int, default=6)
    ap.add_argument("--pollahead", type=int, default=2)
    ap.add_argument("--ofirst", type=int, default=0)
    ap.add_argument("--olate", type=int, default=0)
    ap.add_argument("--npoll", type=int, default=2)
    ap.add_argument("--rotc", type=int, default=0)
    ap.add_argument("--ut0", type=int, default=0)
    ap.add_argument("--utper", type=int, default=2)
    ap.add_argument("--utfl", default="")
    ap.add_argument("--rot", type=int, default=0)
    ap.add_argument("--probe", type=int, default=-1)
    ap.add_argument("--halo", type=int, default=1)
    ap.add_argument("--outfl", default="sc1")
    ap.add_argument("--protouch", type=int, default=2)
    ap.add_argument("--tfirst", type=int, default=1)
    ap.add_argument("--ntx", type=int, default=0)
    ap.add_argument("--ntw", type=int, default=0)
    ap.add_argument("--ntt", type=int, default=0)
    ap.add_argument("--late", type=int, default=0)
    ap.add_argument("--pford", default="h2,h3,h1,o")
    ap.add_argument("--hflag", type=float, default=0.5)
    ap.add_argument("--csplit", type=int, default=1)
    ap.add_argument("--quota0", type=int, default=11)
    ap.add_argument("--wtouch", type=int, default=2)
    ap.add_argument("--wfirst", type=int, default=1)
    ap.add_argument("--statlag", type=int, default=3)
    ap.add_argument("--rotmask", type=int, default=6)
    ap.add_argument("--pfsched", default="0011111111100000")
    ap.add_argument("--statstep", type=int, default=0)
    ap.add_argument("--pfrot", type=int, default=7)
    ap.add_argument("--amp", type=lambda x: tuple(int(v) for v in x.split(",")), default=None)
    ap.add_argument("--wsched", default="033333333333300000")
    ap.add_argument("--bars", default="1,3,5,7,9,11,13,15")
    ap.add_argument("--align", type=int, default=0)
    ap.add_argument("--proextra", type=int, default=1)
    ap.add_argument("--dshadow", type=int, default=60)
    ap.add_argument("--pollpos", type=int, default=5)
    ap.add_argument("--stsched", type=lambda x: [int(ch) for ch in x], default=[int(ch) for ch in "0000000000033334"])
    ap.add_argument("--p2lds", type=int, default=4)
    ap.add_argument("--pfslice", type=int, default=4096)
    opt = ap.parse_args()
    import subprocess, re, os
    for _ in range(2):
        open(opt.o, "w").write(G(opt).build())
        subprocess.check_call(["clang", "-x", "assembler", "-target", "amdgcn-amd-amdhsa", "-mcpu=gfx950", "-c", opt.o, "-o", opt.o + ".o"])
        t = subprocess.check_output(["llvm-objdump", "-t", opt.o + ".o"], text=True)
        sym = {m.group(2): int(m.group(1), 16) for m in re.finditer(r"^([0-9a-f]{16}) .* (L_\w+)$", t, re.M)}
        n = sym["L_codeend"] - sym["L_pc"]
        opt.pfslice = (n - 12288) // 7 // 16 * 16
        opt.pfslice = min(opt.pfslice, 8192)
        opt.verbose = False
    os.remove(opt.o + ".o")
    print("code bytes", sym["L_codeend"], "pfslice", opt.pfslice, {k: v for k, v in sym.items() if k in ("L_pc", "L_t10", "L_join", "L_go", "L_end")}, file=sys.stderr)
```

```python
import sys, argparse, struct
from fw import *
KN = "recurrent_scan__sliding_local_dilated__glu_gated_bilinear__prompt"

WSLOT = 20480
XBASE = 5 * WSLOT
XSLOT = 18432
MISC = XBASE + 3 * XSLOT
STATL = MISC
LDS_BYTES = 163840
RBS = 144 * 1024
WS_STAT = 0x900000
WS_FLAG = 0x910000
WS_SIZE = 0x920000
STAMP = 200 << 20
def S4(b): return f"s[{b}:{b+3}]"
bX, bWO, bWD, bOUT, bWS, bDBG = 4, 8, 12, 16, 20, 24
sX, sWO, sWD, sOUT, sWS, sDBG = map(S4, (bX, bWO, bWD, bOUT, bWS, bDBG))
bS = [28, 32, 36, 40, 44]; sS = [S4(b) for b in bS]
sW, sM, sN, sR, sC = "s68", "s69", "s70", "s71", "s72"
sKa, sKb, sIncA = "s73", "s74", "s75"
sWoff, sXoff, sHoff = "s76", "s77", "s78"
sIdx, sTyp = "s79", "s80"
sT0, sT1, sT2, sT3 = "s82", "s83", "s84", "s85"
sNon = "s[86:87]"; sNonL, sNonH = "s86", "s87"
sU = ["s88", "s89", "s90"]
sEx = "s[94:95]"
sB = ["s48", "s49", "s50", "s51"]
sWB = ["s52", "s53", "s56", "s57"]
sCnt = "s58"
sXc = "s93"; sXk = "s92"
vL = "v1"
vX = ["v8", "v9"]; vH = ["v10", "v11"]; vWg = ["v12", "v13", "v14", "v15", "v16"]; vB2 = "v17"
RA = 18
RT = 22
VST = 26
BIAS = 30
GAT = 76
NON = 56
GA = 58
SX = 60
V4 = lambda r: f"v[{r}:{r+3}]"
V2 = lambda r: f"v[{r}:{r+1}]"
A4 = lambda r: f"a[{r}:{r+3}]"
A2 = lambda r: f"a[{r}:{r+1}]"
CSACC = 228
ONES = 252
def f2h(x): return "0x%08x" % struct.unpack("<I", struct.pack("<f", x))[0]
aQ = lambda i: 88 + 4 * i
aK = lambda i: 120 + 4 * i
aV = lambda i: 156 + 4 * i
aG = lambda i: 192 + 4 * i
aU = lambda i: 224 + 4 * i
bAcc = lambda g, i: 96 + 32 * g + 4 * i
bMix = lambda u, i: 224 + 16 * u + 4 * i
NA = {0: 9, 1: 8}; NB = {0: 5, 1: 6}
fA = lambda st, i: 56 * st + 4 * i
def fB(ty, st, j): return 56 * st + 4 * NA[ty] + 4 * j
M16 = "v_mfma_f32_16x16x32_bf16"

class G:
    def __init__(self, opt): self.opt = opt; self.young = {}
    def pstamp(self, k):
        return self.stamp(k, True) if self.opt.prostamps else []
    def stamp(self, k, force=False):
        if not self.opt.stamps: return []
        if (self.opt.prostamps or self.opt.p2stamps) and 2 <= k <= 7 and not force: return []
        if self.opt.probe >= 0 and k in (2, 3) and not force: return []
        if self.opt.epistamps and k in (2, 3, 4) and not force: return []
        return mk(f"s_memrealtime s[96:97]\ns_memtime s[100:101]\ns_waitcnt lgkmcnt(0)\nv_writelane_b32 v7, s96, {k}\nv_writelane_b32 v7, s100, {16+k}")

    def scc_live(self, flat, k):
        for ins in flat[k:]:
            if ins.op.startswith(("s_cselect", "s_cbranch_scc", "s_addc")): return True
            if ins.kind == "salu" and not ins.op.startswith(("s_mov", "s_waitcnt", "s_nop", "s_movk")): return False
        return False
    def mksrd(self, b, p, size):
        return mk(f"s_mov_b32 s{b}, s{p}\ns_mov_b32 s{b+1}, s{p+1}\ns_mov_b32 s{b+2}, {size}\ns_mov_b32 s{b+3}, 0x20000")

    def dma_x(self, p, h, halo=True):
        base = XBASE + (p % 3) * XSLOT
        L = [mk(f"s_add_u32 {sXk}, {sXc}, {h*16384}\ns_add_u32 m0, {sXoff}, {base + 2048*h}\nbuffer_load_dwordx4 {vX[0]}, {sX}, {sXk} offen lds"),
             mk(f"s_add_u32 m0, {sXoff}, {base + 2048*h + 1024}\nbuffer_load_dwordx4 {vX[1]}, {sX}, {sXk} offen lds")]
        if halo:
            ho = "s3" if (self.opt.halo and h == 0) else sHoff
            L.append(mk(f"s_add_u32 m0, {ho}, {base + 256*h}\nbuffer_load_dword {vH[h]}, {sX}, {sXc} offen lds"))
        if h == 1: L[-1] += mk(f"s_add_u32 {sXc}, {sXc}, 128\ns_and_b32 {sXc}, {sXc}, 1023")
        if p < self.opt.ntx:
            for a in L:
                for i in a:
                    if i.kind == "vmem": i.text = i.text.replace(" lds", " nt lds")
        if "x" in self.opt.ko and p > 0:
            for a in L:
                for i in a:
                    if i.kind == "vmem": i.text = i.text.replace(sXk, "0").replace(sXc, "0")
        return L
    def dma_w(self, s):
        base = (s % 5) * WSLOT
        L = []
        for g in self.opt.gord:
            L.append(mk(f"s_add_u32 m0, {sWoff}, {base + 4096*g}\nbuffer_load_dwordx4 {vWg[g]}, {sS[g]}, {sKa if g < 3 else sKb} offen{' nt' if s < self.opt.ntw else ''} lds"))
        if "w" not in self.opt.ko: L[-1] += mk(f"s_add_u32 {sKa}, {sKa}, {sIncA}\ns_add_u32 {sKb}, {sKb}, {32*3584}")
        G = self.opt.kgroups
        if G > 1 and (s + 1) % (16 // G) == 0 and s < 15:
            L[-1].append(mk(f"s_cmp_eq_u32 {sKb}, {512*3584}\ns_cselect_b32 {sKa}, 0, {sKa}\ns_cselect_b32 {sKb}, 0, {sKb}"))
        return L
    def dma_queue(self, ty):
        Q = []
        for s in range(16):
            if s % 2 == 0 and ("x", s // 2) not in self.vm0:
                p = s // 2
                for h in range(2):
                    for a in self.dma_x(p, h, halo=(ty == 0)): Q.append((max(0, 2 * p - 5), ("x", p), a))
            if ("w", s) not in self.vm0:
                for a in self.dma_w(s): Q.append((max(0, s - 5), ("w", s), a))
        if self.opt.xmix:
            out = []; i = 0
            while i < len(Q):
                if Q[i][1][0] == "x":
                    j = i
                    while j < len(Q) and Q[j][1] == Q[i][1]: j += 1
                    xs = Q[i:j]; k = j
                    while k < len(Q) and Q[k][1] == Q[j][1]: k += 1
                    ws = Q[j:k]
                    e = max(q[0] for q in xs + ws)
                    while xs or ws:
                        if xs: t = xs.pop(0); out.append((e, t[1], t[2]))
                        if ws: t = ws.pop(0); out.append((e, t[1], t[2]))
                    i = k
                else: out.append(Q[i]); i += 1
            Q = out
        return Q

    def wtouch(self, n):
        return mk(f"""
v_add_u32 v44, 2, v44
v_and_b32 v44, 15, v44
v_lshl_add_u32 v48, v44, 5, v45
v_mad_u32_u24 v49, v48, s86, v46
v_mad_u32_u24 v48, v48, s87, v47
buffer_load_dword a{220 + 2 * n}, v49, s[88:91], s54 offen{' nt' if self.opt.ntt else ''}
buffer_load_dword a{221 + 2 * n}, v48, {sS[4]}, s55 offen{' nt' if self.opt.ntt else ''}
""")
    def prologue(self):
        o = self.opt
        vm = self.vm0 = []
        def note(L, tag):
            L = flatten(L)
            for i in L:
                if i.kind == "vmem": vm.append(tag)
            return L
        c = mk(f"""
s_load_dwordx2 s[4:5], s[0:1], 0
s_load_dwordx16 s[48:63], s[0:1], 0
s_load_dwordx4 s[64:67], s[0:1], 64
s_cmp_ge_u32 s2, 256
s_cbranch_scc1 L_end
""")
        if o.stamps: c += mk("v_mov_b32 v7, 0\ns_memrealtime s[98:99]")
        c += note(mk(f"""
s_getpc_b64 s[88:89]
L_pc:
v_lshrrev_b32 v2, 6, v0
v_and_b32 {vL}, 63, v0
s_lshr_b32 {sT1}, s2, 3
s_lshl_b32 {sT0}, {sT1}, 2
v_add_u32 v3, {sT0}, v2
v_lshl_add_u32 v3, {vL}, 7, v3
v_min_u32 v3, {o.nlines - 1}, v3
v_lshlrev_b32 v3, 7, v3
s_mov_b64 exec, {(1 << o.cl) - 1}
global_load_dword a112, v3, s[88:89]
s_mov_b64 exec, -1
"""), ("pre", 0))
        c += mk(f"""
s_and_b32 {sT0}, s2, 7
v_readfirstlane_b32 {sW}, v2
s_lshr_b32 {sM}, {sT0}, 2
s_lshl_b32 {sM}, {sM}, 3
s_lshr_b32 {sT2}, {sT1}, 2
s_add_u32 {sM}, {sM}, {sT2}
v_lshrrev_b32 v5, 3, {vL}
v_lshrrev_b32 v3, 4, {vL}
v_xor_b32 v4, v3, {vL}
v_and_b32 v4, 7, v4
v_lshlrev_b32 v4, 4, v4
s_lshl_b32 {sT3}, {sM}, 7
s_lshl_b32 {sT2}, {sW}, 5
s_add_u32 {sT2}, {sT2}, {sT3}
v_add_u32 v6, {sT2}, v5
v_lshl_add_u32 {vX[0]}, v6, 10, v4
v_xor_b32 {vX[1]}, 64, {vX[0]}
v_add_u32 {vX[1]}, 0x2000, {vX[1]}
s_lshl_b32 {sXoff}, {sW}, 12
s_add_u32 {sXoff}, {sXoff}, 2048
s_lshl_b32 {sXc}, s2, 1
s_and_b32 {sXk}, s2, 4
s_add_u32 {sXc}, {sXc}, {sXk}
s_and_b32 {sXc}, {sXc}, {o.rotmask}
s_lshl_b32 s81, {sXc}, 1
s_lshl_b32 {sXc}, {sXc}, 7
s_mov_b32 s{bX+2}, {2048*1024}
s_mov_b32 s{bX+3}, 0x20000
s_add_u32 {sXk}, {sXc}, 16384
s_add_u32 m0, {sXoff}, {XBASE}
s_waitcnt lgkmcnt(0)
""")
        if o.stamps: c += mk("s_mov_b32 s99, 0")
        c += self.pstamp(2)
        if o.xt0:
            c += note(mk(f"buffer_load_dword a227, v50, {sX}, {sXc} offen{' nt' if o.ntxt else ''}"), ("xt", 0))
            if o.xt0 > 1: c += note(mk(f"s_add_u32 {sXk}, {sXc}, 128\ns_and_b32 {sXk}, {sXk}, 1023\nbuffer_load_dword a226, v50, {sX}, {sXk} offen{' nt' if o.ntxt else ''}"), ("xt", 0))
        X0 = self.dma_x(0, 0) + self.dma_x(0, 1)
        def lds(v, srd, so): return f"buffer_load_dwordx4 {v}, {srd}, {so} offen lds"
        c += note(mk(f"""
{lds(vX[0], sX, sXc)}
s_add_u32 m0, m0, 1024
s_lshl_b32 {sWoff}, {sW}, 10
{lds(vX[1], sX, sXc)}
s_add_u32 m0, m0, 1024
s_and_b32 {sN}, {sT0}, 3
{lds(vX[0], sX, sXk)}
s_add_u32 m0, m0, 1024
s_lshl_b32 {sIdx}, {sN}, 1
{lds(vX[1], sX, sXk)}
"""), ("x", 0))
        c += self.pstamp(3)
        c += note(mk(f"""
s_lshl_b32 {sN}, {sN}, 2
s_and_b32 {sT2}, {sT1}, 3
s_add_u32 {sN}, {sN}, {sT2}
s_lshr_b32 {sTyp}, {sT2}, 1
s_and_b32 {sT2}, {sT2}, 1
s_add_u32 {sIdx}, {sIdx}, {sT2}
s_and_b32 {sT2}, {sW}, 1
s_lshl_b32 {sT3}, {sT2}, 2
v_and_or_b32 v4, v5, 2, {sT3}
v_xor_b32 v4, v4, {vL}
v_and_b32 v4, 7, v4
v_lshlrev_b32 v4, 4, v4
v_lshl_add_u32 v6, {sW}, 3, v5
s_movk_i32 s87, 3584
s_movk_i32 s86, 3072
s_lshl_b32 s95, {sIdx}, 7
s_lshl_b32 {sT3}, {sIdx}, 8
s_addk_i32 {sT3}, 1024
s_add_u32 s49, s95, 1024
s_add_u32 s94, s95, 2048
s_add_u32 s54, {sT3}, 128
s_lshl_b32 s55, {sIdx}, 6
s_addk_i32 s55, 3072
s_cmp_eq_u32 {sTyp}, 1
s_cselect_b32 s86, s87, s86
s_cselect_b32 s48, {sT3}, s95
s_cselect_b32 s49, {sT3}, s49
s_cselect_b32 s94, s54, s94
s_cselect_b32 s55, s55, s95
s_cselect_b32 s95, s54, s95
s_cselect_b64 vcc, -1, 0
s_cselect_b64 s[28:29], s[56:57], s[50:51]
s_cselect_b64 s[32:33], s[58:59], s[50:51]
s_cselect_b64 s[40:41], s[58:59], s[56:57]
v_mad_u32_u24 v2, v6, s86, v4
s_lshl_b32 s30, s86, 9
s_lshl_b32 {sIncA}, s86, 5
s_mov_b32 s31, s7
v_add_u32 {vWg[0]}, s48, v2
s_mul_i32 {sKa}, s81, {sIncA}
s_mov_b32 m0, {sWoff}
v_add_u32 {vWg[1]}, s49, v2
{lds(vWg[0], sS[0], sKa)}
s_mov_b32 s34, s30
s_mov_b32 s35, s7
s_add_u32 m0, m0, 4096
v_add_u32 {vWg[2]}, s94, v2
{lds(vWg[1], sS[1], sKa)}
s_mov_b64 s[36:37], s[28:29]
s_mov_b32 s38, s30
s_mov_b32 s39, s7
s_add_u32 m0, m0, 4096
v_mad_u32_u24 v3, v6, s87, v4
{lds(vWg[2], sS[2], sKa)}
s_mov_b32 s42, {512*3584}
s_mov_b32 s43, s7
s_mul_i32 {sKb}, s81, {32*3584}
s_add_u32 m0, m0, 4096
v_add_u32 {vWg[3]}, s95, v3
{lds(vWg[3], sS[3], sKb)}
v_lshrrev_b32 v4, 4, {vL}
v_and_b32 v4, 2, v4
v_xor_b32 v4, v4, {vL}
v_and_b32 v4, 3, v4
v_lshlrev_b32 v4, 4, v4
v_lshrrev_b32 v6, 2, {vL}
v_lshl_add_u32 v6, {sT2}, 4, v6
v_mad_u32_u24 v4, v6, s87, v4
s_lshl_b32 {sT2}, {sTyp}, 1
s_cmp_lt_u32 {sW}, {sT2}
s_cselect_b64 s[44:45], s[56:57], s[58:59]
s_mov_b32 s46, s42
s_mov_b32 s47, s7
v_cndmask_b32 v4, v3, v4, vcc
s_add_u32 m0, m0, 4096
v_add_u32 {vWg[4]}, s55, v4
{lds(vWg[4], sS[4], sKb)}
s_add_u32 {sKa}, {sKa}, {sIncA}
s_add_u32 {sKb}, {sKb}, {32*3584}
"""), ("w", 0))
        c += self.pstamp(4)
        tstate = mk(f"""
s_cmp_eq_u32 {sW}, 1
s_cselect_b32 s54, s49, s48
s_cselect_b32 s88, s32, s28
s_cselect_b32 s89, s33, s29
s_cmp_eq_u32 {sW}, 2
s_cselect_b32 s54, s94, s54
s_cmp_eq_u32 {sW}, 3
s_cselect_b32 s54, s95, s54
s_cselect_b32 s88, s40, s88
s_cselect_b32 s89, s41, s89
s_cselect_b32 s90, s42, s30
s_cselect_b32 s86, s87, s86
s_mov_b32 s91, 0x20000
s_add_u32 s81, s81, {o.wfirst - 2}
v_lshrrev_b32 v5, 2, {vL}
v_add_u32 v44, s81, v5
s_and_b32 {sT2}, {sM}, 7
s_lshl_b32 {sT2}, {sT2}, 2
v_and_b32 v45, 3, {vL}
v_add_u32 v45, {sT2}, v45
v_lshrrev_b32 v46, 3, {vL}
v_lshlrev_b32 v46, 28, v46
s_lshl_b32 {sT2}, {sTyp}, 1
s_sub_u32 {sT2}, 3, {sT2}
v_xor_b32 v5, {sW}, {vL}
v_and_b32 v5, {sT2}, v5
v_lshl_or_b32 v47, v5, 26, v46
""")
        if o.tearly:
            c += tstate
            for n in range(o.tearly): c += note(self.wtouch(1 + n), ("wt", 0))
        c += mk(f"""
s_lshl_b32 {sT2}, {sW}, 2
s_lshl_b32 {sT3}, {sM}, 7
s_add_u32 {sT2}, {sT2}, {sT3}
s_sub_u32 {sT2}, {sT2}, 16
v_lshrrev_b32 v6, 5, {vL}
v_add_u32 v6, {sT2}, v6
s_lshl_b32 {sT1}, {sW}, 5
v_lshlrev_b32 v4, 2, {vL}
v_and_b32 v4, 0x7f, v4
v_xor_b32 v4, {sT1}, v4
v_max_i32 v2, 0, v6
v_lshl_add_u32 {vH[0]}, v2, 10, v4
v_add_u32 v6, 2, v6
v_max_i32 v2, 0, v6
v_xor_b32 v4, 16, v4
v_lshl_add_u32 {vH[1]}, v2, 10, v4
s_lshl_b32 {sHoff}, {sW}, 9
s_cmp_eq_u32 {sW}, 0
s_cselect_b32 s3, 0x10000, {sHoff}
s_cselect_b32 {sT2}, {0x80000000 if o.halo else 0}, 0
v_or_b32 {vH[0]}, {sT2}, {vH[0]}
""")
        c += note([X0[2], X0[5]], ("x", 0))
        c += mk(f"""
v_lshrrev_b32 v2, 4, {vL}
v_bfe_u32 v3, {vL}, 2, 2
v_and_b32 v4, 3, {vL}
v_and_b32 v6, 15, {vL}
v_lshrrev_b32 v5, 1, v6
v_xor_b32 v5, v5, v2
v_lshlrev_b32 v5, 4, v5
v_lshl_add_u32 v5, v6, 7, v5
v_add_u32 v5, {XBASE}, v5
s_lshr_b32 {sT2}, {sW}, 1
s_and_b32 {sT2}, {sT2}, {sTyp}
s_lshl_b32 {sT2}, {sT2}, 13
v_add_u32 v{RA}, {sT2}, v5
v_xor_b32 v{RA+1}, 64, v{RA}
v_subrev_u32 v{RA+2}, {sT2}, v5
v_xor_b32 v{RA+3}, 64, v{RA+2}
v_and_b32 v6, 1, v2
v_lshrrev_b32 v5, 1, v3
v_lshl_or_b32 v5, v6, 1, v5
v_xor_b32 v5, {sW}, v5
v_lshlrev_b32 v5, 5, v5
v_lshl_add_u32 v5, v2, 10, v5
v_lshl_add_u32 v5, v3, 7, v5
v_lshl_add_u32 v{RT}, v4, 3, v5
v_add_u32 v{RT+1}, {3*WSLOT}, v{RT}
v_lshrrev_b32 v5, 1, v2
v_lshlrev_b32 v5, 10, v5
v_lshl_add_u32 v5, v6, 9, v5
v_lshl_add_u32 v5, v3, 6, v5
v_lshl_add_u32 v5, v4, 3, v5
v_xor_b32 v6, {sW}, v6
v_and_b32 v6, 1, v6
v_lshl_add_u32 v{RT+2}, v6, 5, v5
v_add_u32 v{RT+3}, {3*WSLOT}, v{RT+2}
v_mov_b32 v5, 0x3f803f80
v_lshlrev_b32 v6, 2, {vL}
v_add_u32 v6, {XBASE}, v6
{"" if not o.halo else f"ds_write_b32 v6, v5{chr(10)}ds_write_b32 v6, v5 offset:{XSLOT}{chr(10)}ds_write_b32 v6, v5 offset:{2*XSLOT}"}
v_accvgpr_write_b32 a{ONES}, v5
v_accvgpr_write_b32 a{ONES+1}, v5
v_accvgpr_write_b32 a{ONES+2}, v5
v_accvgpr_write_b32 a{ONES+3}, v5
""")
        if not o.tearly: c += tstate
        c += mk(f"""
""")
        c += self.mksrd(bDBG, 64, 256)
        c += mk(f"""
s_or_b32 {sT2}, s2, {sW}
s_cmp_lg_u32 {sT2}, 0
s_cbranch_scc1 L_nononce
s_memrealtime s[94:95]
s_waitcnt lgkmcnt(0)
s_or_b32 s94, s94, 1
v_mov_b32 v2, s94
v_mov_b32 v3, s95
v_mov_b32 v4, 0
s_mov_b64 exec, 1
buffer_store_dwordx2 v[2:3], v4, {sDBG}, 0 offen sc1
s_mov_b64 exec, -1
L_nononce:
""")
        c += self.pstamp(7)
        xt = mk(f"buffer_load_dword a226, v50, {sX}, {sXc} offen{' nt' if o.ntxt else ''}")
        for ch in o.pord:
            if ch == "t": c += note(self.wtouch(1 + vm.count(("wt", 0)) // 2 % 2), ("wt", 0))
            if ch == "x": c += note(xt, ("xt", 0))
            if ch == "1": c += note(self.dma_w(1), ("w", 1))
            if ch == "X": c += note(self.dma_x(1, 0) + self.dma_x(1, 1), ("x", 1))
            if ch == "2": c += note(self.dma_w(2), ("w", 2))
        c += self.pstamp(5)
        if o.walk:
            c += mk(f"""
; instruction-cache warm-up: hop along the s_cbranch_execz chains (no other instruction runs with EXEC = 0)
s_mov_b64 exec, 0
s_cmp_eq_u32 {sW}, 3
s_cbranch_scc1 H_p_0
s_lshl_b32 {sT2}, {sTyp}, 2
s_add_u32 {sT2}, {sT2}, {sW}
s_cmp_eq_u32 {sT2}, 0
s_cbranch_scc1 H_a0_0
s_cmp_eq_u32 {sT2}, 1
s_cbranch_scc1 H_a1_0
s_cmp_eq_u32 {sT2}, 2
s_cbranch_scc1 H_a2_0
s_cmp_eq_u32 {sT2}, 4
s_cbranch_scc1 H_b0_0
s_cmp_eq_u32 {sT2}, 5
s_cbranch_scc1 H_b1_0
s_branch H_b2_0
L_wback:
s_mov_b64 exec, -1
""")
        c += mk(f"s_add_u32 s81, {sXc}, {128 * (o.xfirst - 3)}")
        c += self.pstamp(6)
        if o.shift:
            c += mk(f"""
s_lshr_b32 {sT2}, {sW}, {o.verbit}
s_and_b32 {sT2}, {sT2}, 1
s_lshl_b32 {sT1}, {sTyp}, 1
s_add_u32 {sT2}, {sT2}, {sT1}
s_cmp_eq_u32 {sT2}, 1
s_cbranch_scc1 L_t01
s_cmp_eq_u32 {sT2}, 2
s_cbranch_scc1 L_t10
s_cmp_eq_u32 {sT2}, 3
s_cbranch_scc1 L_t11
""")
        else: c += mk(f"s_cmp_eq_u32 {sTyp}, 1\ns_cbranch_scc1 L_t10")
        return c

    def deferred(self, ty):
        o = self.opt
        A = []
        A += self.mksrd(bWO, 52, 512 * 1024) + self.mksrd(bWD, 60, 1792 * 1024) + self.mksrd(bWS, 66, WS_SIZE) + self.mksrd(bOUT, 62, 2048 * 1024)
        A += mk(f"""
s_lshr_b32 {sT1}, s2, 3
s_and_b32 {sT2}, s2, 7
s_lshr_b32 {sR}, {sT2}, {o.csplit}
s_lshl_b32 {sR}, {sR}, {2 + o.csplit}
s_lshr_b32 s64, {sT1}, {3 - o.csplit}
s_add_u32 {sR}, {sR}, s64
s_and_b32 {sC}, {sT1}, {(8 >> o.csplit) - 1}
s_and_b32 {sT2}, {sT2}, {o.csplit}
s_xor_b32 {sT2}, {sT2}, {o.cflip}
s_lshl_b32 {sT2}, {sT2}, 2
s_add_u32 {sC}, {sC}, {sT2}
s_lshl_b32 {sT3}, {sW}, 11
s_mul_i32 s62, {sC}, {o.rotc}
s_mul_i32 s63, {sR}, {2 - o.csplit}
s_add_u32 s62, s62, s63
s_and_b32 s62, s62, 7
s_lshl_b32 s63, s62, 12
s_lshl_b32 s62, s62, 16
v_lshrrev_b32 v5, 2, {vL}
v_and_b32 v5, 4, v5
v_xor_b32 v5, v5, {vL}
v_and_b32 v5, 7, v5
v_lshlrev_b32 v5, 4, v5
v_lshrrev_b32 v6, 3, {vL}
v_lshl_add_u32 v5, v6, 10, v5
s_lshl_b32 {sT2}, {sC}, 7
v_add_u32 {vB2}, {sT2}, v5
s_and_b32 {sT1}, {sW}, 1
s_lshr_b32 {sT2}, {sW}, 1
s_lshl_b32 {sT2}, {sT2}, 14
s_lshl_b32 {sWB[0]}, {sT1}, 18
s_add_u32 {sWB[0]}, {sWB[0]}, {sT2}
s_mov_b32 {sWB[1]}, {sWB[0]}
s_lshl_b32 s64, {sT1}, 19
s_add_u32 s64, s64, {sT2}
s_add_u32 s56, s64, {512*1024}
s_lshl_b32 s64, {sT1}, 17
s_add_u32 s64, s64, {sT2}
s_add_u32 s57, s64, {1536*1024}
s_lshl_b32 {sT1}, {sM}, 7
s_sub_u32 {sT2}, {sT1}, 16
v_add_u32 v5, {sT2}, {vL}
v_max_i32 v{GA}, 0, v5
v_lshlrev_b32 v{GA}, 4, v{GA}
v_add_u32 v5, 64, v5
v_lshlrev_b32 v{GA+1}, 4, v5
s_add_u32 {sT1}, {sT1}, 112
v_and_b32 v5, 15, {vL}
v_add_u32 v5, {sT1}, v5
v_lshlrev_b32 v42, 4, v5
""")
        B = []
        if ty == 0:
            B += mk(f"""
v_lshlrev_b32 v{VST}, 4, {vL}
v_add_u32 v{VST+1}, {RBS}, v{VST}
v_add_u32 v{VST+2}, {2*RBS}, v{VST}
v_add_u32 v{VST+3}, {3*RBS}, v{VST}
s_mul_i32 {sT1}, {sM}, 576
s_lshl_b32 {sT2}, {sIdx}, 2
s_add_u32 {sT2}, {sT2}, {sW}
s_add_u32 {sU[1]}, {sT1}, {sT2}
s_add_u32 {sU[0]}, {sU[1]}, 32
s_lshl_b32 {sU[0]}, {sU[0]}, 10
s_lshl_b32 {sU[1]}, {sU[1]}, 10
v_lshrrev_b32 v4, 4, {vL}
v_and_b32 v6, 15, {vL}
v_lshlrev_b32 v4, 2, v4
v_sub_u32 v4, v6, v4
v_mov_b32 v3, 0xff800000
v_mov_b32 v6, 0x80000000
""")
            for r in range(4):
                B += mk(f"""
v_subrev_u32 v5, {r}, v4
v_and_b32 v5, 0x80000001, v5
v_cmp_eq_u32 vcc, 0, v5
v_cmp_eq_u32 {sEx}, v6, v5
v_cndmask_b32_e64 v{BIAS+4+r}, v3, 0, vcc
v_cndmask_b32_e64 v{BIAS+r}, v3, 0, {sEx}
""")
            B.append(mk(f"s_cmp_eq_u32 {sM}, 0\ns_cselect_b64 vcc, -1, 0"))
            for r in range(4): B += mk(f"v_cndmask_b32 v{BIAS+8+r}, v{BIAS+r}, v3, vcc")
        else:
            B += mk(f"""
s_lshr_b32 {sT1}, {sW}, 1
s_mul_i32 {sT2}, {sT1}, {2*RBS}
v_lshlrev_b32 v5, 4, {vL}
v_add_u32 v{VST}, {sT2}, v5
v_add_u32 v{VST+1}, {RBS}, v{VST}
v_subrev_u32 v{VST+2}, {sT2}, v5
v_add_u32 v{VST+2}, {2*RBS}, v{VST+2}
v_add_u32 v{VST+3}, {RBS}, v{VST+2}
s_mul_i32 {sT1}, {sM}, 576
s_lshl_b32 {sT2}, {sIdx}, 3
s_add_u32 {sT2}, {sT2}, {sW}
s_add_u32 {sT2}, {sT2}, {sT1}
s_add_u32 {sU[0]}, {sT2}, 64
s_add_u32 {sU[1]}, {sT2}, 68
s_lshl_b32 {sT2}, {sIdx}, 1
s_and_b32 s64, {sW}, 1
s_add_u32 {sT2}, {sT2}, s64
s_add_u32 {sT2}, {sT2}, {sT1}
s_add_u32 {sU[2]}, {sT2}, 128
s_lshl_b32 {sU[0]}, {sU[0]}, 10
s_lshl_b32 {sU[1]}, {sU[1]}, 10
s_lshl_b32 {sU[2]}, {sU[2]}, 10
""")
        return A, B

    def reads(self, ty, stage):
        st = stage & 1
        xb = ((stage // 2) % 3) * XSLOT; kh = stage & 1
        ws = stage % 5; rg = ws // 3; wb = (ws % 3) * WSLOT
        out = []
        for i in range(NA[ty]):
            if ty == 0: out.append(I(f"ds_read_b128 {A4(fA(st, i))}, v{RA+kh} offset:{xb + 2048*i}"))
            else: out.append(I(f"ds_read_b128 {A4(fA(st, i))}, v{RA+kh+(2 if i >= 4 else 0)} offset:{xb + 2048*(i+1)}"))
        def tr(j, reg, off, second):
            return [I(f"ds_read_b64_tr_b16 {A2(fB(ty, st, j))}, v{reg} offset:{wb+off}"),
                    I(f"ds_read_b64_tr_b16 {A2(fB(ty, st, j)+2)}, v{reg} offset:{wb+off+second}")]
        B = []
        for g in range(5 if ty == 0 else 4): B += tr(g, RT + rg, 4096 * g, 512)
        if ty == 1: B += tr(4, RT + 2 + rg, 16384, 256) + tr(5, RT + 2 + rg, 16384 + 2048, 256)
        if self.opt.mixrd:
            z = []
            while out or B:
                if out: z.append(out.pop(0))
                if B: z.append(B.pop(0))
            return z
        return out + B

    def mfmas(self, ty, stage):
        st = stage & 1
        out = []
        Z = lambda d: "0" if stage == 0 else d
        def T(d, j, i): out.append(I(f"{M16} {V4(d)}, {A4(fB(ty, st, j))}, {A4(fA(st, i))}, {Z(V4(d))}"))
        def CS(k, flip=False):
            d = A4(CSACC + 4 * k); f = A4(fB(ty, st, k))
            if self.opt.nocs: return
            out.append(I(f"{M16} {d}, {A4(ONES)}, {f}, {Z(d)}" if flip else f"{M16} {d}, {f}, {A4(ONES)}, {Z(d)}"))
        if ty == 0:
            for i in range(8): T(aQ(i), 0, i + 1)
            CS(0)
            for i in range(9): T(aK(i), 1, i)
            if not self.opt.halo: CS(1)
            for i in range(9): out.append(I(f"{M16} {V4(aV(i))}, {A4(fA(st, i))}, {A4(fB(ty, st, 2))}, {Z(V4(aV(i)))}"))
            if not self.opt.halo: CS(2, True)
            for i in range(8): T(aG(i), 3, i + 1)
            CS(3)
            for i in range(8): T(aU(i), 4, i + 1)
            CS(4)
        else:
            for g in range(4):
                for i in range(8): T(bAcc(g, i), g, i)
                CS(g)
            for u in range(2):
                for i in range(4): T(bMix(u, i), 4 + u, i)
                CS(4 + u)
        return out

    TILES = [(2, 2*k) for k in range(16)] + [(3, 2*k) for k in range(4)] + [(1, 2*k) for k in range(8)] + [(0, 2*k) for k in range(8)]
    RSIZE = {0: 16, 1: 16, 2: 32, 3: 8}
    def b2off(self, r, k, blk):
        if not self.opt.rot: return f"s_add_u32 {sT0}, {sWB[r]}, {(16*k + 8*blk)*1024}"
        if blk: return f"s_add_u32 {sT0}, {sT0}, 8192"
        return f"s_add_u32 {sT0}, s62, {k*16384}\ns_and_b32 {sT0}, {sT0}, {self.RSIZE[r]*16384 - 1}\ns_add_u32 {sT0}, {sT0}, {sWB[r]}"
    def b2_dma(self, s):
        def free_at(q):
            a = q * 2048
            if a < XBASE: return [s_ for s_ in range(11, 16) if s_ % 5 == a // WSLOT][0]
            return {2: 11, 0: 13, 1: 15}[(a - XBASE) // XSLOT]
        out = []
        for i in sorted(range(19), key=lambda u: u):
            if max(free_at(4 * self.slot(i) + w) for w in range(4)) != s: continue
            r, k = self.TILES[i]; srd = sWO if r == 0 else sWD
            for blk in range(2):
                out += mk(self.b2off(r, k, blk) + "\n"
                          f"s_add_u32 m0, {sT3}, {self.slot(i)*8192 + blk*1024}\nbuffer_load_dwordx4 {vB2}, {srd}, {sT0} offen lds")
        return out

    PFG = {"h2": (sWD, 512, 4), "h3": (sWD, 1536, 1), "h1": (sWD, 0, 2), "o": (sWO, 0, 2), "A": (sWD, 0, 1), "B": (sWD, 256, 1), "C": (sWO, 0, 1)}
    def l2pf(self, grp, k, seq):
        if self.opt.wide:
            wd = self.opt.wide
            L = []
            if seq == 0:
                L += mk(f"""
s_lshr_b32 s59, s2, 3
s_lshl_b32 s59, s59, 2
s_add_u32 s59, s59, {sW}
s_lshl_b32 s59, s59, {10 + wd}
v_lshrrev_b32 v3, {2 + wd}, {vL}
v_lshlrev_b32 v3, 28, v3
s_and_b32 s65, s2, 1
s_xor_b32 s65, s65, {self.opt.cflip}
s_lshl_b32 s65, s65, 9
s_add_u32 s59, s59, s65
v_and_b32 v2, 3, {vL}
v_lshl_or_b32 v3, v2, 7, v3
v_bfe_u32 v2, {vL}, 2, {wd}
v_lshl_or_b32 v2, v2, 10, v3
v_add_u32 v2, s59, v2
s_lshr_b32 s59, s2, 1
""")
            n = 16 >> wd
            if seq < n:
                return L + mk(f"s_add_u32 s65, s59, {seq + 1}\ns_and_b32 s65, s65, {n - 1}\ns_lshl_b32 s65, s65, {17 + wd}\nbuffer_load_dword a{216 + seq}, v2, {sWD}, s65 offen")
            return L + mk(f"buffer_load_dword a{216 + seq}, v2, {sWO}, 0 offen")
        srd, row0, n = self.PFG[grp]; cs = self.opt.csplit
        thin = grp in "ABC"; one = thin and cs == 0
        L = []
        if seq == 0 and self.opt.shares:
            sh = [int(c) for c in self.opt.shares]
            assert sum(sh[:4]) == 8 and sum(sh[4:]) == 8
            st = [sum(sh[(k & 4):k]) for k in range(8)]
            pack = lambda t: sum(v << (4 * k) for k, v in enumerate(t))
            L += mk(f"""
s_and_b32 s65, {sN}, 7
s_lshl_b32 s65, s65, 2
s_lshr_b32 s64, {pack(sh):#x}, s65
s_and_b32 s64, s64, 15
s_lshr_b32 s65, {pack(st):#x}, s65
s_and_b32 s65, s65, 15
s_lshr_b32 s59, s2, 5
s_lshl_b32 s59, s59, 2
s_add_u32 s59, s59, {sW}
s_lshl_b32 s59, s59, 3
s_add_u32 s59, s59, s65
s_lshl_b32 s59, s59, 10
s_and_b32 s65, s2, 1
s_lshl_b32 s65, s65, 9
s_add_u32 s59, s59, s65
v_and_b32 v2, 3, {vL}
v_lshlrev_b32 v2, 7, v2
v_lshrrev_b32 v3, 2, {vL}
v_cmp_le_u32 vcc, s64, v3
v_lshl_add_u32 v2, v3, 10, v2
v_add_u32 v2, s59, v2
v_mov_b32 v3, 0x80000000
v_cndmask_b32 v2, v2, v3, vcc
s_lshr_b32 s59, s2, 1
""")
        elif seq == 0 and self.opt.pfa:
            L += mk(f"""
s_lshr_b32 s59, s2, 5
s_lshl_b32 s59, s59, 1
s_bfe_u32 s65, s2, 0x10003
s_add_u32 s59, s59, s65
s_lshl_b32 s59, s59, 2
s_add_u32 s59, s59, {sW}
s_lshl_b32 s59, s59, 12
v_lshrrev_b32 v3, 4, {vL}
v_lshlrev_b32 v3, 28, v3
s_and_b32 s65, s2, 1
s_xor_b32 s65, s65, {self.opt.cflip}
s_lshl_b32 s65, s65, 9
s_add_u32 s59, s59, s65
v_and_b32 v2, 3, {vL}
v_lshl_or_b32 v3, v2, 7, v3
v_bfe_u32 v2, {vL}, 2, 2
v_lshl_or_b32 v2, v2, 10, v3
v_add_u32 v2, s59, v2
s_lshr_b32 s59, s2, 1
""")
        elif seq == 0:
            L += mk(f"""
s_lshr_b32 s59, s2, 3
s_lshl_b32 s59, s59, 2
s_add_u32 s59, s59, {sW}
s_lshl_b32 s59, s59, {10 if one else 11}
v_lshrrev_b32 v3, {4 if (cs == 0 and not one) else 3}, {vL}
v_lshlrev_b32 v3, 28, v3
""")
            if cs == 0: L += mk(f"v_lshl_or_b32 v2, {vL}, 7, v3")
            else: L += mk(f"""
s_and_b32 s65, s2, 1
s_xor_b32 s65, s65, {self.opt.cflip}
s_lshl_b32 s65, s65, 9
s_add_u32 s59, s59, s65
v_and_b32 v2, 3, {vL}
v_lshl_or_b32 v3, v2, 7, v3
v_bfe_u32 v2, {vL}, 2, 1
v_lshl_or_b32 v2, v2, 10, v3
""")
            L += mk(f"v_add_u32 v2, s59, v2\ns_lshr_b32 s59, s2, {cs}")
            if self.opt.skip37:
                L += mk(f"""
s_and_b32 s65, {sIdx}, 3
s_lshl_b32 s64, {sTyp}, 2
s_or_b32 s65, s65, s64
v_and_b32 v2, 0xfffffff, v2
v_bfe_u32 v3, {vL}, 3, 1
{"v_lshl_add_u32 v2, v3, 13, v2" if self.opt.skip37 == 1 else "v_mul_u32_u24 v3, 9216, v3" + chr(10) + "v_add_u32 v2, v2, v3"}
""")
                hi, lo = (16, 0) if self.opt.skip37 == 1 else (12, 4)
                L.append(mk(f"s_cmp_eq_u32 s65, 2\ns_cselect_b32 s64, {hi}, 8\ns_cmp_eq_u32 s65, 3\ns_cselect_b32 s64, {lo}, s64"))
                L += mk(f"v_mov_b32 v3, 0x80000000\nv_cmp_le_u32 vcc, s64, {vL}\nv_nop\nv_cndmask_b32 v2, v2, v3, vcc")
        if thin:
            return L + mk(f"""
s_and_b32 s65, s59, {(8 >> cs) - 1}
s_mul_i32 s65, s65, {((64 if grp == "C" else 224) << cs) * 1024}
s_add_u32 s65, s65, {(row0 >> (1 - cs)) * 1024}
buffer_load_dword a{216 + seq % 12}, v2, {srd}, s65 offen
""")
        return L + mk(f"""
s_add_u32 s65, s59, {k}
s_and_b32 s65, s65, {(n - 1) & self.opt.pfrot}
s_lshl_b32 s65, s65, 18
s_add_u32 s65, s65, {row0 * 1024}
buffer_load_dword a{216 + seq % 12}, v2, {srd}, s65 offen
""")

    def utouch(self, ty, n, per):
        units = [(0, j) for j in range(4)] + [(1, j) for j in range(4)] + ([(2, j) for j in range(2)] if ty else [])
        L = []
        if n == 0:
            L += mk(f"v_lshrrev_b32 v51, 3, {vL}\nv_lshlrev_b32 v51, 28, v51\nv_mul_u32_u24 v50, 112, {vL}\nv_add_u32 v50, v50, v51")
        for k, (u, j) in enumerate(units[n * per:(n + 1) * per]):
            L += mk(f"v_add_u32 v51, v50, v{VST+j}\nbuffer_load_dword a{216 + (n * per + k) % 10}, v51, {sWS}, {sU[u]} offen{self.opt.utfl}")
        return L
    def flagaddr(self, dst, off):
        return mk(f"""
s_lshl_b32 {dst}, {sM}, 2
s_lshr_b32 {sT1}, {sN}, 2
s_add_u32 {dst}, {dst}, {sT1}
s_lshl_b32 {dst}, {dst}, 6
s_and_b32 {sT1}, {sN}, 3
s_lshl_b32 {sT1}, {sT1}, 2
s_add_u32 {dst}, {dst}, {sT1}
s_add_u32 {dst}, {dst}, {sW}
s_lshl_b32 {dst}, {dst}, 3
s_add_u32 {dst}, {dst}, {WS_FLAG + off}
""") + (mk(f"s_lshl_b32 {sT1}, {sW}, 27\ns_add_u32 {dst}, {dst}, {sT1}") if self.opt.wgflag else [])
    def flagstore(self, so, r):
        return mk(f"""
v_mov_b32 v{r}, {sNonL}
v_mov_b32 v{r+1}, {sNonH}
v_lshlrev_b32 v{r+2}, 31, {vL}
v_lshl_or_b32 v{r+2}, {vL}, 25, v{r+2}
buffer_store_dwordx2 {V2(r)}, v{r+2}, {sWS}, {so} offen sc1
""")

    def stats_load(self):
        return mk(f"""
s_lshl_b32 {sT2}, {sM}, 7
s_lshl_b32 {sT1}, {sN}, 3
s_add_u32 {sT1}, {sT1}, {sT2}
s_lshl_b32 {sT2}, {sW}, 1
s_add_u32 {sT1}, {sT1}, {sT2}
s_lshl_b32 {sT1}, {sT1}, 10
v_lshlrev_b32 v{SX+16}, 4, {vL}
buffer_load_dwordx4 v[{SX}:{SX+3}], v{SX+16}, {sX}, {sT1} offen
buffer_load_dwordx4 v[{SX+4}:{SX+7}], v{SX+16}, {sX}, {sT1} offen offset:1024
""")

    def stats_compute(self):
        def row(x, e, t):
            L = []
            for k in range(4):
                L.append(f"v_lshlrev_b32 v{e+2*k}, 16, v{x+k}")
                L.append(f"v_and_b32 v{e+2*k+1}, 0xffff0000, v{x+k}")
            L += [f"v_add_f32 v{x}, v{e}, v{e+1}", f"v_add_f32 v{x+1}, v{e+2}, v{e+3}", f"v_add_f32 v{x+2}, v{e+4}, v{e+5}", f"v_add_f32 v{x+3}, v{e+6}, v{e+7}",
                  f"v_add_f32 v{x}, v{x}, v{x+1}", f"v_add_f32 v{x+2}, v{x+2}, v{x+3}", f"v_add_f32 v{x}, v{x}, v{x+2}"]
            def red(r):
                R = [f"v_add_f32_dpp v{r}, v{r}, v{r} row_ror:{sh} row_mask:0xf bank_mask:0xf" for sh in (8, 4, 2, 1)]
                for p in ("16", "32"):
                    R += [f"v_mov_b32 v{r+1}, v{r}", f"v_permlane{p}_swap_b32 v{r}, v{r+1}", f"v_add_f32 v{r}, v{r}, v{r+1}"]
                return R
            L += red(x)
            L.append(f"v_mul_f32 v{t+1}, 0x3b000000, v{x}")
            for k in range(8): L.append(f"v_sub_f32 v{e+k}, v{e+k}, v{t+1}")
            L += [f"v_mul_f32 v{x}, v{e}, v{e}", f"v_mul_f32 v{x+1}, v{e+1}, v{e+1}"]
            for k in range(2, 8): L.append(f"v_fmac_f32 v{x+(k&1)}, v{e+k}, v{e+k}")
            L.append(f"v_add_f32 v{x}, v{x}, v{x+1}")
            L += red(x)
            L += [f"v_mov_b32 v{x+1}, 0x3727c5ac", f"v_fmac_f32 v{x+1}, 0x3b000000, v{x}", f"v_rsq_f32 v{t}, v{x+1}"]
            return L
        a = row(SX, SX + 8, SX + 24); b = row(SX + 4, SX + 16, SX + 26)
        out = []
        for p, q in zip(a, b): out += [I(p), I(q)]
        return out

    def publish(self, ty):
        L = mk(f"""
v_readfirstlane_b32 {sNonL}, v{NON}
v_readfirstlane_b32 {sNonH}, v{NON+1}
v_cmp_eq_u32 vcc, 1, {vL}
s_lshl_b32 {sT1}, {sM}, 7
s_lshl_b32 {sT2}, {sN}, 3
s_cmp_eq_u32 {sNonL}, 0
s_cbranch_scc1 L_slow_nonce{ty}
L_back_nonce{ty}:
v_cndmask_b32 v{SX}, v{SX+24}, v{SX+26}, vcc
v_cndmask_b32 v{SX+1}, v{SX+25}, v{SX+27}, vcc
v_mov_b32 v{SX+2}, {sNonL}
v_mov_b32 v{SX+3}, {sNonH}
s_add_u32 {sT1}, {sT1}, {sT2}
s_lshl_b32 {sT2}, {sW}, 1
s_add_u32 {sT1}, {sT1}, {sT2}
s_lshl_b32 {sT1}, {sT1}, 4
s_add_u32 {sT1}, {sT1}, {WS_STAT}
v_lshlrev_b32 v{SX+4}, 4, {vL}
v_cmp_lt_u32 vcc, 1, {vL}
v_mov_b32 v{SX+5}, 0x80000000
v_cndmask_b32 v{SX+4}, v{SX+4}, v{SX+5}, vcc
buffer_store_dwordx4 v[{SX}:{SX+3}], v{SX+4}, {sWS}, {sT1} offen sc1
""")
        return L[:5] + [L[5:8]] + L[8:]

    def gather_load(self):
        return mk(f"""
s_mov_b32 {sT1}, {WS_STAT}
buffer_load_dwordx4 {V4(GAT)}, v{GA}, {sWS}, {sT1} offen sc1
buffer_load_dwordx4 {V4(GAT+4)}, v{GA+1}, {sWS}, {sT1} offen sc1
buffer_load_dwordx4 {V4(GAT+8)}, v42, {sWS}, {sT1} offen sc1
""")
    def gather_cmp(self):
        return mk(f"""
v_cmp_ne_u64 vcc, {sNon}, {V2(GAT+2)}
v_cmp_ne_u64 {sEx}, {sNon}, {V2(GAT+6)}
v_cmp_ne_u64 s[92:93], {sNon}, {V2(GAT+10)}
s_or_b64 vcc, vcc, {sEx}
s_or_b64 vcc, vcc, s[92:93]
""")

    ST = 60
    def stats_stage(self, ty, tv):
        ST = self.ST
        L = [self.gather_cmp() + mk(f"s_cbranch_vccnz L_slow_gat{tv}\nL_back_gat{tv}:")]
        L += mk(f"""
s_mul_i32 {sT1}, {sW}, 1152
s_add_u32 {sT1}, {sT1}, {STATL}
v_lshl_add_u32 v44, {vL}, 2, {sT1}
v_and_b32 v45, 15, {vL}
v_lshl_add_u32 v45, v45, 2, {sT1}
v_add_u32 v46, 512, v45
""")
        W = mk(f"""
ds_write2_b32 v44, v{GAT}, v{GAT+1} offset0:0 offset1:144
ds_write2_b32 v44, v{GAT+4}, v{GAT+5} offset0:64 offset1:208
ds_write2_b32 v46, v{GAT+8}, v{GAT+9} offset0:0 offset1:144
""")
        if ty == 0:
            L += mk(f"v_add_u32 v47, 256, v45\nv_lshrrev_b32 v43, 4, {vL}\nv_lshl_add_u32 v43, v43, 4, {sT1}")
            for i in range(9):
                if i < 4: W += mk(f"ds_read2_b32 {V2(ST+2*i)}, v45 offset0:{16*i} offset1:{144+16*i}")
                else: W += mk(f"ds_read2_b32 {V2(ST+2*i)}, v47 offset0:{16*i-64} offset1:{80+16*i}")
        else:
            L += mk(f"""
s_lshr_b32 {sT2}, {sW}, 1
s_lshl_b32 {sT2}, {sT2}, 8
v_add_u32 v47, {sT2}, v45
v_subrev_u32 v48, {sT2}, v45
v_add_u32 v48, 256, v48
""")
            for i in range(8):
                W += mk(f"ds_read2_b32 {V2(ST+2*i)}, v{47 if i < 4 else 48} offset0:{16+16*(i%4)} offset1:{160+16*(i%4)}")
        return L + W

    def type_code(self, ty, ver=0):
        o = self.opt
        c = mk(f"L_t{ty}{ver}:")
        tv = f"{ty}{ver}"
        vm = list(self.vm0)
        def waitfor(tags):
            for t in tags: assert vm.count(t) >= {"w": 5, "x": 4}.get(t[0], 1) and all(q[1] != t for q in dq), (t, ty)
            idx = max([k for k, t in enumerate(vm) if t in tags], default=-1)
            return len(vm) - 1 - idx
        noted = []
        def note(L, tag):
            for i in flatten(L):
                if i.kind == "vmem": vm.append(tag); noted.append(i)
            return L
        need = lambda s: [("w", s), ("x", s // 2)]
        dq = []
        c += mk(f"s_waitcnt vmcnt({waitfor(need(0))}) lgkmcnt(0)\ns_barrier")
        defA, defB = self.deferred(ty)
        c += self.stamp(1)
        c += self.reads(ty, 0)
        stats = self.stats_compute()
        dq = self.dma_queue(ty)
        pfq = [(g, k) for g in o.pford.split(",") for k in range(self.PFG[g][2])]; pfn = 0
        if o.wide: pfq = pfq[:(16 >> o.wide) + 1]

        third = -(-len(stats) // 6) * 2
        SL = o.statstep; SC = o.sc
        cuts = [0] + o.cuts + [len(stats)]
        SN, SP, SG, SS = 1, SC + len(cuts) - 1, o.sg, o.ss
        for s in range(16):
            tags = need(s + 1) if s < 15 else []
            if s == SC: tags = tags + [("sl", 0)]
            if s == SP: tags = tags + [("non", 0)]
            if s == SS: tags = tags + [("gat", 0)]
            if s == 13: tags = tags + [("b2", 11)]
            if s == 14: tags = tags + [("b2", 12)]
            if s == 15: tags = tags + [("b2", 13)]
            c += mk((f"s_waitcnt vmcnt({waitfor(tags)}) lgkmcnt(0)" if tags else "s_waitcnt lgkmcnt(0)") + "\ns_barrier")
            if o.stamps and s in o.stst: c += self.stamp(2 + o.stst.index(s))
            rd = self.reads(ty, s + 1) if s < 15 else []
            other = []; atoms = []; prefix = []; slowv = []; mark = len(vm)
            if s == SN:
                slowv += note(mk(f"v_mov_b32 v{NON}, 0\nbuffer_load_dwordx2 {V2(NON)}, v{NON}, {sDBG}, 0 offen sc1"), ("non", 0))
            if s == SG: slowv += note(self.gather_load(), ("gat", 0))
            if s == SL: slowv += note(self.stats_load(), ("sl", 0))
            if s < o.wtouch and o.tfirst: slowv += note(self.wtouch(s % 3), ("wt", 0))
            for _ in range(int(o.xsched[s])):
                other += note(mk(f"s_add_u32 s81, s81, 128\ns_and_b32 s81, s81, 1023\nbuffer_load_dword a{226 + (s & 1)}, v50, {sX}, s81 offen"), ("xt", 0))
            k = 0
            while dq and dq[0][0] <= s and k < (o.quota0 if s == 0 else o.qs[s] - (ty if o.qb else 0) if o.qs else o.quota):
                _, tag, atom = dq.pop(0); atoms.append(note(atom, tag)); k += 1
            if s < o.wtouch and not o.tfirst: slowv += note(self.wtouch(s % 3), ("wt", 0))
            nb1 = 11 if ty == 0 else len(defB)
            blocks = {0: defA[:16], 1: defA[16:34], 7: defA[34:], 8: defB[:nb1], 9: defB[nb1:]}
            late = blocks.get(s, [])
            if s > 10:
                assert not dq or s <= 13
                d = self.b2_dma(s)
                if s == 15 and ty == 1 and o.bdefer:
                    self.defer_b = [d[k:k + 3] for k in range(len(d) - 3 * o.bdefer, len(d), 3)]; d = d[:len(d) - 3 * o.bdefer]
                note(d, ("b2", s)); atoms += [d[k:k + 3] for k in range(0, len(d), 3)]
            if not o.nopf and not (o.pfa and ty == 1):
                for _ in range(int(o.pfsched[s])):
                    if not pfq: break
                    g, k = pfq.pop(0); slowv += note(self.l2pf(g, k, pfn), ("pf", 0)); pfn += 1
            if o.ut0 and o.ut0 <= s < min(11, o.ut0 + (10 + o.utper - 1) // o.utper): other += note(self.utouch(ty, s - o.ut0, o.utper), ("ut", 0))
            if SC <= s < SP: other += stats[cuts[s - SC]: cuts[s - SC + 1]]
            if s == SP: slowv += note(self.publish(tv), ("pub", 0))
            if s == SS:
                ss = self.stats_stage(ty, tv)
                if "r" in o.ko: ss = [x for x in ss if isinstance(x, list) or not x.op.startswith("ds_read")]
                if "e" in o.ko: ss = [x for x in ss if isinstance(x, list) or not x.op.startswith("ds_write")]
                if "g" in o.ko: ss = [[ss[0][-1]]] + ss[1:]
                ssd = [x for x in ss if not isinstance(x, list) and x.kind == "ds"]
                ssv = [x for x in ss if isinstance(x, list) or x.kind != "ds"]
                prefix = ssv; rd = rd + ssd
            if s == 10 and ty == 0: other += self.selectors()
            other += late
            if s == 11: other += self.traddr([2, 3, 4, 5, 6, 49])
            if s >= 13: rd = rd + flatten(self.passthru([2, 3, 4, 5, 6, 49], {13: range(0, 6), 14: range(6, 12), 15: range(12, 20)}[s]))
            if s in (14, 15): atoms += note(self.round2(self.R2_14 if s == 14 else self.R2_15), ("b2", 20))
            if ty == 1 and s == 12 and o.bearly:
                for k, it in enumerate(self.round2(range(29, 36))[:o.bearly]):
                    it[-1] = I(it[-1].text.replace(A4(56 + 4 * k), V4(self.BE[k])))
                    atoms.append(note(it, ("b2", 21)))
            other = other + slowv if o.slowlast else slowv + other
            if o.even and s > o.afirst:
                A = [x for at in atoms for x in at]
                nA = len(atoms); merged = []; P = list(other); tot = len(A) + len(P)
                k = 0; pos = 0
                for j, at in enumerate(atoms):
                    tgt = int((j + o.evoff) * tot / nA) - len(at)
                    while P and pos < tgt: merged.append(P.pop(0)); pos += 1
                    merged += at; pos += len(at)
                other = prefix + merged + P
            else: other = prefix + [x for at in atoms for x in at] + other
            tagof = {}
            for x, t in zip(noted, vm[mark:]): tagof[id(x)] = t
            vm[mark:] = [tagof[id(x)] for x in flatten(other) if x.kind == "vmem"]
            del noted[:]
            mm = self.mfmas(ty, s)
            if o.nomfma: mm = [I("s_nop 0") for _ in mm]
            if o.noreads: rd = []
            no = len([i for i in flatten(other) if not i.is_label])
            room = 2 * (len(mm) - len(rd))
            ost = len(rd) if no <= room else max(0, len(rd) - (no - room))
            wv = weave(mm, rd, other, per_gap=2, shift=(o.shift if ver else 0), lds_span=(o.span if len(rd) <= o.span else 0), front=len([x for x in flatten(prefix) if not x.is_label]))
            if prefix:
                lastp = max(k for k, x in enumerate(wv) if any(x is y for y in flatten(prefix)))
                firstd = min(k for k, x in enumerate(wv) if any(x is y for y in ssd))
                assert lastp < firstd, (lastp, firstd)
            if o.align == 3:
                for i in wv: i.padok = False
            if 8 <= s <= 10:
                if "V" in o.ko: wv = [x for x in wv if x.kind != "vmem"]
                if "D" in o.ko: wv = [x for x in wv if x.kind != "ds"]
                if "O" in o.ko: wv = [x for x in wv if x.kind not in ("valu", "salu")]
                if "B" in o.ko: c = [x for k, x in enumerate(c) if not (x.op == "s_barrier" and k > len(c) - 12)]
            c += wv
        c += self.stamp(5)
        if o.probe >= 0:
            g, k = self.TILES[o.probe]
            c += mk(f"""
s_waitcnt vmcnt(0)
v_readfirstlane_b32 s64, {vB2}
v_and_b32 v4, 15, {vL}
v_lshrrev_b32 v5, 4, {vL}
v_lshlrev_b32 v5, 5, v5
v_add_u32 v4, v4, v5
v_lshlrev_b32 v4, 10, v4
v_add_u32 v4, s64, v4
s_add_u32 s65, {sWB[g]}, {16*k*1024}
""") + self.stamp(2, True) + mk(f"buffer_load_dword v5, v4, {sWO if g == 0 else sWD}, s65 offen\ns_waitcnt vmcnt(0)") + self.stamp(3, True)
        c += mk("s_waitcnt lgkmcnt(0)")
        if o.shift and ver == 0: c += mk(f"s_branch L_epi{ty}")
        self.loop_end = len(c)
        c += mk(f"L_epi{ty}:")
        c += self.epi_a() if ty == 0 else self.epi_b()
        if ty == 0: c += mk("s_branch L_join")
        self.loop_last = c[self.loop_end - 1]
        c = cap_vm(flatten(c), len(self.vm0), *((1000, 48) if "c" in o.ko else (60, 48)))
        slow = mk(f"""
L_slow_nonce{tv}:
{"s_or_b32 s99, s99, 1" if o.stamps else ""}
s_mov_b32 {sCnt}, 0
L_sn{tv}:
v_mov_b32 v{NON}, 0
buffer_load_dwordx2 {V2(NON)}, v{NON}, {sDBG}, 0 offen sc1
s_waitcnt vmcnt(0)
v_readfirstlane_b32 {sNonL}, v{NON}
v_readfirstlane_b32 {sNonH}, v{NON+1}
s_add_u32 {sCnt}, {sCnt}, 1
s_cmp_gt_u32 {sCnt}, 20000
s_cbranch_scc1 L_back_nonce{tv}
s_cmp_eq_u32 {sNonL}, 0
s_cbranch_scc1 L_sn{tv}
s_branch L_back_nonce{tv}
L_slow_gat{tv}:
{"s_or_b32 s99, s99, 2" if o.stamps else ""}
s_mov_b32 {sCnt}, 0
L_sg{tv}:
""") + self.gather_load() + mk("s_waitcnt vmcnt(0)") + self.gather_cmp() + mk(f"""
s_add_u32 {sCnt}, {sCnt}, 1
s_cmp_gt_u32 {sCnt}, 20000
s_cbranch_scc1 L_back_gat{tv}
s_cbranch_vccnz L_sg{tv}
s_branch L_back_gat{tv}
""")
        return c, slow

    def stg(self, u, blk): return 56 + 8 * (u - 29) + 4 * blk
    SL1 = [3, 4, 17, 18, 5, 6, 7, 8, 9, 13, 10, 11, 12, 0, 1, 2, 14, 15, 16]
    def slot(self, u): return self.SL1[u] if u < 19 else self.SL1[[0, 1, 4, 5, 6, 2, 3, 7, 8, 9][u - 19]] if u < 29 else self.SL1[10 + u - 29]
    def frag(self, i): return 112 + 8 * i if i < 14 else 8 * (i - 14)
    def round2(self, us):
        L = []
        for u in us:
            g, k = self.TILES[u]; srd = sWO if g == 0 else sWD
            for blk in range(2):
                t = self.b2off(g, k, blk).replace(sT0, "s61")
                if u < 29: L.append(mk(t + f"\ns_add_u32 m0, {sT3}, {self.slot(u)*8192 + blk*1024}\nbuffer_load_dwordx4 {vB2}, {srd}, s61 offen lds"))
                else: L.append(mk(t + f"\nbuffer_load_dwordx4 {A4(self.stg(u, blk))}, {vB2}, {srd}, s61 offen"))
        return L
    BE = [30, 34, 38, 88, 92]
    R2_14 = [19, 20, 24]; R2_15 = [25, 21, 22]; R2_E = [23, 26, 27, 28]
    TR = {0: [42, 58, 59, 16], 1: [88, 89, 90, 91]}
    def traddr(self, R):
        L = mk(f"""
s_and_b32 {sT1}, {sW}, 1
s_lshl_b32 {sT1}, {sT1}, 6
v_lshrrev_b32 v4, 5, {vL}
v_lshlrev_b32 v4, 10, v4
v_bfe_u32 v6, {vL}, 2, 2
v_lshl_add_u32 v4, v6, 7, v4
v_lshrrev_b32 v6, 1, v6
v_lshl_add_u32 v4, v6, 6, v4
v_bfe_u32 v6, {vL}, 4, 1
v_lshl_add_u32 v4, v6, 5, v4
v_and_b32 v6, 1, {vL}
v_lshl_add_u32 v4, v6, 4, v4
v_bfe_u32 v6, {vL}, 1, 1
v_lshl_add_u32 v4, v6, 3, v4
v_xor_b32 v4, {sT1}, v4
s_lshl_b32 {sT1}, {sT1}, 5
v_add_u32 v{R[0]}, {sT1}, v4
v_xor_b32 v{R[1]}, 64, v{R[0]}
""")
        for k in range(2, len(R)): L += mk(f"v_add_u32 v{R[k]}, {0x10000 * (k // 2)}, v{R[k & 1]}")
        return L
    def passthru(self, R, tiles):
        L = []
        for i in tiles:
            sg = 2 * self.slot(i // 2) + (i & 1)
            L += [[I(f"ds_read_b64_tr_b16 {A2(self.frag(i) + 4*cb + 2*e)}, v{R[2*(sg//16)+cb]} offset:{(sg%16)*4096+e*512}")] for cb in range(2) for e in range(2)]
        return L
    def sprinkle(self, code, items, start, stop):
        out = []; n = len(items); k = 0
        for idx, ins in enumerate(code):
            out.append(ins)
            while k < n and idx >= start and (idx - start + 1) * n >= (k + 1) * (stop - start):
                out += items[k]; k += 1
        for it in items[k:]: out += it
        return out
    NEG = "op_sel:[0,1,0] op_sel_hi:[1,1,1] neg_lo:[0,1,0] neg_hi:[0,1,0]"
    def gu(self, cs, g, u, stp, dst):
        NEG = self.NEG
        L = [f"v_pk_fma_f32 {V2(g+2*h)}, {V2(cs+2*h)}, {V2(stp)}, {V2(g+2*h)} {NEG}" for h in range(2)]
        L += [f"v_pk_fma_f32 {V2(u+2*h)}, {V2(cs+4+2*h)}, {V2(stp)}, {V2(u+2*h)} {NEG}" for h in range(2)]
        L += [f"v_pk_mul_f32 {V2(g+2*h)}, {V2(g+2*h)}, {V2(u+2*h)}" for h in range(2)]
        L += [f"v_cvt_pk_bf16_f32 v{dst+h}, v{g+2*h}, v{g+2*h+1}" for h in range(2)]
        return L
    def gu_unit(self, cs, g0, u0, g1, u1, st0, st1, vo, so):
        c = []
        for x, y in zip(self.gu(cs, g0, u0, st0, u0), self.gu(cs, g1, u1, st1, u0 + 2)): c += mk(x + "\n" + y)
        return c + self.unit_store(u0, vo, so)
    def unit_store(self, r, vo, so):
        if "n" in self.opt.ko: return []
        return mk(f"v_permlane16_swap_b32 v{r}, v{r+2}\nv_permlane16_swap_b32 v{r+1}, v{r+3}\nbuffer_store_dwordx4 {V4(r)}, v{vo}, {sWS}, {so} offen" + ("" if "p" in self.opt.ko else " sc1"))
    def csread(self, dst, k, n=4):
        return [I(f"v_accvgpr_read_b32 v{dst+r}, a{CSACC+4*k+r}") for r in range(n)]

    def epi_b(self):
        ST = self.ST; o = self.opt
        c = []
        for k in range(6): c += self.csread(8 + 4 * k if k < 2 else 36 + 4 * k, k)
        U = []
        for P in range(2):
            cs = 8 if P == 0 else 44
            for j in range(4):
                U.append(self.gu_unit(cs, bAcc(2*P, 2*j), bAcc(2*P+1, 2*j), bAcc(2*P, 2*j+1), bAcc(2*P+1, 2*j+1), ST+4*j, ST+4*j+2, VST+j, sU[P]))
        for j in range(2):
            U.append(self.gu_unit(52, bMix(0, 2*j), bMix(1, 2*j), bMix(0, 2*j+1), bMix(1, 2*j+1), ST+4*j, ST+4*j+2, VST+j, sU[2]))
        st = self.round2(range(29, 36))[o.bearly:] + getattr(self, "defer_b", []) + self.round2(self.R2_E); nb = o.nstage_b
        assert o.bearly % 2 == 0 or not o.rot
        ni = 0
        for j, u in enumerate(U):
            c += u
            if j >= o.bint0:
                for _ in range(o.bint):
                    if ni < 14 - o.bearly: c += st.pop(0); ni += 1
                    if j == len(U) - 1: nlast = o.bint
        tail_l = o.bint if (o.bint and len(U) - 1 >= o.bint0) else 0
        tail_l = len([1 for x in c[max(k for k, x in enumerate(c) if x.kind == "vmem" and x.data):] if x.kind == "vmem"]) - 1
        c += self.stamp(6)
        mv = [I(f"v_accvgpr_write_b32 a{56+4*k+r}, v{self.BE[k]+r}") for k in range(o.bearly) for r in range(4)]
        su = mk("s_waitcnt vmcnt(40)" if mv else "") + mv + self.flagaddr(sT2, 0) + self.polladdr() + self.p2setup()
        c += self.sprinkle(su, st[:nb], 0, len(su))
        if o.wgflag: c += mk(f"s_waitcnt vmcnt({nb + 2 + tail_l}) lgkmcnt(0)\ns_barrier") + self.flagstore(sT2, 8) + self.stamp(7) + mk(f"s_mov_b32 {sT2}, 0x8000000")
        else:
            c += mk(f"s_waitcnt vmcnt({nb + 2 + tail_l}) lgkmcnt(0)") + self.flagstore(sT2, 8) + self.stamp(7)
            c += mk(f"s_mov_b32 {sT2}, 0x8000000\ns_barrier")
        k = len(st) - o.pollahead
        for it in st[nb:k]: c += it
        c += self.poll_issue(0)
        for it in st[k:]: c += it
        c += mk(f"s_waitcnt vmcnt({o.pollahead})")
        return c

    SEL = 54
    def selectors(self):
        S = self.SEL
        L = mk(f"""
v_and_b32 v4, 15, {vL}
v_lshrrev_b32 v5, 4, {vL}
v_lshlrev_b32 v5, 2, v5
v_sub_u32 v4, v4, v5
v_and_b32 v5, 1, {vL}
v_sub_u32 v4, v4, v5
v_lshlrev_b32 v5, 4, v5
v_mov_b32 v6, 0x0c0c0c0c
""")
        for jj, pat in ((0, 0x0c0c0100), (1, 0x0c0c0302)):
            L += mk(f"v_mov_b32 v{S+jj}, {pat:#x}\nv_alignbit_b32 v{S+2+jj}, v{S+jj}, v{S+jj}, v5")
            L += mk(f"v_cmp_le_i32 vcc, {2*jj}, v4\nv_nop\nv_cndmask_b32 v{S+jj}, v{S+2+jj}, v6, vcc\nv_cndmask_b32 v{S+2+jj}, v6, v{S+2+jj}, vcc")
        return L

    def epi_a(self):
        o = self.opt
        ST = self.ST; NEG = self.NEG; SEL = self.SEL
        def inter(LL):
            out = []
            for step in range(max(len(l) for l in LL)):
                for l in LL:
                    if step < len(l): out += mk(l[step])
            return out
        c = []
        c += self.csread(8, 3) + self.csread(12, 4) + self.csread(44, 0)
        if not o.halo: c += self.csread(48, 1) + self.csread(52, 2, 1)
        vs = lambda i: 192 + 8 * (i % 4) if i < 8 else 78
        def vsread(i): return mk(f"ds_read_b128 {V4(vs(i))}, v43 offset:{64*i}\nds_read_b128 {V4(vs(i)+4)}, v43 offset:{576+64*i}")
        c += vsread(8)
        hst = []
        for j in range(4):
            gu = self.gu_unit(8, aG(2*j), aU(2*j), aG(2*j+1), aU(2*j+1), ST+2+4*j, ST+4+4*j, VST+j, sU[0])
            hst.append([gu.pop()])
            c += gu + vsread(j)
        c += self.stamp(6)
        c += mk("s_waitcnt lgkmcnt(0)\ns_barrier")
        if o.epistamps: c += self.stamp(2, True)
        head = c; c = []
        st = self.round2(self.R2_E) + self.round2(range(29, 36))
        if o.halo:
            c += [I(f"v_mov_b32_dpp v{48+r}, v{aK(0)+r} row_newbcast:0 row_mask:0xf bank_mask:0xf") for r in range(4)]
            c += mk(f"v_mov_b32 v52, v{aV(0)}\nv_mov_b32 v53, v{aV(0)}\ns_nop 0\nv_permlane16_swap_b32 v52, v53\nv_mov_b32 v53, v52\ns_nop 1\nv_permlane32_swap_b32 v52, v53")
        kp = lambda i: 8 + 2 * i if i < 4 else 18 + 2 * (i - 4) if i < 8 else 86
        def kfix(i):
            k = aK(i); stp = ST + 2 * i
            return [f"v_pk_fma_f32 {V2(k)}, {V2(48)}, {V2(stp)}, {V2(k)} {NEG}",
                    f"v_pk_fma_f32 {V2(k+2)}, {V2(50)}, {V2(stp)}, {V2(k+2)} {NEG}",
                    f"v_pk_mul_f32 {V2(k)}, {V2(k)}, {V2(stp)} op_sel_hi:[1,0]",
                    f"v_pk_mul_f32 {V2(k+2)}, {V2(k+2)}, {V2(stp)} op_sel_hi:[1,0]",
                    f"v_cvt_pk_bf16_f32 v{kp(i)}, v{k}, v{k+1}",
                    f"v_cvt_pk_bf16_f32 v{kp(i)+1}, v{k+2}, v{k+3}"]
        qp = lambda i: 120 + 2 * i
        def qfix(i):
            q = aQ(i); stp = ST + 2 * (i + 1)
            return [f"v_pk_fma_f32 {V2(q)}, {V2(44)}, {V2(stp)}, {V2(q)} {NEG}",
                    f"v_pk_fma_f32 {V2(q+2)}, {V2(46)}, {V2(stp)}, {V2(q+2)} {NEG}",
                    f"v_cvt_pk_bf16_f32 v{qp(i)}, v{q}, v{q+1}",
                    f"v_cvt_pk_bf16_f32 v{qp(i)+1}, v{q+2}, v{q+3}"]
        NEGV = "op_sel_hi:[1,0,1] neg_lo:[0,1,0] neg_hi:[0,1,0]"
        vp = lambda i: 136 + 2 * i
        def vfix(i):
            v = aV(i); s_ = vs(i)
            return [f"v_pk_fma_f32 {V2(v)}, {V2(s_+4)}, {V2(52)}, {V2(v)} {NEGV}",
                    f"v_pk_fma_f32 {V2(v+2)}, {V2(s_+6)}, {V2(52)}, {V2(v+2)} {NEGV}",
                    f"v_pk_mul_f32 {V2(v)}, {V2(v)}, {V2(s_)}",
                    f"v_pk_mul_f32 {V2(v+2)}, {V2(v+2)}, {V2(s_+2)}",
                    f"v_cvt_pk_bf16_f32 v{vp(i)}, v{v}, v{v+1}",
                    f"v_cvt_pk_bf16_f32 v{vp(i)+1}, v{v+2}, v{v+3}"]
        c += inter([kfix(i) for i in range(9)])
        c += mk("s_waitcnt lgkmcnt(0)")
        c += inter([vfix(i) for i in (0, 1, 2, 3, 8)])
        for i in range(4, 8): c += vsread(i)
        c += inter([qfix(i) for i in range(8)])
        c += mk("s_waitcnt lgkmcnt(0)")
        c += inter([vfix(i) for i in range(4, 8)])
        if o.aint:
            z = []
            for h in hst: z += [h] + st[:o.aint]; st = st[o.aint:]
            st = z + st
        else: st = st[:o.hpos] + hst + st[o.hpos:]
        n1 = o.nfirst_a
        head += self.sprinkle(c, st[:n1], 0, len(c))
        if o.epistamps: head += self.stamp(3, True) + self.stamp(4, True)
        c = []
        MK = "v_mfma_f32_16x16x16_bf16"
        sp = lambda i: 88 + 8 * i if i < 4 else 156 + 8 * (i - 4)
        sch = f2h(0.25 * 1.4426950408889634)
        def smf(i):
            bp = BIAS + 8 if i == 0 else BIAS
            return [f"{MK} {V4(sp(i))}, {V2(kp(i))}, {V2(qp(i))}, {V4(bp)}", f"{MK} {V4(sp(i)+4)}, {V2(kp(i+1))}, {V2(qp(i))}, {V4(BIAS+4)}"]
        def merge(i):
            s_ = sp(i)
            return [f"v_max3_f32 v{s_}, v{s_}, v{s_+1}, v{s_+4}", f"v_max3_f32 v{s_+2}, v{s_+2}, v{s_+3}, v{s_+6}",
                    f"v_max_f32 v{s_}, v{s_}, v{s_+5}", f"v_max_f32 v{s_+1}, v{s_+2}, v{s_+7}",
                    f"v_mul_f32 v{s_+4}, {sch}, v{ST+2*(i+1)}", f"v_max_f32 v{s_+2}, v{s_}, v{s_+1}"]
        for i in range(8):
            a = smf(i); b = merge(i - 3) if i >= 3 else []
            c += mk(a[0]) + mk("\n".join(b[:3])) + mk(a[1]) + mk("\n".join(b[3:]))
        c += inter([merge(i) for i in (5, 6, 7)])
        def cross(A, B, C, D):
            a, b, cc, d = (sp(x) + 2 for x in (A, B, C, D))
            return [f"v_permlane32_swap_b32 v{a}, v{b}", f"v_permlane32_swap_b32 v{cc}, v{d}",
                    f"v_max_f32 v{a}, v{a}, v{b}", f"v_max_f32 v{cc}, v{cc}, v{d}", "s_nop 0",
                    f"v_permlane16_swap_b32 v{a}, v{cc}", f"v_max_f32 v{a}, v{a}, v{cc}", f"v_mov_b32 v{cc}, v{a}", "s_nop 0",
                    f"v_permlane16_swap_b32 v{a}, v{cc}", f"v_mov_b32 v{b}, v{a}", f"v_mov_b32 v{d}, v{cc}",
                    f"v_permlane32_swap_b32 v{a}, v{b}", f"v_permlane32_swap_b32 v{cc}, v{d}"]
        c += [x for x in inter([cross(0, 1, 2, 3), cross(4, 5, 6, 7)]) if x.op != "s_nop"]
        O = lambda i: 192 + 4 * i
        oq = lambda i: 120 + 4 * (i // 2) + 2 * (i % 2)
        def expo(i):
            s_ = sp(i)
            return [f"v_mul_f32_e64 v{s_+5}, -v{s_+2}, v{s_+4}",
                    f"v_fma_f32 v{s_}, v{s_}, v{s_+4}, v{s_+5}", f"v_fma_f32 v{s_+1}, v{s_+1}, v{s_+4}, v{s_+5}",
                    f"v_exp_f32 v{s_}, v{s_}", f"v_exp_f32 v{s_+1}, v{s_+1}",
                    f"v_cvt_pk_bf16_f32 v{s_+2}, v{s_}, v{s_+1}"] + [f"v_perm_b32 v{s_+4+k}, 0, v{s_+2}, v{SEL+k}" for k in range(4)]
        def pv(i): return [f"{M16} {V4(sp(i))}, {A4(ONES)}, {V4(sp(i)+4)}, 0", f"{M16} {V4(O(i))}, {V4(vp(i))}, {V4(sp(i)+4)}, 0"]
        def fin(i):
            d = oq(i)
            return [f"v_rcp_f32 v{sp(i)}, v{sp(i)}"] + [f"v_mul_f32 v{O(i)+r}, v{O(i)+r}, v{sp(i)}" for r in range(4)] + \
                   [f"v_cvt_pk_bf16_f32 v{d}, v{O(i)}, v{O(i)+1}", f"v_cvt_pk_bf16_f32 v{d+1}, v{O(i)+2}, v{O(i)+3}"]
        E = [inter([expo(2 * p), expo(2 * p + 1)]) for p in range(4)]
        F = [inter([fin(2 * p), fin(2 * p + 1)]) for p in range(4)]
        P = [mk("\n".join(pv(2 * p) + pv(2 * p + 1))) for p in range(4)]
        def mix(valu, mf, first=2, every=3):
            out = []; mf = list(mf)
            for k, x in enumerate(valu):
                if mf and k >= first and (k - first) % every == 0: out.append(mf.pop(0))
                out.append(x)
            return out + mf
        def swp(r): return mk(f"v_permlane16_swap_b32 v{r}, v{r+2}\nv_permlane16_swap_b32 v{r+1}, v{r+3}")
        if o.anew:
            pre = c
            ost = lambda j: [I(f"buffer_store_dwordx4 {V4(120+4*j)}, v{8+j}, {sWS}, {sU[1]} offen sc1")] if j < o.oearly else []
            c = E[0] + mix(E[1], P[0]) + mix(E[2], P[1]) + F[0] + swp(120) + ost(0)
            c += mix(E[3], P[2]) + mix(F[1], P[3]) + swp(124) + ost(1) + F[2] + swp(128) + ost(2) + F[3] + swp(132)
            vst = [I(f"v_mov_b32 v{8+j}, v{VST+j}") for j in range(4)]
            su = vst + self.polladdr() + self.p2setup() + self.flagaddr(sT2, 0 if o.hflag2 == 1 else 128)
            k = len(st) - o.pollahead
            n2 = min(k, n1 + o.nstage_a)
            pre = self.sprinkle(pre, st[n1:n2], 0, len(pre))
            items = [[x] for x in su]
            c = self.sprinkle(c, items, 0, int(len(c) * 0.6))
            late = st[n2:k] + [self.poll_issue(0)] + st[k:]
            c = self.sprinkle(c, late, int(len(c) * o.latefrom), int(len(c) * o.lateto) - o.pollpos)
            nx = len([1 for x in c[[i for i, x in enumerate(c) if x.text == late[k - n2][0].text][0] + 1:] if x.kind == "vmem"])
            if o.hflag2 == 2:
                hp = head + pre
                ny = len([1 for x in hp[max(k for k, x in enumerate(hp) if x.kind == "vmem" and x.data) + 1:] if x.kind == "vmem"])
                pre = pre + self.flagaddr("s64", 256) + mk(f"s_waitcnt vmcnt({ny})" + ("\ns_barrier" if o.wgflag else "")) + self.flagstore("s64", 12)
            c = head + pre + c
            c += self.stamp(7)
            c += [I(f"buffer_store_dwordx4 {V4(120+4*j)}, v{8+j}, {sWS}, {sU[1]} offen sc1") for j in range(o.oearly, 4)]
            c += mk(f"s_waitcnt vmcnt({nx + 4 - o.oearly})")
            if o.hflag2 == 1: c += self.flagstore(sT2, 12) + mk(f"s_add_u32 {sT2}, {sT2}, 128")
            return c
        c += E[0] + mix(E[1], P[0]) + mix(E[2], P[1]) + F[0] + swp(120)
        c += mix(E[3], P[2]) + mix(F[1], P[3]) + swp(124) + F[2] + swp(128) + F[3] + swp(132)
        na = min(n1 + o.nstage_a, len(st) - o.pollahead)
        c = head + self.sprinkle(c, st[n1:na], 0, len(c))
        c += self.stamp(7)
        c += [I(f"buffer_store_dwordx4 {V4(120+4*j)}, v{VST+j}, {sWS}, {sU[1]} offen sc1") for j in range(4)] if o.ofirst else []
        su = self.polladdr() + self.p2setup() + self.flagaddr(sT2, 0 if o.hflag2 else 128)
        k = len(st) - o.pollahead
        vst = [I(f"v_mov_b32 v{8+j}, v{VST+j}") for j in range(4)]
        c += vst + self.sprinkle(su, st[na:k], 0, len(su))
        c += self.poll_issue(0)
        for it in st[k:]: c += it
        if not o.ofirst: c += [I(f"buffer_store_dwordx4 {V4(120+4*j)}, v{8+j}, {sWS}, {sU[1]} offen sc1") for j in range(4)]
        c += mk(f"s_waitcnt vmcnt({o.pollahead + (0 if o.ofirst else 4)})")
        if o.hflag2: c += self.flagstore(sT2, 12) + mk(f"s_add_u32 {sT2}, {sT2}, 128")
        return c

    POLL = 58
    def polladdr(self):
        return mk(f"""
s_lshr_b32 s81, {sR}, 1
s_lshl_b32 s81, s81, 1
s_and_b32 {sT1}, {sW}, 1
s_add_u32 s81, s81, {sT1}
s_lshl_b32 s81, s81, 10
s_add_u32 s81, s81, {WS_FLAG}
v_and_b32 v16, 15, {vL}
v_lshlrev_b32 v16, 3, v16
v_bfe_u32 v{self.POLL}, {vL}, 4, 1
v_lshl_add_u32 v16, v{self.POLL}, 9, v16
""")
    def poll_issue(self, off, reg=None):
        return mk(f"buffer_load_dwordx2 {V2(reg or self.POLL)}, v16, {sWS}, s81 offen offset:{off} sc1")
    PT = 18; PW = 24; PX = 27; PY = 29; VXO = 34; XR = 36
    def p2setup(self):
        PT, PW, PX, PY, VXO, XR = self.PT, self.PW, self.PX, self.PY, self.VXO, self.XR
        c = mk(f"""
s_lshl_b32 {sT0}, {sR}, 1
s_lshr_b32 {sT1}, {sW}, 1
s_add_u32 {sT0}, {sT0}, {sT1}
s_lshl_b32 s59, {sT0}, 5
s_mul_i32 {sT0}, {sT0}, {RBS}
s_and_b32 {sT1}, {sW}, 1
s_lshl_b32 {sB[0]}, {sT1}, 14
s_add_u32 {sB[0]}, {sB[0]}, {sT0}
s_add_u32 {sB[1]}, {sB[0]}, {32*1024}
s_lshl_b32 {sB[2]}, {sT1}, 15
s_add_u32 {sB[2]}, {sB[2]}, {sT0}
s_add_u32 {sB[2]}, {sB[2]}, {64*1024}
s_lshl_b32 {sB[3]}, {sT1}, 13
s_add_u32 {sB[3]}, {sB[3]}, {sT0}
s_add_u32 {sB[3]}, {sB[3]}, {128*1024}
v_lshlrev_b32 v2, 4, {vL}
v_lshrrev_b32 v4, 2, {vL}
v_add_u32 v6, s59, v4
v_and_b32 v5, 3, {vL}
v_lshlrev_b32 v3, 4, v5
v_lshl_add_u32 v6, v6, 10, v3
s_lshl_b32 {sT0}, {sC}, 7
s_lshl_b32 {sT1}, {sT1}, 6
s_add_u32 {sT0}, {sT0}, {sT1}
v_add_u32 v{VXO}, {sT0}, v6
v_add_u32 v{VXO+1}, 0x4000, v{VXO}
buffer_load_dwordx4 {V4(XR)}, v{VXO}, {sX}, 0 offen
buffer_load_dwordx4 {V4(XR+4)}, v{VXO+1}, {sX}, 0 offen
v_and_b32 v6, 31, {vL}
v_add_u32 v3, s59, v6
v_lshlrev_b32 v33, 4, v3
v_add_u32 v{PW}, {sT3}, v2
v_add_u32 v{PW+1}, 0x10000, v{PW}
v_add_u32 v{PW+2}, 0x20000, v{PW}
v_xor_b32 v{PX}, 0x800, v{PW}
; output transpose (private 2KB at 131072 + w*2048): write s*64 + ((2jj+hi)^((s>>1)&3))*16 ; read row*64 + (q^((row>>1)&3))*16
v_lshrrev_b32 v3, 5, {vL}
v_bfe_u32 v{PY}, {vL}, 1, 2
v_xor_b32 v3, v3, v{PY}
v_lshlrev_b32 v3, 4, v3
v_lshl_add_u32 v3, v6, 6, v3
s_add_u32 {sT0}, {sT3}, {7*8192}
v_add_u32 v{PY}, {sT0}, v3
v_xor_b32 v{PY+1}, 32, v{PY}
v_bfe_u32 v3, {vL}, 3, 2
v_xor_b32 v3, v3, v5
v_lshlrev_b32 v3, 4, v3
v_lshl_add_u32 v3, v4, 6, v3
v_add_u32 v{PY+2}, {sT0}, v3
""")
        c += self.traddr([PT + k for k in range(6)])
        return c

    def phase2(self):
        o = self.opt
        BF = [112, 144]; SACC = 176; DACC = 64; ABUF = 144; DEPTH = o.depth
        PT, PW, PX, PY, VXO, XR, POLL = self.PT, self.PW, self.PX, self.PY, self.VXO, self.XR, self.POLL
        TILES = self.TILES
        c = mk("L_join:")
        c += self.stamp(8)
        if o.p1only:
            return c
        def bread(t):
            out = []
            if t < 5: return out
            for h in range(4):
                sg = 2 * self.slot((4 * t + h) // 2) + (h & 1)
                for cb in range(2):
                    for e in range(2):
                        out.append(I(f"ds_read_b64_tr_b16 {A2(BF[t&1]+8*h+4*cb+2*e)}, v{PT+2*(sg//16)+cb} offset:{(sg%16)*4096+e*512}"))
            return out
        c += mk(f"""
v_cmp_ne_u64 vcc, {sNon}, {V2(POLL)}
s_nop 0
s_and_b32 vcc_lo, vcc_lo, {0x1100 if o.split else 0x11001100 if o.wgflag else 0xff00ff00}
s_cbranch_scc1 L_slow_e
L_go:
""")
        PR = [POLL, 62, 64, 66]
        pe = mk(f"L_slow_e:\ns_mov_b32 {sCnt}, 0" + ("\ns_or_b32 s99, s99, 4" if o.stamps else ""))
        NP = o.npoll
        for k in range(NP - 1): pe += self.poll_issue(0, PR[k]) + mk("s_sleep 4")
        if NP == 1 and o.psleep: pe += mk(f"s_branch L_se\nL_se2:\ns_sleep {o.psleep}")
        pe += mk("L_se:")
        for k in range(NP):
            pe += self.poll_issue(0, PR[(k + NP - 1) % NP]) + mk(f"s_waitcnt vmcnt({NP - 1})\nv_cmp_ne_u64 vcc, {sNon}, {V2(PR[k])}\ns_nop 1\ns_and_b32 vcc_lo, vcc_lo, {0x1100 if o.split else 0x11001100 if o.wgflag else 0xff00ff00}\ns_cbranch_scc0 L_se_done")
        pe += mk(f"""
s_add_u32 {sCnt}, {sCnt}, 1
s_cmp_gt_u32 {sCnt}, 10000
s_cbranch_scc0 {"L_se2" if NP == 1 and o.psleep else "L_se"}
L_se_done:
s_branch L_go
""")
        for z in range(2 if o.hflag2 else 1):
            pe += mk(f"L_slow_o{z}:\ns_mov_b32 {sCnt}, 0" + ("\ns_or_b32 s99, s99, 8" if o.stamps else "") + f"\nL_so{z}:") + self.poll_issue(256 if (o.hflag2 and z == 0) else 128) + mk(f"""
s_add_u32 {sCnt}, {sCnt}, 1
s_waitcnt vmcnt(0)
v_cmp_ne_u64 vcc, {sNon}, {V2(POLL)}
s_and_b32 vcc_lo, vcc_lo, {0x110011 if o.wgflag else 0xff00ff}
s_cbranch_scc0 L_back_o{z}
s_cmp_gt_u32 {sCnt}, 20000
s_cbranch_scc0 L_so{z}
s_branch L_back_o{z}
""")
        if o.split:
            pe += mk(f"L_slow_q:\ns_mov_b32 {sCnt}, 0\nL_sq:") + self.poll_issue(0) + mk(f"""
s_add_u32 {sCnt}, {sCnt}, 1
s_waitcnt vmcnt(0)
v_cmp_ne_u64 vcc, {sNon}, {V2(POLL)}
s_and_b32 vcc_lo, vcc_lo, 0x11000000
s_cbranch_scc0 L_back_q
s_cmp_gt_u32 {sCnt}, 20000
s_cbranch_scc0 L_sq
s_branch L_back_q
""")
        self.slow2 = pe
        c += self.stamp(9) + self.stamp(10)
        vm = []
        def aload(t):
            r, k = TILES[2 * t]; b = ABUF + 16 * (t % DEPTH)
            vm.extend([("a", t)] * 4)
            t0 = f"s_add_u32 {sT0}, {sB[r]}, {k*1024}" if not o.rot else f"s_add_u32 {sT0}, s63, {k*1024}\ns_and_b32 {sT0}, {sT0}, {self.RSIZE[r]*1024 - 1}\ns_add_u32 {sT0}, {sT0}, {sB[r]}"
            return mk(t0) + [I(f"buffer_load_dwordx4 {V4(b+4*h)}, v2, {sWS}, {sT0} offen offset:{1024*h} sc1") for h in range(4)]
        def young(tag): return len(vm) - 1 - max(k for k, t in enumerate(vm) if t == tag)
        for t in range(o.burst): c += aload(t)
        c += mk(f"s_mov_b32 {sT1}, {WS_STAT}\nbuffer_load_dword v{XR+8}, v33, {sWS}, {sT1} offen sc1"); vm.append(("rs", 0))
        c += mk(f"s_waitcnt vmcnt({len(vm)})")
        c += (mk("s_barrier") if o.wgflag else []) + self.flagstore(sT2, 12); vm.append(("fl", 0))
        c += mk("" if o.wgflag else "s_barrier")
        c += bread(0)
        M32 = "v_mfma_f32_32x32x16_bf16"
        issued = o.burst; nwr = 0
        TP = 10 - o.burst - o.plead; TP2 = 14 - o.burst - o.plead
        xo = [24576, 25600, 32768, 33792]
        RX = ABUF + 16 * (12 % DEPTH)
        TM = ABUF + 16 * (13 % DEPTH)
        el = range(16)
        xun = []
        for k in range(8):
            xun += mk(f"v_lshlrev_b32 v{46+2*k}, 16, v{XR+k}\nv_and_b32 v{47+2*k}, 0xffff0000, v{XR+k}")
        pre_d = mk(f"v_mul_f32 v{XR+8}, v{XR+8}, v{XR+8}\nv_mul_f32 v{XR+9}, 0xbfb8aa3b, v{XR+8}\nv_mov_b32 v62, 1.0")
        def stage(k, e, pk):
            D, R, T = DACC + e, RX + e, TM + e
            if not pk:
                return [f"v_add_f32 v{D}, v{D}, v{R}", f"v_mul_f32 v{T}, v{XR+9}, v{D}", f"v_exp_f32 v{T}, v{T}", f"v_mul_f32 v{D}, v{XR+8}, v{D}",
                        f"v_add_f32 v{T}, 1.0, v{T}", f"v_rcp_f32 v{T}, v{T}", f"v_mul_f32 v{D}, v{D}, v{T}"][k]
            return [f"v_pk_add_f32 {V2(D)}, {V2(D)}, {V2(R)}", f"v_pk_mul_f32 {V2(T)}, {V2(D)}, {V2(XR+8)} op_sel:[0,1] op_sel_hi:[1,1]", None,
                    f"v_pk_mul_f32 {V2(D)}, {V2(D)}, {V2(XR+8)} op_sel_hi:[1,0]", f"v_pk_add_f32 {V2(T)}, {V2(T)}, {V2(62)} op_sel_hi:[1,0]", None,
                    f"v_pk_mul_f32 {V2(D)}, {V2(D)}, {V2(T)}"][k]
        todo = [(k, e) for k in range(7) for e in el]
        def take(n):
            out = [I(stage(k, e, False)) for k, e in todo[:n]]; del todo[:n]
            return out
        def rest_packed():
            out = []
            while todo:
                k, e = todo.pop(0)
                if e % 2 == 0 and todo and todo[0] == (k, e + 1) and stage(k, e, True): todo.pop(0); out.append(I(stage(k, e, True)))
                else: out.append(I(stage(k, e, False)))
            return out
        BARS = [9, 13, 15]
        for t in range(18):
            b = ABUF + 16 * (t % DEPTH)
            bar = t in BARS
            c += mk(f"s_waitcnt vmcnt({young(('a', t))}) lgkmcnt({0 if (bar or t == 16) else nwr})" + ("\ns_barrier" if bar else ""))
            if o.p2stamps and t in (0, 4, 9, 14, 16, 17): c += self.stamp({0: 2, 4: 3, 9: 4, 14: 5, 16: 6, 17: 7}[t], True)
            mm = []
            for h in range(4):
                for cb in range(2):
                    k = 16 * cb
                    d = f"v[{96+k}:{96+k+15}]" if t >= 14 else f"v[{DACC+k}:{DACC+k+15}]"
                    cc = "0" if (t in (0, 14) and h == 0) else d
                    mm.append(I(f"{M32} {d}, {A4((self.frag(4*t+h) if t < 5 else BF[t&1]+8*h)+4*cb)}, {V4(b+4*h)}, {cc}"))
            lds = bread(t + 1) if t < 17 else []
            wr = []
            if True:
                for k in {9: range(0, 4), 10: range(4, 8), 11: range(8, 11), 12: range(11, 14)}.get(t, []):
                    u = 29 + k // 2; blk = k & 1; sg = self.slot(u)
                    wr.append(I(f"ds_write_b128 v{PW+sg//8}, {A4(self.stg(u, blk))} offset:{(sg%8)*8192+blk*1024}"))
            if t == 14:
                wr += [I(f"ds_write_b128 v{PW}, {V4(DACC+16+4*p)} offset:{xo[p]}") for p in range(4)]
            if t == 15:
                lds = [I(f"ds_read_b128 {V4(RX+4*p)}, v{PX} offset:{xo[p]}") for p in range(4)] + lds
            if t == 14: wr += pre_d
            if t == 15: wr += xun
            if t >= 16: wr = take(o.dsh[t - 16])
            ld = []
            if False:
                ld += self.flagstore(sT2, 12); vm.append(("fl", 0))
            if o.split and t == 4 - o.burst - o.split: ld += self.poll_issue(0, 62); vm.append(("po", 2))
            if t == TP: ld += self.poll_issue(256 if o.hflag2 else 128); vm.append(("po", 0))
            if t == TP2 and o.hflag2: ld += self.poll_issue(128, 60); vm.append(("po", 1))
            if issued < 18 and issued - DEPTH < t:
                if o.split and issued == 4:
                    ld.append(mk(f"s_waitcnt vmcnt({young(('po', 2))})\nv_cmp_ne_u64 vcc, {sNon}, {V2(62)}\ns_nop 0\ns_and_b32 vcc_lo, vcc_lo, 0x11000000\ns_cbranch_scc1 L_slow_q\nL_back_q:"))
                if issued in ((10, 14) if o.hflag2 else (10,)):
                    z = int(issued == 14)
                    ld.append(mk(f"s_waitcnt vmcnt({young(('po', z))})\nv_cmp_ne_u64 vcc, {sNon}, {V2(60 if z else POLL)}\ns_nop 0\ns_and_b32 vcc_lo, vcc_lo, {0x110011 if o.wgflag else 0xff00ff}\ns_cbranch_scc1 L_slow_o{z}\nL_back_o{z}:"))
                ld += aload(issued); issued += 1
            seq = []
            while ld or wr:
                if ld: seq.append(ld.pop(0))
                if wr: seq.append(wr.pop(0))
            if "m" in o.p2: mm = [I("s_nop 0") for _ in mm]
            if "r" in o.p2: lds = [x for x in lds if "tr" not in x.op]
            if "h" in o.p2: lds = [x for k, x in enumerate(lds) if "tr" not in x.op or k % 2 == 0]
            if "b" in o.p2: lds = [I(x.text.replace("ds_read_b64_tr_b16", "ds_read_b64")) for x in lds]
            if "w" in o.p2: seq = [x for x in seq if isinstance(x, list) or not x.op.startswith("ds_write")]
            wv = weave(mm, lds, seq, per_gap=(6 if t >= 16 else o.p2gap), lds_per_gap=o.p2lds, oth_start=(2 if t == 14 else 0))
            dsl = [x for x in wv if x.kind == "ds"]
            last = max([k for k, x in enumerate(dsl) if x.op.startswith("ds_read")], default=-1)
            nwr = len(dsl) - 1 - last
            if o.align == 3:
                for i in wv: i.padok = False
            c += wv
        c += self.stamp(11)
        dval = rest_packed()
        lead = min(8, len(dval))
        c += dval[:lead]; dval = dval[lead:]
        per = -(-len(dval) // 8)
        for p in range(4):
            c += mk(f"ds_write_b128 v{PW}, {V4(112+4*p)} offset:{16384+xo[p]}") + dval[:per]; dval = dval[per:]
        SV = 96
        c += mk("s_waitcnt lgkmcnt(0)\ns_barrier")
        c += [I(f"ds_read_b128 {V4(RX+4*p)}, v{PX} offset:{16384+xo[p]}") for p in range(4)]
        c += dval
        c += mk("s_waitcnt lgkmcnt(0)")
        c += [I(f"v_pk_add_f32 {V2(SV+2*e)}, {V2(SV+2*e)}, {V2(RX+2*e)}") for e in range(8)]
        c += [I(f"v_pk_mul_f32 {V2(SV+2*e)}, {V2(SV+2*e)}, {V2(DACC+2*e)}") for e in range(8)]
        c += [I(f"v_cvt_pk_bf16_f32 v{8+e}, v{SV+2*e}, v{SV+2*e+1}") for e in range(8)]
        c += mk(f"""
ds_write_b128 v{PY}, {V4(8)}
ds_write_b128 v{PY+1}, {V4(12)}
ds_read_b128 {V4(112)}, v{PY+2}
ds_read_b128 {V4(116)}, v{PY+2} offset:1024
""")
        for hh in range(2):
            c += mk(f"s_waitcnt lgkmcnt({1-hh})")
            for k in range(4):
                c += mk(f"v_lshlrev_b32 v{SV+8*hh+2*k}, 16, v{112+4*hh+k}\nv_and_b32 v{SV+8*hh+2*k+1}, 0xffff0000, v{112+4*hh+k}")
            for k in range(4): c += mk(f"v_pk_add_f32 {V2(SV+8*hh+2*k)}, {V2(SV+8*hh+2*k)}, {V2(46+8*hh+2*k)}")
            for k in range(4): c += mk(f"v_cvt_pk_bf16_f32 v{120+4*hh+k}, v{SV+8*hh+2*k}, v{SV+8*hh+2*k+1}")
            c += mk(f"buffer_store_dwordx4 {V4(120+4*hh)}, v{VXO+hh}, {sOUT}, 0 offen {o.outfl}")
        return c

    def finish(self):
        c = []
        if self.opt.amp:
            k, mult = self.opt.amp
            c += self.stamp(12)
            c += mk(f"""
s_waitcnt vmcnt(0)
s_cmp_lg_u32 s2, 77
s_cbranch_scc1 L_end
v_readlane_b32 s96, v7, {k}
s_sub_u32 s96, s96, s98
s_mul_i32 s96, s96, {mult}
s_min_u32 s96, s96, 100000
s_memrealtime s[100:101]
s_waitcnt lgkmcnt(0)
s_add_u32 s96, s96, s100
L_amp:
s_memrealtime s[100:101]
s_waitcnt lgkmcnt(0)
s_sub_u32 s97, s96, s100
s_cmp_gt_i32 s97, 0
s_cbranch_scc1 L_amp
L_end:
s_endpgm
""")
            return c
        if self.opt.stamps:
            c += self.stamp(12)
            c += mk(f"""
s_waitcnt vmcnt(0)
s_memrealtime s[96:97]
s_waitcnt lgkmcnt(0)
v_writelane_b32 v7, s96, 13
v_writelane_b32 v7, s98, 0
v_writelane_b32 v7, {sTyp}, 14
v_writelane_b32 v7, s99, 15
s_add_u32 s{bWS}, s66, {STAMP}
s_addc_u32 s{bWS+1}, s67, 0
s_mov_b32 s{bWS+2}, 0x100000
s_lshl_b32 {sT0}, s2, 2
s_add_u32 {sT0}, {sT0}, {sW}
s_lshl_b32 {sT0}, {sT0}, 7
v_lshlrev_b32 v4, 2, {vL}
s_mov_b64 exec, 0xffffffff
buffer_store_dword v7, v4, {sWS}, {sT0} offen
""")
        c += mk("L_end:\ns_endpgm")
        return c

    def build(self):
        pro = self.prologue()
        nv = 2 if self.opt.shift else 1
        parts = {}
        for t in range(2):
            for v in range(nv):
                c, slow = self.type_code(t, v)
                k = [i for i, x in enumerate(c) if x is self.loop_last][0] + 1
                parts[t, v] = (c[:k], c[k:], slow)
        p2 = self.phase2()
        fin = self.finish()
        tot = 0
        for (t, v), (lp, ep, slow) in parts.items():
            ep = parts[t, nv - 1][1]
            tot += fix_hazards(pro + lp + ep + p2 + fin, self.opt.verbose)
        for (t, v), (lp, ep, slow) in parts.items():
            fix_hazards(slow, self.opt.verbose)
            e, mx = check_waits(pro + lp + parts[t, nv - 1][1] + p2 + fin, f"t{t}{v}")
            print(f"type {t} ver {v}: wait errors {e}, max vm outstanding {mx}", file=sys.stderr)
        print(f"inserted nop states: {tot}", file=sys.stderr)
        slow2 = getattr(self, "slow2", [])
        fix_hazards(slow2)
        code = list(pro)
        for t in range(2):
            for v in range(nv): code += parts[t, v][0]
            code += parts[t, nv - 1][1]
        code += p2 + fin
        for k in parts: code += parts[k][2]
        code += slow2
        L = KN + "_kernel"
        if self.opt.align:
            wrap = lambda t: f'.amdgcn_target "amdgcn-amd-amdhsa--gfx950"\n.text\n.p2align 8\n{t}L_codeend:\n'
            print("align (promoted, padded):", align8(code, wrap, self.opt.align > 1), file=sys.stderr)
        hdr = open("cdna_kernels/" + KN + ".s.ref").read().split("; Override launch")[0] if self.opt.final else ""
        out = hdr + f"; @launch grid=(256,1,1) block=(256,1,1) lds={LDS_BYTES}\n"
        out += f'.amdgcn_target "amdgcn-amd-amdhsa--gfx950"\n.text\n.globl {L}\n.p2align 8\n.type {L},@function\n{L}:\n'
        out += text(code)
        out += "s_endpgm\n.p2align 6\nL_codeend:\n"
        out += f""".section .rodata,"a"
.p2align 6
.amdhsa_kernel {L}
  .amdhsa_next_free_vgpr 512
  .amdhsa_next_free_sgpr 102
  .amdhsa_accum_offset 256
  .amdhsa_group_segment_fixed_size 0
  .amdhsa_kernarg_size 80
  .amdhsa_user_sgpr_count 2
  .amdhsa_user_sgpr_kernarg_segment_ptr 1
  .amdhsa_system_sgpr_workgroup_id_x 1
  .amdhsa_float_denorm_mode_32 3
.end_amdhsa_kernel
"""
        return out

if __name__ == "__main__":
    ap = argparse.ArgumentParser()
    ap.add_argument("-o", default="k.s")
    for f in ("stamps", "p1only", "verbose", "final", "nomfma", "noreads", "nocs", "nopf", "epistamps", "prostamps", "p2stamps"): ap.add_argument("--" + f, action="store_true")
    ap.add_argument("--p2", default="")
    ap.add_argument("--p2gap", type=int, default=4)
    ap.add_argument("--burst", type=int, default=3)
    ap.add_argument("--ramp", type=int, default=2)
    ap.add_argument("--nstage_b", type=int, default=0)
    ap.add_argument("--depth", type=int, default=7)
    ap.add_argument("--pf0", type=int, default=2)
    ap.add_argument("--tlb", type=int, default=0)
    ap.add_argument("--kgroups", type=int, default=4)
    ap.add_argument("--quota", type=int, default=10)
    ap.add_argument("--ko", default="")
    ap.add_argument("--tearly", type=int, default=0)
    ap.add_argument("--nlines", type=int, default=300)
    ap.add_argument("--cl", type=int, default=3)
    ap.add_argument("--shares", default="33116011")
    ap.add_argument("--skip37", type=int, default=0)
    ap.add_argument("--cflip", type=int, default=0)
    ap.add_argument("--rotadd", type=int, default=0)
    ap.add_argument("--wide", type=int, default=0)
    ap.add_argument("--split", type=int, default=0)
    ap.add_argument("--gord", type=lambda x: [int(c) for c in x], default=[0, 1, 2, 3, 4])
    ap.add_argument("--xmix", type=int, default=0)
    ap.add_argument("--slowlast", type=int, default=0)
    ap.add_argument("--afirst", type=int, default=0)
    ap.add_argument("--even", type=int, default=1)
    ap.add_argument("--evoff", type=float, default=0.5)
    ap.add_argument("--span", type=int, default=0)
    ap.add_argument("--mixrd", type=int, default=0)
    ap.add_argument("--shift", type=int, default=0)
    ap.add_argument("--verbit", type=int, default=0)
    ap.add_argument("--wgflag", type=int, default=1)
    ap.add_argument("--oearly", type=int, default=1)
    ap.add_argument("--lateto", type=float, default=0.8)
    ap.add_argument("--anew", type=int, default=1)
    ap.add_argument("--bdefer", type=int, default=12)
    ap.add_argument("--bint", type=int, default=0)
    ap.add_argument("--bint0", type=int, default=0)
    ap.add_argument("--aint", type=int, default=2)
    ap.add_argument("--qs", type=lambda x: [int(ch, 16) for ch in x], default=[int(ch, 16) for ch in "0aaaaaaaaaaa0000"])
    ap.add_argument("--qb", type=int, default=0)
    ap.add_argument("--sg", type=int, default=10)
    ap.add_argument("--ss", type=int, default=12)
    ap.add_argument("--sc", type=int, default=2)
    ap.add_argument("--cuts", type=lambda x: [int(v) for v in x.split(",")], default=[36, 56, 86])
    ap.add_argument("--xsched", default="0000000000000000")
    ap.add_argument("--xfirst", type=int, default=3)
    ap.add_argument("--plead", type=int, default=2)
    ap.add_argument("--pfa", type=int, default=0)
    ap.add_argument("--bearly", type=int, default=4)
    ap.add_argument("--stst", type=lambda x: [int(v) for v in x.split(",")], default=[1, 5, 11])
    ap.add_argument("--ntxt", type=int, default=0)
    ap.add_argument("--xt0", type=int, default=0)
    ap.add_argument("--hflag2", type=int, default=0)
    ap.add_argument("--psleep", type=int, default=0)
    ap.add_argument("--dsh", type=lambda x: [int(v) for v in x.split(",")], default=[28, 40])
    ap.add_argument("--latefrom", type=float, default=0.1)
    ap.add_argument("--pord", default="t1Xt")
    ap.add_argument("--walk", type=int, default=0)
    ap.add_argument("--wskip", type=int, default=120)
    ap.add_argument("--hearly", type=int, default=1)
    ap.add_argument("--hpos", type=int, default=0)
    ap.add_argument("--nfirst_a", type=int, default=12)
    ap.add_argument("--bsplit", type=int, default=4)
    ap.add_argument("--bpt", type=int, default=64)
    ap.add_argument("--nstage_a", type=int, default=6)
    ap.add_argument("--pollahead", type=int, default=2)
    ap.add_argument("--ofirst", type=int, default=0)
    ap.add_argument("--olate", type=int, default=0)
    ap.add_argument("--npoll", type=int, default=2)
    ap.add_argument("--rotc", type=int, default=0)
    ap.add_argument("--ut0", type=int, default=0)
    ap.add_argument("--utper", type=int, default=2)
    ap.add_argument("--utfl", default="")
    ap.add_argument("--rot", type=int, default=0)
    ap.add_argument("--probe", type=int, default=-1)
    ap.add_argument("--halo", type=int, default=1)
    ap.add_argument("--outfl", default="sc1")
    ap.add_argument("--protouch", type=int, default=2)
    ap.add_argument("--tfirst", type=int, default=1)
    ap.add_argument("--ntx", type=int, default=0)
    ap.add_argument("--ntw", type=int, default=0)
    ap.add_argument("--ntt", type=int, default=0)
    ap.add_argument("--late", type=int, default=0)
    ap.add_argument("--pford", default="h2,h3,h1,o")
    ap.add_argument("--hflag", type=float, default=0.5)
    ap.add_argument("--csplit", type=int, default=1)
    ap.add_argument("--quota0", type=int, default=11)
    ap.add_argument("--wtouch", type=int, default=2)
    ap.add_argument("--wfirst", type=int, default=1)
    ap.add_argument("--statlag", type=int, default=3)
    ap.add_argument("--rotmask", type=int, default=6)
    ap.add_argument("--pfsched", default="0011111111100000")
    ap.add_argument("--statstep", type=int, default=0)
    ap.add_argument("--pfrot", type=int, default=7)
    ap.add_argument("--amp", type=lambda x: tuple(int(v) for v in x.split(",")), default=None)
    ap.add_argument("--wsched", default="033333333333300000")
    ap.add_argument("--bars", default="1,3,5,7,9,11,13,15")
    ap.add_argument("--align", type=int, default=0)
    ap.add_argument("--proextra", type=int, default=1)
    ap.add_argument("--dshadow", type=int, default=60)
    ap.add_argument("--pollpos", type=int, default=5)
    ap.add_argument("--stsched", type=lambda x: [int(ch) for ch in x], default=[int(ch) for ch in "0000000000033334"])
    ap.add_argument("--p2lds", type=int, default=4)
    ap.add_argument("--pfslice", type=int, default=4096)
    opt = ap.parse_args()
    import subprocess, re, os
    for _ in range(2):
        open(opt.o, "w").write(G(opt).build())
        subprocess.check_call(["clang", "-x", "assembler", "-target", "amdgcn-amd-amdhsa", "-mcpu=gfx950", "-c", opt.o, "-o", opt.o + ".o"])
        t = subprocess.check_output(["llvm-objdump", "-t", opt.o + ".o"], text=True)
        sym = {m.group(2): int(m.group(1), 16) for m in re.finditer(r"^([0-9a-f]{16}) .* (L_\w+)$", t, re.M)}
        n = sym["L_codeend"] - sym["L_pc"]
        opt.nlines = n // 128; opt.cl = -(-opt.nlines // 128)
        pass
        opt.verbose = False
    os.remove(opt.o + ".o")
    print("code bytes", sym["L_codeend"], "pfslice", opt.pfslice, {k: v for k, v in sym.items() if k in ("L_pc", "L_t10", "L_join", "L_go", "L_end")}, file=sys.stderr)
```
